```python
import torch

def _softmax(x, axis=-1):
    return torch.softmax(x, dim=axis)
def _gelu(x):
    return torch.nn.functional.gelu(x, approximate="tanh")
def _silu(x):
    return torch.nn.functional.silu(x)
def _sigmoid(x):
    return torch.sigmoid(x)
def _layernorm(x, axis=-1, eps=1e-5):
    m = x.mean(dim=axis, keepdim=True)
    v = x.var(dim=axis, keepdim=True, unbiased=False)
    return (x - m) / torch.sqrt(v + eps)
def _scatter_add(tgt, idx, src, axis=0):
    return tgt.clone().index_add_(axis, idx, src)
def _segment_sum(src, seg, n):
    out = torch.zeros((n,) + src.shape[1:], dtype=src.dtype)
    return out.index_add_(0, seg, src)
def _pad(x, pw):
    flat = tuple(v for pair in reversed(pw) for v in pair)
    return torch.nn.functional.pad(x, flat)

kernel_name = 'parallel_sum__compressed_kv_cla__geglu_ffn__prompt'

def setup_inputs():

    _w = (lambda a: (lambda t: t.to(torch.bfloat16) if t.is_floating_point() else t)(torch.as_tensor(a)))
    def _A_setup():
        B, H, Sq, Sk, D, M = 1, 32, 2048, 2048, 128, 512
        Dc = 4 * D
        return {
            "x": _w((lambda *s: torch.randn(*s, dtype=torch.bfloat16) * 0.05)(B, Sq, M)),
            "c_kv": _w((lambda *s: torch.randn(*s, dtype=torch.bfloat16) * 1.6)(B, Sk, Dc)),
            "w_q": _w((lambda *s: torch.randn(*s, dtype=torch.bfloat16) * 0.8)(M, H, D) * (M ** -0.5)),
            "w_uk": _w((lambda *s: torch.randn(*s, dtype=torch.bfloat16) * 0.8)(Dc, H, D) * (Dc ** -0.5)),
            "w_uv": _w((lambda *s: torch.randn(*s, dtype=torch.bfloat16) * 1.6)(Dc, H, D) * (Dc ** -0.5)),
            "w_o": _w((lambda *s: torch.randn(*s, dtype=torch.bfloat16) * 1.6)(H, D, M) * ((H * D) ** -0.5)),
        }
    _A_in = _A_setup()

    def _B_setup():
        B, S, D, F = 1, 2048, 512, 1376
        return {
            "x": _w((lambda *s: torch.randn(*s, dtype=torch.bfloat16) * 0.05)(B, S, D)),
            "w_gate": _w((lambda *s: torch.randn(*s, dtype=torch.bfloat16) * 0.05)(D, F)),
            "w_up": _w((lambda *s: torch.randn(*s, dtype=torch.bfloat16) * 0.05)(D, F)),
            "w_down": _w((lambda *s: torch.randn(*s, dtype=torch.bfloat16) * 0.05)(F, D)),
        }
    _B_in = _B_setup()

    return {
        "A_x": _A_in["x"],
        "A_c_kv": _A_in["c_kv"],
        "A_w_q": _A_in["w_q"],
        "A_w_uk": _A_in["w_uk"],
        "A_w_uv": _A_in["w_uv"],
        "A_w_o": _A_in["w_o"],
        "B_x": _B_in["x"],
        "B_w_gate": _B_in["w_gate"],
        "B_w_up": _B_in["w_up"],
        "B_w_down": _B_in["w_down"],
    }

def reference(A_x, A_c_kv, A_w_q, A_w_uk, A_w_uv, A_w_o, B_x, B_w_gate, B_w_up, B_w_down):
    def _A_ref(x, c_kv, w_q, w_uk, w_uv, w_o):
        B, Sq, M = x.shape[0], x.shape[1], x.shape[2]
        Sk = c_kv.shape[1]
        H, D = w_q.shape[1], w_q.shape[2]
        q = torch.einsum("bqm,mhd->bhqd", x, w_q)
        k = torch.einsum("bkc,chd->bhkd", c_kv, w_uk)
        v = torch.einsum("bkc,chd->bhkd", c_kv, w_uv)
        scores = torch.einsum("bhqd,bhkd->bhqk", q, k) * (D ** -0.5)
        off = Sk - Sq
        qi = torch.arange(Sq)[:, None]
        kj = torch.arange(Sk)[None, :]
        cmask = kj <= (qi + off)
        scores = torch.where(cmask[None, None], scores, -1e9)
        p = _softmax(scores, axis=-1)
        ctx = torch.einsum("bhqk,bhkd->bhqd", p, v)
        return torch.einsum("bhqd,hdm->bqm", ctx, w_o)

    def _B_ref(x, w_gate, w_up, w_down):
        return (_gelu(x @ w_gate) * (x @ w_up)) @ w_down

    x = A_x
    xn = _layernorm(x, axis=-1)
    return x + _A_ref(xn, A_c_kv, A_w_q, A_w_uk, A_w_uv, A_w_o) + _B_ref(xn, B_w_gate, B_w_up, B_w_down)
```

```python
import re

TRANS = ("v_exp_f32", "v_log_f32", "v_rcp_f32", "v_rsq_f32", "v_sqrt_f32", "v_sin_f32", "v_cos_f32")
_REG = re.compile(r"^(-?)(abs\()?([vas])(\d+)\)?$")
_RNG = re.compile(r"^(-?)([vas])\[(\d+):(\d+)\]$")


def regs_of(op):
    op = op.strip()
    m = _REG.match(op)
    if m:
        return [m.group(3) + m.group(4)]
    m = _RNG.match(op)
    if m:
        return [m.group(2) + str(i) for i in range(int(m.group(3)), int(m.group(4)) + 1)]
    if op == "vcc":
        return ["vcc"]
    if op in ("m0", "exec"):
        return [op]
    return []


class Ins:
    __slots__ = ("text", "mn", "kind", "defs", "uses", "srcc", "srcab", "wide_store", "tag", "cost", "nwait", "dpp",
                 "sgpr_uses_vmem", "target")

    def __init__(self, text, tag=None):
        self.text = text
        self.tag = tag
        t = text.split(";")[0].strip()
        self.defs, self.uses, self.srcc, self.srcab = [], [], [], []
        self.wide_store = False
        self.nwait = 1
        self.dpp = False
        self.target = None
        if t.endswith(":"):
            self.mn, self.kind, self.cost, self.nwait = t, "label", 0, 0
            return
        if t.startswith(".") or not t:
            self.mn, self.kind, self.cost, self.nwait = t, "dir", 0, 0
            return
        parts = t.split(None, 1)
        mn = parts[0]
        self.mn = mn
        rest = parts[1] if len(parts) > 1 else ""
        ops = [o.strip() for o in rest.split(",")] if rest else []
        mods = ""
        if ops:
            sp = ops[-1].split(None, 1)
            ops[-1] = sp[0]
            mods = sp[1] if len(sp) > 1 else ""
        R = lambda i: regs_of(ops[i]) if i < len(ops) else []
        self.cost = 4
        if mn.startswith("v_mfma"):
            self.kind = "mfma"
            self.defs = R(0)
            self.srcab = R(1) + R(2)
            self.srcc = R(3)
            self.uses = self.srcab + self.srcc
            self.cost = 8
        elif mn.startswith("v_"):
            self.kind = "trans" if mn.startswith(TRANS) else "valu"
            if self.kind == "trans":
                self.cost = 8
            self.dpp = mn.endswith("_dpp")
            if mn.startswith("v_permlane"):
                self.defs = R(0) + R(1)
                self.uses = R(0) + R(1)
            elif mn.startswith(("v_add_co", "v_addc_co", "v_sub_co")):
                self.defs = R(0) + R(1)
                self.uses = sum((R(i) for i in range(2, len(ops))), [])
            else:
                self.defs = R(0)
                self.uses = sum((R(i) for i in range(1, len(ops))), [])
                if mn.startswith(("v_fmac", "v_writelane", "v_dot2c")) or self.dpp:
                    self.uses += R(0)
        elif mn.startswith("ds_read"):
            self.kind = "dsread"
            self.defs = R(0)
            self.uses = R(1)
        elif mn.startswith("ds_write"):
            self.kind = "dswrite"
            self.uses = sum((R(i) for i in range(len(ops))), [])
        elif mn.startswith("buffer_load"):
            if " lds" in " " + mods:
                self.kind = "dma"
                self.uses = sum((R(i) for i in range(len(ops))), []) + ["m0"]
            else:
                self.kind = "vload"
                self.defs = R(0)
                self.uses = sum((R(i) for i in range(1, len(ops))), [])
            self.cost = 8
        elif mn.startswith(("buffer_store", "buffer_atomic")):
            self.kind = "vstore"
            self.uses = sum((R(i) for i in range(len(ops))), [])
            self.wide_store = mn.endswith(("x3", "x4"))
            self.srcab = R(0)
            self.cost = 8
        elif mn in ("buffer_inv", "buffer_wbl2"):
            self.kind = "vstore"
        elif mn.startswith("s_load"):
            self.kind = "smem"
            self.defs = R(0)
            self.uses = R(1)
        elif mn in ("s_memtime", "s_memrealtime"):
            self.kind = "smem"
            self.defs = R(0)
        elif mn == "s_waitcnt":
            self.kind = "wait"
        elif mn == "s_nop":
            self.kind = "nop"
            self.nwait = int(ops[0]) + 1
            self.cost = 4 * self.nwait
        elif mn == "s_barrier":
            self.kind = "barrier"
        elif mn in ("s_branch",) or mn.startswith("s_cbranch"):
            self.kind = "branch"
            self.target = ops[0]
            if "vcc" in mn:
                self.uses = ["vcc"]
        elif mn == "s_endpgm":
            self.kind = "end"
        elif mn.startswith("s_"):
            self.kind = "salu"
            if mn.startswith(("s_cmp", "s_bitcmp", "s_setprio", "s_sleep")):
                self.uses = sum((R(i) for i in range(len(ops))), [])
            else:
                self.defs = R(0)
                self.uses = sum((R(i) for i in range(1, len(ops))), [])
                if mn.startswith(("s_bitset", "s_addk", "s_mulk")):
                    self.uses += R(0)
                if "saveexec" in mn:
                    self.defs = self.defs + ["exec"]
        else:
            raise ValueError("unknown instruction: " + text)

    def __repr__(self):
        return self.text


def I(text, tag=None):
    return Ins(text, tag)


VM_KINDS = ("vload", "vstore", "dma")
LG_KINDS = ("dsread", "dswrite")


class Scoreboard:
    def __init__(self):
        self.vm = []
        self.lg = []
        self.smem = False
        self.pend = {}

    def copy(self):
        s = Scoreboard()
        s.vm, s.lg, s.smem, s.pend = list(self.vm), list(self.lg), self.smem, dict(self.pend)
        return s

    def _need(self, op):
        if op.kind in VM_KINDS:
            if op in self.vm:
                return (len(self.vm) - 1 - self.vm.index(op), None)
        elif op.kind in LG_KINDS:
            if op in self.lg:
                return (None, len(self.lg) - 1 - self.lg.index(op))
        elif op.kind == "smem":
            if self.smem:
                return (None, 0)
        return (None, None)

    def wait(self, vmN, lgN):
        parts = []
        if vmN is not None and vmN < len(self.vm):
            vmN = min(vmN, 63)
            parts.append(f"vmcnt({vmN})")
            self.vm = self.vm[len(self.vm) - vmN:] if vmN else []
        if lgN is not None and (lgN < len(self.lg) or (lgN == 0 and self.smem)):
            if self.smem:
                lgN = 0
            lgN = min(lgN, 15)
            parts.append(f"lgkmcnt({lgN})")
            self.lg = self.lg[len(self.lg) - lgN:] if lgN else []
            if lgN == 0:
                self.smem = False
        if not parts:
            return None
        live = set(map(id, self.vm)) | set(map(id, self.lg))
        self.pend = {r: o for r, o in self.pend.items() if id(o) in live or (o.kind == "smem" and self.smem)}
        return I("s_waitcnt " + " ".join(parts))

    def wait_ops(self, ops, lg0=False):
        vmN = None
        lgN = 0 if lg0 else None
        for op in ops:
            a, b = self._need(op)
            if a is not None:
                vmN = a if vmN is None else min(vmN, a)
            if b is not None:
                lgN = b if lgN is None else min(lgN, b)
        return self.wait(vmN, lgN)

    def before(self, ins):
        ops = [self.pend[r] for r in ins.uses + ins.defs if r in self.pend]
        return self.wait_ops(ops) if ops else None

    def after(self, ins):
        if ins.kind in VM_KINDS:
            self.vm.append(ins)
        elif ins.kind in LG_KINDS:
            self.lg.append(ins)
        elif ins.kind == "smem":
            self.smem = True
        if ins.kind in ("vload", "dsread", "smem"):
            for r in ins.defs:
                self.pend[r] = ins
        if ins.kind == "wait":
            m = re.search(r"vmcnt\((\d+)\)", ins.text)
            n = re.search(r"lgkmcnt\((\d+)\)", ins.text)
            self.wait(int(m.group(1)) if m else None, int(n.group(1)) if n else None)


class Group:
    kind = "group"

    def __init__(self, instrs):
        self.instrs = instrs
        self.cost = sum(i.cost for i in instrs)


def flatten(seq):
    out = []
    for x in seq:
        if x.kind == "group":
            out += flatten(x.instrs)
        else:
            out.append(x)
    return out


class Need:
    kind = "need"
    cost = 4
    nwait = 0
    defs = uses = ()

    def __init__(self, ops, lg0=False):
        self.ops = ops
        self.lg0 = lg0

    def resolve(self):
        out = []
        for o in self.ops:
            o = o() if callable(o) else o
            out += o if isinstance(o, (list, tuple)) else [o]
        return out


def add_waits(seq, sb):
    out = []
    for ins in flatten(seq):
        if ins.kind == "need":
            w = sb.wait_ops(ins.resolve(), ins.lg0)
            if w:
                out.append(w)
            continue
        if ins.kind in ("label", "dir"):
            out.append(ins)
            continue
        w = sb.before(ins)
        if w:
            out.append(w)
        if ins.kind in VM_KINDS and len(sb.vm) >= 62:
            out.append(sb.wait(46, None))
        out.append(ins)
        sb.after(ins)
        if len(sb.vm) > 63:
            raise RuntimeError("more than 63 vm ops outstanding at " + ins.text)
    return out


def _isv(r):
    return r[0] in "va" and r != "vcc"


def _iss(r):
    return (r[0] == "s") or r == "vcc"


def hazard_dist(p, c):
    need = 0
    pk, ck = p.kind, c.kind
    pv = pk in ("valu", "trans")
    cv = ck in ("valu", "trans")
    D = set(p.defs)
    if pv:
        dv = {r for r in D if _isv(r)}
        ds = {r for r in D if _iss(r)}
        if dv:
            if ck == "mfma" and dv & set(c.uses):
                need = max(need, 2)
            if cv and dv & set(c.uses):
                if c.mn.startswith("v_permlane") or c.dpp:
                    need = max(need, 2)
                if c.mn.startswith(("v_readfirstlane", "v_readlane")):
                    need = max(need, 1)
                if pk == "trans" and ck != "trans":
                    need = max(need, 1)
                if pk == "trans" and ck == "trans":
                    need = max(need, 1)
        if ds:
            if cv and ds & set(c.uses):
                need = max(need, 4 if c.mn.startswith(("v_readlane", "v_writelane")) else 2)
            if ck in ("vload", "vstore", "dma") and ds & set(c.uses):
                need = max(need, 5)
            if ck in ("salu", "branch") and ds & set(c.uses):
                need = max(need, 1)
    if pk == "mfma":
        if ck == "mfma":
            if D & set(c.srcab):
                need = max(need, 8)
            ov = D & set(c.srcc)
            if ov and list(c.srcc) != list(p.defs):
                need = max(need, 6)
        elif cv or ck in ("vload", "vstore", "dma", "dsread", "dswrite"):
            if D & (set(c.uses) | set(c.defs)):
                need = max(need, 8)
        if cv and set(p.srcc) & set(c.defs):
            need = max(need, 3)
    if pk == "salu" and "m0" in D and (ck == "dma" or (cv and "m0" in c.uses)):
        need = max(need, 4 if cv else 1)
    if pk == "vstore" and p.wide_store and set(p.srcab) & set(c.defs):
        need = max(need, 2)
    return need


WINDOW = 10


def pad_hazards(seq, prev=()):
    hist = [x for x in prev if x.nwait]
    out = []
    for ins in seq:
        if ins.kind in ("label", "dir"):
            out.append(ins)
            continue
        dist = 0
        short = 0
        for p in reversed(hist[-WINDOW:]):
            n = hazard_dist(p, ins)
            if n > dist:
                short = max(short, n - dist)
            dist += p.nwait
            if dist >= WINDOW:
                break
        if short:
            nop = I(f"s_nop {short - 1}")
            out.append(nop)
            hist.append(nop)
        out.append(ins)
        hist.append(ins)
    return out


def check_hazards(prev, seq):
    a = [x for x in seq if x.kind not in ("label", "dir")][:WINDOW + 2]
    p = pad_hazards(a, prev)
    if len(p) != len(a):
        raise RuntimeError("hazard on edge into: " + " | ".join(x.text for x in p))


class Task:
    def __init__(self, name, instrs, lo, hi, prio=1, tight=False):
        self.name, self.instrs, self.lo, self.hi, self.prio, self.tight = name, instrs, lo, hi, prio, tight


def schedule(mf, tasks, budget=8, overflow_report=None):
    n = len(mf)
    load = [0] * (n + 1)
    slots = [[] for _ in range(n + 1)]
    for t in sorted(tasks, key=lambda t: t.prio):
        lo, hi = max(0, t.lo), min(n, t.hi)
        if hi < lo:
            raise RuntimeError(f"empty window for task {t.name}: {t.lo}..{t.hi}")
        k = len(t.instrs)
        cur = lo
        for i, ins in enumerate(t.instrs):
            if t.tight:
                tgt = cur
            else:
                tgt = lo + int(i * (hi - lo + 1) / max(k, 1))
            tgt = max(tgt, cur)
            g = None
            for cand in range(tgt, hi + 1):
                if load[cand] + ins.cost <= budget or load[cand] == 0:
                    g = cand
                    break
                if not t.tight and cand - tgt > max(2, (hi - lo + 1) // max(k, 1) + 2):
                    break
            if g is None:
                for cand in range(tgt, cur - 1, -1):
                    if load[cand] + ins.cost <= budget:
                        g = cand
                        break
            if g is None:
                best = min(range(cur, min(hi, tgt + 3) + 1), key=lambda c: (load[c], abs(c - tgt)))
                g = best
            load[g] += ins.cost
            slots[g].append((t.prio, ins))
            cur = g
    out = []
    for g in range(n + 1):
        out += [x[1] for x in slots[g]]
        if g < n:
            out.append(mf[g])
    if overflow_report is not None:
        overflow_report.append((sum(max(0, l - budget) for l in load), sum(load), n))
    return out


def render(seq):
    lines = []
    for ins in seq:
        if ins.kind == "label":
            lines.append(ins.text)
        elif ins.kind == "dir":
            lines.append(ins.text)
        else:
            lines.append("    " + ins.text)
    return "\n".join(lines) + "\n"
```

```python
import math
import struct
import sys

from asmir import (I, Ins, Group, Need, Task, Scoreboard, add_waits, pad_hazards, check_hazards, schedule, render,
                   flatten)

KNAME = "parallel_sum__compressed_kv_cla__geglu_ffn__prompt_kernel"


class Opt:
    stop = None
    stamps = False
    G = 4
    NS = 10
    LEAD = 6
    spin = 1 << 16
    prefetch = True
    budget = 8


def fbits(x):
    return "0x%08x" % struct.unpack("<I", struct.pack("<f", x))[0]


XN_OFF = 0
KF_OFF = 2 << 20
VF_OFF = 18 << 20
ZC_OFF = 34 << 20
ZH_OFF = 50 << 20
FL_OFF = 56 << 20
FL_XN, FL_KV, FL_H, FL_C = FL_OFF, FL_OFF + 1024, FL_OFF + 5120, FL_OFF + 6144
TS_OFF = 57 << 20
WS_SIZE = 64 << 20
OOB = 0x7FFFFF00

S_X, S_CKV, S_WQ, S_WUK, S_WUV, S_WO, S_WG, S_WU, S_WD, S_OUT, S_DBG, S_WS = range(4, 52, 4)
S_KV = S_WU
S_ZH = S_CKV
S_ZC = S_WQ
sWAVE, sH, sW, sB, sT0, sW2K, sTOKB, sKFB, sVFB = range(52, 61)
sXN = [61, 62, 63, 64]
sZH = [65, 66, 67, 68]
sZC = [69, 70, 71, 72]
sT1, sT2, sT3 = 73, 74, 75
sM0, sM1 = 76, 78
sEV = 80
sJ, sSOFF, sWR, sRD = 82, 83, 84, 85
sNM1 = [86, 87, 88, 89]
sNM2 = [90, 91, 92, 93]
sFXN, sFKV, sFH, sFC = 94, 95, 96, 97
sSPIN, sGBD, sPOLL = 98, 99, 100
sST = 101
TS = 2


def srd(b):
    return f"s[{b}:{b+3}]"


def vr(b, n=4):
    return f"v[{b}:{b+n-1}]" if n > 1 else f"v{b}"


def ar(b, n=4):
    return f"a[{b}:{b+n-1}]" if n > 1 else f"a{b}"


MF = "v_mfma_f32_16x16x32_bf16"


def mfma(d, a, b, c):
    return I(f"{MF} {d}, {a}, {b}, {c}")


ACC = [0, 64, 128]
WFB = [192, 200, 208]
PK = [216, 220, 224]
vG0, vG1, vGK = 228, 229, 230
vPOLL = 231
vRD = [232, 233, 234, 235]
vRD64 = [236, 237]
vRD32 = 238
vWO = [239, 240]
vGA = [241, 242]
vGB = [243, 244]
vTRD = [241, 242]
vL16 = [245, 246, 247, 248]
vONE = 249
vPO32 = 250
vPO8 = 251
vGBS = 252
vC0, vC1 = 253, 254
vLANE = 255
vTO = list(range(128, 136))
vLN = 136
NRING = 11
LNBUF = NRING * 8192
TOKB = 98304

aO = lambda db, q: (q * 8 + db) * 4
aS = lambda q, kb: 128 + (q * 2 + kb) * 4
aC = lambda q, kb: 160 + (q * 2 + kb) * 4
aP = lambda q: 192 + q * 4
aE = [208, 216, 224]
vOR, vOR2 = 232, 233
vARD = 234
vDM = [235, 236]
vT = [237, 238, 239, 240]
vHP = 241
gQ = lambda q, ds: ds * 16 + q * 4
gK = lambda kb, ds: 64 + (kb * 4 + ds) * 4
gV = lambda db: 96 + db * 4
gL = lambda q: 128 + q * 4
gONE = 144
TF = lambda tb, ks: (ks * 4 + tb) * 4


class Gen:
    def __init__(self, opt):
        self.o = opt
        self.out = []
        self.cold = []
        self.nlab = 0
        self.reports = []
        self.nstamp = 0

    def lab(self, p):
        self.nlab += 1
        return f"L_{p}_{self.nlab}"

    def stamp(self, vt=None):
        if not self.o.stamps:
            return []
        vt = vPOLL if vt is None else vt
        k = self.nstamp
        self.nstamp += 1
        return [Group([I(f"s_memtime s[{TS}:{TS+1}]"), I(f"s_memrealtime s[{sT2}:{sT2+1}]"),
                       I("s_waitcnt lgkmcnt(0)"), I("s_mov_b64 exec, 1"),
                       I(f"v_mov_b32 v{vt}, s{TS}"),
                       I(f"s_add_u32 s{TS}, s{sST}, {k*4}"),
                       I(f"buffer_store_dword v{vt}, v{vC0}, {srd(S_WS)}, s{TS} offen"),
                       I("s_nop 1"),
                       I(f"v_mov_b32 v{vt}, s{sT2}"),
                       I(f"buffer_store_dword v{vt}, v{vC0}, {srd(S_WS)}, s{TS} offen offset:64"),
                       I("s_nop 1"), I("s_mov_b64 exec, -1")])]

    def poll_check(self, vreg, srdb, voff, soff, val):
        slow, back = self.lab("spin"), self.lab("back")
        self.cold.append(f"""{slow}:
    s_mov_b32 s{sSPIN}, {self.o.spin}
{slow}_l:
    buffer_load_dword v{vreg}, v{voff}, {srd(srdb)}, {soff} offen sc1
    s_waitcnt vmcnt(0)
    v_cmp_ne_u32 vcc, {val}, v{vreg}
    s_nop 1
    s_cbranch_vccz {back}
    s_sub_u32 s{sSPIN}, s{sSPIN}, 1
    s_cmp_lg_u32 s{sSPIN}, 0
    s_cbranch_scc1 {slow}_l
    s_branch {back}
""")
        return Group([I(f"v_cmp_ne_u32 vcc, {val}, v{vreg}"), I(f"s_cbranch_vccnz {slow}"), I(f"{back}:")])

    def poll_load(self, vreg, srdb, voff, soff):
        return I(f"buffer_load_dword v{vreg}, v{voff}, {srd(srdb)}, {soff} offen sc1")

    def setup(self):
        c = []
        A = c.append
        A(I("s_cmp_ge_u32 s2, 256"))
        A(I("s_cbranch_scc1 L_exit"))
        ptrs = [(S_CKV, 8, 2097152), (S_WUK, 24, 4194304), (S_X, 0, 2097152), (S_WS, 96, WS_SIZE), (S_DBG, 88, 256),
                (S_WUV, 32, 4194304), (S_WQ, 16, 4194304), (S_WO, 40, 4194304), (S_WG, 56, 1409024),
                (S_WU, 64, 1409024), (S_WD, 72, 1409024), (S_OUT, 80, 2097152)]
        for b, off, n in ptrs:
            A(I(f"s_load_dwordx2 s[{b}:{b+1}], s[0:1], {off}"))
        A(I(f"v_and_b32 v{vLANE}, 63, v0"))
        A(I("v_lshrrev_b32 v1, 6, v0"))
        A(I(f"s_mov_b32 s{sB}, s2"))
        A(I(f"v_readfirstlane_b32 s{sWAVE}, v1"))
        for b, off, n in ptrs:
            A(I(f"s_mov_b32 s{b+2}, {n}"))
            A(I(f"s_mov_b32 s{b+3}, 0x20000"))
        A(I(f"s_and_b32 s{sT0}, s{sB}, 7"))
        A(I(f"s_lshl_b32 s{sT0}, s{sT0}, 2"))
        A(I(f"s_bfe_u32 s{sT1}, s{sB}, 0x20003"))
        A(I(f"s_add_u32 s{sH}, s{sT0}, s{sT1}"))
        A(I(f"s_lshr_b32 s{sW}, s{sB}, 5"))
        A(I(f"s_lshl_b32 s{sW2K}, s{sWAVE}, 11"))
        A(I(f"s_lshl_b32 s{sTOKB}, s{sWAVE}, 14"))
        A(I(f"s_add_u32 s{sTOKB}, s{sTOKB}, {TOKB}"))
        L = vLANE
        A(I(f"v_lshrrev_b32 v1, 3, v{L}"))
        A(I(f"v_lshrrev_b32 v2, 4, v{L}"))
        A(I(f"v_and_b32 v3, 7, v{L}"))
        A(I(f"s_lshl_b32 s{sT0}, s{sW}, 2"))
        A(I(f"s_add_u32 s{sT0}, s{sT0}, s{sWAVE}"))
        A(I(f"s_lshl_b32 s{sT0}, s{sT0}, 16"))
        A(I(f"v_xor_b32 v4, v3, v2"))
        A(I(f"v_lshlrev_b32 v5, 10, v1"))
        A(I(f"v_lshl_add_u32 v6, v4, 4, v5"))
        A(I(f"v_add_u32 v{vTO[0]}, s{sT0}, v6"))
        A(I(f"v_xor_b32 v7, 64, v{vTO[0]}"))
        for p in range(1, 8):
            src = 7 if p & 1 else vTO[0]
            A(I(f"v_add_u32 v{vTO[p]}, {p*8192 - (p&3)*1024}, v{src}"))
        A(I(f"v_lshrrev_b32 v8, 5, v{L}"))
        A(I(f"v_and_b32 v9, 3, v1"))
        A(I(f"v_lshl_add_u32 v9, v8, 3, v9"))
        A(I(f"s_lshr_b32 s{sT0}, s{sWAVE}, 1"))
        A(I(f"s_lshl_b32 s{sT0}, s{sT0}, 5"))
        A(I(f"s_and_b32 s{sT1}, s{sWAVE}, 1"))
        A(I(f"s_lshl_b32 s{sT1}, s{sT1}, 2"))
        A(I(f"s_add_u32 s{sT0}, s{sT0}, s{sT1}"))
        A(I(f"v_add_u32 v9, s{sT0}, v9"))
        A(I(f"v_lshlrev_b32 v10, 1, v2"))
        A(I(f"v_xor_b32 v10, v3, v10"))
        A(I(f"v_lshlrev_b32 v10, 4, v10"))
        A(I(f"s_lshl_b32 s{sT0}, s{sH}, 8"))
        A(I(f"v_lshl_add_u32 v11, v9, 13, v10"))
        A(I(f"v_add_u32 v{vWO[0]}, s{sT0}, v11"))
        A(I(f"v_add_u32 v{vWO[1]}, {16*8192-1024}, v{vWO[0]}"))
        A(I(f"s_lshl_b32 s{sT0}, s{sB}, 2"))
        A(I(f"s_add_u32 s{sT0}, s{sT0}, s{sWAVE}"))
        A(I(f"s_lshl_b32 s{sT0}, s{sT0}, 11"))
        A(I(f"v_and_b32 v12, 31, v{L}"))
        A(I(f"v_lshlrev_b32 v13, 10, v8"))
        A(I(f"v_lshl_add_u32 v13, v12, 4, v13"))
        A(I(f"v_add_u32 v{vLN+32}, s{sT0}, v13"))
        A(I(f"v_mov_b32 v{vC0}, 0"))
        A(I(f"v_mov_b32 v{vC1}, 1"))
        A(I(f"v_mov_b32 v14, {OOB}"))
        A(I("v_cmp_eq_u32 vcc, 0, v0"))
        A(I(f"v_lshlrev_b32 v{vPO32}, 2, v12"))
        A(I(f"v_lshlrev_b32 v{vPO8}, 2, v3"))
        A(I(f"v_cndmask_b32 v{vONE}, v14, v{vC0}, vcc"))
        A(I(f"s_lshr_b32 s{sT0}, s{sB}, 4"))
        A(I(f"s_sub_u32 s{sT1}, 15, s{sT0}"))
        A(I(f"s_min_u32 s{sT1}, s{sT0}, s{sT1}"))
        A(I(f"s_lshl_b32 s{sT1}, s{sT1}, 7"))
        A(I(f"s_lshr_b32 s{sT0}, s{sB}, 7"))
        A(I(f"s_lshl_b32 s{sT0}, s{sT0}, 4"))
        A(I(f"s_and_b32 s{sT2}, s{sB}, 15"))
        A(I(f"s_add_u32 s{sT0}, s{sT0}, s{sT2}"))
        A(I(f"s_lshl_b32 s{sT0}, s{sT0}, 2"))
        A(I(f"s_add_u32 s{sFXN}, s{sT0}, s{sT1}"))
        A(I(f"s_add_u32 s{sFXN}, s{sFXN}, {FL_XN}"))
        A(I(f"s_lshl_b32 s{sT0}, s{sH}, 7"))
        A(I(f"s_lshl_b32 s{sT1}, s{sW}, 2"))
        A(I(f"s_add_u32 s{sFKV}, s{sT0}, s{sT1}"))
        A(I(f"s_add_u32 s{sFKV}, s{sFKV}, {FL_KV}"))
        A(I(f"s_lshl_b32 s{sT0}, s{sW}, 7"))
        A(I(f"s_lshl_b32 s{sT1}, s{sH}, 2"))
        A(I(f"s_add_u32 s{sT0}, s{sT0}, s{sT1}"))
        A(I(f"s_add_u32 s{sFH}, s{sT0}, {FL_H}"))
        A(I(f"s_add_u32 s{sFC}, s{sT0}, {FL_C}"))
        if self.o.stamps:
            A(I(f"s_lshl_b32 s{sST}, s{sB}, 2"))
            A(I(f"s_add_u32 s{sST}, s{sST}, s{sWAVE}"))
            A(I(f"s_lshl_b32 s{sST}, s{sST}, 7"))
            A(I(f"s_add_u32 s{sST}, s{sST}, {TS_OFF}"))
        return c

    def setup2(self):
        c = []
        A = c.append
        L = vLANE
        t = vLN + 24
        g, i16 = t, t + 1
        A(I(f"v_lshrrev_b32 v{g}, 4, v{L}"))
        A(I(f"v_and_b32 v{i16}, 15, v{L}"))
        A(I(f"v_lshrrev_b32 v{t+2}, 2, v{i16}"))
        A(I(f"v_lshl_add_u32 v{t+2}, v{g}, 2, v{t+2}"))
        A(I(f"v_and_b32 v{t+3}, 3, v{i16}"))
        A(I(f"v_lshlrev_b32 v{t+3}, 3, v{t+3}"))
        A(I(f"v_bfe_u32 v{t+4}, v{t+2}, 1, 2"))
        A(I(f"v_lshlrev_b32 v{t+4}, 5, v{t+4}"))
        A(I(f"v_lshl_add_u32 v{t+5}, v{t+2}, 7, v{t+3}"))
        A(I(f"v_add_u32 v{vRD[0]}, v{t+5}, v{t+4}"))
        for cb in range(1, 4):
            A(I(f"v_xor_b32 v{vRD[cb]}, {cb*32}, v{vRD[0]}"))
        A(I(f"v_and_b32 v{t+4}, 1, v{g}"))
        A(I(f"v_lshlrev_b32 v{t+4}, 5, v{t+4}"))
        A(I(f"v_lshl_add_u32 v{t+5}, v{t+2}, 6, v{t+3}"))
        A(I(f"v_add_u32 v{vRD64[0]}, v{t+5}, v{t+4}"))
        A(I(f"v_xor_b32 v{vRD64[1]}, 32, v{vRD64[0]}"))
        A(I(f"v_lshl_add_u32 v{vRD32}, v{t+2}, 5, v{t+3}"))
        A(I(f"v_lshrrev_b32 v{t+4}, 1, v{i16}"))
        A(I(f"v_xor_b32 v{t+4}, v{g}, v{t+4}"))
        A(I(f"v_lshlrev_b32 v{t+4}, 4, v{t+4}"))
        A(I(f"v_lshl_add_u32 v{t+4}, v{i16}, 7, v{t+4}"))
        A(I(f"v_add_u32 v{vTRD[0]}, s{sTOKB}, v{t+4}"))
        A(I(f"v_xor_b32 v{vTRD[1]}, 64, v{vTRD[0]}"))
        A(I(f"v_lshlrev_b32 v{vL16[0]}, 4, v{L}"))
        for i in range(1, 4):
            A(I(f"v_add_u32 v{vL16[i]}, {4096*i}, v{vL16[0]}"))
        return c

    def setup3(self):
        c = []
        A = c.append
        L = vLANE
        A(I(f"s_lshl_b32 s{sT1}, s{sH}, 6"))
        A(I(f"s_lshl_b32 s{sT2}, s{sW}, 3"))
        A(I(f"s_add_u32 s{sT1}, s{sT1}, s{sT2}"))
        A(I(f"s_lshl_b32 s{sT2}, s{sWAVE}, 1"))
        A(I(f"s_add_u32 s{sT1}, s{sT1}, s{sT2}"))
        A(I(f"s_lshl_b32 s{sT1}, s{sT1}, 13"))
        A(I(f"s_add_u32 s{sKFB}, s{sT1}, {KF_OFF}"))
        A(I(f"s_add_u32 s{sVFB}, s{sT1}, {VF_OFF}"))
        B = sNM2
        A(I(f"s_sub_u32 s{sT1}, 15, s{sW}"))
        A(I(f"s_lshl_b32 s{sT1}, s{sT1}, 3"))
        A(I(f"s_lshl_b32 s{sT2}, s{sW}, 3"))
        A(I(f"s_sub_u32 s{sT3}, 7, s{sWAVE}"))
        A(I(f"s_add_u32 s{B[0]}, s{sT1}, s{sT3}"))
        A(I(f"s_add_u32 s{B[1]}, s{sT1}, s{sWAVE}"))
        A(I(f"s_add_u32 s{B[2]}, s{sT2}, s{sT3}"))
        A(I(f"s_add_u32 s{B[3]}, s{sT2}, s{sWAVE}"))
        for q in range(4):
            A(I(f"s_lshl_b32 s{sXN[q]}, s{B[q]}, 14"))
            if XN_OFF:
                A(I(f"s_add_u32 s{sXN[q]}, s{sXN[q]}, {XN_OFF}"))
            A(I(f"s_lshr_b32 s{sT1}, s{B[q]}, 2"))
            A(I(f"s_and_b32 s{sT2}, s{B[q]}, 3"))
            A(I(f"s_lshl_b32 s{sT2}, s{sT2}, 10"))
            A(I(f"s_mul_i32 s{sZH[q]}, s{sT1}, {43*4096}"))
            A(I(f"s_add_u32 s{sZH[q]}, s{sZH[q]}, s{sT2}"))
            A(I(f"s_lshl_b32 s{sT3}, s{sH}, 12"))
            A(I(f"s_add_u32 s{sZH[q]}, s{sZH[q]}, s{sT3}"))
            A(I(f"s_add_u32 s{sZH[q]}, s{sZH[q]}, {ZH_OFF}"))
            A(I(f"s_lshl_b32 s{sZC[q]}, s{sT1}, 19"))
            A(I(f"s_add_u32 s{sZC[q]}, s{sZC[q]}, s{sT2}"))
            A(I(f"s_lshl_b32 s{sT3}, s{sH}, 14"))
            A(I(f"s_add_u32 s{sZC[q]}, s{sZC[q]}, s{sT3}"))
            A(I(f"s_add_u32 s{sZC[q]}, s{sZC[q]}, {ZC_OFF}"))
        A(I(f"s_lshr_b32 s{sT1}, s{sH}, 1"))
        A(I(f"s_add_u32 s{sT1}, s{sT1}, 32"))
        A(I(f"s_sub_u32 s{sT1}, s{sT1}, s{sH}"))
        A(I(f"s_lshl_b32 s{sGBD}, s{sT1}, 12"))
        A(Group([I(f"s_cmp_lt_u32 s{sWAVE}, 2"), I(f"s_cselect_b32 s{S_WG}, s{S_WG}, s{S_WU}"),
                 I(f"s_cselect_b32 s{S_WG+1}, s{S_WG+1}, s{S_WU+1}")]))
        A(I(f"v_mov_b32 v{vGK}, {fbits(GK1)}"))
        return c

    def setup4(self):
        c = []
        A = c.append
        L = vLANE
        t = PK[2]
        A(I(f"v_lshrrev_b32 v{t}, 4, v{L}"))
        A(I(f"v_bfe_u32 v{t+1}, v{L}, 2, 2"))
        A(I(f"v_lshl_add_u32 v{t+1}, v{t}, 3, v{t+1}"))
        A(I(f"s_and_b32 s{sT1}, s{sWAVE}, 1"))
        A(I(f"s_lshl_b32 s{sT2}, s{sT1}, 5"))
        A(I(f"v_add_u32 v{t+1}, s{sT2}, v{t+1}"))
        A(I(f"v_mul_u32_u24 v{t+1}, 2752, v{t+1}"))
        A(I(f"v_and_b32 v{t}, 1, v{t}"))
        A(I(f"v_lshlrev_b32 v{t}, 1, v{t}"))
        A(I(f"v_and_b32 v{t+2}, 3, v{L}"))
        A(I(f"v_xor_b32 v{t}, v{t}, v{t+2}"))
        A(I(f"v_lshl_add_u32 v{t}, v{t}, 4, v{t+1}"))
        A(I(f"s_lshl_b32 s{sT2}, s{sH}, 6"))
        A(I(f"v_add_u32 v{vGA[0]}, s{sT2}, v{t}"))
        A(I(f"v_add_u32 v{vGA[1]}, {4*2752-1024}, v{vGA[0]}"))
        A(I(f"v_bfe_u32 v{t}, v{L}, 3, 2"))
        A(I(f"v_bfe_u32 v{t+1}, v{L}, 1, 2"))
        A(I(f"v_lshl_add_u32 v{t}, v{t}, 3, v{t+1}"))
        A(I(f"v_lshrrev_b32 v{t+1}, 5, v{L}"))
        A(I(f"v_lshl_add_u32 v{t}, v{t+1}, 2, v{t}"))
        A(I(f"s_lshl_b32 s{sT2}, s{sT1}, 6"))
        A(I(f"v_add_u32 v{t}, s{sT2}, v{t}"))
        A(I(f"v_mul_u32_u24 v{t}, 2752, v{t}"))
        A(I(f"v_and_b32 v{t+1}, 1, v{L}"))
        A(I(f"v_lshl_add_u32 v{t}, v{t+1}, 4, v{t}"))
        A(I(f"s_min_u32 s{sT2}, s{sH}, 21"))
        A(I(f"s_lshl_b32 s{sT2}, s{sT2}, 5"))
        A(I(f"s_add_u32 s{sT2}, s{sT2}, 2048"))
        A(I(f"v_add_u32 v{vGB[0]}, s{sT2}, v{t}"))
        A(I(f"v_add_u32 v{vGB[1]}, {32*2752-1024}, v{vGB[0]}"))
        A(I(f"s_and_b32 s{sT2}, s{sH}, 1"))
        A(I(f"s_lshl_b32 s{sT2}, s{sT2}, 3"))
        A(Group([I(f"s_cmp_lt_u32 s{sH}, 22"), I(f"s_cselect_b32 s{sT2}, s{sT2}, {OOB}")]))
        A(I(f"v_add_u32 v{vGBS}, s{sT2}, v{vL16[0]}"))
        return c

    def ln_compute(self):
        R = vLN
        X = vLN + 8
        t = vLN + 24
        c = []
        A = c.append
        for i in range(8):
            A(I(f"v_lshlrev_b32 v{X+2*i}, 16, v{R+i}"))
            A(I(f"v_and_b32 v{X+2*i+1}, 0xffff0000, v{R+i}"))

        def reduce32(r):
            for sh in (8, 4, 2, 1):
                A(I(f"v_add_f32_dpp v{r}, v{r}, v{r} row_ror:{sh} row_mask:0xf bank_mask:0xf"))
            A(I(f"v_mov_b32 v{t+7}, v{r}"))
            A(I(f"v_permlane16_swap_b32 v{r}, v{t+7}"))
            A(I(f"v_add_f32 v{r}, v{r}, v{t+7}"))
        A(I(f"v_add_f32 v{t}, v{X}, v{X+1}"))
        A(I(f"v_add_f32 v{t+1}, v{X+2}, v{X+3}"))
        for i in range(4, 16, 2):
            A(I(f"v_add_f32 v{t}, v{t}, v{X+i}"))
            A(I(f"v_add_f32 v{t+1}, v{t+1}, v{X+i+1}"))
        A(I(f"v_add_f32 v{t}, v{t}, v{t+1}"))
        reduce32(t)
        A(I(f"v_mul_f32 v{t}, {fbits(1.0/512)}, v{t}"))
        for i in range(16):
            A(I(f"v_sub_f32 v{X+i}, v{X+i}, v{t}"))
        A(I(f"v_mul_f32 v{t+1}, v{X}, v{X}"))
        A(I(f"v_mul_f32 v{t+2}, v{X+1}, v{X+1}"))
        for i in range(2, 16, 2):
            A(I(f"v_fmac_f32 v{t+1}, v{X+i}, v{X+i}"))
            A(I(f"v_fmac_f32 v{t+2}, v{X+i+1}, v{X+i+1}"))
        A(I(f"v_add_f32 v{t+1}, v{t+1}, v{t+2}"))
        reduce32(t + 1)
        A(I(f"v_mul_f32 v{t+1}, {fbits(1.0/512)}, v{t+1}"))
        A(I(f"v_cvt_pk_bf16_f32 v{t+2}, v{t}, v{t+1}"))
        A(I(f"v_and_b32 v{t+3}, 0xffff0000, v{t+2}"))
        A(I(f"v_lshlrev_b32 v{t+2}, 16, v{t+2}"))
        A(I(f"v_add_f32 v{t+3}, {fbits(1e-5)}, v{t+3}"))
        A(I(f"v_cvt_pk_bf16_f32 v{t+3}, v{t+3}, v{t+3}"))
        A(I(f"v_and_b32 v{t+3}, 0xffff0000, v{t+3}"))
        A(I(f"v_sqrt_f32 v{t+3}, v{t+3}"))
        A(I(f"v_sub_f32 v{t+2}, v{t}, v{t+2}"))
        A(I(f"v_cvt_pk_bf16_f32 v{t+3}, v{t+3}, v{t+3}"))
        A(I(f"v_and_b32 v{t+3}, 0xffff0000, v{t+3}"))
        A(I(f"v_rcp_f32 v{t+3}, v{t+3}"))
        A(I(f"v_and_b32 v{t+4}, 31, v{vLANE}"))
        A(I(f"v_lshrrev_b32 v{t+5}, 5, v{vLANE}"))
        A(I(f"v_mul_f32 v{t+2}, v{t+2}, v{t+3}"))
        A(I(f"v_lshl_add_u32 v{t+4}, v{t+4}, 3, v{t+5}"))
        A(I(f"s_lshl_b32 s{sT1}, s{sWAVE}, 5"))
        A(I(f"s_add_u32 s{sT1}, s{sT1}, {LNBUF}"))
        A(I(f"v_lshl_add_u32 v{t+4}, v{t+4}, 4, s{sT1}"))
        for i in range(16):
            A(I(f"v_fma_f32 v{X+i}, v{X+i}, v{t+3}, v{t+2}"))
        for i in range(8):
            A(I(f"v_cvt_pk_bf16_f32 v{R+i}, v{X+2*i}, v{X+2*i+1}"))
        A(I(f"ds_write_b128 v{t+4}, {vr(R)}"))
        A(I(f"ds_write_b128 v{t+4}, {vr(R+4)} offset:4096"))
        return c

    def ln_store(self):
        R = vLN
        t = vLN + 24
        c = []
        A = c.append
        A(I(f"s_lshl_b32 s{sT1}, s{sWAVE}, 11"))
        A(I(f"s_add_u32 s{sT1}, s{sT1}, {LNBUF}"))
        A(I(f"v_add_u32 v{t}, s{sT1}, v{vL16[0]}"))
        A(I(f"ds_read_b128 {vr(R)}, v{t}"))
        A(I(f"ds_read_b128 {vr(R+4)}, v{t} offset:1024"))
        A(I(f"v_lshrrev_b32 v{t+1}, 3, v{vLANE}"))
        A(I(f"v_and_b32 v{t+2}, 7, v{vLANE}"))
        A(I(f"v_lshlrev_b32 v{t+2}, 4, v{t+2}"))
        A(I(f"v_lshl_add_u32 v{t+1}, v{t+1}, 8, v{t+2}"))
        A(I(f"s_lshr_b32 s{sT1}, s{sB}, 1"))
        A(I(f"s_lshl_b32 s{sT1}, s{sT1}, 14"))
        A(I(f"s_and_b32 s{sT2}, s{sB}, 1"))
        A(I(f"s_lshl_b32 s{sT2}, s{sT2}, 7"))
        A(I(f"s_add_u32 s{sT1}, s{sT1}, s{sT2}"))
        A(I(f"s_lshl_b32 s{sT2}, s{sWAVE}, 12"))
        A(I(f"s_add_u32 s{sT1}, s{sT1}, s{sT2}"))
        if XN_OFF:
            A(I(f"s_add_u32 s{sT1}, s{sT1}, {XN_OFF}"))
        A(I(f"v_add_u32 v{t+1}, s{sT1}, v{t+1}"))
        st = [I(f"buffer_store_dwordx4 {vr(R)}, v{t+1}, {srd(S_WS)}, 0 offen sc1"),
              I(f"buffer_store_dwordx4 {vr(R+4)}, v{t+1}, {srd(S_WS)}, 0 offen offset:2048 sc1")]
        return c + st, st

    def tiles(self):
        T = []
        for c in range(8):
            for half in range(2):
                T.append(dict(name=f"K{half}c{c}", typ="R128", srd=S_WUK, soff=c * 64 * 8192 + half * 128, vo=vWO,
                              acc=ACC[half], swap=False, ks0=2 * c, first=(c == 0)))
        for (nm, sr, col, acc, swap) in (("V0", S_WUV, 0, ACC[2], True), ("V1", S_WUV, 1, ACC[0], True)):
            for c in range(8):
                T.append(dict(name=f"{nm}c{c}", typ="R128", srd=sr, soff=c * 64 * 8192 + col * 128, vo=vWO, acc=acc,
                              swap=swap, ks0=2 * c, first=(c == 0)))
        for c in range(8):
            T.append(dict(name=f"GAc{c}", typ="R64", srd=S_WG, soff=c * 64 * 2752, vo=vGA, acc=ACC[1], swap=False,
                          ks0=2 * c, first=(c == 0)))
        for c in range(4):
            T.append(dict(name=f"GBc{c}", typ="R32", srd=S_WG, soff=c * 128 * 2752, vo=vGB, acc=ACC[2], swap=False,
                          ks0=4 * c, first=(c == 0)))
        for (nm, col, acc) in (("Q0", 0, ACC[0]), ("Q1", 1, ACC[1])):
            for c in range(8):
                T.append(dict(name=f"{nm}c{c}", typ="R128", srd=S_WQ, soff=c * 64 * 8192 + col * 128, vo=vWO,
                              acc=acc, swap=False, ks0=2 * c, first=(c == 0)))
        for n, t in enumerate(T):
            t["slot"] = (n % NRING) * 8192
        return T

    def tile_dma(self, t):
        ops = [I(f"buffer_load_dwordx4 v{t['vo'][p]}, {srd(t['srd'])}, s{sT0} offen offset:{p*1024} lds")
               for p in range(2)]
        t["dma"] = ops
        return [Group([I(f"s_add_u32 m0, s{sW2K}, {t['slot']}"), I(f"s_mov_b32 s{sT0}, {t['soff']}"), ops[0]]),
                ops[1]]

    def unit_reads(self, t, u, buf):
        base = t["slot"]
        hi = base >= 65536
        base -= 65536 if hi else 0
        r = []
        for k in range(2):
            for a in range(2):
                d = WFB[buf] + 4 * k + 2 * a
                if t["typ"] == "R128":
                    addr, off = vRD[u], base + k * 4096 + a * 2048
                elif t["typ"] == "R64":
                    addr, off = vRD64[u & 1], base + (u >> 1) * 4096 + k * 2048 + a * 1024
                else:
                    addr, off = vRD32, base + (u & 1) * 4096 + (2 * (u >> 1) + k) * 1024 + a * 512
                r.append(I(f"ds_read_b64_tr_b16 {vr(d,2)}, v{addr} offset:{off}"))
        return r

    def unit_mfma(self, t, u, buf):
        m = []
        if t["typ"] == "R32":
            wb, ksb, first = u & 1, t["ks0"] + 2 * (u >> 1), t["first"] and u < 2
        else:
            wb, ksb, first = u, t["ks0"], t["first"]
        for tb in range(4):
            d = vr(t["acc"] + (wb * 4 + tb) * 4)
            for k in range(2):
                wf, tf = vr(WFB[buf] + 4 * k), ar(TF(tb, ksb + k))
                a, b = (tf, wf) if t["swap"] else (wf, tf)
                m.append(mfma(d, a, b, "0" if (first and k == 0) else d))
        return m

    def tok_dma(self, c):
        ops = [I(f"buffer_load_dwordx4 v{vTO[p]}, {srd(S_CKV)}, s{sT0} offen offset:{(p&3)*1024} lds") for p in range(8)]
        seq = []
        for p in range(8):
            if p & 3 == 0:
                seq.append(Group([I(f"s_add_u32 m0, s{sTOKB}, {(c&1)*8192 + (p>>2)*4096}"),
                                  I(f"s_mov_b32 s{sT0}, {c*128}"), ops[p]]))
            else:
                seq.append(ops[p])
        return seq, ops

    def tok_reads(self, c):
        return [I(f"ds_read_b128 {ar(TF(tb, 2*c+k))}, v{vTRD[k]} offset:{(c&1)*8192 + tb*2048}")
                for k in range(2) for tb in range(4)]

    def pk_frag(self, d, t0, t1):
        return [I(f"v_cvt_pk_bf16_f32 v{d}, v{t0}, v{t0+1}"), I(f"v_cvt_pk_bf16_f32 v{d+1}, v{t0+2}, v{t0+3}"),
                I(f"v_cvt_pk_bf16_f32 v{d+2}, v{t1}, v{t1+1}"), I(f"v_cvt_pk_bf16_f32 v{d+3}, v{t1+2}, v{t1+3}")]

    def epi_K(self, half):
        c, st = [], []
        n = 0
        for tb in range(4):
            for d2 in range(2):
                p = PK[n % 3]
                n += 1
                acc = ACC[half]
                c += self.pk_frag(p, acc + ((2 * d2) * 4 + tb) * 4, acc + ((2 * d2 + 1) * 4 + tb) * 4)
                s = I(f"buffer_store_dwordx4 {vr(p)}, v{vL16[tb]}, {srd(S_WS)}, s{sKFB} offen "
                      f"offset:{(2*half+d2)*1024} sc1")
                c.append(s)
                st.append(s)
        return c, st

    def epi_V(self, half, acc):
        c, st = [], []
        n = 0
        for wb in range(4):
            for sp in range(2):
                p = PK[n % 3]
                n += 1
                c += self.pk_frag(p, acc + (wb * 4 + 2 * sp) * 4, acc + (wb * 4 + 2 * sp + 1) * 4)
                s = I(f"buffer_store_dwordx4 {vr(p)}, v{vL16[2*sp+half]}, {srd(S_WS)}, s{sVFB} offen "
                      f"offset:{wb*1024} sc1")
                c.append(s)
                st.append(s)
        return c, st

    def gelu4(self, g, u):
        c = []
        for i in (0, 2):
            a, b = g + i, g + i + 1
            c += [I(f"v_mul_f32 v{vG0}, v{a}, v{a}"), I(f"v_mul_f32 v{vG1}, v{b}, v{b}"),
                  I(f"v_fmaak_f32 v{vG0}, v{vG0}, v{vGK}, {fbits(GK0)}"),
                  I(f"v_fmaak_f32 v{vG1}, v{vG1}, v{vGK}, {fbits(GK0)}"),
                  I(f"v_mul_f32 v{vG0}, v{vG0}, v{a}"), I(f"v_mul_f32 v{vG1}, v{vG1}, v{b}"),
                  I(f"v_exp_f32 v{vG0}, v{vG0}"), I(f"v_exp_f32 v{vG1}, v{vG1}"),
                  I(f"v_mul_f32 v{a}, v{a}, v{u+i}"), I(f"v_mul_f32 v{b}, v{b}, v{u+i+1}"),
                  I(f"v_add_f32 v{vG0}, 1.0, v{vG0}"), I(f"v_add_f32 v{vG1}, 1.0, v{vG1}"),
                  I(f"v_rcp_f32 v{vG0}, v{vG0}"), I(f"v_rcp_f32 v{vG1}, v{vG1}"),
                  I(f"v_mul_f32 v{a}, v{a}, v{vG0}"), I(f"v_mul_f32 v{b}, v{b}, v{vG1}")]
        return c

    def epi_GA(self):
        c, st = [], []
        acc = ACC[1]
        for tb in range(4):
            T = lambda wb: acc + (wb * 4 + tb) * 4
            c += self.gelu4(T(0), T(2)) + self.gelu4(T(1), T(3))
            p = PK[tb % 3]
            c += self.pk_frag(p, T(0), T(1))
            s = I(f"buffer_store_dwordx4 {vr(p)}, v{vL16[0]}, {srd(S_WS)}, s{sZH[tb]} offen sc1")
            c.append(s)
            st.append(s)
        return c, st

    def epi_GB(self):
        c, st = [], []
        acc = ACC[2]
        for tb in range(4):
            g, u = acc + tb * 4, acc + (4 + tb) * 4
            c += self.gelu4(g, u)
            p = PK[(tb + 1) % 3]
            c += [I(f"v_cvt_pk_bf16_f32 v{p}, v{g}, v{g+1}"), I(f"v_cvt_pk_bf16_f32 v{p+1}, v{g+2}, v{g+3}")]
            s = I(f"buffer_store_dwordx2 {vr(p,2)}, v{vGBS}, {srd(S_WS)}, s{sT3} offen sc1")
            c.append(Group([I(f"s_add_u32 s{sT3}, s{sZH[tb]}, s{sGBD}"), s]))
            st.append(s)
        return c, st

    def epi_Q(self, half, q):
        c = []
        acc = ACC[half]
        for d2 in range(2):
            t0, t1 = acc + ((2 * d2) * 4 + q) * 4, acc + ((2 * d2 + 1) * 4 + q) * 4
            for r in list(range(t0, t0 + 4)) + list(range(t1, t1 + 4)):
                c.append(I(f"v_mul_f32 v{r}, s{sQS}, v{r}"))
            p = PK[d2]
            c += self.pk_frag(p, t0, t1)
            for r in range(4):
                c.append(I(f"v_accvgpr_write_b32 a{gQ(q, 2*half+d2)+r}, v{p+r}"))
        return c

    def flag_store(self, s):
        return I(f"buffer_store_dword v{vC1}, v{vONE}, {srd(S_WS)}, s{s} offen sc1")

    def att_setup(self):
        c = []
        A = c.append
        A(I(f"s_lshl_b32 s{sT1}, s{sH}, 19"))
        A(I(f"s_and_b32 s{sT2}, s{sWAVE}, 1"))
        A(I(f"s_lshl_b32 s{sT2}, s{sT2}, 12"))
        A(I(f"s_add_u32 s{sT1}, s{sT1}, s{sT2}"))
        A(I(f"s_lshl_b32 s{sT3}, s{sW}, 2"))
        A(I(f"s_sub_u32 s{sT3}, 64, s{sT3}"))
        A(I(f"s_lshl_b32 s{sT3}, s{sT3}, 13"))
        A(I(f"s_sub_u32 s{sT3}, s{sT3}, s{sT2}"))
        A(Group([I(f"s_cmp_lt_u32 s{sWAVE}, 2"), I(f"s_cselect_b32 s{sT2}, {VF_OFF - KF_OFF - 16384}, 0")]))
        A(I(f"s_add_u32 s{sT1}, s{sT1}, s{sT2}"))
        A(I(f"s_add_u32 s{sT1}, s{sT1}, {KF_OFF + 16384}"))
        A(Group([I(f"s_cmp_lt_u32 s{sWAVE}, 2"), I(f"s_cselect_b32 s{sT2}, 0, 16384")]))
        A(I(f"s_sub_u32 s{S_KV+2}, s{sT3}, s{sT2}"))
        A(Group([I(f"s_add_u32 s{S_KV}, s{S_WS}, s{sT1}"), I(f"s_addc_u32 s{S_KV+1}, s{S_WS+1}, 0")]))
        A(I(f"s_lshr_b32 s{sT1}, s{sWAVE}, 1"))
        A(I(f"s_sub_u32 s{sT2}, 3, s{sT1}"))
        A(I(f"s_lshl_b32 s{sT3}, s{sW}, 2"))
        A(I(f"s_add_u32 s{sNM1[3]}, s{sT3}, s{sT1}"))
        A(I(f"s_add_u32 s{sNM1[2]}, s{sT3}, s{sT2}"))
        A(I(f"s_sub_u32 s{sT3}, 60, s{sT3}"))
        A(I(f"s_add_u32 s{sNM1[1]}, s{sT3}, s{sT1}"))
        A(I(f"s_add_u32 s{sNM1[0]}, s{sT3}, s{sT2}"))
        m = sum(1 << j for j in range(0, 64, self.o.G))
        A(I(f"s_mov_b32 s{sEV}, {m & 0xffffffff:#x}"))
        A(I(f"s_mov_b32 s{sEV+1}, {m >> 32:#x}"))
        for q in range(4):
            A(I(f"s_sub_u32 s{sNM2[q]}, s{sNM1[q]}, 1"))
            A(I(f"s_bitset1_b64 s[{sEV}:{sEV+1}], s{sNM1[q]}"))
            A(I(f"s_bitset1_b64 s[{sEV}:{sEV+1}], s{sNM2[q]}"))
        return c

    def att_dma(self, tile=None):
        return [I(f"buffer_load_dwordx4 v{vL16[0]}, {srd(S_KV)}, s{sSOFF} offen offset:{p*1024} sc1 lds")
                for p in range(4)]

    def phase12(self):
        o = self.o
        T = self.tiles()
        NT = len(T)
        pre = self.setup()
        A = pre.append
        A(I("s_waitcnt lgkmcnt(0)"))
        zero = [I(f"buffer_store_dword v{vC0}, v{vONE}, {srd(S_WS)}, s{s} offen sc1") for s in (sFXN, sFKV, sFH, sFC)]
        s0, tok0 = self.tok_dma(0)
        pre += s0
        pre += self.tile_dma(T[0]) + self.tile_dma(T[1])
        pre += zero
        lnl = [I(f"buffer_load_dwordx4 {vr(vLN)}, v{vLN+32}, {srd(S_X)}, 0 offen"),
               I(f"buffer_load_dwordx4 {vr(vLN+4)}, v{vLN+32}, {srd(S_X)}, 0 offen offset:512")]
        s1, tok1 = self.tok_dma(1)
        pre += s1
        pre += self.tile_dma(T[2]) + self.tile_dma(T[3])
        pre += lnl
        if o.prefetch:
            pre += self.prefetch0()
        for n in range(4, 7):
            pre += self.tile_dma(T[n])
        pre += self.setup2()
        pre += self.stamp()
        tokd = {0: tok0, 1: tok1}
        pre.append(Need(tok0))
        rd0 = self.tok_reads(0)
        pre += rd0
        pre.append(Need([T[n]["dma"] for n in range(4)], lg0=True))
        pre.append(I("s_barrier"))
        gate = I(f"buffer_atomic_add v{vC1}, v{vONE}, {srd(S_DBG)}, 0 offen sc1")
        pre.append(gate)
        pre += self.unit_reads(T[0], 0, 0) + self.unit_reads(T[0], 1, 1)
        pre += self.stamp()

        mf = []
        for n, t in enumerate(T):
            for u in range(4):
                mf += self.unit_mfma(t, u, (4 * n + u) % 3)
        tasks = []
        bar_gap = lambda g: 128 * g - 13
        extra_need = {g: [] for g in range(NT // 4 + 1)}
        for U in range(2, 4 * NT):
            n, u = divmod(U, 4)
            lo = 8 * (U - 2)
            rd = self.unit_reads(T[n], u, U % 3)
            pn = (U - 1) // 4
            if (T[n]["slot"] >= 65536) != (T[pn]["slot"] >= 65536) and u == 0:
                sw = "v_add_u32" if T[n]["slot"] >= 65536 else "v_subrev_u32"
                rd = [Group([I(f"{sw} v{r}, 0x10000, v{r}") for r in vRD + vRD64 + [vRD32]] + [rd[0]])] + rd[1:]
            if U % 16 == 0:
                tasks.append(Task(f"rd{U}", rd, lo + 4, lo + 7, prio=0, tight=True))
            elif U % 16 == 15:
                tasks.append(Task(f"rd{U}", rd, lo, lo + 3, prio=0, tight=True))
            else:
                tasks.append(Task(f"rd{U}", rd, lo, lo + 7, prio=0))
        LEAD = NRING - 4
        for n in range(LEAD, NT):
            seq = self.tile_dma(T[n])
            lo = 32 * (n - LEAD)
            tasks.append(Task(f"dma{n}", [Group(seq)], lo + 1, lo + 24, prio=2))
        for c in range(1, 8):
            if c == 1:
                wr, wd = (18, 40), (44, 62)
            else:
                wr, wd = (64 * (c - 1) + 2, 64 * (c - 1) + 24), (64 * (c - 1) + 30, 64 * (c - 1) + 60)
            rd = self.tok_reads(c)
            tasks.append(Task(f"tokrd{c}", [Need([lambda c=c: tokd[c]])] + rd, wr[0], wr[1], prio=1))
            if c + 2 < 8:
                seq, ops = self.tok_dma(c + 2)
                tokd[c + 2] = ops
                tasks.append(Task(f"tokdma{c+2}", [Need(rd), Group(seq[:4]), Group(seq[4:])], wd[0], wd[1], prio=2))
        seq, ops = self.tok_dma(2)
        tokd[2] = ops
        tasks.append(Task("tokdma2", [Group(seq[:4]), Group(seq[4:])], 1, 14, prio=2))
        tasks.append(Task("ln", self.ln_compute(), 66, bar_gap(3) - 6, prio=3))
        c, lnst = self.ln_store()
        tasks.append(Task("lnst", c, bar_gap(3) + 2, 399, prio=3))
        extra_need[4] += lnst
        tasks.append(Task("flagxn", [self.flag_store(sFXN)], bar_gap(4) + 4, bar_gap(4) + 10, prio=3))
        tasks.append(Task("setup3", self.setup3(), 400, 470, prio=4))
        tasks.append(Task("setup4", self.setup4(), 472, 510, prio=4))
        tasks.append(Task("gate", [self.poll_load(vPOLL, S_DBG, vC0, "0")], 530, 534, prio=3))
        tasks.append(Task("gatechk", [self.poll_check(vPOLL, S_DBG, vC0, "0", "0x100"),
                                      I(f"s_lshl_b32 s{sPOLL}, s{sW}, 7"),
                                      I(f"s_add_u32 s{sPOLL}, s{sPOLL}, {FL_XN}"),
                                      self.poll_load(vPOLL, S_WS, vPO32, f"s{sPOLL}")], 640, 650, prio=3))
        tasks.append(Task("xnchk", [self.poll_check(vPOLL, S_WS, vPO32, f"s{sPOLL}", "1")], 790, 796, prio=3))
        c, st = self.epi_K(0)
        tasks.append(Task("epiK0", c, 522, 640, prio=5))
        c, st2 = self.epi_K(1)
        tasks.append(Task("epiK1", c, 642, 760, prio=5))
        c, st3 = self.epi_V(0, ACC[2])
        tasks.append(Task("epiV0", c, 778, 1010, prio=5))
        c, st4 = self.epi_V(1, ACC[0])
        tasks.append(Task("epiV1", c, 1034, 1200, prio=5))
        extra_need[11] += st + st2 + st3 + st4
        tasks.append(Task("flagkv", [self.flag_store(sFKV)], bar_gap(11) + 4, bar_gap(11) + 10, prio=3))
        for c in range(8):
            ld = [I(f"buffer_load_dwordx4 {ar(TF(tb, 2*c+k))}, v{vL16[(2*c+k)>>2]}, {srd(S_WS)}, s{sXN[tb]} offen "
                    f"offset:{((2*c+k)&3)*1024} sc1") for k in range(2) for tb in range(4)]
            lo = 32 * (25 + c)
            tasks.append(Task(f"xn{c}", ld, lo + 1, lo + 30, prio=2))
        c, stA = self.epi_GA()
        tasks.append(Task("epiGA", c, 1290, 1560, prio=5))
        c, stB = self.epi_GB()
        tasks.append(Task("epiGB", c, 1562, 1720, prio=5))
        self.h_stores = stA + stB
        c = [I(f"s_mov_b32 s{sQS}, {fbits(QSCALE)}")]
        for q in range(4):
            c += self.epi_Q(0, q)
        tasks.append(Task("epiQ0", c, 1722, 1850, prio=5))
        tasks.append(Task("attsetup", self.att_setup(), 1420, 1520, prio=4))
        kvp = [I(f"s_lshl_b32 s{sPOLL}, s{sH}, 7"), I(f"s_add_u32 s{sPOLL}, s{sPOLL}, {FL_KV}"),
               self.poll_load(vPOLL, S_WS, vPO8, f"s{sPOLL}")]
        tasks.append(Task("kvpoll", kvp, 1560, 1570, prio=3))
        k01 = [I(f"buffer_load_dwordx4 v{vL16[0]}, {srd(S_WS)}, s{sT0} offen offset:{p*1024} sc1 lds") for p in range(4)]
        seq = [self.poll_check(vPOLL, S_WS, vPO8, f"s{sPOLL}", "1"),
               Group([I(f"s_lshl_b32 s{sT0}, s{sH}, 19"), I(f"s_lshl_b32 s{sWR}, s{sWAVE}, 12"),
                      I(f"s_add_u32 s{sT0}, s{sT0}, s{sWR}"), I(f"s_add_u32 s{sT0}, s{sT0}, {KF_OFF}"),
                      I(f"s_add_u32 m0, s{sWR}, {6*16384}"), I("s_nop 0")] + k01)]
        self.att_first = list(k01)
        for j in range(3):
            d = self.att_dma()
            seq.append(Group([I(f"s_add_u32 m0, s{sWR}, {(7+j)*16384}"), I(f"s_mov_b32 s{sSOFF}, {j*8192}")] + d))
            self.att_first += d
        tasks.append(Task("kvfirst", seq, 1670, 1760, prio=2))
        z = [I(f"v_mov_b32 v{r}, 0") for r in list(range(0, 64))]
        tasks.append(Task("zeroA", z, 1852, 1918, prio=6))
        z = [I(f"v_mov_b32 v{r}, 0") for r in range(160, 192)]
        tasks.append(Task("zeroC", z, 1730, 1900, prio=6))
        for g in range(1, NT // 4):
            ops = [T[n]["dma"] for n in range(4 * g, 4 * g + 4)] + extra_need[g]
            tasks.append(Task(f"bar{g}", [Group([Need(ops, lg0=True), I("s_barrier")])], bar_gap(g), bar_gap(g),
                              prio=-1))
        if o.stamps:
            for gp in (512, 1024, 1408):
                tasks.append(Task("stamp", self.stamp(), gp, gp, prio=7))
        body = schedule(mf, tasks, o.budget, self.reports)
        if o.stop == "p1a":
            body = body[:body.index(mf[1100])]
        return pre + body

    def prefetch0(self):
        return []

    def mask(self, q):
        c = []
        D = vDM[q & 1]
        src = aC(q, 0)
        c.append(I(f"v_mov_b32 v{vT[0]}, 0xff800000"))
        order = [(1, r) for r in range(4)] + [(0, 3), (0, 2), (0, 1), (0, 0)]
        for i in range(0, 8, 2):
            (k0, r0), (k1, r1) = order[i], order[i + 1]
            c.append(I(f"v_cmp_gt_i32 s[{sM0}:{sM0+1}], {16*k0+r0}, v{D}"))
            c.append(I(f"v_cmp_gt_i32 s[{sM1}:{sM1+1}], {16*k1+r1}, v{D}"))
            c.append(I("s_nop 0"))
            c.append(I(f"v_cndmask_b32 v{aC(q,k0)+r0}, v{src}, v{vT[0]}, s[{sM0}:{sM0+1}]"))
            c.append(I(f"v_cndmask_b32 v{aC(q,k1)+r1}, v{src}, v{vT[0]}, s[{sM1}:{sM1+1}]"))
        return c

    def rowmax(self, q, t0, t1):
        S = aS(q, 0)
        return [I(f"v_max3_f32 v{t0}, v{S}, v{S+1}, v{S+2}"), I(f"v_max3_f32 v{t1}, v{S+3}, v{S+4}, v{S+5}"),
                I(f"v_max3_f32 v{t0}, v{t0}, v{S+6}, v{S+7}"), I(f"v_max_f32 v{t0}, v{t0}, v{t1}"),
                I(f"v_mov_b32 v{t1}, v{t0}"), I(f"v_permlane32_swap_b32 v{t0}, v{t1}"),
                I(f"v_max_f32 v{t0}, v{t0}, v{t1}"),
                I(f"v_mov_b32 v{t1}, v{t0}"), I(f"v_permlane16_swap_b32 v{t0}, v{t1}"),
                I(f"v_max_f32 v{t0}, v{t0}, v{t1}"),
                I(f"v_add_f32 v{t0}, {fbits(BIAS)}, v{t0}")]

    def exps(self, q, E):
        S = aS(q, 0)
        return [I(f"v_exp_f32 v{E+i}, v{S+i}") for i in range(8)]

    def cvts(self, q, E):
        return [I(f"v_cvt_pk_bf16_f32 v{aP(q)+i}, v{E+2*i}, v{E+2*i+1}") for i in range(4)]

    def fix(self, q):
        t0, t1 = aE[2], aE[2] + 1
        S = aS(q, 0)
        c = [I("s_nop 7"), I("s_nop 1")] + self.rowmax(q, t0, t1)
        c.append(I(f"v_max_f32 v{t0}, 0, v{t0}"))
        c.append(I(f"v_exp_f32 v{t1}, -v{t0}"))
        for i in range(8):
            c.append(I(f"v_sub_f32 v{S+i}, v{S+i}, v{t0}"))
            c.append(I(f"v_sub_f32 v{aC(q,0)+i}, v{aC(q,0)+i}, v{t0}"))
        for r in range(aO(0, q), aO(0, q) + 32):
            c.append(I(f"v_mul_f32 v{r}, v{r}, v{t1}"))
        for r in range(4):
            c.append(I(f"v_accvgpr_read_b32 v{t0+2+r}, a{gL(q)+r}"))
        for r in range(4):
            c.append(I(f"v_mul_f32 v{t0+2+r}, v{t0+2+r}, v{t1}"))
        for r in range(4):
            c.append(I(f"v_accvgpr_write_b32 a{gL(q)+r}, v{t0+2+r}"))
        c += self.exps(q, aE[1]) + self.cvts(q, aE[1])
        return c

    def check(self, qs):
        P = [aP(q) + i for q in qs for i in range(4)]
        ors = []
        cur = None
        while P:
            if cur is None:
                ors.append(I(f"v_or3_b32 v{vOR}, v{P[0]}, v{P[1]}, v{P[2]}"))
                P = P[3:]
                cur = vOR
            elif len(P) >= 2:
                ors.append(I(f"v_or3_b32 v{vOR}, v{vOR}, v{P[0]}, v{P[1]}"))
                P = P[2:]
            else:
                ors.append(I(f"v_or_b32 v{vOR}, v{vOR}, v{P[0]}"))
                P = []
        slow, back = self.lab("fix"), self.lab("fixb")
        body = []
        for q in qs:
            body += self.fix(q)
        body += [I("s_nop 1"), I(f"s_branch {back}")]
        self.cold.append(f"{slow}:\n" + render(pad_hazards(body)))
        tail = [I(f"v_and_b32 v{vOR}, 0x40004000, v{vOR}"),
                Group([I(f"v_cmp_ne_u32 vcc, 0, v{vOR}"), I(f"s_cbranch_vccnz {slow}"), I(f"{back}:")])]
        return ors, tail

    def k_reads(self, half_off=8192):
        return [I(f"ds_read_b128 {ar(gK(kb, ds))}, v{vARD} offset:{half_off + (kb*4+ds)*1024}")
                for kb in range(2) for ds in range(4)]

    def qk(self, q):
        m = []
        for kb in range(2):
            for ds in range(4):
                d = vr(aS(q, kb))
                m.append(mfma(d, ar(gK(kb, ds)), ar(gQ(q, ds)), vr(aC(q, kb)) if ds == 0 else d))
        return m

    def pv(self, q):
        m = [mfma(vr(aO(db, q)), ar(gV(db)), vr(aP(q)), vr(aO(db, q))) for db in range(8)]
        m.append(mfma(ar(gL(q)), ar(gONE), vr(aP(q)), ar(gL(q))))
        return m

    def iteration(self, nc, nn):
        o = self.o
        X = [m for q in range(nn) for m in self.qk(q)]
        Y = [m for q in range(nc) for m in self.pv(q)]
        y0 = len(X)
        n = y0 + len(Y)
        late = nc - 1
        tasks = []
        hi = 8 * (nn - 1) if nn == nc else min(max(y0, 0) + 9 * late - 2, 9)
        hi = max(0, min(hi, 9))
        ors, tail = self.check([late])
        tasks.append(Task("late", self.cvts(late, aE[0]) + ors + tail, 0, hi, prio=0, tight=(hi < 6)))
        vrd = [I(f"ds_read_b128 {ar(gV(db))}, v{vARD} offset:{db*1024}") for db in range(8)]
        tasks.append(Task("vrd", vrd, 0, max(0, min(y0 - 6, 14)), prio=1))
        ES = [aE[1], aE[2], aE[1]]
        early = list(range(nn - 1))
        if nn > 0:
            start = 10 if nn > 1 else 10
            span = (n - start) / nn
            pos = [int(start + span * i) for i in range(nn + 1)]
            for q in range(nn):
                lo = max(pos[q], 8 * q + 10)
                hi_e = pos[q + 1] - 1
                if q in early and q < nc:
                    cv_lo = y0 + 9 * (q + 1)
                else:
                    cv_lo = y0
                if q == 2:
                    lo = max(lo, y0 + 9 + 5)
                if q in early:
                    hi_e = max(lo, min(hi_e, n - 8))
                    tasks.append(Task(f"exp{q}", self.exps(q, ES[q]), lo, hi_e, prio=2))
                    cl = max(cv_lo, hi_e + 1)
                    tasks.append(Task(f"cvt{q}", self.cvts(q, ES[q]), cl, min(n, cl + 4), prio=1))
                    last_cv = min(n, cl + 4)
                else:
                    tasks.append(Task(f"exp{q}", self.exps(q, aE[0]), min(lo, n), n, prio=2))
            if early:
                ors, tail = self.check(early)
                tasks.append(Task("chk1", ors + tail, min(n, last_cv + 1), n, prio=3, tight=True))
            krd = self.k_reads()
            adv = [Group([I(f"s_add_u32 s{sRD}, s{sRD}, 16384"), I(f"s_cmp_eq_u32 s{sRD}, {o.NS*16384}"),
                          I(f"s_cselect_b32 s{sRD}, 0, s{sRD}")]), I(f"v_add_u32 v{vARD}, s{sRD}, v{vL16[0]}")]
            tasks.append(Task("krd", krd + adv, y0, n - 2, prio=1))
            d = self.att_dma()
            pre = Group([I(f"s_mov_b32 m0, s{sWR}"), I(f"s_add_u32 s{sSOFF}, s{sSOFF}, 8192"), d[0]])
            post = Group([I(f"s_add_u32 s{sWR}, s{sWR}, 16384"), I(f"s_cmp_ge_u32 s{sWR}, {o.NS*16384}"),
                          I(f"s_cselect_b32 s{sT0}, {o.NS*16384}, 0"), I(f"s_sub_u32 s{sWR}, s{sWR}, s{sT0}")])
            tasks.append(Task("dma", [pre] + d[1:] + [post], min(8, n // 3), min(n - 4, y0 + 8), prio=4))
        seq = schedule(X + Y, tasks, o.budget, self.reports)
        return seq

    def att_state(self):
        sb = Scoreboard()
        for r in self.k_reads():
            sb.after(r)
        for i in range(40):
            sb.after(I("buffer_inv sc1"))
        return sb

    def finalize(self, q):
        t0 = vT[0]
        c = [I(f"v_accvgpr_read_b32 v{t0}, a{gL(q)}"), I(f"v_rcp_f32 v{t0}, v{t0}")]
        st = []
        for k in range(4):
            a, b = aO(2 * k, q), aO(2 * k + 1, q)
            for r in list(range(a, a + 4)) + list(range(b, b + 4)):
                c.append(I(f"v_mul_f32 v{r}, v{r}, v{t0}"))
            p = aE[1] + 4 * k
            c += self.pk_frag(p, a, b)
            s = I(f"buffer_store_dwordx4 {vr(p)}, v{vL16[k]}, {srd(S_WS)}, s{sZC[q]} offen sc1")
            c.append(s)
            st.append(s)
        return c, st

    def seg(self, seq, sb, prev=()):
        s = add_waits(seq, sb)
        return pad_hazards(s, prev)

    def attention(self, sb, prev):
        o = self.o
        out = []
        pro = []
        A = pro.append
        pre = [I(f"v_lshrrev_b32 v{vT[0]}, 4, v{vLANE}"), I(f"v_and_b32 v{vT[1]}, 15, v{vLANE}"),
               I(f"v_lshlrev_b32 v{vT[0]}, 2, v{vT[0]}"), I(f"v_sub_u32 v{vT[1]}, v{vT[1]}, v{vT[0]}"),
               I(f"s_and_b32 s{sT1}, s{sWAVE}, 1"), I(f"s_lshl_b32 s{sT1}, s{sT1}, 4"),
               I(f"v_add_u32 v{vDM[1]}, s{sT1}, v{vT[1]}"), I(f"s_sub_u32 s{sT1}, 16, s{sT1}"),
               I(f"v_add_u32 v{vDM[0]}, s{sT1}, v{vT[1]}"),
               I(f"v_add_u32 v{vARD}, {6*16384}, v{vL16[0]}"),
               I(f"v_mov_b32 v{vT[2]}, 0x3f803f80")]
        pre += [I(f"v_accvgpr_write_b32 a{gONE+r}, v{vT[2]}") for r in range(4)]
        pre += [I(f"v_accvgpr_write_b32 a{r}, 0") for r in range(gL(0), gL(0) + 16)]
        pro += pre
        pro += [Need(self.att_first + self.h_stores, lg0=True), I("s_barrier")]
        pro += self.k_reads(0)
        pro.append(self.flag_store(sFH))
        for j in range(3, o.LEAD):
            pro.append(Group([I(f"s_add_u32 m0, s{sWR}, {((7+j) % o.NS)*16384}"),
                              I(f"s_mov_b32 s{sSOFF}, {j*8192}")] + self.att_dma()))
        pro += [I(f"s_add_u32 s{sWR}, s{sWR}, {((7+o.LEAD-1) % o.NS)*16384}"),
                I(f"s_add_u32 s{sWR}, s{sWR}, 16384"),
                I(f"s_mov_b32 s{sRD}, {7*16384}"), I(f"s_mov_b32 s{sJ}, 0")]
        assert ((7 + o.LEAD - 1) % o.NS) + 1 < o.NS
        pro += self.epi_Q(1, 0)
        skip = self.lab("nomask")
        pro += [I(f"s_cmp_lg_u32 s{sNM1[3]}, 0"), I(f"s_cbranch_scc1 {skip}")] + self.mask(3) + [I(f"{skip}:")]
        X = [m for q in range(4) for m in self.qk(q)]
        tasks = []
        for q in range(1, 4):
            tasks.append(Task(f"epiQ1_{q}", self.epi_Q(1, q), 8 * (q - 1), 8 * q - 2, prio=1))
        z = [I(f"v_mov_b32 v{r}, 0") for r in range(64, 128)]
        pro += schedule(X, tasks, o.budget, self.reports)
        pro += z
        pro += self.k_reads()
        pro += [I(f"v_add_u32 v{vARD}, s{sRD}, v{vL16[0]}")]
        for q in range(4):
            t0, t1 = vT[0], vT[1]
            S = aS(q, 0)
            pro += self.rowmax(q, t0, t1)
            for i in range(8):
                pro.append(I(f"v_sub_f32 v{S+i}, v{S+i}, v{t0}"))
            for i in range(8):
                pro.append(I(f"v_sub_f32 v{aC(q,0)+i}, 0, v{t0}"))
            if q < 3:
                E = [aE[1], aE[2], aE[1]][q]
                pro += self.exps(q, E) + self.cvts(q, E)
            else:
                pro += self.exps(q, aE[0])
        pro += [I("s_waitcnt lgkmcnt(0)")]
        pro += self.stamp(vT[3])
        pro = self.seg(pro, sb, prev)
        out += pro
        out.append(I(f"s_branch L_ev4"))
        wait_n = (o.LEAD - o.G) * 4
        last_st = None
        for n in (4, 3, 2, 1):
            body = self.iteration(n, n)
            ctl = [I(f"s_add_u32 s{sJ}, s{sJ}, 1"), I(f"s_bitcmp1_b64 s[{sEV}:{sEV+1}], s{sJ}"),
                   I(f"s_cbranch_scc0 L_body{n}")]
            b = self.seg(body + ctl, self.att_state())
            check_hazards(b, b)
            out += [I(".p2align 6"), I(f"L_body{n}:")] + b
            ev = [I(f"L_ev{n}:")]
            nb, nm, nh, nh2 = self.lab("nb"), self.lab("nm"), self.lab("nh"), self.lab("nh2")
            ev += [I(f"s_and_b32 s{sT0}, s{sJ}, {o.G-1}"), I(f"s_cbranch_scc1 {nb}"),
                   I(f"s_waitcnt vmcnt({wait_n}) lgkmcnt(0)"), I("s_barrier")]
            ev += [I(f"s_cmp_eq_u32 s{sJ}, {2*o.G}"), I(f"s_cbranch_scc0 {nh}")]
            ev += self.p4_scalars() + [self.poll_load(vHP, S_WS, vPO32, f"s{sPOLL}"), I(f"{nh}:")]
            ev += [I(f"s_cmp_eq_u32 s{sJ}, {3*o.G}"), I(f"s_cbranch_scc0 {nh2}"),
                   self.poll_check(vHP, S_WS, vPO32, f"s{sPOLL}", "1"), I(f"{nh2}:")]
            ev += [I(f"{nb}:"), I(f"s_cmp_eq_u32 s{sJ}, s{sNM2[n-1]}"), I(f"s_cbranch_scc0 {nm}")]
            ev += self.mask(n - 1) + [I(f"{nm}:"), I(f"s_cmp_eq_u32 s{sJ}, s{sNM1[n-1]}"),
                                      I(f"s_cbranch_scc0 L_body{n}")]
            if n >= 2:
                nm2 = self.lab("nm")
                ev += [I(f"s_cmp_eq_u32 s{sJ}, s{sNM2[n-2]}"), I(f"s_cbranch_scc0 {nm2}")]
                ev += self.mask(n - 2) + [I(f"{nm2}:")]
            ev = pad_hazards(flatten(ev), b)
            tr = self.iteration(n, n - 1)
            fin, st = self.finalize(n - 1)
            last_st = st
            tail = []
            if n >= 2:
                tail = [I(f"s_add_u32 s{sJ}, s{sJ}, 1"), I(f"s_bitcmp1_b64 s[{sEV}:{sEV+1}], s{sJ}"),
                        I(f"s_cbranch_scc1 L_ev{n-1}")]
            sbt = self.att_state()
            t = self.seg(tr + fin + tail, sbt, ev)
            out += ev + t
        self.ctx_stores = last_st
        return out, sbt

    def p4_scalars(self):
        return [I(f"s_and_b32 s{sT1}, s{sB}, 7"), I(f"s_lshl_b32 s{sT1}, s{sT1}, 2"),
                I(f"s_bfe_u32 s{sT2}, s{sB}, 0x20003"), I(f"s_add_u32 s{sT1}, s{sT1}, s{sT2}"),
                I(f"s_lshr_b32 s{sT2}, s{sT1}, 1"), I(f"s_sub_u32 s{sT3}, 15, s{sT2}"),
                I(f"s_min_u32 s{sT2}, s{sT2}, s{sT3}"), I(f"s_lshl_b32 s{sPOLL}, s{sT2}, 7"),
                I(f"s_add_u32 s{sPOLL}, s{sPOLL}, {FL_H}")]

    def phase4(self, sb, prev):
        o = self.o
        ACC4, ZR, WR = 0, 64, [192, 208]
        vRd4 = [224, 225, 226, 227]
        vWo4 = [228, 229, 230, 231]
        vXo, vP4 = 232, 233
        XR = 234
        sWB, sZo, sWo, sCT = sNM1[0], sNM1[1], sNM1[2], sNM1[3]
        L = vLANE
        c = []
        A = c.append
        A(I("s_waitcnt vmcnt(4) lgkmcnt(0)"))
        A(I("s_barrier"))
        c += self.stamp(242)
        A(I(f"s_mul_i32 s{sT1}, s{sH}, {43*4096}"))
        A(I(f"s_add_u32 s{sT1}, s{sT1}, {ZH_OFF}"))
        A(I(f"s_add_u32 s{S_ZH}, s{S_WS}, s{sT1}"))
        A(I(f"s_addc_u32 s{S_ZH+1}, s{S_WS+1}, 0"))
        A(I(f"s_mov_b32 s{S_ZH+2}, {43*4096}"))
        A(I(f"s_lshl_b32 s{sT1}, s{sH}, 19"))
        A(I(f"s_lshl_b32 s{sT2}, s{sWAVE}, 17"))
        A(I(f"s_add_u32 s{sT1}, s{sT1}, s{sT2}"))
        A(I(f"s_add_u32 s{sT1}, s{sT1}, {ZC_OFF}"))
        A(I(f"s_add_u32 s{S_ZC}, s{S_WS}, s{sT1}"))
        A(I(f"s_addc_u32 s{S_ZC+1}, s{S_WS+1}, 0"))
        A(I(f"s_mov_b32 s{S_ZC+2}, {32*4096}"))
        A(I(f"s_lshl_b32 s{sT2}, s{sWAVE}, 20"))
        A(I(f"s_add_u32 s{S_WO}, s{S_WO}, s{sT2}"))
        A(I(f"s_addc_u32 s{S_WO+1}, s{S_WO+1}, 0"))
        A(I(f"s_mov_b32 s{S_WO+2}, {1 << 20}"))
        A(I(f"s_lshl_b32 s{sWB}, s{sWAVE}, 15"))
        A(I(f"s_mul_i32 s{sZo}, s{sWAVE}, {11*4096}"))
        A(I(f"s_mul_i32 s{sWo}, s{sWAVE}, {11*32768}"))
        A(I(f"s_lshl_b32 s{sCT}, s{sW}, 7"))
        t = WR[1]
        A(I(f"v_lshrrev_b32 v{t}, 3, v{L}"))
        A(I(f"v_lshrrev_b32 v{t+1}, 4, v{L}"))
        A(I(f"v_lshlrev_b32 v{t+1}, 1, v{t+1}"))
        A(I(f"v_and_b32 v{t+2}, 7, v{L}"))
        A(I(f"v_xor_b32 v{t+1}, v{t+1}, v{t+2}"))
        A(I(f"v_lshlrev_b32 v{t+1}, 4, v{t+1}"))
        A(I(f"v_lshl_add_u32 v{t}, v{t}, 10, v{t+1}"))
        A(I(f"v_add_u32 v{vWo4[0]}, s{sCT}, v{t}"))
        for p in range(1, 4):
            A(I(f"v_add_u32 v{vWo4[p]}, {p*(8192-1024)}, v{vWo4[0]}"))
        NH = 11

        def loads(n):
            slot = (n % 8) * 4096
            if n < NH:
                ws, zs = S_WD, S_ZH
            else:
                ws, zs = S_WO, S_ZC
            dma = [I(f"buffer_load_dwordx4 v{vWo4[p]}, {srd(ws)}, s{sWo} offen offset:{p*1024} lds") for p in range(4)]
            zl = [I(f"buffer_load_dwordx4 {vr(ZR + ((n % 8)*4 + tb)*4)}, v{vL16[0]}, {srd(zs)}, s{sZo} offen "
                    f"offset:{tb*1024} sc1") for tb in range(4)]
            head = Group([I(f"s_add_u32 m0, s{sWB}, {slot}"), I("s_nop 0"), dma[0]])
            adv = Group([I(f"s_add_u32 s{sZo}, s{sZo}, 4096"), I(f"s_add_u32 s{sWo}, s{sWo}, 32768")])
            return head, dma, zl, adv

        def reads(n):
            slot = (n % 8) * 4096
            return [I(f"ds_read_b64_tr_b16 {vr(WR[n & 1] + 4*wb + 2*a, 2)}, v{vRd4[wb]} offset:{slot + a*2048}")
                    for wb in range(4) for a in range(2)]

        D = {}
        for n in range(7):
            head, dma, zl, adv = loads(n)
            D[n % 8] = dma
            c += [head] + dma[1:] + zl + [adv]
        A(Need(self.ctx_stores))
        A(I("s_barrier"))
        A(self.flag_store(sFC))
        A(I(f"s_sub_u32 s{sPOLL}, s{sPOLL}, {FL_H}"))
        A(I(f"s_lshl_b32 s{sT1}, s{sWAVE}, 5"))
        A(I(f"s_add_u32 s{sPOLL}, s{sPOLL}, s{sT1}"))
        A(I(f"s_add_u32 s{sPOLL}, s{sPOLL}, {FL_C}"))
        g, i16 = t, t + 1
        A(I(f"v_lshrrev_b32 v{g}, 4, v{L}"))
        A(I(f"v_and_b32 v{i16}, 15, v{L}"))
        A(I(f"v_lshrrev_b32 v{t+2}, 2, v{i16}"))
        A(I(f"v_lshl_add_u32 v{t+2}, v{g}, 2, v{t+2}"))
        A(I(f"v_and_b32 v{t+3}, 3, v{i16}"))
        A(I(f"v_lshlrev_b32 v{t+3}, 3, v{t+3}"))
        A(I(f"v_bfe_u32 v{t+4}, v{t+2}, 1, 2"))
        A(I(f"v_lshlrev_b32 v{t+4}, 5, v{t+4}"))
        A(I(f"v_lshl_add_u32 v{t+5}, v{t+2}, 7, v{t+3}"))
        A(I(f"v_add3_u32 v{vRd4[0]}, v{t+5}, v{t+4}, s{sWB}"))
        for cb in range(1, 4):
            A(I(f"v_xor_b32 v{vRd4[cb]}, {cb*32}, v{vRd4[0]}"))
        A(I(f"s_lshl_b32 s{sT1}, s{sH}, 2"))
        A(I(f"s_add_u32 s{sT1}, s{sT1}, s{sWAVE}"))
        A(I(f"s_lshl_b32 s{sT1}, s{sT1}, 14"))
        A(I(f"s_add_u32 s{sT1}, s{sT1}, s{sCT}"))
        A(I(f"v_lshlrev_b32 v{t+2}, 10, v{i16}"))
        A(I(f"v_lshl_add_u32 v{t+2}, v{g}, 3, v{t+2}"))
        A(I(f"v_add_u32 v{vXo}, s{sT1}, v{t+2}"))
        for r in range(64):
            A(I(f"v_mov_b32 v{ACC4+r}, 0"))
        A(Need([D[0]]))
        c += reads(0)
        head, dma, zl, adv = loads(7)
        D[7] = dma
        c += [head] + dma[1:] + zl + [adv]

        def step(n, extra_pre=()):
            m = [mfma(vr(ACC4 + (wb*4 + tb)*4), vr(WR[n & 1] + 4*wb), vr(ZR + ((n % 8)*4 + tb)*4),
                      vr(ACC4 + (wb*4 + tb)*4)) for tb in range(4) for wb in range(4)]
            tasks = []
            nd = D[(n + 1) % 8]
            tasks.append(Task("rd", [Need([nd])] + reads(n + 1), 1, 12, prio=0))
            head, dma, zl, adv = loads(n + 8)
            D[n % 8] = dma
            if n + 8 == NH:
                tasks.append(Task("rst", [I(f"s_mov_b32 s{sZo}, 0"), I(f"s_mov_b32 s{sWo}, 0")], 0, 0, prio=0))
            tasks.append(Task("dma", list(extra_pre) + [head] + dma[1:], 4, 11, prio=1))
            for tb in range(4):
                tasks.append(Task("z", [zl[tb]] + ([adv] if tb == 3 else []), 4 * tb + 4, 4 * tb + 4 + (5 if tb < 3 else 0),
                                  prio=2))
            return schedule(m, tasks, 16)

        for n in range(NH):
            ex = []
            if n == 1:
                ex = [self.poll_load(vP4, S_WS, vPO8, f"s{sPOLL}")]
            if n == NH - 8:
                c.append(self.poll_check(vP4, S_WS, vPO8, f"s{sPOLL}", "1"))
                c += self.stamp(242)
            c += step(n, ex)
        c += [I(f"s_mov_b32 s{sJ}, 0")]
        head = self.seg(c, sb, prev)
        def loop_body(sbx, pv):
            b = []
            for n in range(NH, NH + 8):
                b += step(n)
            b += [I(f"s_add_u32 s{sJ}, s{sJ}, 1"), I(f"s_cmp_lt_u32 s{sJ}, 4"), I("s_cbranch_scc1 L_p4loop")]
            return self.seg(b, sbx, pv)
        b1 = loop_body(sb, head)
        b2 = loop_body(sb, b1)
        assert [x.text for x in b1] == [x.text for x in b2], "phase-4 loop is not in steady state"
        e = []
        A = e.append
        xl = [I(f"buffer_load_dwordx2 {vr(XR + 2*wb, 2)}, v{vXo}, {srd(S_X)}, 0 offen offset:{wb*32}") for wb in range(4)]
        A(I("s_waitcnt vmcnt(0) lgkmcnt(0)"))
        e += self.stamp(242)
        e += xl
        A(I("s_barrier"))
        for s in range(4):
            lab, nxt = f"L_red{s}", f"L_red{s+1}"
            A(I(f"{lab}:"))
            if s < 3:
                A(I(f"s_cmp_lg_u32 s{sWAVE}, {s}"))
                A(I(f"s_cbranch_scc1 {nxt}"))
            for tb in range(4):
                if tb == s:
                    continue
                slot = (s - tb - 1) & 3
                for wb in range(4):
                    A(I(f"ds_write_b128 v{vL16[0]}, {vr(ACC4 + (wb*4+tb)*4)} offset:{(tb*3+slot)*4096 + wb*1024}"))
            for wb in range(4):
                for r in range(4):
                    A(I(f"v_mov_b32 v{ZR + wb*4 + r}, v{ACC4 + (wb*4+s)*4 + r}"))
            if s < 3:
                A(I("s_branch L_red4"))
        A(I("L_red4:"))
        A(I("s_waitcnt lgkmcnt(0)"))
        A(I("s_barrier"))
        A(I(f"s_mul_i32 s{sT1}, s{sWAVE}, {3*4096}"))
        A(I(f"v_add_u32 v{vP4}, s{sT1}, v{vL16[0]}"))
        R = ZR + 16
        for slot in range(3):
            for wb in range(4):
                A(I(f"ds_read_b128 {vr(R + (slot*4+wb)*4)}, v{vP4} offset:{slot*4096 + wb*1024}"))
        for wb in range(4):
            x = WR[0] + 4 * wb
            A(I(f"v_lshlrev_b32 v{x}, 16, v{XR+2*wb}"))
            A(I(f"v_and_b32 v{x+1}, 0xffff0000, v{XR+2*wb}"))
            A(I(f"v_lshlrev_b32 v{x+2}, 16, v{XR+2*wb+1}"))
            A(I(f"v_and_b32 v{x+3}, 0xffff0000, v{XR+2*wb+1}"))
        for wb in range(4):
            x = WR[0] + 4 * wb
            for r in range(4):
                o_ = ZR + wb * 4 + r
                A(I(f"v_add_f32 v{o_}, v{o_}, v{R + wb*4 + r}"))
                A(I(f"v_add_f32 v{x+r}, v{x+r}, v{R + (4+wb)*4 + r}"))
                A(I(f"v_add_f32 v{o_}, v{o_}, v{R + (8+wb)*4 + r}"))
                A(I(f"v_add_f32 v{o_}, v{o_}, v{x+r}"))
            A(I(f"v_cvt_pk_bf16_f32 v{x}, v{ZR+wb*4}, v{ZR+wb*4+1}"))
            A(I(f"v_cvt_pk_bf16_f32 v{x+1}, v{ZR+wb*4+2}, v{ZR+wb*4+3}"))
            A(I(f"buffer_store_dwordx2 {vr(x,2)}, v{vXo}, {srd(S_OUT)}, 0 offen offset:{wb*32}"))
        e += self.stamp(242)
        tail = self.seg(e, sb, b2)
        return head + [I(".p2align 6"), I("L_p4loop:")] + b1 + tail

    def build(self):
        o = self.o
        sb = Scoreboard()
        p12 = self.phase12()
        if o.stop == "p2":
            for q in range(4):
                p12 += self.epi_Q(1, q)
            p12 += [I(f"s_lshl_b32 s{sT1}, s{sB}, 2"), I(f"s_add_u32 s{sT1}, s{sT1}, s{sWAVE}"),
                    I(f"s_lshl_b32 s{sT1}, s{sT1}, 14"), I(f"s_add_u32 s{sT1}, s{sT1}, {ZC_OFF}")]
            for q in range(4):
                for ds in range(4):
                    p12.append(I(f"buffer_store_dwordx4 {ar(gQ(q, ds))}, v{vL16[q]}, {srd(S_WS)}, s{sT1} offen "
                                 f"offset:{ds*1024}"))
        code = self.seg(p12, sb)
        if o.stop not in ("p1a", "p2"):
            a, sb3 = self.attention(sb, code)
            code += a
            if o.stop != "p3":
                code += self.phase4(sb3, code)
        code += [I("s_waitcnt vmcnt(0) lgkmcnt(0)"), I("L_exit:"), I("s_endpgm")]
        self.code = code
        txt = HEADER + render(code) + "".join(self.cold) + FOOTER
        return txt


GK0 = -2.0 * math.sqrt(2.0 / math.pi) * math.log2(math.e)
GK1 = GK0 * 0.044715
QSCALE = math.log2(math.e) / math.sqrt(128.0)
BIAS = 8.0
sQS = sGBD + 0
sQS = 3

HEADER = f"""; Fused LayerNorm + compressed-KV causal attention + GeGLU FFN, one persistent launch.
; @launch grid=(256,1,1) block=(256,1,1) lds=163840
.amdgcn_target "amdgcn-amd-amdhsa--gfx950"
.text
.globl {KNAME}
.p2align 8
.type {KNAME},@function
{KNAME}:
"""
FOOTER = f"""    s_endpgm
.section .rodata,"a"
.p2align 6
.amdhsa_kernel {KNAME}
  .amdhsa_next_free_vgpr 512
  .amdhsa_next_free_sgpr 102
  .amdhsa_accum_offset 256
  .amdhsa_group_segment_fixed_size 0
  .amdhsa_kernarg_size 104
  .amdhsa_user_sgpr_count 2
  .amdhsa_user_sgpr_kernarg_segment_ptr 1
  .amdhsa_system_sgpr_workgroup_id_x 1
  .amdhsa_float_denorm_mode_32 3
.end_amdhsa_kernel
"""


def main():
    o = Opt()
    out = "k.s"
    for a in sys.argv[1:]:
        if "=" in a:
            k, v = a.split("=")
            if k == "out":
                out = v
            else:
                cur = getattr(o, k)
                setattr(o, k, v if (cur is None or isinstance(cur, str)) else type(cur)(int(v)))
    g = Gen(o)
    txt = g.build()
    open(out, "w").write(txt)
    for r in g.reports:
        print("sched overflow/total/gaps:", r, file=sys.stderr)


if __name__ == "__main__":
    main()
```

```python
import re

TRANS = ("v_exp_f32", "v_log_f32", "v_rcp_f32", "v_rsq_f32", "v_sqrt_f32", "v_sin_f32", "v_cos_f32")
_REG = re.compile(r"^(-?)(abs\()?([vas])(\d+)\)?$")
_RNG = re.compile(r"^(-?)([vas])\[(\d+):(\d+)\]$")


def regs_of(op):
    op = op.strip()
    m = _REG.match(op)
    if m:
        return [m.group(3) + m.group(4)]
    m = _RNG.match(op)
    if m:
        return [m.group(2) + str(i) for i in range(int(m.group(3)), int(m.group(4)) + 1)]
    if op == "vcc":
        return ["vcc"]
    if op in ("m0", "exec"):
        return [op]
    return []


class Ins:
    __slots__ = ("text", "mn", "kind", "defs", "uses", "srcc", "srcab", "wide_store", "tag", "cost", "nwait", "dpp",
                 "sgpr_uses_vmem", "target")

    def __init__(self, text, tag=None):
        self.text = text
        self.tag = tag
        t = text.split(";")[0].strip()
        self.defs, self.uses, self.srcc, self.srcab = [], [], [], []
        self.wide_store = False
        self.nwait = 1
        self.dpp = False
        self.target = None
        if t.endswith(":"):
            self.mn, self.kind, self.cost, self.nwait = t, "label", 0, 0
            return
        if t.startswith(".") or not t:
            self.mn, self.kind, self.cost, self.nwait = t, "dir", 0, 0
            return
        parts = t.split(None, 1)
        mn = parts[0]
        self.mn = mn
        rest = parts[1] if len(parts) > 1 else ""
        ops = [o.strip() for o in rest.split(",")] if rest else []
        mods = ""
        if ops:
            sp = ops[-1].split(None, 1)
            ops[-1] = sp[0]
            mods = sp[1] if len(sp) > 1 else ""
        R = lambda i: regs_of(ops[i]) if i < len(ops) else []
        self.cost = 4
        if mn.startswith("v_mfma"):
            self.kind = "mfma"
            self.defs = R(0)
            self.srcab = R(1) + R(2)
            self.srcc = R(3)
            self.uses = self.srcab + self.srcc
            self.cost = 8
        elif mn.startswith("v_"):
            self.kind = "trans" if mn.startswith(TRANS) else "valu"
            if self.kind == "trans":
                self.cost = 8
            self.dpp = mn.endswith("_dpp")
            if mn.startswith("v_permlane"):
                self.defs = R(0) + R(1)
                self.uses = R(0) + R(1)
            elif mn.startswith(("v_add_co", "v_addc_co", "v_sub_co")):
                self.defs = R(0) + R(1)
                self.uses = sum((R(i) for i in range(2, len(ops))), [])
            else:
                self.defs = R(0)
                self.uses = sum((R(i) for i in range(1, len(ops))), [])
                if mn.startswith(("v_fmac", "v_writelane", "v_dot2c")) or self.dpp:
                    self.uses += R(0)
        elif mn.startswith("ds_read"):
            self.kind = "dsread"
            self.defs = R(0)
            self.uses = R(1)
        elif mn.startswith("ds_write"):
            self.kind = "dswrite"
            self.uses = sum((R(i) for i in range(len(ops))), [])
        elif mn.startswith("buffer_load"):
            if " lds" in " " + mods:
                self.kind = "dma"
                self.uses = sum((R(i) for i in range(len(ops))), []) + ["m0"]
            else:
                self.kind = "vload"
                self.defs = R(0)
                self.uses = sum((R(i) for i in range(1, len(ops))), [])
            self.cost = 8
        elif mn.startswith(("buffer_store", "buffer_atomic")):
            self.kind = "vstore"
            self.uses = sum((R(i) for i in range(len(ops))), [])
            self.wide_store = mn.endswith(("x3", "x4"))
            self.srcab = R(0)
            self.cost = 8
        elif mn in ("buffer_inv", "buffer_wbl2"):
            self.kind = "vstore"
        elif mn.startswith("s_load"):
            self.kind = "smem"
            self.defs = R(0)
            self.uses = R(1)
        elif mn in ("s_memtime", "s_memrealtime"):
            self.kind = "smem"
            self.defs = R(0)
        elif mn == "s_waitcnt":
            self.kind = "wait"
        elif mn == "s_nop":
            self.kind = "nop"
            self.nwait = int(ops[0]) + 1
            self.cost = 4 * self.nwait
        elif mn == "s_barrier":
            self.kind = "barrier"
        elif mn in ("s_branch",) or mn.startswith("s_cbranch"):
            self.kind = "branch"
            self.target = ops[0]
            if "vcc" in mn:
                self.uses = ["vcc"]
        elif mn == "s_endpgm":
            self.kind = "end"
        elif mn.startswith("s_"):
            self.kind = "salu"
            if mn.startswith(("s_cmp", "s_bitcmp", "s_setprio", "s_sleep")):
                self.uses = sum((R(i) for i in range(len(ops))), [])
            else:
                self.defs = R(0)
                self.uses = sum((R(i) for i in range(1, len(ops))), [])
                if mn.startswith(("s_bitset", "s_addk", "s_mulk")):
                    self.uses += R(0)
                if "saveexec" in mn:
                    self.defs = self.defs + ["exec"]
        else:
            raise ValueError("unknown instruction: " + text)

    def __repr__(self):
        return self.text


def I(text, tag=None):
    return Ins(text, tag)


VM_KINDS = ("vload", "vstore", "dma")
LG_KINDS = ("dsread", "dswrite")


class Scoreboard:
    def __init__(self):
        self.vm = []
        self.lg = []
        self.smem = False
        self.pend = {}

    def copy(self):
        s = Scoreboard()
        s.vm, s.lg, s.smem, s.pend = list(self.vm), list(self.lg), self.smem, dict(self.pend)
        return s

    def _need(self, op):
        if op.kind in VM_KINDS:
            if op in self.vm:
                return (len(self.vm) - 1 - self.vm.index(op), None)
        elif op.kind in LG_KINDS:
            if op in self.lg:
                return (None, len(self.lg) - 1 - self.lg.index(op))
        elif op.kind == "smem":
            if self.smem:
                return (None, 0)
        return (None, None)

    def wait(self, vmN, lgN):
        parts = []
        if vmN is not None and vmN < len(self.vm):
            vmN = min(vmN, 63)
            parts.append(f"vmcnt({vmN})")
            self.vm = self.vm[len(self.vm) - vmN:] if vmN else []
        if lgN is not None and (lgN < len(self.lg) or (lgN == 0 and self.smem)):
            if self.smem:
                lgN = 0
            lgN = min(lgN, 15)
            parts.append(f"lgkmcnt({lgN})")
            self.lg = self.lg[len(self.lg) - lgN:] if lgN else []
            if lgN == 0:
                self.smem = False
        if not parts:
            return None
        live = set(map(id, self.vm)) | set(map(id, self.lg))
        self.pend = {r: o for r, o in self.pend.items() if id(o) in live or (o.kind == "smem" and self.smem)}
        return I("s_waitcnt " + " ".join(parts))

    def wait_ops(self, ops, lg0=False):
        vmN = None
        lgN = 0 if lg0 else None
        ops = [y for x in ops for y in (x.tag if isinstance(x.tag, list) else [x])]
        for op in ops:
            a, b = self._need(op)
            if a is not None:
                vmN = a if vmN is None else min(vmN, a)
            if b is not None:
                lgN = b if lgN is None else min(lgN, b)
        return self.wait(vmN, lgN)

    def before(self, ins):
        ops = [self.pend[r] for r in ins.uses + ins.defs if r in self.pend]
        return self.wait_ops(ops) if ops else None

    def after(self, ins):
        if ins.kind in VM_KINDS:
            self.vm.append(ins)
        elif ins.kind in LG_KINDS:
            self.lg.append(ins)
        elif ins.kind == "smem":
            self.smem = True
        if ins.kind in ("vload", "dsread", "smem"):
            for r in ins.defs:
                self.pend[r] = ins
        if ins.kind == "wait":
            m = re.search(r"vmcnt\((\d+)\)", ins.text)
            n = re.search(r"lgkmcnt\((\d+)\)", ins.text)
            self.wait(int(m.group(1)) if m else None, int(n.group(1)) if n else None)


class Group:
    kind = "group"

    def __init__(self, instrs):
        self.instrs = instrs
        self.cost = sum(i.cost for i in instrs)


def flatten(seq):
    out = []
    for x in seq:
        if x.kind == "group":
            out += flatten(x.instrs)
        else:
            out.append(x)
    return out


class Need:
    kind = "need"
    cost = 4
    nwait = 0
    defs = uses = ()

    def __init__(self, ops, lg0=False):
        self.ops = ops
        self.lg0 = lg0

    def resolve(self):
        out = []
        for o in self.ops:
            o = o() if callable(o) else o
            out += o if isinstance(o, (list, tuple)) else [o]
        return out


def add_waits(seq, sb):
    out = []
    seq = flatten(seq)
    n = len(seq)
    i = 0
    start = True
    while i < n:
        ins = seq[i]
        if start:
            ops = []
            j = i
            while j < n:
                x = seq[j]
                if x.kind in ("label", "branch", "barrier", "need", "wait", "dir", "smem"):
                    break
                ops += [sb.pend[r] for r in list(x.uses) + list(x.defs) if r in sb.pend]
                if x.kind == "mfma" or j - i > 6:
                    break
                j += 1
            if ops:
                w = sb.wait_ops(ops)
                if w:
                    out.append(w)
            start = False
        i += 1
        if ins.kind == "need":
            w = sb.wait_ops(ins.resolve(), ins.lg0)
            if w:
                out.append(w)
            continue
        if ins.kind in ("label", "dir"):
            out.append(ins)
            start = True
            continue
        w = sb.before(ins)
        if w:
            out.append(w)
        if ins.kind in VM_KINDS and len(sb.vm) >= 62:
            out.append(sb.wait(46, None))
        out.append(ins)
        sb.after(ins)
        if ins.kind == "mfma":
            start = True
        if len(sb.vm) > 63:
            raise RuntimeError("more than 63 vm ops outstanding at " + ins.text)
    return out


def batch(ops):
    for o in ops:
        o.tag = ops
    return ops


def _isv(r):
    return r[0] in "va" and r != "vcc"


def _iss(r):
    return (r[0] == "s") or r == "vcc"


def hazard_dist(p, c):
    need = 0
    pk, ck = p.kind, c.kind
    pv = pk in ("valu", "trans")
    cv = ck in ("valu", "trans")
    D = set(p.defs)
    if pv:
        dv = {r for r in D if _isv(r)}
        ds = {r for r in D if _iss(r)}
        if dv:
            if ck == "mfma" and dv & set(c.uses):
                need = max(need, 2)
            if cv and dv & set(c.uses):
                if c.mn.startswith("v_permlane") or c.dpp:
                    need = max(need, 2)
                if c.mn.startswith(("v_readfirstlane", "v_readlane")):
                    need = max(need, 1)
                if pk == "trans" and ck != "trans":
                    need = max(need, 1)
                if pk == "trans" and ck == "trans":
                    need = max(need, 1)
        if ds:
            if cv and ds & set(c.uses):
                need = max(need, 4 if c.mn.startswith(("v_readlane", "v_writelane")) else 2)
            if ck in ("vload", "vstore", "dma") and ds & set(c.uses):
                need = max(need, 5)
            if ck in ("salu", "branch") and ds & set(c.uses):
                need = max(need, 1)
    if pk == "mfma":
        if ck == "mfma":
            if D & set(c.srcab):
                need = max(need, 8)
            ov = D & set(c.srcc)
            if ov and list(c.srcc) != list(p.defs):
                need = max(need, 6)
        elif cv or ck in ("vload", "vstore", "dma", "dsread", "dswrite"):
            if D & (set(c.uses) | set(c.defs)):
                need = max(need, 8)
        if cv and set(p.srcc) & set(c.defs):
            need = max(need, 3)
    if pk == "salu" and "m0" in D and (ck == "dma" or (cv and "m0" in c.uses)):
        need = max(need, 4 if cv else 1)
    if pk == "vstore" and p.wide_store and set(p.srcab) & set(c.defs):
        need = max(need, 2)
    return need


WINDOW = 10


def pad_hazards(seq, prev=()):
    hist = [x for x in prev if x.nwait]
    out = []
    for ins in seq:
        if ins.kind in ("label", "dir"):
            out.append(ins)
            continue
        dist = 0
        short = 0
        for p in reversed(hist[-WINDOW:]):
            n = hazard_dist(p, ins)
            if n > dist:
                short = max(short, n - dist)
            dist += p.nwait
            if dist >= WINDOW:
                break
        if short:
            nop = I(f"s_nop {short - 1}")
            out.append(nop)
            hist.append(nop)
        out.append(ins)
        hist.append(ins)
    return out


def check_hazards(prev, seq):
    a = [x for x in seq if x.kind not in ("label", "dir")][:WINDOW + 2]
    p = pad_hazards(a, prev)
    if len(p) != len(a):
        raise RuntimeError("hazard on edge into: " + " | ".join(x.text for x in p))


class Task:
    def __init__(self, name, instrs, lo=None, hi=None, prio=1, tight=False):
        self.name, self.instrs, self.lo, self.hi, self.prio, self.tight = name, instrs, lo, hi, prio, tight


SCALAR = ("salu", "wait", "nop", "branch", "barrier", "need", "smem")


class Item:
    __slots__ = ("ins", "lo", "hi", "mind", "tgt", "task", "idx", "gap", "n", "rank", "flat")

    def __init__(self, ins, lo, hi, mind, tgt, task, idx):
        self.ins, self.lo, self.hi, self.mind, self.tgt, self.task, self.idx = ins, lo, hi, mind, tgt, task, idx
        self.gap = None
        flat = [x for x in flatten([ins]) if x.kind not in ("label", "dir")]
        self.flat = flat
        n = {"s": 0, "d": 0, "v": 0, "t": 0, "m": 0}
        for x in flat:
            k = x.kind
            if k in SCALAR:
                n["s"] += 1
            elif k in LG_KINDS:
                n["d"] += 1
            elif k == "trans":
                n["t"] += 1
            elif k in VM_KINDS:
                n["m"] += 1
            else:
                n["v"] += 1
        self.n = n
        if ins.kind == "group" or ins.kind == "need":
            self.rank = 0 if not (n["d"] or n["v"] or n["t"] or n["m"]) else (1 if not n["t"] else 4)
        elif n["s"]:
            self.rank = 0
        elif n["d"]:
            self.rank = 1
        elif n["m"]:
            self.rank = 2
        elif n["v"]:
            self.rank = 3
        else:
            self.rank = 4


def _dep(a, b):
    if a.ins.kind in ("group", "need", "barrier", "branch") or b.ins.kind in ("group", "need", "barrier", "branch"):
        return True
    if a.n["s"] and b.n["s"]:
        return True
    if (a.n["d"] or a.n["m"]) and (b.n["d"] or b.n["m"]):
        return True
    for x in a.flat:
        for y in b.flat:
            if set(x.defs) & (set(y.uses) | set(y.defs)) or set(x.uses) & set(y.defs):
                return True
    return False


def order_gap(items):
    out = []
    rest = sorted(items, key=lambda it: (it.rank, it.task.prio, getattr(it.task, 'num', 0), it.idx))
    while rest:
        for k, it in enumerate(rest):
            if not any(o is not it and o.task is it.task and o.idx < it.idx and _dep(o, it) for o in rest):
                out.append(rest.pop(k))
                break
    return out


def gap_cost(items, reserved=False):
    if not items:
        return 0
    seq = [x for it in order_gap(items) for x in it.flat]
    t = 4 if reserved else 0
    free_scalar = not reserved
    v = 0
    seen_valu = seen_trans = False
    nval = 0
    for x in seq:
        k = x.kind
        if k in SCALAR:
            if k == "need":
                pass
            if free_scalar and v == 0:
                free_scalar = False
            else:
                v += 1
        elif k in LG_KINDS:
            v += 1 + (2 if seen_valu else 0) + (2 if seen_trans else 0)
        elif k == "trans":
            v += 2
            seen_trans = True
        elif k in VM_KINDS:
            v += 2 + (0 if free_scalar else 1) + (1 if seen_valu else 0)
            free_scalar = False
        else:
            v += 1
            nval += 1
            seen_valu = True
    c = max(0, v - 2) * 4
    if nval == 2 and v == 2:
        c += 1
    return c


def schedule(mf, tasks, budget=8, overflow_report=None, reserve=(), iters=4000, seed=1):
    import random
    rnd = random.Random(seed)
    n = len(mf)
    reserve = set(reserve)
    slots = [[] for _ in range(n + 1)]
    cost = [0] * (n + 1)
    chains = []
    for num, t in enumerate(tasks):
        t.num = num
    for t in sorted(tasks, key=lambda t: t.prio):
        k = len(t.instrs)
        items = []
        for i, e in enumerate(t.instrs):
            if isinstance(e, tuple):
                ins, lo, hi = e[:3]
                mind = e[3] if len(e) > 3 else 0
                lo = t.lo if lo is None else lo
                hi = t.hi if hi is None else hi
                tgt = lo if (t.tight or t.lo is None) else max(lo, min(hi, t.lo + int(i * (t.hi - t.lo + 1) / k)))
            else:
                ins, lo, hi, mind = e, t.lo, t.hi, 0
                tgt = lo if t.tight else lo + int(i * (hi - lo + 1) / k)
            items.append(Item(ins, max(0, lo), min(n, hi), mind, tgt, t, i))
        for i in range(k - 2, -1, -1):
            items[i].hi = min(items[i].hi, items[i + 1].hi - items[i + 1].mind)
        cur = -1
        for i, it in enumerate(items):
            lo = max(it.lo, (cur + it.mind) if i else it.lo)
            if lo > it.hi:
                raise RuntimeError(f"empty window for task {t.name}[{i}]: {lo}..{it.hi}")
            tgt = min(max(it.tgt, lo), it.hi)
            span = 6 if not t.tight else 3
            best = None
            for g in range(max(lo, tgt - (0 if t.tight else 2)), min(it.hi, tgt + span) + 1):
                d = gap_cost(slots[g] + [it], g in reserve) - cost[g]
                key = (d, abs(g - tgt))
                if best is None or key < best[0]:
                    best = (key, g)
            g = best[1]
            it.gap = g
            slots[g].append(it)
            cost[g] = gap_cost(slots[g], g in reserve)
            cur = g
        chains.append(items)
    allit = [(c, i) for c in chains for i in range(len(c))]

    def rng(c, i):
        it = c[i]
        lo = max(it.lo, c[i - 1].gap + it.mind) if i else it.lo
        hi = min(it.hi, c[i + 1].gap - c[i + 1].mind) if i + 1 < len(c) else it.hi
        return lo, hi

    def move(it, g):
        slots[it.gap].remove(it)
        cost[it.gap] = gap_cost(slots[it.gap], it.gap in reserve)
        it.gap = g
        slots[g].append(it)
        cost[g] = gap_cost(slots[g], g in reserve)

    for rounds in range(iters):
        hot = [(c, i) for (c, i) in allit if cost[c[i].gap] > 0]
        if not hot:
            break
        improved = False
        rnd.shuffle(hot)
        for c, i in hot:
            it = c[i]
            if cost[it.gap] == 0:
                continue
            lo, hi = rng(c, i)
            g0 = it.gap
            rest = [x for x in slots[g0] if x is not it]
            gain = cost[g0] - gap_cost(rest, g0 in reserve)
            best = None
            for g in range(max(lo, g0 - 24), min(hi, g0 + 24) + 1):
                if g == g0:
                    continue
                d = gap_cost(slots[g] + [it], g in reserve) - cost[g] - gain
                key = (d, abs(g - it.tgt))
                if best is None or key < best[0]:
                    best = (key, g)
            if best and best[0][0] < 0:
                move(it, best[1])
                improved = True
        if not improved:
            moved = 0
            for _ in range(min(200, 4 * len(allit))):
                c, i = rnd.choice(allit)
                it = c[i]
                lo, hi = rng(c, i)
                if hi <= lo:
                    continue
                g = rnd.randint(max(lo, it.gap - 3), min(hi, it.gap + 3))
                if g == it.gap:
                    continue
                g0 = it.gap
                rest = [x for x in slots[g0] if x is not it]
                d = gap_cost(slots[g] + [it], g in reserve) - cost[g] - (cost[g0] - gap_cost(rest, g0 in reserve))
                if d <= 0:
                    move(it, g)
                    moved += 1
            if rounds > 6 and n > 200:
                break
            if rounds > 300:
                break
    out = []
    for g in range(n + 1):
        out += [it.ins for it in order_gap(slots[g])]
        if g < n:
            out.append(mf[g])
    if overflow_report is not None:
        overflow_report.append((sum(cost), n))
    return out


def estimate(seq):
    tot = 0
    cur = []

    class T:
        prio = 0
    for x in seq:
        if x.kind in ("label", "dir"):
            continue
        if x.kind == "mfma":
            tot += 16 + gap_cost([Item(Group(cur), 0, 0, 0, 0, T, 0)] if cur else [])
            cur = []
        else:
            cur.append(x)
    return tot + 4 * len(cur)


def render(seq):
    lines = []
    for ins in seq:
        if ins.kind == "label":
            lines.append(ins.text)
        elif ins.kind == "dir":
            lines.append(ins.text)
        else:
            lines.append("    " + ins.text)
    return "\n".join(lines) + "\n"


def verify_order(ref, got):
    def scan(seq):
        last, seen = {}, {}
        for x in flatten(seq):
            if x.kind in ("label", "dir", "need", "wait", "nop"):
                continue
            seen[id(x)] = (x, tuple((r, last.get(r)) for r in x.uses if r != "vcc" or True))
            for r in x.defs:
                last[r] = id(x)
        return seen, last
    a, la = scan(ref)
    b, lb = scan(got)
    assert set(a) == set(b), "instruction sets differ: " + str([a[k][0].text for k in set(a) - set(b)] +
                                                                [b[k][0].text for k in set(b) - set(a)])
    for k in a:
        if a[k][1] != b[k][1]:
            bad = [(r, a.get(p, [None])[0], b.get(q, [None])[0]) for (r, p), (_, q) in zip(a[k][1], b[k][1]) if p != q]
            raise RuntimeError(f"order violated for {a[k][0].text}: {bad}")
    for r in la:
        if la[r] != lb[r]:
            raise RuntimeError(f"last writer of {r} differs")


def merge_waits(x, y):
    def split(seq):
        out, w = [], {}
        for i in seq:
            if i.kind == "wait":
                for nm, v in re.findall(r"(vmcnt|lgkmcnt)\((\d+)\)", i.text):
                    w[nm] = min(w.get(nm, 99), int(v))
            else:
                out.append((w, i))
                w = {}
        return out
    a, b = split(x), split(y)
    assert [i.text for _, i in a] == [i.text for _, i in b], "loop bodies differ in more than waits"
    out = []
    for (wa, i), (wb, _) in zip(a, b):
        w = {k: min(wa.get(k, 99), wb.get(k, 99)) for k in set(wa) | set(wb)}
        if w:
            out.append(I("s_waitcnt " + " ".join(f"{k}({w[k]})" for k in ("vmcnt", "lgkmcnt") if k in w)))
        out.append(i)
    return out
```

```python
import math
import struct
import sys

from asmir import (I, Ins, Group, Need, Task, Scoreboard, add_waits, pad_hazards, check_hazards, schedule, render,
                   flatten, batch, estimate, verify_order, merge_waits)

KNAME = "parallel_sum__compressed_kv_cla__geglu_ffn__prompt_kernel"


class Opt:
    stop = None
    stamps = False
    G = 4
    NS = 10
    LEAD = 6
    spin = 1 << 16
    prefetch = 2
    xnslope = 88
    xn0 = 600
    lead4 = 8
    chk4 = 6
    G12 = 4
    lead12 = 11
    st_lo = 575
    st_hi = 1420
    seed = 1
    budget = 8
    timeit = ""
    drop = ""
    stflag = "sc1"
    ldflag = "sc1"


def fbits(x):
    return "0x%08x" % struct.unpack("<I", struct.pack("<f", x))[0]


XN_OFF = 0
KF_OFF = 2 << 20
VF_OFF = 18 << 20
ZC_OFF = 34 << 20
ZH_OFF = 50 << 20
FL_OFF = 56 << 20
FL_XN, FL_KV, FL_H, FL_C = FL_OFF, FL_OFF + 1024, FL_OFF + 5120, FL_OFF + 6144
FL_E = FL_OFF + 7168
TS_OFF = 57 << 20
EX_OFF = 64 << 20
WS_SIZE = 72 << 20
OOB = 0x7FFFFF00

S_X, S_CKV, S_WQ, S_WUK, S_WUV, S_WO, S_WG, S_WU, S_WD, S_OUT, S_DBG, S_WS = range(4, 52, 4)
S_KV = S_WU
S_ZH = S_CKV
S_ZC = S_WQ
sWAVE, sH, sW, sB, sT0, sW2K, sTOKB, sKFB, sVFB = range(52, 61)
sXN = [61, 62, 63, 64]
sZH = [65, 66, 67, 68]
sZC = [69, 70, 71, 72]
sT1, sT2, sT3 = 73, 74, 75
sM0, sM1 = 76, 78
sEV = 80
sJ, sSOFF, sWR, sRD = 82, 83, 84, 85
sNM1 = [86, 87, 88, 89]
sNM2 = [90, 91, 92, 93]
sFXN, sFKV, sFH, sFC = 94, 95, 96, 97
sSPIN, sGBD, sPOLL = sT3, 99, 100
sST = 101
sK2 = [80, 81, 82, 85]
sACC = 98
TS = 2


def srd(b):
    return f"s[{b}:{b+3}]"


def vr(b, n=4):
    return f"v[{b}:{b+n-1}]" if n > 1 else f"v{b}"


def ar(b, n=4):
    return f"a[{b}:{b+n-1}]" if n > 1 else f"a{b}"


MF = "v_mfma_f32_16x16x32_bf16"


def mfma(d, a, b, c):
    return I(f"{MF} {d}, {a}, {b}, {c}")


ACC = [0, 64, 128]
WFB = [192, 200, 208]
PK = [216, 220, 224]
vG0, vG1, vGK = 228, 229, 230
vPOLL = 231
vRD = [232, 233, 234, 235]
vRD64 = [236, 237]
vRD32 = 238
vWO = [239, 240]
vGA = [241, 242]
vGB = [243, 244]
vTRD = [241, 242]
vL16 = [245, 246, 247, 248]
vONE = 249
vPO32 = 250
vPO8 = 251
vGBS = 252
vC0, vC1 = 253, 254
vLANE = 255
vX16 = [216, 217, 218, 219]
vTO = list(range(128, 136))
vLN = 136
vPFW = 176
LNBUF = 7 * 8192
TOKB = 65536
HV = dict(K0=(0, 1), K1=(2, 3), V0=(4, 5), V1=(1, 3), GA=(0, 5), GB=(3, 3), Q0=(2, 4), Q1=(1, 0))


def areg(ps, wb, tb):
    t = 4 * wb + tb
    return 32 * HV[ps][t >> 3] + 4 * (t & 7)


aO = lambda db, q: (q * 8 + db) * 4
aS = lambda q, kb: 128 + (q * 2 + kb) * 4
aC = lambda q, kb: 160 + (q * 2 + kb) * 4
aP = lambda q: 192 + q * 4
aE = [208, 216, 224]
vOR, vOR2 = 232, 233
vARD = 234
vDM = [235, 236]
vT = [237, 238, 239, 240]
vHP = 241
gQ = lambda q, ds: ds * 16 + q * 4
gK = lambda kb, ds: 64 + (kb * 4 + ds) * 4
gV = lambda db: 96 + db * 4
gL = lambda q: 128 + q * 4
gONE = 144
TF = lambda tb, ks: (ks * 4 + tb) * 4


class Gen:
    def __init__(self, opt):
        self.o = opt
        self.out = []
        self.cold = []
        self.nlab = 0
        self.reports = []
        self.nstamp = 0

    def lab(self, p):
        self.nlab += 1
        return f"L_{p}_{self.nlab}"

    def stamp(self, vt=None):
        if not self.o.stamps:
            return []
        vt = vPOLL if vt is None else vt
        k = self.nstamp
        self.nstamp += 1
        return [Group([I(f"s_memtime s[{TS}:{TS+1}]"), I(f"s_memrealtime s[{sT2}:{sT2+1}]"),
                       I("s_waitcnt lgkmcnt(0)"), I("s_mov_b64 exec, 1"),
                       I(f"v_mov_b32 v{vt}, s{TS}"),
                       I(f"s_add_u32 s{TS}, s{sST}, {k*4}"),
                       I(f"buffer_store_dword v{vt}, v{vC0}, {srd(S_WS)}, s{TS} offen"),
                       I("s_nop 1"),
                       I(f"v_mov_b32 v{vt}, s{sT2}"),
                       I(f"buffer_store_dword v{vt}, v{vC0}, {srd(S_WS)}, s{TS} offen offset:64"),
                       I("s_nop 1"),
                       I(f"v_mov_b32 v{vt}, s{sACC}"),
                       I(f"buffer_store_dword v{vt}, v{vC0}, {srd(S_WS)}, s{TS} offen offset:128"),
                       I("s_nop 1"), I("s_mov_b64 exec, -1")])]

    def timed(self, seq):
        if not self.o.stamps:
            return seq
        return [I("s_memtime s[0:1]")] + seq + [I(f"s_memtime s[{sM0}:{sM0+1}]"), I("s_waitcnt lgkmcnt(0)"),
                                                I(f"s_sub_u32 s0, s{sM0}, s0"), I(f"s_add_u32 s{sACC}, s{sACC}, s0")]

    def poll_check(self, vreg, srdb, voff, soff, val, cmp="ne", split=False):
        slow, back = self.lab("spin"), self.lab("back")
        self.cold.append(f"""{slow}:
    s_mov_b32 s{sSPIN}, {self.o.spin}
{slow}_l:
    buffer_load_dword v{vreg}, v{voff}, {srd(srdb)}, {soff} offen sc1
    s_waitcnt vmcnt(0)
    v_cmp_{cmp}_u32 vcc, {val}, v{vreg}
    s_nop 1
    s_cbranch_vccz {back}
    s_sub_u32 s{sSPIN}, s{sSPIN}, 1
    s_cmp_lg_u32 s{sSPIN}, 0
    s_cbranch_scc1 {slow}_l
    s_branch {back}
""")
        a, b = I(f"v_cmp_{cmp}_u32 vcc, {val}, v{vreg}"), Group([I(f"s_cbranch_vccnz {slow}"), I(f"{back}:")])
        return [a, (b, None, None, 2)] if split else Group([a, b])

    def poll_load(self, vreg, srdb, voff, soff):
        return I(f"buffer_load_dword v{vreg}, v{voff}, {srd(srdb)}, {soff} offen sc1")

    def setup(self):
        c = []
        A = c.append
        A(I("s_cmp_ge_u32 s2, 256"))
        A(I("s_cbranch_scc1 L_exit"))
        ptrs = [(S_CKV, 8, 2097152), (S_WUK, 24, 4194304), (S_X, 0, 2097152), (S_WS, 96, WS_SIZE), (S_DBG, 88, 256),
                (S_WUV, 32, 4194304), (S_WQ, 16, 4194304), (S_WO, 40, 4194304), (S_WG, 56, 1409024),
                (S_WU, 64, 1409024), (S_WD, 72, 1409024), (S_OUT, 80, 2097152)]
        for b, off, n in ptrs:
            A(I(f"s_load_dwordx2 s[{b}:{b+1}], s[0:1], {off}"))
        A(I(f"v_and_b32 v{vLANE}, 63, v0"))
        A(I("v_lshrrev_b32 v1, 6, v0"))
        A(I(f"s_mov_b32 s{sB}, s2"))
        A(I(f"v_readfirstlane_b32 s{sWAVE}, v1"))
        for b, off, n in ptrs:
            A(I(f"s_mov_b32 s{b+2}, {n}"))
            A(I(f"s_mov_b32 s{b+3}, 0x20000"))
        A(I(f"s_and_b32 s{sT0}, s{sB}, 7"))
        A(I(f"s_lshl_b32 s{sT0}, s{sT0}, 2"))
        A(I(f"s_bfe_u32 s{sT1}, s{sB}, 0x20003"))
        A(I(f"s_add_u32 s{sH}, s{sT0}, s{sT1}"))
        A(I(f"s_lshr_b32 s{sW}, s{sB}, 5"))
        A(I(f"s_lshl_b32 s{sW2K}, s{sWAVE}, 11"))
        A(I(f"s_mul_i32 s{sTOKB}, s{sWAVE}, 24576"))
        A(I(f"s_add_u32 s{sTOKB}, s{sTOKB}, {TOKB}"))
        A(I(f"s_add_u32 s{sT0}, s{sH}, s{sW}"))
        for i in range(4):
            A(I(f"s_add_u32 s{sT1}, s{sT0}, {i}"))
            A(I(f"s_and_b32 s{sT1}, s{sT1}, 3"))
            A(I(f"s_lshl_b32 s{sK2[i]}, s{sT1}, 8"))
        L = vLANE
        A(I(f"v_lshrrev_b32 v1, 3, v{L}"))
        A(I(f"v_lshrrev_b32 v2, 4, v{L}"))
        A(I(f"v_and_b32 v3, 7, v{L}"))
        A(I(f"s_lshl_b32 s{sT0}, s{sW}, 2"))
        A(I(f"s_add_u32 s{sT0}, s{sT0}, s{sWAVE}"))
        A(I(f"s_lshl_b32 s{sT0}, s{sT0}, 16"))
        A(I(f"v_xor_b32 v4, v3, v2"))
        A(I(f"v_lshlrev_b32 v5, 10, v1"))
        A(I(f"v_lshl_add_u32 v6, v4, 4, v5"))
        A(I(f"v_add_u32 v{vTO[0]}, s{sT0}, v6"))
        A(I(f"v_xor_b32 v7, 64, v{vTO[0]}"))
        for p in range(1, 8):
            src = 7 if p & 1 else vTO[0]
            A(I(f"v_add_u32 v{vTO[p]}, {p*8192 - (p&3)*1024}, v{src}"))
        A(I(f"v_lshrrev_b32 v8, 5, v{L}"))
        A(I(f"v_and_b32 v9, 3, v1"))
        A(I(f"v_lshl_add_u32 v9, v8, 3, v9"))
        A(I(f"s_lshr_b32 s{sT0}, s{sWAVE}, 1"))
        A(I(f"s_lshl_b32 s{sT0}, s{sT0}, 5"))
        A(I(f"s_and_b32 s{sT1}, s{sWAVE}, 1"))
        A(I(f"s_lshl_b32 s{sT1}, s{sT1}, 2"))
        A(I(f"s_add_u32 s{sT0}, s{sT0}, s{sT1}"))
        A(I(f"v_add_u32 v9, s{sT0}, v9"))
        A(I(f"v_lshlrev_b32 v10, 1, v2"))
        A(I(f"v_xor_b32 v10, v3, v10"))
        A(I(f"v_lshlrev_b32 v10, 4, v10"))
        A(I(f"s_lshl_b32 s{sT0}, s{sH}, 8"))
        A(I(f"v_lshl_add_u32 v11, v9, 13, v10"))
        A(I(f"v_add_u32 v{vWO[0]}, s{sT0}, v11"))
        A(I(f"v_add_u32 v{vWO[1]}, {16*8192-1024}, v{vWO[0]}"))
        A(I(f"s_lshl_b32 s{sT0}, s{sB}, 2"))
        A(I(f"s_add_u32 s{sT0}, s{sT0}, s{sWAVE}"))
        A(I(f"s_lshl_b32 s{sT0}, s{sT0}, 11"))
        A(I(f"v_and_b32 v12, 31, v{L}"))
        A(I(f"v_lshlrev_b32 v13, 10, v8"))
        A(I(f"v_lshl_add_u32 v13, v12, 4, v13"))
        A(I(f"v_add_u32 v{vLN+32}, s{sT0}, v13"))
        A(I(f"v_mov_b32 v{vC0}, 0"))
        A(I(f"v_mov_b32 v{vC1}, 1"))
        A(I(f"v_mov_b32 v14, {OOB}"))
        A(I("v_cmp_eq_u32 vcc, 0, v0"))
        A(I(f"v_lshlrev_b32 v{vPO32}, 2, v12"))
        A(I(f"v_lshlrev_b32 v{vPO8}, 2, v3"))
        A(I(f"v_cndmask_b32 v{vONE}, v14, v{vC0}, vcc"))
        A(I(f"s_lshr_b32 s{sT0}, s{sB}, 4"))
        A(I(f"s_sub_u32 s{sT1}, 15, s{sT0}"))
        A(I(f"s_min_u32 s{sT1}, s{sT0}, s{sT1}"))
        A(I(f"s_lshl_b32 s{sT1}, s{sT1}, 7"))
        A(I(f"s_lshr_b32 s{sT0}, s{sB}, 7"))
        A(I(f"s_lshl_b32 s{sT0}, s{sT0}, 4"))
        A(I(f"s_and_b32 s{sT2}, s{sB}, 15"))
        A(I(f"s_add_u32 s{sT0}, s{sT0}, s{sT2}"))
        A(I(f"s_lshl_b32 s{sT0}, s{sT0}, 2"))
        A(I(f"s_add_u32 s{sFXN}, s{sT0}, s{sT1}"))
        A(I(f"s_add_u32 s{sFXN}, s{sFXN}, {FL_XN}"))
        A(I(f"s_lshl_b32 s{sT0}, s{sH}, 7"))
        A(I(f"s_lshl_b32 s{sT1}, s{sW}, 2"))
        A(I(f"s_add_u32 s{sFKV}, s{sT0}, s{sT1}"))
        A(I(f"s_add_u32 s{sFKV}, s{sFKV}, {FL_KV}"))
        A(I(f"s_lshl_b32 s{sT0}, s{sW}, 7"))
        A(I(f"s_lshl_b32 s{sT1}, s{sH}, 2"))
        A(I(f"s_add_u32 s{sT0}, s{sT0}, s{sT1}"))
        A(I(f"s_add_u32 s{sFH}, s{sT0}, {FL_H}"))
        A(I(f"s_add_u32 s{sFC}, s{sT0}, {FL_C}"))
        if self.o.stamps:
            A(I(f"s_lshl_b32 s{sST}, s{sB}, 2"))
            A(I(f"s_add_u32 s{sST}, s{sST}, s{sWAVE}"))
            A(I(f"s_lshl_b32 s{sST}, s{sST}, 8"))
            A(I(f"s_mov_b32 s{sACC}, 0"))
            A(I(f"s_add_u32 s{sST}, s{sST}, {TS_OFF}"))
        return c

    def setup2(self):
        c = []
        A = c.append
        L = vLANE
        t = vLN + 24
        g, i16 = t, t + 1
        A(I(f"v_lshrrev_b32 v{g}, 4, v{L}"))
        A(I(f"v_and_b32 v{i16}, 15, v{L}"))
        A(I(f"v_lshrrev_b32 v{t+2}, 2, v{i16}"))
        A(I(f"v_lshl_add_u32 v{t+2}, v{g}, 2, v{t+2}"))
        A(I(f"v_and_b32 v{t+3}, 3, v{i16}"))
        A(I(f"v_lshlrev_b32 v{t+3}, 3, v{t+3}"))
        A(I(f"v_bfe_u32 v{t+4}, v{t+2}, 1, 2"))
        A(I(f"v_lshlrev_b32 v{t+4}, 5, v{t+4}"))
        A(I(f"v_lshl_add_u32 v{t+5}, v{t+2}, 7, v{t+3}"))
        A(I(f"v_add_u32 v{vRD[0]}, v{t+5}, v{t+4}"))
        for cb in range(1, 4):
            A(I(f"v_xor_b32 v{vRD[cb]}, {cb*32}, v{vRD[0]}"))
        A(I(f"v_and_b32 v{t+4}, 1, v{g}"))
        A(I(f"v_lshlrev_b32 v{t+4}, 5, v{t+4}"))
        A(I(f"v_lshl_add_u32 v{t+5}, v{t+2}, 6, v{t+3}"))
        A(I(f"v_add_u32 v{vRD64[0]}, v{t+5}, v{t+4}"))
        A(I(f"v_xor_b32 v{vRD64[1]}, 32, v{vRD64[0]}"))
        A(I(f"v_lshl_add_u32 v{vRD32}, v{t+2}, 5, v{t+3}"))
        A(I(f"v_lshrrev_b32 v{t+4}, 1, v{i16}"))
        A(I(f"v_xor_b32 v{t+4}, v{g}, v{t+4}"))
        A(I(f"v_lshlrev_b32 v{t+4}, 4, v{t+4}"))
        A(I(f"v_lshl_add_u32 v{t+4}, v{i16}, 7, v{t+4}"))
        A(I(f"v_add_u32 v{vTRD[0]}, s{sTOKB}, v{t+4}"))
        A(I(f"v_xor_b32 v{vTRD[1]}, 64, v{vTRD[0]}"))
        A(I(f"v_lshlrev_b32 v{vL16[0]}, 4, v{L}"))
        for i in range(1, 4):
            A(I(f"v_add_u32 v{vL16[i]}, {4096*i}, v{vL16[0]}"))
        return c

    def setup3(self):
        c = []
        A = c.append
        L = vLANE
        A(I(f"s_lshl_b32 s{sT1}, s{sH}, 6"))
        A(I(f"s_lshl_b32 s{sT2}, s{sW}, 3"))
        A(I(f"s_add_u32 s{sT1}, s{sT1}, s{sT2}"))
        A(I(f"s_lshl_b32 s{sT2}, s{sWAVE}, 1"))
        A(I(f"s_add_u32 s{sT1}, s{sT1}, s{sT2}"))
        A(I(f"s_lshl_b32 s{sT1}, s{sT1}, 13"))
        A(I(f"s_add_u32 s{sKFB}, s{sT1}, {KF_OFF}"))
        A(I(f"s_add_u32 s{sVFB}, s{sT1}, {VF_OFF}"))
        B = sNM2
        A(I(f"s_sub_u32 s{sT1}, 15, s{sW}"))
        A(I(f"s_lshl_b32 s{sT1}, s{sT1}, 3"))
        A(I(f"s_lshl_b32 s{sT2}, s{sW}, 3"))
        A(I(f"s_sub_u32 s{sT3}, 7, s{sWAVE}"))
        A(I(f"s_add_u32 s{B[0]}, s{sT1}, s{sT3}"))
        A(I(f"s_add_u32 s{B[1]}, s{sT1}, s{sWAVE}"))
        A(I(f"s_add_u32 s{B[2]}, s{sT2}, s{sT3}"))
        A(I(f"s_add_u32 s{B[3]}, s{sT2}, s{sWAVE}"))
        for q in range(4):
            A(I(f"s_lshl_b32 s{sXN[q]}, s{B[q]}, 14"))
            if XN_OFF:
                A(I(f"s_add_u32 s{sXN[q]}, s{sXN[q]}, {XN_OFF}"))
            A(I(f"s_lshr_b32 s{sT1}, s{B[q]}, 2"))
            A(I(f"s_and_b32 s{sT2}, s{B[q]}, 3"))
            A(I(f"s_lshl_b32 s{sT2}, s{sT2}, 10"))
            A(I(f"s_mul_i32 s{sZH[q]}, s{sT1}, {43*4096}"))
            A(I(f"s_add_u32 s{sZH[q]}, s{sZH[q]}, s{sT2}"))
            A(I(f"s_lshl_b32 s{sT3}, s{sH}, 12"))
            A(I(f"s_add_u32 s{sZH[q]}, s{sZH[q]}, s{sT3}"))
            A(I(f"s_add_u32 s{sZH[q]}, s{sZH[q]}, {ZH_OFF}"))
            A(I(f"s_lshl_b32 s{sZC[q]}, s{sT1}, 19"))
            A(I(f"s_add_u32 s{sZC[q]}, s{sZC[q]}, s{sT2}"))
            A(I(f"s_lshl_b32 s{sT3}, s{sH}, 14"))
            A(I(f"s_add_u32 s{sZC[q]}, s{sZC[q]}, s{sT3}"))
            A(I(f"s_add_u32 s{sZC[q]}, s{sZC[q]}, {ZC_OFF}"))
        A(I(f"s_lshr_b32 s{sT1}, s{sH}, 1"))
        A(I(f"s_add_u32 s{sT1}, s{sT1}, 32"))
        A(I(f"s_sub_u32 s{sT1}, s{sT1}, s{sH}"))
        A(I(f"s_lshl_b32 s{sGBD}, s{sT1}, 12"))
        A(Group([I(f"s_cmp_lt_u32 s{sWAVE}, 2"), I(f"s_cselect_b32 s{S_WG}, s{S_WG}, s{S_WU}"),
                 I(f"s_cselect_b32 s{S_WG+1}, s{S_WG+1}, s{S_WU+1}")]))
        A(I(f"v_mov_b32 v{vGK}, {fbits(GK1)}"))
        for i in range(4):
            A(I(f"s_lshl_b32 s{sT1}, s{sK2[i]}, 4"))
            A(I(f"v_add_u32 v{vX16[i]}, s{sT1}, v{vL16[0]}"))
        return c

    def setup4(self):
        c = []
        A = c.append
        L = vLANE
        t = PK[2]
        A(I(f"v_lshrrev_b32 v{t}, 4, v{L}"))
        A(I(f"v_bfe_u32 v{t+1}, v{L}, 2, 2"))
        A(I(f"v_lshl_add_u32 v{t+1}, v{t}, 3, v{t+1}"))
        A(I(f"s_and_b32 s{sT1}, s{sWAVE}, 1"))
        A(I(f"s_lshl_b32 s{sT2}, s{sT1}, 5"))
        A(I(f"v_add_u32 v{t+1}, s{sT2}, v{t+1}"))
        A(I(f"v_mul_u32_u24 v{t+1}, 2752, v{t+1}"))
        A(I(f"v_and_b32 v{t}, 1, v{t}"))
        A(I(f"v_lshlrev_b32 v{t}, 1, v{t}"))
        A(I(f"v_and_b32 v{t+2}, 3, v{L}"))
        A(I(f"v_xor_b32 v{t}, v{t}, v{t+2}"))
        A(I(f"v_lshl_add_u32 v{t}, v{t}, 4, v{t+1}"))
        A(I(f"s_lshl_b32 s{sT2}, s{sH}, 6"))
        A(I(f"v_add_u32 v{vGA[0]}, s{sT2}, v{t}"))
        A(I(f"v_add_u32 v{vGA[1]}, {4*2752-1024}, v{vGA[0]}"))
        A(I(f"v_bfe_u32 v{t}, v{L}, 3, 2"))
        A(I(f"v_bfe_u32 v{t+1}, v{L}, 1, 2"))
        A(I(f"v_lshl_add_u32 v{t}, v{t}, 3, v{t+1}"))
        A(I(f"v_lshrrev_b32 v{t+1}, 5, v{L}"))
        A(I(f"v_lshl_add_u32 v{t}, v{t+1}, 2, v{t}"))
        A(I(f"s_lshl_b32 s{sT2}, s{sT1}, 6"))
        A(I(f"v_add_u32 v{t}, s{sT2}, v{t}"))
        A(I(f"v_mul_u32_u24 v{t}, 2752, v{t}"))
        A(I(f"v_and_b32 v{t+1}, 1, v{L}"))
        A(I(f"v_lshl_add_u32 v{t}, v{t+1}, 4, v{t}"))
        A(I(f"s_min_u32 s{sT2}, s{sH}, 21"))
        A(I(f"s_lshl_b32 s{sT2}, s{sT2}, 5"))
        A(I(f"s_add_u32 s{sT2}, s{sT2}, 2048"))
        A(I(f"v_add_u32 v{vGB[0]}, s{sT2}, v{t}"))
        A(I(f"v_add_u32 v{vGB[1]}, {32*2752-1024}, v{vGB[0]}"))
        A(I(f"s_and_b32 s{sT2}, s{sH}, 1"))
        A(I(f"s_lshl_b32 s{sT2}, s{sT2}, 3"))
        A(Group([I(f"s_cmp_lt_u32 s{sH}, 22"), I(f"s_cselect_b32 s{sT2}, s{sT2}, {OOB}")]))
        A(I(f"v_add_u32 v{vGBS}, s{sT2}, v{vL16[0]}"))
        return c

    def ln_compute(self):
        R = vLN
        X = vLN + 8
        t = vLN + 24
        c = []
        A = c.append
        for i in range(8):
            A(I(f"v_lshlrev_b32 v{X+2*i}, 16, v{R+i}"))
            A(I(f"v_and_b32 v{X+2*i+1}, 0xffff0000, v{R+i}"))

        def reduce32(r):
            for sh in (8, 4, 2, 1):
                A(I(f"v_add_f32_dpp v{r}, v{r}, v{r} row_ror:{sh} row_mask:0xf bank_mask:0xf"))
            A(I(f"v_mov_b32 v{t+7}, v{r}"))
            A(I(f"v_permlane16_swap_b32 v{r}, v{t+7}"))
            A(I(f"v_add_f32 v{r}, v{r}, v{t+7}"))
        A(I(f"v_add_f32 v{t}, v{X}, v{X+1}"))
        A(I(f"v_add_f32 v{t+1}, v{X+2}, v{X+3}"))
        for i in range(4, 16, 2):
            A(I(f"v_add_f32 v{t}, v{t}, v{X+i}"))
            A(I(f"v_add_f32 v{t+1}, v{t+1}, v{X+i+1}"))
        A(I(f"v_add_f32 v{t}, v{t}, v{t+1}"))
        reduce32(t)
        A(I(f"v_mul_f32 v{t}, {fbits(1.0/512)}, v{t}"))
        for i in range(16):
            A(I(f"v_sub_f32 v{X+i}, v{X+i}, v{t}"))
        A(I(f"v_mul_f32 v{t+1}, v{X}, v{X}"))
        A(I(f"v_mul_f32 v{t+2}, v{X+1}, v{X+1}"))
        for i in range(2, 16, 2):
            A(I(f"v_fmac_f32 v{t+1}, v{X+i}, v{X+i}"))
            A(I(f"v_fmac_f32 v{t+2}, v{X+i+1}, v{X+i+1}"))
        A(I(f"v_add_f32 v{t+1}, v{t+1}, v{t+2}"))
        reduce32(t + 1)
        A(I(f"v_mul_f32 v{t+1}, {fbits(1.0/512)}, v{t+1}"))
        A(I(f"v_cvt_pk_bf16_f32 v{t+2}, v{t}, v{t+1}"))
        A(I(f"v_and_b32 v{t+3}, 0xffff0000, v{t+2}"))
        A(I(f"v_lshlrev_b32 v{t+2}, 16, v{t+2}"))
        A(I(f"v_add_f32 v{t+3}, {fbits(1e-5)}, v{t+3}"))
        A(I(f"v_cvt_pk_bf16_f32 v{t+3}, v{t+3}, v{t+3}"))
        A(I(f"v_and_b32 v{t+3}, 0xffff0000, v{t+3}"))
        A(I(f"v_sqrt_f32 v{t+3}, v{t+3}"))
        A(I(f"v_sub_f32 v{t+2}, v{t}, v{t+2}"))
        A(I(f"v_cvt_pk_bf16_f32 v{t+3}, v{t+3}, v{t+3}"))
        A(I(f"v_and_b32 v{t+3}, 0xffff0000, v{t+3}"))
        A(I(f"v_rcp_f32 v{t+3}, v{t+3}"))
        A(I(f"v_and_b32 v{t+4}, 31, v{vLANE}"))
        A(I(f"v_lshrrev_b32 v{t+5}, 5, v{vLANE}"))
        A(I(f"v_mul_f32 v{t+2}, v{t+2}, v{t+3}"))
        A(I(f"v_lshl_add_u32 v{t+4}, v{t+4}, 3, v{t+5}"))
        A(I(f"s_lshl_b32 s{sT1}, s{sWAVE}, 5"))
        A(I(f"s_add_u32 s{sT1}, s{sT1}, {LNBUF}"))
        A(I(f"v_lshl_add_u32 v{t+4}, v{t+4}, 4, s{sT1}"))
        for i in range(16):
            A(I(f"v_fma_f32 v{X+i}, v{X+i}, v{t+3}, v{t+2}"))
        for i in range(8):
            A(I(f"v_cvt_pk_bf16_f32 v{R+i}, v{X+2*i}, v{X+2*i+1}"))
        A(I(f"ds_write_b128 v{t+4}, {vr(R)}"))
        A(I(f"ds_write_b128 v{t+4}, {vr(R+4)} offset:4096"))
        return c

    def ln_store(self):
        R = vLN
        t = vLN + 24
        c = []
        A = c.append
        A(I(f"s_lshl_b32 s{sT1}, s{sWAVE}, 11"))
        A(I(f"s_add_u32 s{sT1}, s{sT1}, {LNBUF}"))
        A(I(f"v_add_u32 v{t}, s{sT1}, v{vL16[0]}"))
        A(I(f"ds_read_b128 {vr(R)}, v{t}"))
        A(I(f"ds_read_b128 {vr(R+4)}, v{t} offset:1024"))
        A(I(f"v_lshrrev_b32 v{t+1}, 3, v{vLANE}"))
        A(I(f"v_and_b32 v{t+2}, 7, v{vLANE}"))
        A(I(f"v_lshlrev_b32 v{t+2}, 4, v{t+2}"))
        A(I(f"v_lshl_add_u32 v{t+1}, v{t+1}, 8, v{t+2}"))
        A(I(f"s_lshr_b32 s{sT1}, s{sB}, 1"))
        A(I(f"s_lshl_b32 s{sT1}, s{sT1}, 14"))
        A(I(f"s_and_b32 s{sT2}, s{sB}, 1"))
        A(I(f"s_lshl_b32 s{sT2}, s{sT2}, 7"))
        A(I(f"s_add_u32 s{sT1}, s{sT1}, s{sT2}"))
        A(I(f"s_lshl_b32 s{sT2}, s{sWAVE}, 12"))
        A(I(f"s_add_u32 s{sT1}, s{sT1}, s{sT2}"))
        if XN_OFF:
            A(I(f"s_add_u32 s{sT1}, s{sT1}, {XN_OFF}"))
        A(I(f"v_add_u32 v{t+1}, s{sT1}, v{t+1}"))
        st = [I(f"buffer_store_dwordx4 {vr(R)}, v{t+1}, {srd(S_WS)}, 0 offen sc1"),
              I(f"buffer_store_dwordx4 {vr(R+4)}, v{t+1}, {srd(S_WS)}, 0 offen offset:2048 sc1")]
        return c + st, st

    def tiles(self):
        T = []
        for c in range(8):
            for half in range(2):
                T.append(dict(typ="R128", srd=S_WUK, kc=c, col=half * 128, vo=vWO, acc=f"K{half}", swap=False,
                              ks0=2 * c, first=(c == 0)))
        for c in range(8):
            for half in range(2):
                T.append(dict(typ="R128", srd=S_WUV, kc=c, col=half * 128, vo=vWO, acc=f"V{half}", swap=True,
                              ks0=2 * c, first=(c == 0)))
        for c in range(4):
            for cc in (2 * c, 2 * c + 1):
                T.append(dict(typ="R64", srd=S_WG, kc=cc, col=0, vo=vGA, acc="GA", swap=False, ks0=2 * cc,
                              first=(cc == 0)))
            T.append(dict(typ="R32", srd=S_WG, kc=2 * c, col=0, vo=vGB, acc="GB", swap=False, ks0=4 * c,
                          first=(c == 0)))
        for half in range(2):
            for c in range(8):
                T.append(dict(typ="R128", srd=S_WQ, kc=c, col=half * 128, vo=vWO, acc=f"Q{half}", swap=False,
                              ks0=2 * c, first=(c == 0)))
        return T

    def tile_dma(self, t):
        ops = [I(f"buffer_load_dwordx4 v{t['vo'][p]}, {srd(t['srd'])}, s{sT0} offen offset:{p*1024} lds")
               for p in range(2)]
        t["dma"] = ops
        stride = 8192 if t["typ"] == "R128" else 2752
        kc = t["kc"]
        so = [I(f"s_mul_i32 s{sT0}, s{sK2[kc >> 1]}, {stride // 2}")]
        add = (kc & 1) * 64 * stride + t["col"]
        if add:
            so.append(I(f"s_add_u32 s{sT0}, s{sT0}, {add}"))
        return so + [I(f"s_add_u32 m0, s{sW2K}, {t['slot']}"), ops[0], ops[1]]

    def unit_reads(self, t, u, buf):
        base = t["slot"] & 0xffff
        r = []
        for k in range(2):
            for a in range(2):
                d = WFB[buf] + 4 * k + 2 * a
                if t["typ"] == "R128":
                    addr, off = vRD[u], base + k * 4096 + a * 2048
                elif t["typ"] == "R64":
                    addr, off = vRD64[u & 1], base + (u >> 1) * 4096 + k * 2048 + a * 1024
                else:
                    addr, off = vRD32, base + (u & 1) * 4096 + (2 * (u >> 1) + k) * 1024 + a * 512
                r.append(I(f"ds_read_b64_tr_b16 {vr(d,2)}, v{addr} offset:{off}"))
        return batch(r)

    def unit_mfma(self, t, u, buf):
        m = []
        if t["typ"] == "R32":
            wb, ksb, first = u & 1, t["ks0"] + 2 * (u >> 1), t["first"] and u < 2
        else:
            wb, ksb, first = u, t["ks0"], t["first"]
        for tb in range(4):
            d = vr(areg(t["acc"], wb, tb))
            for k in range(2):
                wf, tf = vr(WFB[buf] + 4 * k), ar(TF(tb, ksb + k))
                a, b = (tf, wf) if t["swap"] else (wf, tf)
                m.append(mfma(d, a, b, "0" if (first and k == 0) else d))
        return m

    def tok_dma(self, c):
        ops = [I(f"buffer_load_dwordx4 v{vTO[p]}, {srd(S_CKV)}, s{sT0} offen offset:{(p&3)*1024} lds") for p in range(8)]
        seq = [I(f"s_add_u32 s{sT0}, s{sK2[c >> 1]}, {(c & 1) * 128}")]
        for p in range(8):
            if p & 3 == 0:
                seq.append(I(f"s_add_u32 m0, s{sTOKB}, {(c%3)*8192 + (p>>2)*4096}"))
            seq.append(ops[p])
        return seq, ops

    def tok_reads(self, c):
        return batch([I(f"ds_read_b128 {ar(TF(tb, 2*c+k))}, v{vTRD[k]} offset:{(c%3)*8192 + tb*2048}")
                      for k in range(2) for tb in range(4)])

    def pk_frag(self, d, t0, t1):
        return [I(f"v_cvt_pk_bf16_f32 v{d}, v{t0}, v{t0+1}"), I(f"v_cvt_pk_bf16_f32 v{d+1}, v{t0+2}, v{t0+3}"),
                I(f"v_cvt_pk_bf16_f32 v{d+2}, v{t1}, v{t1+1}"), I(f"v_cvt_pk_bf16_f32 v{d+3}, v{t1+2}, v{t1+3}")]

    def epi_K(self, half):
        c, st = [], []
        ps = f"K{half}"
        for tb in range(4):
            for d2 in range(2):
                p = areg(ps, d2, tb)
                c += self.pk_frag(p, areg(ps, 2 * d2, tb), areg(ps, 2 * d2 + 1, tb))
                st.append(I(f"buffer_store_dwordx4 {vr(p)}, v{vL16[tb]}, {srd(S_WS)}, s{sKFB} offen "
                            f"offset:{(2*half+d2)*1024} {self.o.stflag}"))
        return c, st

    def epi_V(self, half):
        c, st = [], []
        ps = f"V{half}"
        for wb in range(4):
            for sp in range(2):
                p = areg(ps, wb & 1, 2 * sp + (wb >> 1))
                c += self.pk_frag(p, areg(ps, wb, 2 * sp), areg(ps, wb, 2 * sp + 1))
                st.append(I(f"buffer_store_dwordx4 {vr(p)}, v{vL16[2*sp+half]}, {srd(S_WS)}, s{sVFB} offen "
                            f"offset:{wb*1024} {self.o.stflag}"))
        return c, st

    def gelu4(self, g, u):
        c = []
        for i in (0, 2):
            a, b = g + i, g + i + 1
            c += [I(f"v_mul_f32 v{vG0}, v{a}, v{a}"), I(f"v_mul_f32 v{vG1}, v{b}, v{b}"),
                  I(f"v_fmaak_f32 v{vG0}, v{vG0}, v{vGK}, {fbits(GK0)}"),
                  I(f"v_fmaak_f32 v{vG1}, v{vG1}, v{vGK}, {fbits(GK0)}"),
                  I(f"v_mul_f32 v{vG0}, v{vG0}, v{a}"), I(f"v_mul_f32 v{vG1}, v{vG1}, v{b}"),
                  I(f"v_exp_f32 v{vG0}, v{vG0}"), I(f"v_exp_f32 v{vG1}, v{vG1}"),
                  I(f"v_mul_f32 v{a}, v{a}, v{u+i}"), I(f"v_mul_f32 v{b}, v{b}, v{u+i+1}"),
                  I(f"v_add_f32 v{vG0}, 1.0, v{vG0}"), I(f"v_add_f32 v{vG1}, 1.0, v{vG1}"),
                  I(f"v_rcp_f32 v{vG0}, v{vG0}"), I(f"v_rcp_f32 v{vG1}, v{vG1}"),
                  I(f"v_mul_f32 v{a}, v{a}, v{vG0}"), I(f"v_mul_f32 v{b}, v{b}, v{vG1}")]
        return c

    def epi_GA(self):
        c, st = [], []
        for tb in range(4):
            T = lambda wb: areg("GA", wb, tb)
            c += self.gelu4(T(0), T(2)) + self.gelu4(T(1), T(3))
            p = T(0)
            c += self.pk_frag(p, T(0), T(1))
            s = I(f"buffer_store_dwordx4 {vr(p)}, v{vL16[0]}, {srd(S_WS)}, s{sZH[tb]} offen {self.o.stflag}")
            c.append(s)
            st.append(s)
        return c, st

    def epi_GB(self):
        c, st = [], []
        for tb in range(4):
            g, u = areg("GB", 0, tb), areg("GB", 1, tb)
            c += self.gelu4(g, u)
            p = g
            c += [I(f"v_cvt_pk_bf16_f32 v{p}, v{g}, v{g+1}"), I(f"v_cvt_pk_bf16_f32 v{p+1}, v{g+2}, v{g+3}")]
            s = I(f"buffer_store_dwordx2 {vr(p,2)}, v{vGBS}, {srd(S_WS)}, s{sT3} offen {self.o.stflag}")
            c.append(Group([I(f"s_add_u32 s{sT3}, s{sZH[tb]}, s{sGBD}"), s]))
            st.append(s)
        return c, st

    def epi_Q(self, half, q):
        c = []
        for d2 in range(2):
            t0, t1 = areg(f"Q{half}", 2 * d2, q), areg(f"Q{half}", 2 * d2 + 1, q)
            for r in list(range(t0, t0 + 4)) + list(range(t1, t1 + 4)):
                c.append(I(f"v_mul_f32 v{r}, s{sQS}, v{r}"))
            p = t0
            c += self.pk_frag(p, t0, t1)
            for r in range(4):
                c.append(I(f"v_accvgpr_write_b32 a{gQ(q, 2*half+d2)+r}, v{p+r}"))
        return c

    def flag_store(self, s):
        return I(f"buffer_store_dword v{vC1}, v{vONE}, {srd(S_WS)}, s{s} offen sc1")

    def att_setup(self):
        c = []
        A = c.append
        A(I(f"s_lshl_b32 s{sT1}, s{sH}, 19"))
        A(I(f"s_and_b32 s{sT2}, s{sWAVE}, 1"))
        A(I(f"s_lshl_b32 s{sT2}, s{sT2}, 12"))
        A(I(f"s_add_u32 s{sT1}, s{sT1}, s{sT2}"))
        A(I(f"s_lshl_b32 s{sT3}, s{sW}, 2"))
        A(I(f"s_sub_u32 s{sT3}, 64, s{sT3}"))
        A(I(f"s_lshl_b32 s{sT3}, s{sT3}, 13"))
        A(I(f"s_sub_u32 s{sT3}, s{sT3}, s{sT2}"))
        A(Group([I(f"s_cmp_lt_u32 s{sWAVE}, 2"), I(f"s_cselect_b32 s{sT2}, {VF_OFF - KF_OFF - 16384}, 0")]))
        A(I(f"s_add_u32 s{sT1}, s{sT1}, s{sT2}"))
        A(I(f"s_add_u32 s{sT1}, s{sT1}, {KF_OFF + 16384}"))
        A(Group([I(f"s_cmp_lt_u32 s{sWAVE}, 2"), I(f"s_cselect_b32 s{sT2}, 0, 16384")]))
        A(I(f"s_sub_u32 s{S_KV+2}, s{sT3}, s{sT2}"))
        A(Group([I(f"s_add_u32 s{S_KV}, s{S_WS}, s{sT1}"), I(f"s_addc_u32 s{S_KV+1}, s{S_WS+1}, 0")]))
        A(I(f"s_lshr_b32 s{sT1}, s{sWAVE}, 1"))
        A(I(f"s_sub_u32 s{sT2}, 3, s{sT1}"))
        A(I(f"s_lshl_b32 s{sT3}, s{sW}, 2"))
        A(I(f"s_add_u32 s{sNM1[3]}, s{sT3}, s{sT1}"))
        A(I(f"s_add_u32 s{sNM1[2]}, s{sT3}, s{sT2}"))
        A(I(f"s_sub_u32 s{sT3}, 60, s{sT3}"))
        A(I(f"s_add_u32 s{sNM1[1]}, s{sT3}, s{sT1}"))
        A(I(f"s_add_u32 s{sNM1[0]}, s{sT3}, s{sT2}"))
        for q in range(4):
            A(I(f"s_sub_u32 s{sNM2[q]}, s{sNM1[q]}, 1"))
        return c

    def att_events(self):
        c = []
        A = c.append
        m = sum(1 << j for j in range(0, 64, self.o.G))
        A(I(f"s_mov_b32 s{sEV}, {m & 0xffffffff:#x}"))
        A(I(f"s_mov_b32 s{sEV+1}, {m >> 32:#x}"))
        for q in range(4):
            A(I(f"s_bitset1_b64 s[{sEV}:{sEV+1}], s{sNM1[q]}"))
            A(I(f"s_bitset1_b64 s[{sEV}:{sEV+1}], s{sNM2[q]}"))
        return c

    def att_dma(self, tile=None):
        return [I(f"buffer_load_dwordx4 v{vL16[0]}, {srd(S_KV)}, s{sSOFF} offen offset:{p*1024} {self.o.ldflag} lds")
                for p in range(4)]

    def pf_load(self, voff, sr, soff="0", dst=None):
        x = I(f"buffer_load_dword {dst or 'v%d' % vG0}, v{voff}, {srd(sr)}, {soff} offen")
        x.defs = []
        return x

    def prefetch0(self):
        L = vLANE
        t = 16
        c = [I(f"v_lshrrev_b32 v{t}, 1, v{L}"), I(f"v_and_b32 v{t+1}, 1, v{L}"),
             I(f"s_lshl_b32 s{sT1}, s{sW}, 2"), I(f"s_add_u32 s{sT1}, s{sT1}, s{sWAVE}"),
             I(f"s_lshl_b32 s{sT2}, s{sT1}, 17"), I(f"s_lshl_b32 s{sT3}, s{sH}, 8"),
             I(f"s_add_u32 s{sT2}, s{sT2}, s{sT3}"),
             I(f"v_lshlrev_b32 v{t}, 13, v{t}"), I(f"v_lshl_add_u32 v{t}, v{t+1}, 7, v{t}"),
             I(f"v_add_u32 v{t}, s{sT2}, v{t}"),
             I(f"v_mov_b32 v{t+2}, {OOB}"), I(f"v_cmp_gt_u32 vcc, 32, v{L}"),
             I(f"s_lshl_b32 s{sT1}, s{sT1}, 16"), I(f"s_and_b32 s{sT3}, s{sH}, 3"),
             I(f"v_cndmask_b32 v{vPFW}, v{t+2}, v{t}, vcc"),
             I(f"s_lshl_b32 s{sT3}, s{sT3}, 14"), I(f"s_add_u32 s{sT1}, s{sT1}, s{sT3}"),
             I(f"s_add_u32 s{sT1}, s{sT1}, {3*128}"),
             I(f"v_and_b32 v{t}, 15, v{L}"), I(f"v_lshrrev_b32 v{t+1}, 4, v{L}"),
             I(f"v_lshlrev_b32 v{t}, 10, v{t}"), I(f"v_lshl_add_u32 v{t}, v{t+1}, 7, v{t}"),
             I(f"v_add_u32 v{vPFW+1}, s{sT1}, v{t}")]
        return c, self.pf_load(vPFW + 1, S_CKV), self.pf_load(vPFW, S_WUK)

    def prefetch_xn(self):
        L = vLANE
        t = PK[0]
        c = [I(f"s_and_b32 s{sT1}, s{sH}, 3"), I(f"s_lshl_b32 s{sT1}, s{sT1}, 12"),
             I(f"v_and_b32 v{t}, 31, v{L}"), I(f"v_lshlrev_b32 v{t}, 7, v{t}"), I(f"v_add_u32 v{t}, s{sT1}, v{t}"),
             I(f"v_cmp_gt_u32 vcc, 32, v{L}")]
        for k in range(2):
            c += [I(f"v_mov_b32 v{t+1}, s{sXN[2*k]}"), I(f"v_mov_b32 v{t+2}, s{sXN[2*k+1]}"),
                  I(f"v_cndmask_b32 v{t+1}, v{t+2}, v{t+1}, vcc"), I(f"v_add_u32 v{t+4+k}, v{t}, v{t+1}"),
                  self.pf_load(t + 4 + k, S_WS)]
        return c

    def prefetch1(self):
        L = vLANE
        t = vLN + 34
        a = [self.pf_load(vPFW, S_WUV)]
        b = [self.pf_load(vPFW, S_WQ)]
        c = [I(f"s_lshr_b32 s{sT1}, s{sB}, 3"), I(f"s_lshl_b32 s{sT1}, s{sT1}, 2"),
             I(f"s_add_u32 s{sT1}, s{sT1}, s{sWAVE}"), I(f"s_lshl_b32 s{sT1}, s{sT1}, 2"),
             I(f"v_lshrrev_b32 v{t}, 4, v{L}"), I(f"v_add_u32 v{t}, s{sT1}, v{t}"),
             I(f"v_mul_u32_u24 v{t}, 2752, v{t}"),
             I(f"v_and_b32 v{t+1}, 7, v{L}"), I(f"v_lshlrev_b32 v{t+1}, 6, v{t+1}"),
             I(f"s_and_b32 s{sT2}, s{sB}, 7"), I(f"s_lshl_b32 s{sT3}, s{sT2}, 8"),
             I(f"s_lshl_b32 s{sT2}, s{sT2}, 7"), I(f"s_add_u32 s{sT2}, s{sT2}, {2048 - 5*64}"),
             I(f"v_mov_b32 v{t+2}, s{sT3}"), I(f"v_mov_b32 v{t+3}, s{sT2}"),
             I(f"v_cmp_gt_u32 vcc, {5*64}, v{t+1}"),
             I(f"v_cndmask_b32 v{t+2}, v{t+3}, v{t+2}, vcc"),
             I(f"v_add3_u32 v{t}, v{t}, v{t+1}, v{t+2}")]
        c += [self.pf_load(t, S_WG), self.pf_load(t, S_WU)]
        return a, b, c

    def prefetch2(self):
        L = vLANE
        t = vT[0]
        c = [I(f"s_lshl_b32 s{sT1}, s{sB}, 2"), I(f"s_add_u32 s{sT1}, s{sT1}, s{sWAVE}"),
             I(f"s_lshl_b32 s{sT2}, s{sT1}, 12"), I(f"v_and_b32 v{t}, 31, v{L}"),
             I(f"v_lshlrev_b32 v{t}, 7, v{t}"), I(f"v_add_u32 v{t}, s{sT2}, v{t}"),
             I(f"s_mul_i32 s{sT2}, s{sT1}, {11*128}"), I(f"v_min_u32 v{t+1}, 10, v{L}"),
             I(f"v_lshlrev_b32 v{t+1}, 7, v{t+1}"), I(f"v_add_u32 v{t+1}, s{sT2}, v{t+1}"),
             self.pf_load(t, S_WO, dst="a200"), self.pf_load(t + 1, S_WD, dst="a200")]
        return c

    def phase12(self):
        o = self.o
        T = self.tiles()
        NT = len(T)
        pre = self.setup()
        A = pre.append
        A(I("s_waitcnt lgkmcnt(0)"))
        pre += self.stamp()
        zpre = [I(f"s_mul_i32 s{sT1}, s{sWAVE}, 3072"), I(f"s_add_u32 s{sT1}, s{sT1}, {FL_OFF}"),
                I(f"s_cmp_eq_u32 s{sB}, 0"), I(f"s_cselect_b32 s{sT1}, s{sT1}, {OOB}"),
                I(f"v_lshlrev_b32 v20, 4, v{vLANE}")] + [I(f"v_mov_b32 v{r}, 0") for r in range(24, 28)]
        zero = [I(f"buffer_store_dwordx4 v[24:27], v20, {srd(S_WS)}, s{sT1} offen offset:{k*1024} sc1") for k in range(3)]
        s0, tok0 = self.tok_dma(0)
        pre += s0
        for n in range(4):
            T[n]["slot"] = n * 8192
        pre += self.tile_dma(T[0]) + self.tile_dma(T[1])
        c, pfa, pfb = self.prefetch0()
        pre += c
        if o.prefetch & 16:
            pre += [pfa, pfb]
        pre += zpre + zero
        lnl = [I(f"buffer_load_dwordx4 {vr(vLN)}, v{vLN+32}, {srd(S_X)}, 0 offen"),
               I(f"buffer_load_dwordx4 {vr(vLN+4)}, v{vLN+32}, {srd(S_X)}, 0 offen offset:512")]
        pre += self.setup2()
        s1, tok1 = self.tok_dma(1)
        pre += s1
        pre += self.tile_dma(T[2]) + self.tile_dma(T[3])
        pre += lnl
        tokd = {0: tok0, 1: tok1}
        pre.append(Need(tok0))
        rd0 = self.tok_reads(0)
        pre += rd0
        pre.append(Need([T[n]["dma"] for n in range(2)] + zero, lg0=True))
        pre.append(I("s_barrier"))
        pre += [I(f"s_cmp_eq_u32 s{sB}, 0"), I(f"s_cselect_b32 s{sT1}, 0, {OOB}"),
                I(f"buffer_store_dword v{vC1}, v{vONE}, {srd(S_DBG)}, s{sT1} offen sc1")]
        pre += self.stamp()
        pre += self.unit_reads(T[0], 0, 0) + self.unit_reads(T[0], 1, 1)

        mf = []
        for n, t in enumerate(T):
            for u in range(4):
                mf += self.unit_mfma(t, u, (4 * n + u) % 3)
        tasks = []
        bstart = list(range(2, 16, 2)) + list(range(16, NT, o.G12))
        bg = lambda n0: 32 * n0 - 13
        extra_need = {n0: [] for n0 in bstart}
        release = lambda n: bg(min([b for b in bstart if b > n] + [NT + 1]))
        own_bar = lambda n: bg(max(b for b in bstart if b <= n))
        KVF = 1712
        free_at = {sl: -1 for sl in range(7)}
        free_at.update({sl: bg(14) + 1 for sl in range(7, 20)})
        for n in range(4):
            free_at[n] = release(n)
        want = {4: 0, 5: 50, 6: 84, 7: 120, 8: 130, 9: 180, 10: 200, 11: 236, 12: 260, 13: 300, 14: 320, 15: 340}
        for n in range(16, NT):
            want[n] = max(360 + 14 * (n - 16), 32 * (n - o.lead12))
        events = [(want[n], "W", n) for n in range(4, NT)]
        tokwant = {(2, 0): 8, (2, 1): 24, (3, 0): 40, (3, 1): 64, (4, 0): 92, (4, 1): 106, (5, 0): 154, (5, 1): 168,
                   (6, 0): 218, (6, 1): 242, (7, 0): 282, (7, 1): 308}
        events += [(v, "T", k) for k, v in tokwant.items()]
        events.append((KVF, "KV", None))
        events.sort(key=lambda e: e[0])
        tokrd = {c: self.tok_reads(c) for c in range(1, 8)}
        tokrd[0] = rd0
        tokw = {1: (18, 36)}
        for c in range(2, 8):
            tokw[c] = (64 * (c - 1) + 2, 64 * (c - 1) + 22)
            tasks.append(Task(f"tokrd{c}", [Need([lambda c=c: tokd[c]])] + tokrd[c], *tokw[c], prio=1))
        tasks.append(Task("tokrd1", [Need(tok1)] + tokrd[1], *tokw[1], prio=1))
        tseq = {}
        for c in range(2, 8):
            seq, ops = self.tok_dma(c)
            tokd[c] = ops
            tseq[(c, 0)] = ([Need(tokrd[c - 3])] if c >= 4 else []) + seq[:6]
            tseq[(c, 1)] = [I(seq[0].text)] + seq[6:]
        k01 = [I(f"buffer_load_dwordx4 v{vL16[0]}, {srd(S_WS)}, s{sT0} offen offset:{p*1024} {self.o.ldflag} lds")
               for p in range(4)]
        kvseq = [I(f"s_lshl_b32 s{sT0}, s{sH}, 19"), I(f"s_lshl_b32 s{sWR}, s{sWAVE}, 12"),
                 I(f"s_add_u32 s{sT0}, s{sT0}, s{sWR}"), I(f"s_add_u32 s{sT0}, s{sT0}, {KF_OFF}"),
                 I(f"s_add_u32 m0, s{sWR}, {6*16384}")] + k01
        self.att_first = list(k01)
        for j in range(3):
            d = self.att_dma()
            kvseq += [I(f"s_add_u32 m0, s{sWR}, {(7+j)*16384}"), I(f"s_mov_b32 s{sSOFF}, {j*8192}")] + d
            self.att_first += d
        m0ent = []
        cur = 0
        for w, kind, k in events:
            lo = max(w, cur)
            if kind == "W":
                ok = [sl for sl in free_at if sl < 12 or release(k) <= KVF]
                sl = min(ok, key=lambda x: (max(free_at[x], lo), x))
                lo = max(lo, free_at[sl] + 1)
                free_at[sl] = release(k)
                T[k]["slot"] = sl * 8192
                seq = self.tile_dma(T[k])
                ln = 9 if lo < 512 else 18
                assert lo + ln < own_bar(k) - 24, (k, lo, own_bar(k))
                T[k]["issue"] = lo
            elif kind == "T":
                seq = tseq[k]
                if k[0] >= 4:
                    lo = max(lo, tokw[k[0] - 3][1] + 1)
                ln = 15
                assert lo + ln < tokw[k[0]][0] - 24, (k, lo)
            else:
                seq = kvseq
                ln = 110
            prev_scalar = False
            for x in seq:
                mind = 1 if (x.kind == "dma" and prev_scalar) else 0
                prev_scalar = x.kind == "salu"
                m0ent.append((x, lo, lo + ln, mind))
            cur = lo + (ln if ln < 100 else 0) - 2
        tasks.append(Task("m0", m0ent, prio=1))
        print("W issue gap / slot:", [(T[n]["issue"], T[n]["slot"] >> 13) for n in range(4, NT)], file=sys.stderr)
        win = {"R128": 0, "R64": 0, "R32": 0}
        aregs = {"R128": vRD, "R64": vRD64, "R32": [vRD32]}
        for U in range(2, 4 * NT):
            n, u = divmod(U, 4)
            lo = 8 * (U - 2)
            rd = self.unit_reads(T[n], u, U % 3)
            ty, wn = T[n]["typ"], T[n]["slot"] >> 16
            if wn != win[ty]:
                sw = "v_add_u32" if wn > win[ty] else "v_subrev_u32"
                fix = [I(f"{sw} v{r}, {abs(wn - win[ty]) << 16:#x}, v{r}") for r in aregs[ty]]
                win[ty] = wn
                if T[n - 1]["typ"] == ty:
                    rd = [Group(fix + [rd[0]])] + rd[1:]
                else:
                    tasks.append(Task(f"rdfix{U}", fix, lo - 24, lo - 1, prio=1))
            if u == 0 and n in bstart:
                tasks.append(Task(f"rd{U}", rd, lo + 4, lo + 7, prio=0, tight=True))
            elif u == 3 and n + 1 in bstart:
                tasks.append(Task(f"rd{U}", rd, lo, lo + 3, prio=0, tight=True))
            else:
                tasks.append(Task(f"rd{U}", rd, lo, lo + 7, prio=0))
        tasks.append(Task("ln", self.ln_compute(), 2, bg(4) - 2, prio=3))
        c, lnst = self.ln_store()
        tasks.append(Task("lnst", c, bg(4) + 2, 145, prio=3))
        extra_need[8] += lnst
        tasks.append(Task("flagxn", [self.flag_store(sFXN)], bg(8) + 4, bg(8) + 10, prio=3))
        if o.prefetch & 1:
            tasks.append(Task("pf0a", [pfa], 1, 4, prio=0))
        if o.prefetch & 4:
            tasks.append(Task("pf0b", [pfb], 30, 36, prio=0))
        if o.prefetch & 8:
            tasks.append(Task("pfxn", self.prefetch_xn(), 645, 676, prio=3))
        if o.prefetch & 2:
            a, b, c = self.prefetch1()
            tasks = tasks if o.prefetch & 32 == 0 else tasks + [Task("pf1a", a, 130, 140, prio=3)]
            if o.prefetch & 32:
                tasks.append(Task("pf1c", c, bg(12) - 28, bg(12) - 1, prio=3))
                tasks.append(Task("pf1b", b, 300, 310, prio=3))
        tasks.append(Task("setup3", self.setup3(), 400, 470, prio=4))
        tasks.append(Task("setup4", self.setup4(), 472, 510, prio=4))
        tasks.append(Task("gate", [self.poll_load(vPOLL, S_DBG, vC0, "0")], 146, 152, prio=3))
        tasks.append(Task("gatechk", self.poll_check(vPOLL, S_DBG, vC0, "0", "1", split=True), 220, 232, prio=3))
        tasks.append(Task("xnpoll", [I(f"s_lshl_b32 s{sPOLL}, s{sW}, 7"), I(f"s_add_u32 s{sPOLL}, s{sPOLL}, {FL_XN}"),
                                     self.poll_load(vPOLL, S_WS, vPO32, f"s{sPOLL}")], 476, 486, prio=3))
        tasks.append(Task("xnchk", self.poll_check(vPOLL, S_WS, vPO32, f"s{sPOLL}", "1", split=True), 566, 578, prio=3))
        pk, sts = zip(self.epi_K(0), self.epi_K(1), self.epi_V(0), self.epi_V(1))
        tasks.append(Task("epiK0", pk[0], 490, 540, prio=5))
        tasks.append(Task("epiK1", pk[1], 521, 558, prio=4))
        tasks.append(Task("epiV0", pk[2], 1001, 1038, prio=4))
        tasks.append(Task("epiV1", pk[3], 1039, 1086, prio=5))
        allst = [x for l in sts for x in l]
        ent = []
        for k, x in enumerate(allst):
            if k < 16:
                lo = int(545 + k * (1020 - 545) / 16)
            else:
                lo = max(int(1045 + (k - 16) * (o.st_hi - 1045) / 16), 1088 if k >= 24 else 0)
            ent.append((x, lo, lo + 12))
        tasks.append(Task("epistores", ent, prio=2))
        extra_need[48] += allst
        tasks.append(Task("flagkv", [self.flag_store(sFKV)], bg(48) + 4, bg(48) + 10, prio=3))
        for c in range(8):
            ld = [I(f"buffer_load_dwordx4 {ar(TF(tb, 2*c+k))}, v{vX16[(2*c+k)>>2]}, {srd(S_WS)}, s{sXN[tb]} offen "
                    f"offset:{((2*c+k)&3)*1024} {self.o.ldflag}") for k in range(2) for tb in range(4)]
            lo = max(580 + 64 * c, o.xn0 + o.xnslope * c)
            tasks.append(Task(f"xn{c}", batch(ld), lo, lo + o.xnslope - 2, prio=2))
        c, stA = self.epi_GA()
        tasks.append(Task("epiGA", c, 1416, 1660, prio=5))
        c, stB = self.epi_GB()
        tasks.append(Task("epiGB", c, 1661, 1790, prio=5))
        self.h_stores = stA + stB
        c = [I(f"s_mov_b32 s{sQS}, {fbits(QSCALE)}")]
        for q in range(4):
            c += self.epi_Q(0, q)
        tasks.append(Task("epiQ0", c, 1700, 1860, prio=5))
        tasks.append(Task("attsetup", self.att_setup(), 1570, 1655, prio=4))
        tasks.append(Task("attev", self.att_events(), 1840, 1900, prio=4))
        kvp = [I(f"s_lshl_b32 s{sPOLL}, s{sH}, 7"), I(f"s_add_u32 s{sPOLL}, s{sPOLL}, {FL_KV}"),
               self.poll_load(vPOLL, S_WS, vPO8, f"s{sPOLL}")]
        tasks.append(Task("kvpoll", kvp, 1620, 1630, prio=3))
        tasks.append(Task("kvchk", self.poll_check(vPOLL, S_WS, vPO8, f"s{sPOLL}", "1", split=True), 1700, 1710, prio=3))
        zr = lambda a, b: [I(f"v_mov_b32 v{r}, 0") for r in range(a, b)]
        tasks.append(Task("zeroC", zr(160, 192), 1662, 1760, prio=6))
        tasks.append(Task("zeroO3", zr(96, 128), 1792, 1870, prio=6))
        tasks.append(Task("zeroO2", zr(64, 96), 1862, 1920, prio=6))
        for k, n0 in enumerate(bstart):
            n1 = bstart[k + 1] if k + 1 < len(bstart) else NT
            ops = [T[n]["dma"] for n in range(n0, n1)] + extra_need[n0]
            bar = [Need(ops, lg0=True), I("s_barrier")]
            tasks.append(Task(f"bar{n0}", [Group(bar if o.timeit else self.timed(bar))], bg(n0), bg(n0),
                              prio=-1))
        if o.stamps:
            for gp in (128, 512, 1024, 1408, 1916):
                tasks.append(Task("stamp", self.stamp(), gp + 2, gp + 2, prio=7))
        if o.drop:
            dr = o.drop.split(",")
            if "stores" in dr:
                dr.append("epistores")
            for t in tasks:
                if "stores" in dr and t.name.startswith("epi"):
                    t.instrs = [x for x in t.instrs if not any(y.kind == "vstore" for y in flatten([x]))]
            tasks = [t for t in tasks if not any(t.name.startswith(d) for d in dr)]
        body = schedule(mf, tasks, o.budget, self.reports, reserve=range(0, len(mf), 8), seed=o.seed)
        if o.timeit:
            nb = []
            for x in flatten(body):
                hit = {"st": x.kind == "vstore", "ld": x.kind == "vload", "dma": x.kind == "dma",
                       "need": x.kind == "need"}[o.timeit]
                nb += self.timed([x]) if hit else [x]
            body = nb
        return pre + body

    def mask(self, q):
        c = []
        D = vDM[q & 1]
        src = aC(q, 0)
        c.append(I(f"v_mov_b32 v{vT[0]}, 0xff800000"))
        order = [(1, r) for r in range(4)] + [(0, 3), (0, 2), (0, 1), (0, 0)]
        for i in range(0, 8, 2):
            (k0, r0), (k1, r1) = order[i], order[i + 1]
            c.append(I(f"v_cmp_gt_i32 s[{sM0}:{sM0+1}], {16*k0+r0}, v{D}"))
            c.append(I(f"v_cmp_gt_i32 s[{sM1}:{sM1+1}], {16*k1+r1}, v{D}"))
            c.append(I("s_nop 0"))
            c.append(I(f"v_cndmask_b32 v{aC(q,k0)+r0}, v{src}, v{vT[0]}, s[{sM0}:{sM0+1}]"))
            c.append(I(f"v_cndmask_b32 v{aC(q,k1)+r1}, v{src}, v{vT[0]}, s[{sM1}:{sM1+1}]"))
        return c

    def rowmax(self, q, t0, t1):
        S = aS(q, 0)
        return [I(f"v_max3_f32 v{t0}, v{S}, v{S+1}, v{S+2}"), I(f"v_max3_f32 v{t1}, v{S+3}, v{S+4}, v{S+5}"),
                I(f"v_max3_f32 v{t0}, v{t0}, v{S+6}, v{S+7}"), I(f"v_max_f32 v{t0}, v{t0}, v{t1}"),
                I(f"v_mov_b32 v{t1}, v{t0}"), I(f"v_permlane32_swap_b32 v{t0}, v{t1}"),
                I(f"v_max_f32 v{t0}, v{t0}, v{t1}"),
                I(f"v_mov_b32 v{t1}, v{t0}"), I(f"v_permlane16_swap_b32 v{t0}, v{t1}"),
                I(f"v_max_f32 v{t0}, v{t0}, v{t1}"),
                I(f"v_add_f32 v{t0}, {fbits(BIAS)}, v{t0}")]

    def exps(self, q, E):
        S = aS(q, 0)
        return [I(f"v_exp_f32 v{E+i}, v{S+i}") for i in range(8)]

    def cvts(self, q, E):
        return [I(f"v_cvt_pk_bf16_f32 v{aP(q)+i}, v{E+2*i}, v{E+2*i+1}") for i in range(4)]

    def fix(self, q):
        t0, t1 = aE[2], aE[2] + 1
        S = aS(q, 0)
        c = [I("s_nop 7"), I("s_nop 1")] + self.rowmax(q, t0, t1)
        c.append(I(f"v_max_f32 v{t0}, 0, v{t0}"))
        c.append(I(f"v_exp_f32 v{t1}, -v{t0}"))
        for i in range(8):
            c.append(I(f"v_sub_f32 v{S+i}, v{S+i}, v{t0}"))
            c.append(I(f"v_sub_f32 v{aC(q,0)+i}, v{aC(q,0)+i}, v{t0}"))
        for r in range(aO(0, q), aO(0, q) + 32):
            c.append(I(f"v_mul_f32 v{r}, v{r}, v{t1}"))
        for r in range(4):
            c.append(I(f"v_accvgpr_read_b32 v{t0+2+r}, a{gL(q)+r}"))
        for r in range(4):
            c.append(I(f"v_mul_f32 v{t0+2+r}, v{t0+2+r}, v{t1}"))
        for r in range(4):
            c.append(I(f"v_accvgpr_write_b32 a{gL(q)+r}, v{t0+2+r}"))
        c += self.exps(q, aE[1]) + self.cvts(q, aE[1])
        return c

    def check(self, qs, mind=2):
        P = [aP(q) + i for q in qs for i in range(4)]
        ors = []
        cur = None
        while P:
            if cur is None:
                ors.append(I(f"v_or3_b32 v{vOR}, v{P[0]}, v{P[1]}, v{P[2]}"))
                P = P[3:]
                cur = vOR
            elif len(P) >= 2:
                ors.append(I(f"v_or3_b32 v{vOR}, v{vOR}, v{P[0]}, v{P[1]}"))
                P = P[2:]
            else:
                ors.append(I(f"v_or_b32 v{vOR}, v{vOR}, v{P[0]}"))
                P = []
        slow, back = self.lab("fix"), self.lab("fixb")
        body = []
        for q in qs:
            body += self.fix(q)
        body += [I("s_nop 1"), I(f"s_branch {back}")]
        self.cold.append(f"{slow}:\n" + render(pad_hazards(body)))
        tail = [I(f"v_and_b32 v{vOR}, 0x40004000, v{vOR}"), I(f"v_cmp_ne_u32 vcc, 0, v{vOR}"),
                (Group([I(f"s_cbranch_vccnz {slow}"), I(f"{back}:")]), None, None, mind)]
        return ors, tail

    def k_reads(self, half_off=8192):
        r = [I(f"ds_read_b128 {ar(gK(kb, ds))}, v{vARD} offset:{half_off + (kb*4+ds)*1024}")
             for kb in range(2) for ds in range(4)]
        return batch(r[:4]) + batch(r[4:])

    def qk(self, q):
        m = []
        for kb in range(2):
            for ds in range(4):
                d = vr(aS(q, kb))
                m.append(mfma(d, ar(gK(kb, ds)), ar(gQ(q, ds)), vr(aC(q, kb)) if ds == 0 else d))
        return m

    def pv(self, q):
        m = [mfma(vr(aO(db, q)), ar(gV(db)), vr(aP(q)), vr(aO(db, q))) for db in range(8)]
        m.append(mfma(ar(gL(q)), ar(gONE), vr(aP(q)), ar(gL(q))))
        return m

    def iteration(self, nc, nn):
        o = self.o
        X = [m for q in range(nn) for m in self.qk(q)]
        Y = [m for q in range(nc) for m in self.pv(q)]
        y0 = len(X)
        n = y0 + len(Y)
        late = nc - 1
        tasks = []
        hi = 8 * (nn - 1) if nn == nc else y0 + 9 * late
        hi = max(0, min(hi, 8))
        ors, tail = self.check([late], 2 if hi >= 6 else 0)
        tasks.append(Task("late", self.cvts(late, aE[0]) + ors + tail, 0, hi, prio=1, tight=True))
        vrd = [I(f"ds_read_b128 {ar(gV(db))}, v{vARD} offset:{db*1024}") for db in range(8)]
        vrd = batch(vrd[:4]) + batch(vrd[4:])
        tasks.append(Task("vrd", [(r, 0, max(0, y0 - 5 + (4 if k >= 4 else 0))) for k, r in enumerate(vrd)],
                          0, max(0, min(y0 - 3, 12)), prio=2))
        ES = [aE[1], aE[2], aE[1]]
        early = list(range(nn - 1))
        if nn > 0:
            start = 9
            span = (n - start) / nn
            pos = [int(start + span * i) for i in range(nn + 1)]
            last = []
            for q in range(nn):
                rdy = [8 * q + 9] * 4 + [8 * q + 13] * 4
                if q in early:
                    cv_lo = y0 + 9 * (q + 1)
                    cv_hi = min(n - 5, (y0 + 9 * (q + 1) + 9) if q + 1 < len(early) else n - 5)
                    if q == 0 and len(early) == 3:
                        cv_hi = y0 + 9 + 5
                    lo2 = (y0 + 9 + 6) if q == 2 else 0
                    ent = [(e, max(rdy[k], lo2), cv_hi - 2) for k, e in enumerate(self.exps(q, ES[q]))]
                    ent += [(x, cv_lo, cv_hi) for x in self.cvts(q, ES[q])]
                    tasks.append(Task(f"exp{q}", ent, max(pos[q], lo2), max(pos[q + 1] + 3, cv_lo + 4), prio=0))
                    last.append(cv_hi)
                else:
                    ent = [(e, min(n, max(rdy[k], 10)), n) for k, e in enumerate(self.exps(q, aE[0]))]
                    tasks.append(Task(f"exp{q}", ent, min(n, pos[q]), n, prio=0))
            if early:
                ors, tail = self.check(early)
                need = []
                for x in ors:
                    qs = [(int(u[1:]) - aP(0)) // 4 for u in x.uses if aP(0) <= int(u[1:]) < aP(0) + 16]
                    need.append(last[max(qs)] + 1)
                ent = [(x, min(need[k], n - 3), n - 2) for k, x in enumerate(ors)]
                ent += [(tail[0], min(need[-1], n - 3), n - 2), (tail[1], min(need[-1], n - 2), n - 2),
                        (tail[2][0], 0, n, 2)]
                tasks.append(Task("chk1", ent, prio=3, tight=True))
            krd = self.k_reads()
            adv = I(f"v_add_u32 v{vARD}, s{sRD}, v{vL16[0]}")
            tasks.append(Task("krd", [(r, y0, n - (7 if k < 4 else 4)) for k, r in enumerate(krd)] + [(adv, y0, n)],
                              y0, n - 3, prio=2))
            d = self.att_dma()
            R = o.NS * 16384
            sc = [I(f"s_mov_b32 m0, s{sWR}"), I(f"s_add_u32 s{sSOFF}, s{sSOFF}, 8192"), (d[0], None, None, 1)] + d[1:]
            sc += [I(f"s_add_u32 s{sWR}, s{sWR}, 16384"), I(f"s_sub_u32 s{sT0}, s{sWR}, {R}"),
                   I(f"s_min_u32 s{sWR}, s{sWR}, s{sT0}")]
            rdp = [I(f"s_add_u32 s{sRD}, s{sRD}, 16384"), I(f"s_sub_u32 s{sT1}, s{sRD}, {R}"),
                   I(f"s_min_u32 s{sRD}, s{sRD}, s{sT1}")]
            tasks.append(Task("rdp", rdp, 1, max(3, y0 - 1), prio=4))
            tasks.append(Task("dma", sc, 1, n - 4, prio=1))
        tasks.append(Task("j", [I(f"s_add_u32 s{sJ}, s{sJ}, 1")], max(0, n - 6), max(0, n - 3), prio=5))
        res = {0, 4, y0, y0 + 4}
        seq = schedule(X + Y, tasks, o.budget, self.reports, reserve=res, seed=o.seed)
        by = {t.name: [e[0] if isinstance(e, tuple) else e for e in t.instrs] for t in tasks}
        ref = by["late"] + by["vrd"] + X + Y
        for nm in ("exp0", "exp1", "exp2", "exp3", "chk1", "krd", "dma", "j"):
            if nm == "krd":
                ref += by.get("rdp", [])
            ref += by.get(nm, [])
        verify_order(ref, seq)
        return seq

    def att_state(self):
        sb = Scoreboard()
        for r in self.k_reads():
            sb.after(r)
        for i in range(40):
            sb.after(I("buffer_inv sc1"))
        return sb

    def finalize(self, q):
        t0 = vT[0]
        c = [I(f"v_accvgpr_read_b32 v{t0}, a{gL(q)}"), I(f"v_rcp_f32 v{t0}, v{t0}")]
        st = []
        for k in range(4):
            a, b = aO(2 * k, q), aO(2 * k + 1, q)
            for r in list(range(a, a + 4)) + list(range(b, b + 4)):
                c.append(I(f"v_mul_f32 v{r}, v{r}, v{t0}"))
            p = aE[1] + 4 * k
            c += self.pk_frag(p, a, b)
            s = I(f"buffer_store_dwordx4 {vr(p)}, v{vL16[k]}, {srd(S_WS)}, s{sZC[q]} offen {self.o.stflag}")
            c.append(s)
            st.append(s)
        return c, st

    def seg(self, seq, sb, prev=()):
        s = add_waits(seq, sb)
        return pad_hazards(s, prev)

    def attention(self, sb, prev):
        o = self.o
        out = []
        pro = []
        A = pro.append
        pre = [I(f"v_lshrrev_b32 v{vT[0]}, 4, v{vLANE}"), I(f"v_and_b32 v{vT[1]}, 15, v{vLANE}"),
               I(f"v_lshlrev_b32 v{vT[0]}, 2, v{vT[0]}"), I(f"v_sub_u32 v{vT[1]}, v{vT[1]}, v{vT[0]}"),
               I(f"s_and_b32 s{sT1}, s{sWAVE}, 1"), I(f"s_lshl_b32 s{sT1}, s{sT1}, 4"),
               I(f"v_add_u32 v{vDM[1]}, s{sT1}, v{vT[1]}"), I(f"s_sub_u32 s{sT1}, 16, s{sT1}"),
               I(f"v_add_u32 v{vDM[0]}, s{sT1}, v{vT[1]}"),
               I(f"v_add_u32 v{vARD}, {6*16384}, v{vL16[0]}"),
               I(f"v_mov_b32 v{vT[2]}, 0x3f803f80")]
        pre += [I(f"v_accvgpr_write_b32 a{gONE+r}, v{vT[2]}") for r in range(4)]
        pre += [I(f"v_accvgpr_write_b32 a{r}, 0") for r in range(gL(0), gL(0) + 16)]
        pro += pre
        pro += [Need(self.att_first + self.h_stores, lg0=True), I("s_barrier")]
        pro += self.k_reads(0)
        pro.append(self.flag_store(sFH))
        for j in range(3, o.LEAD):
            pro.append(Group([I(f"s_add_u32 m0, s{sWR}, {((7+j) % o.NS)*16384}"),
                              I(f"s_mov_b32 s{sSOFF}, {j*8192}")] + self.att_dma()))
        pro += [I(f"s_add_u32 s{sWR}, s{sWR}, {((7+o.LEAD-1) % o.NS)*16384}"),
                I(f"s_add_u32 s{sWR}, s{sWR}, 16384"),
                I(f"s_mov_b32 s{sRD}, {7*16384}"), I(f"s_mov_b32 s{sJ}, 0")]
        assert ((7 + o.LEAD - 1) % o.NS) + 1 < o.NS
        pro += self.epi_Q(1, 0)
        skip = self.lab("nomask")
        pro += [I(f"s_cmp_lg_u32 s{sNM1[3]}, 0"), I(f"s_cbranch_scc1 {skip}")] + self.mask(3) + [I(f"{skip}:")]
        X = [m for q in range(4) for m in self.qk(q)]
        tasks = []
        for q in range(1, 4):
            tasks.append(Task(f"epiQ1_{q}", self.epi_Q(1, q), 8 * (q - 1), 8 * q - 2, prio=1))
        z = [I(f"v_mov_b32 v{r}, 0") for r in range(0, 64)]
        pro += schedule(X, tasks, o.budget, self.reports)
        pro += z
        pro += self.k_reads()
        pro += [I(f"v_add_u32 v{vARD}, s{sRD}, v{vL16[0]}")]
        for q in range(4):
            t0, t1 = vT[0], vT[1]
            S = aS(q, 0)
            pro += self.rowmax(q, t0, t1)
            for i in range(8):
                pro.append(I(f"v_sub_f32 v{S+i}, v{S+i}, v{t0}"))
            for i in range(8):
                pro.append(I(f"v_sub_f32 v{aC(q,0)+i}, 0, v{t0}"))
            if q < 3:
                E = [aE[1], aE[2], aE[1]][q]
                pro += self.exps(q, E) + self.cvts(q, E)
            else:
                pro += self.exps(q, aE[0])
        pro += [I("s_waitcnt lgkmcnt(0)")]
        pro += self.stamp(vT[3])
        pro = self.seg(pro, sb, prev)
        out += pro
        out.append(I(f"s_branch L_ev4"))
        wait_n = (o.LEAD - o.G) * 4
        last_st = None
        for n in (4, 3, 2, 1):
            body = self.iteration(n, n)
            ctl = [I(f"s_bitcmp1_b64 s[{sEV}:{sEV+1}], s{sJ}"), I(f"s_cbranch_scc0 L_body{n}")]
            b = self.seg(body + ctl, self.att_state())
            print("iteration", n, "estimate", estimate(b), file=sys.stderr)
            check_hazards(b, b)
            out += [I(".p2align 6"), I(f"L_body{n}:")] + b
            ev = [I(f"L_ev{n}:")]
            nb, nm, nh, nh2 = self.lab("nb"), self.lab("nm"), self.lab("nh"), self.lab("nh2")
            ev += [I(f"s_and_b32 s{sT0}, s{sJ}, {o.G-1}"), I(f"s_cbranch_scc1 {nb}"),
                   ] + self.timed([I(f"s_waitcnt vmcnt({wait_n}) lgkmcnt(0)"), I("s_barrier")])
            ev += [I(f"s_cmp_eq_u32 s{sJ}, {2*o.G}"), I(f"s_cbranch_scc0 {nh}")]
            ev += (self.prefetch2() if o.prefetch & 2 else []) + self.p4_scalars()
            ev += [self.poll_load(vHP, S_WS, vPO32, f"s{sPOLL}"), I(f"{nh}:")]
            ev += [I(f"s_cmp_eq_u32 s{sJ}, {3*o.G}"), I(f"s_cbranch_scc0 {nh2}"),
                   self.poll_check(vHP, S_WS, vPO32, f"s{sPOLL}", "1"), I(f"{nh2}:")]
            ev += [I(f"{nb}:"), I(f"s_cmp_eq_u32 s{sJ}, s{sNM2[n-1]}"), I(f"s_cbranch_scc0 {nm}")]
            ev += self.mask(n - 1) + [I(f"{nm}:"), I(f"s_cmp_eq_u32 s{sJ}, s{sNM1[n-1]}"),
                                      I(f"s_cbranch_scc0 L_body{n}")]
            if n >= 2:
                nm2 = self.lab("nm")
                ev += [I(f"s_cmp_eq_u32 s{sJ}, s{sNM2[n-2]}"), I(f"s_cbranch_scc0 {nm2}")]
                ev += self.mask(n - 2) + [I(f"{nm2}:")]
            ev = pad_hazards(flatten(ev), b)
            tr = self.iteration(n, n - 1)
            fin, st = self.finalize(n - 1)
            last_st = st
            tail = []
            if n >= 2:
                tail = [I(f"s_bitcmp1_b64 s[{sEV}:{sEV+1}], s{sJ}"),
                        I(f"s_cbranch_scc1 L_ev{n-1}")]
            sbt = self.att_state()
            t = self.seg(tr + fin + tail, sbt, ev)
            out += ev + t
        self.ctx_stores = last_st
        return out, sbt

    def p4_scalars(self):
        return [I(f"s_bfe_u32 s{sT1}, s{sB}, 0x10002"), I(f"s_lshl_b32 s{sT1}, s{sT1}, 3"),
                I(f"s_bfe_u32 s{sT2}, s{sB}, 0x30003"), I(f"s_add_u32 s{sT2}, s{sT1}, s{sT2}"),
                I(f"s_sub_u32 s{sT3}, 15, s{sT2}"),
                I(f"s_min_u32 s{sT2}, s{sT2}, s{sT3}"), I(f"s_lshl_b32 s{sPOLL}, s{sT2}, 7"),
                I(f"s_add_u32 s{sPOLL}, s{sPOLL}, {FL_H}")]

    def phase4(self, sb, prev):
        o = self.o
        ACC4, ZR, WR = 0, 64, 192
        vRd4 = list(range(224, 232))
        vWo4 = [232, 233]
        vXo, vP4, vW1, XR = 234, 235, 244, 236
        sZo, sWo, sKQ, sTB = sNM1
        sEXs, sEXd, sFE, sOo = sNM2
        sCB, sTID = sEV, sEV + 1
        L = vLANE
        NH, NS, LEAD = 11, 16, o.lead4
        c = []
        A = c.append
        A(I("s_waitcnt vmcnt(4) lgkmcnt(0)"))
        A(I("s_barrier"))
        c += self.stamp(252)
        A(I(f"s_and_b32 s{sKQ}, s{sB}, 3"))
        A(I(f"s_bfe_u32 s{sT1}, s{sB}, 0x10002"))
        A(I(f"s_lshr_b32 s{sT2}, s{sB}, 3"))
        A(I(f"s_lshl_b32 s{sTID}, s{sT1}, 5"))
        A(I(f"s_add_u32 s{sTID}, s{sTID}, s{sT2}"))
        A(I(f"s_lshr_b32 s{sCB}, s{sT2}, 3"))
        A(I(f"s_and_b32 s{sT2}, s{sT2}, 7"))
        A(I(f"s_lshl_b32 s{sT1}, s{sT1}, 3"))
        A(I(f"s_add_u32 s{sTB}, s{sT1}, s{sT2}"))
        t = WR
        A(I(f"v_lshrrev_b32 v{t}, 4, v{L}"))
        A(I(f"v_and_b32 v{t+1}, 15, v{L}"))
        A(I(f"v_lshlrev_b32 v{t+2}, 1, v{t}"))
        A(I(f"v_xor_b32 v{t+2}, v{t+2}, v{t+1}"))
        A(I(f"v_lshlrev_b32 v{t+2}, 4, v{t+2}"))
        A(I(f"v_lshl_add_u32 v{t+2}, v{t}, 10, v{t+2}"))
        A(I(f"s_lshl_b32 s{sT1}, s{sWAVE}, 13"))
        A(I(f"s_lshl_b32 s{sT2}, s{sCB}, 8"))
        A(I(f"s_add_u32 s{sT1}, s{sT1}, s{sT2}"))
        A(I(f"v_add_u32 v{vWo4[0]}, s{sT1}, v{t+2}"))
        A(I(f"v_xor_b32 v{vWo4[1]}, 128, v{vWo4[0]}"))
        A(I(f"v_add_u32 v{vWo4[1]}, {4096-1024}, v{vWo4[1]}"))
        A(I(f"s_lshl_b32 s{sT1}, s{sTB}, 1"))
        A(I(f"s_lshr_b32 s{sT2}, s{sWAVE}, 1"))
        A(I(f"s_add_u32 s{sT1}, s{sT1}, s{sT2}"))
        A(I(f"s_and_b32 s{sT2}, s{sWAVE}, 1"))
        A(I(f"s_lshl_b32 s{sT2}, s{sT2}, 11"))
        A(I(f"s_mul_i32 s{sT3}, s{sT1}, {43*4096}"))
        A(I(f"s_add_u32 s{sT3}, s{sT3}, s{sT2}"))
        A(I(f"s_add_u32 s{sT3}, s{sT3}, {ZH_OFF}"))
        A(I(f"s_add_u32 s{S_ZH}, s{S_WS}, s{sT3}"))
        A(I(f"s_addc_u32 s{S_ZH+1}, s{S_WS+1}, 0"))
        A(I(f"s_sub_u32 s{S_ZH+2}, {43*4096}, s{sT2}"))
        A(I(f"s_lshl_b32 s{sT1}, s{sT1}, 19"))
        A(I(f"s_lshl_b32 s{sT3}, s{sKQ}, 17"))
        A(I(f"s_add_u32 s{sT1}, s{sT1}, s{sT3}"))
        A(I(f"s_add_u32 s{sT1}, s{sT1}, s{sT2}"))
        A(I(f"s_add_u32 s{sT1}, s{sT1}, {ZC_OFF}"))
        A(I(f"s_add_u32 s{S_ZC}, s{S_WS}, s{sT1}"))
        A(I(f"s_addc_u32 s{S_ZC+1}, s{S_WS+1}, 0"))
        A(I(f"s_sub_u32 s{S_ZC+2}, {32*4096}, s{sT2}"))
        A(I(f"s_lshl_b32 s{sT2}, s{sKQ}, 20"))
        A(I(f"s_add_u32 s{S_WO}, s{S_WO}, s{sT2}"))
        A(I(f"s_addc_u32 s{S_WO+1}, s{S_WO+1}, 0"))
        A(I(f"s_mov_b32 s{S_WO+2}, {1 << 20}"))
        A(I(f"s_mul_i32 s{sZo}, s{sKQ}, {11*4096}"))
        A(I(f"s_mul_i32 s{sWo}, s{sKQ}, {11*32768}"))

        Wd, Zd = {}, {}

        def wload(n):
            ws = S_WD if n < NH else S_WO
            d = [I(f"buffer_load_dwordx4 v{vWo4[e]}, {srd(ws)}, s{sWo} offen offset:{e*1024} lds") for e in range(2)]
            Wd[n % NS] = d
            pre = [I(f"s_mov_b32 s{sWo}, 0")] if n == NH else []
            return pre + [I(f"s_add_u32 m0, s{sW2K}, {(n % NS)*8192}"), d[0], d[1],
                          I(f"s_add_u32 s{sWo}, s{sWo}, 32768")]

        def zload(n):
            zs, so = (S_ZH, sZo) if n < NH else (S_ZC, sSOFF)
            d = [I(f"buffer_load_dwordx4 {vr(ZR + ((n % NS)*2 + tb)*4)}, v{vL16[0]}, {srd(zs)}, s{so} offen "
                   f"offset:{tb*1024} {o.ldflag}") for tb in range(2)]
            batch(d)
            pre = [I(f"s_mov_b32 s{so}, 0")] if n == NH else []
            return pre + d + [I(f"s_add_u32 s{so}, s{so}, 4096")]

        def reads(n, wb):
            slot = (n % NS) * 8192
            return batch([I(f"ds_read_b64_tr_b16 {vr(WR + 4*wb + 2*a, 2)}, v{vRd4[wb]} offset:{(slot & 0xffff) + a*4096}")
                          for a in range(2)])

        def winfix(n):
            a, b = ((n - 1) % NS) >> 3, (n % NS) >> 3
            if a == b:
                return lambda wb: []
            op = "v_add_u32" if b else "v_subrev_u32"
            return lambda wb: [I(f"{op} v{vRd4[wb]}, 0x10000, v{vRd4[wb]}")]

        for n in range(4):
            c += wload(n) + zload(n)
        A(Need(self.ctx_stores))
        A(I("s_barrier"))
        A(self.flag_store(sFC))
        A(I(f"s_sub_u32 s{sPOLL}, s{sPOLL}, {FL_H}"))
        A(I(f"s_lshl_b32 s{sT1}, s{sKQ}, 5"))
        A(I(f"s_add_u32 s{sPOLL}, s{sPOLL}, s{sT1}"))
        A(I(f"s_add_u32 s{sPOLL}, s{sPOLL}, {FL_C}"))
        g, i16 = t, t + 1
        A(I(f"v_lshrrev_b32 v{t+2}, 2, v{i16}"))
        A(I(f"v_lshl_add_u32 v{t+2}, v{g}, 2, v{t+2}"))
        A(I(f"v_and_b32 v{t+3}, 3, v{i16}"))
        A(I(f"v_lshlrev_b32 v{t+3}, 3, v{t+3}"))
        A(I(f"v_lshl_add_u32 v{t+3}, v{t+2}, 8, v{t+3}"))
        A(I(f"v_and_b32 v{t+2}, 7, v{t+2}"))
        A(I(f"v_lshl_add_u32 v{t+3}, v{t+2}, 5, v{t+3}"))
        for i in range(8):
            A(I(f"s_lshl_b32 s{sT1}, s{sKQ}, 1"))
            A(I(f"s_add_u32 s{sT1}, s{sT1}, {i}"))
            A(I(f"s_and_b32 s{sT1}, s{sT1}, 7"))
            A(I(f"s_lshl_b32 s{sT1}, s{sT1}, 5"))
            A(I(f"v_xor_b32 v{vRd4[i]}, s{sT1}, v{t+3}"))
        A(I(f"s_lshl_b32 s{sT1}, s{sTB}, 2"))
        A(I(f"s_add_u32 s{sT1}, s{sT1}, s{sWAVE}"))
        A(I(f"s_lshl_b32 s{sT1}, s{sT1}, 15"))
        A(I(f"s_lshl_b32 s{sT2}, s{sCB}, 8"))
        A(I(f"s_add_u32 s{sT1}, s{sT1}, s{sT2}"))
        A(I(f"s_lshl_b32 s{sT2}, s{sKQ}, 6"))
        A(I(f"s_add_u32 s{sT1}, s{sT1}, s{sT2}"))
        A(I(f"v_lshlrev_b32 v{t+2}, 10, v{i16}"))
        A(I(f"v_lshl_add_u32 v{t+2}, v{g}, 3, v{t+2}"))
        A(I(f"v_add_u32 v{vXo}, s{sT1}, v{t+2}"))
        A(I(f"s_mov_b32 s{sOo}, 16384"))
        A(I(f"s_mul_i32 s{sT1}, s{sTID}, {4*3*8192}"))
        A(I(f"s_lshl_b32 s{sT2}, s{sWAVE}, 11"))
        A(I(f"s_add_u32 s{sT1}, s{sT1}, s{sT2}"))
        A(I(f"s_add_u32 s{sEXs}, s{sT1}, {EX_OFF}"))
        A(I(f"s_mul_i32 s{sT2}, s{sKQ}, {3*8192}"))
        A(I(f"s_add_u32 s{sEXd}, s{sEXs}, s{sT2}"))
        A(I(f"s_lshl_b32 s{sFE}, s{sTID}, 2"))
        A(I(f"s_add_u32 s{sFE}, s{sFE}, s{sWAVE}"))
        A(I(f"s_lshl_b32 s{sFE}, s{sFE}, 4"))
        A(I(f"s_add_u32 s{sFE}, s{sFE}, {FL_E}"))
        A(I(f"v_mov_b32 v{t+2}, {OOB}"))
        A(I(f"v_cmp_eq_u32 vcc, 0, v{L}"))
        A(I(f"s_lshl_b32 s{sT1}, s{sKQ}, 2"))
        A(I(f"v_mov_b32 v{t+3}, s{sT1}"))
        A(I(f"v_cndmask_b32 v{vW1}, v{t+2}, v{t+3}, vcc"))
        for n in range(4, LEAD):
            c += wload(n)
        A(Need([Wd[k] for k in range(4)], lg0=True))
        A(I("s_barrier"))
        for wb in range(8):
            c += reads(0, wb)

        def steps(n0, n1, first, zplan, extra):
            mf, tasks = [], []
            wch, zch = [], []
            for n in range(n0, n1):
                b = 16 * (n - n0)
                for wb in range(8):
                    for tb in range(2):
                        d = vr(ACC4 + (wb * 2 + tb) * 4)
                        mf.append(mfma(d, vr(WR + 4 * wb), vr(ZR + ((n % NS) * 2 + tb) * 4),
                                       "0" if (first and n == n0) else d))
                bar = (n + 1) % 4 == 0
                fx = winfix(n + 1)
                ent = []
                for wb in range(8):
                    lo = b + 2 * wb + 2
                    if bar:
                        lo = max(lo, b + 5)
                    ent += [(x, lo, min(b + 16, lo + 3)) for x in fx(wb) + reads(n + 1, wb)]
                tasks.append(Task(f"rd{n}", ent, prio=0, tight=True))
                if bar:
                    need = [Wd[k % NS] for k in range(n + 1, n + 5)]
                    tasks.append(Task(f"bar{n}", [Group([Need(need, lg0=True), I("s_barrier")])], b + 4, b + 4, prio=-1))
                lo = b + (5 if bar else 0)
                wch += [(x, lo, b + 15, 1 if (x.kind == "dma" and k and seq[k-1].kind == "salu") else 0)
                        for seq in [wload(n + LEAD)] for k, x in enumerate(seq)]
                for zn in zplan(n):
                    zch += [(x, b + 1, b + 16) for x in zload(zn)]
                for x in extra.get(n, []):
                    tasks.append(Task("ex", x, b + 1, b + 12, prio=2))
            tasks.append(Task("w", wch, prio=1))
            if zch:
                tasks.append(Task("z", zch, prio=1))
            if extra.get("tasks"):
                tasks += extra["tasks"]
            return schedule(mf, tasks, reserve=range(0, len(mf), 2), seed=o.seed, iters=40)

        CH = o.chk4
        pend = list(range(NH, NH + LEAD))

        def zplan_head(n):
            z = [n + 4] if n + 4 < NH else []
            if n > CH:
                k = -(-len(pend) // (NH - n))
                z += pend[:k]
                del pend[:k]
            return z
        ex = {CH - 2: [[self.poll_load(vP4, S_WS, vPO8, f"s{sPOLL}")]],
              CH: [self.poll_check(vP4, S_WS, vPO8, f"s{sPOLL}", "1", split=True) + self.stamp(252)]}
        c += steps(0, NH, True, zplan_head, ex)
        assert not pend
        c += [I(f"s_mov_b32 s{sJ}, 0")]
        head = self.seg(c, sb, prev)

        def loop_body(sbx, pv):
            b = steps(NH, NH + NS, False, lambda n: [n + LEAD], {})
            b += [I(f"s_add_u32 s{sJ}, s{sJ}, 1"), I(f"s_cmp_lt_u32 s{sJ}, 2"), I("s_cbranch_scc1 L_p4loop")]
            return add_waits(b, sbx)
        b1 = loop_body(sb, head)
        b2 = loop_body(sb, b1)
        b1 = pad_hazards(merge_waits(b1, b2), head)
        check_hazards(b1, b1)
        b2 = b1
        print("phase 4 head / loop estimate", estimate(head), estimate(b1), file=sys.stderr)
        e = []
        A = e.append
        e += self.stamp(252)
        xl = [I(f"buffer_load_dwordx2 {vr(XR + 4*tb + 2*i, 2)}, v{vXo}, {srd(S_X)}, {'s%d' % sOo if tb else '0'} offen "
                f"offset:{i*32}") for tb in range(2) for i in range(2)]
        e += xl
        st = []
        for p in range(1, 4):
            A(I(f"s_add_u32 s{sT1}, s{sKQ}, {p}"))
            A(I(f"s_and_b32 s{sT1}, s{sT1}, 3"))
            A(I(f"s_mul_i32 s{sT1}, s{sT1}, {3*8192}"))
            A(I(f"s_add_u32 s{sT1}, s{sT1}, s{sEXs}"))
            A(I(f"s_add_u32 s{sT1}, s{sT1}, {(p-1)*8192}"))
            for tb in range(2):
                t0, t1 = ACC4 + ((2 * p) * 2 + tb) * 4, ACC4 + ((2 * p + 1) * 2 + tb) * 4
                d = ZR + ((p - 1) * 2 + tb) * 4
                e += self.pk_frag(d, t0, t1)
                x = I(f"buffer_store_dwordx4 {vr(d)}, v{vL16[0]}, {srd(S_WS)}, s{sT1} offen offset:{tb*1024} {o.stflag}")
                A(x)
                st.append(x)
        for tb in range(2):
            for i in range(2):
                a = ACC4 + (i * 2 + tb) * 4
                x = XR + 4 * tb + 2 * i
                u = WR
                e += [I(f"v_lshlrev_b32 v{u}, 16, v{x}"), I(f"v_and_b32 v{u+1}, 0xffff0000, v{x}"),
                      I(f"v_lshlrev_b32 v{u+2}, 16, v{x+1}"), I(f"v_and_b32 v{u+3}, 0xffff0000, v{x+1}")]
                e += [I(f"v_add_f32 v{a+r}, v{a+r}, v{u+r}") for r in range(4)]
        A(Need(st))
        A(I(f"buffer_store_dword v{vC1}, v{vW1}, {srd(S_WS)}, s{sFE} offen sc1"))
        A(I(f"v_and_b32 v{vW1}, 12, v{vPO8}"))
        A(self.poll_load(vP4, S_WS, vW1, f"s{sFE}"))
        A(self.poll_check(vP4, S_WS, vW1, f"s{sFE}", "1"))
        e += self.stamp(252)
        R = ZR + 32
        for p in range(3):
            A(I(f"s_add_u32 s{sT1}, s{sEXd}, {p*8192}"))
            for tb in range(2):
                A(I(f"buffer_load_dwordx4 {vr(R + (p*2+tb)*4)}, v{vL16[0]}, {srd(S_WS)}, s{sT1} offen "
                    f"offset:{tb*1024} {o.ldflag}"))
        for p in range(3):
            for tb in range(2):
                for k in range(4):
                    a = ACC4 + ((k >> 1) * 2 + tb) * 4 + (k & 1) * 2
                    x = R + (p * 2 + tb) * 4 + k
                    u = WR + 2 * (k & 1)
                    e += [I(f"v_lshlrev_b32 v{u}, 16, v{x}"), I(f"v_and_b32 v{u+1}, 0xffff0000, v{x}"),
                          I(f"v_add_f32 v{a}, v{a}, v{u}"), I(f"v_add_f32 v{a+1}, v{a+1}, v{u+1}")]
        for tb in range(2):
            for i in range(2):
                a = ACC4 + (i * 2 + tb) * 4
                d = WR + 4 + 2 * (tb * 2 + i)
                e += [I(f"v_cvt_pk_bf16_f32 v{d}, v{a}, v{a+1}"), I(f"v_cvt_pk_bf16_f32 v{d+1}, v{a+2}, v{a+3}"),
                      I(f"buffer_store_dwordx2 {vr(d,2)}, v{vXo}, {srd(S_OUT)}, {'s%d' % sOo if tb else '0'} offen "
                        f"offset:{i*32}")]
        e += self.stamp(252)
        tail = self.seg(e, sb, b2)
        return head + [I(".p2align 6"), I("L_p4loop:")] + b1 + tail

    def build(self):
        o = self.o
        sb = Scoreboard()
        p12 = self.phase12()
        if o.stop == "p2":
            for q in range(4):
                p12 += self.epi_Q(1, q)
            p12 += [I(f"s_lshl_b32 s{sT1}, s{sB}, 2"), I(f"s_add_u32 s{sT1}, s{sT1}, s{sWAVE}"),
                    I(f"s_lshl_b32 s{sT1}, s{sT1}, 14"), I(f"s_add_u32 s{sT1}, s{sT1}, {ZC_OFF}")]
            for q in range(4):
                for ds in range(4):
                    p12.append(I(f"buffer_store_dwordx4 {ar(gQ(q, ds))}, v{vL16[q]}, {srd(S_WS)}, s{sT1} offen "
                                 f"offset:{ds*1024}"))
        code = self.seg(p12, sb)
        print("phase 1/2 estimate", estimate(code), file=sys.stderr)
        if o.stop not in ("p1a", "p2"):
            a, sb3 = self.attention(sb, code)
            code += a
            if o.stop != "p3":
                code += self.phase4(sb3, code)
        code += [I("s_waitcnt vmcnt(0) lgkmcnt(0)"), I("L_exit:"), I("s_endpgm")]
        self.code = code
        labels = {x.text for x in code if x.kind == "label"}
        import re
        cold = [c for c in self.cold if re.findall(r"s_branch (\S+)", c)[-1] + ":" in labels]
        txt = HEADER + render(code) + "".join(cold) + FOOTER
        return txt


GK0 = -2.0 * math.sqrt(2.0 / math.pi) * math.log2(math.e)
GK1 = GK0 * 0.044715
QSCALE = math.log2(math.e) / math.sqrt(128.0)
BIAS = 8.0
sQS = sGBD + 0
sQS = 3

HEADER = f"""; Fused LayerNorm + compressed-KV causal attention + GeGLU FFN, one persistent launch.
; @launch grid=(256,1,1) block=(256,1,1) lds=163840
.amdgcn_target "amdgcn-amd-amdhsa--gfx950"
.text
.globl {KNAME}
.p2align 8
.type {KNAME},@function
{KNAME}:
"""
FOOTER = f"""    s_endpgm
.section .rodata,"a"
.p2align 6
.amdhsa_kernel {KNAME}
  .amdhsa_next_free_vgpr 512
  .amdhsa_next_free_sgpr 102
  .amdhsa_accum_offset 256
  .amdhsa_group_segment_fixed_size 0
  .amdhsa_kernarg_size 104
  .amdhsa_user_sgpr_count 2
  .amdhsa_user_sgpr_kernarg_segment_ptr 1
  .amdhsa_system_sgpr_workgroup_id_x 1
  .amdhsa_float_denorm_mode_32 3
.end_amdhsa_kernel
"""


def main():
    o = Opt()
    out = "k.s"
    for a in sys.argv[1:]:
        if "=" in a:
            k, v = a.split("=")
            if k == "out":
                out = v
            else:
                cur = getattr(o, k)
                setattr(o, k, v if (cur is None or isinstance(cur, str)) else type(cur)(int(v)))
    g = Gen(o)
    txt = g.build()
    open(out, "w").write(txt)
    for r in g.reports:
        print("sched overflow/total/gaps:", r, file=sys.stderr)


if __name__ == "__main__":
    main()
```

```python
import re

TRANS = ("v_exp_f32", "v_log_f32", "v_rcp_f32", "v_rsq_f32", "v_sqrt_f32", "v_sin_f32", "v_cos_f32")
_REG = re.compile(r"^(-?)(abs\()?([vas])(\d+)\)?$")
_RNG = re.compile(r"^(-?)([vas])\[(\d+):(\d+)\]$")


def regs_of(op):
    op = op.strip()
    m = _REG.match(op)
    if m:
        return [m.group(3) + m.group(4)]
    m = _RNG.match(op)
    if m:
        return [m.group(2) + str(i) for i in range(int(m.group(3)), int(m.group(4)) + 1)]
    if op == "vcc":
        return ["vcc"]
    if op in ("m0", "exec"):
        return [op]
    return []


class Ins:
    __slots__ = ("text", "mn", "kind", "defs", "uses", "srcc", "srcab", "wide_store", "tag", "cost", "nwait", "dpp",
                 "sgpr_uses_vmem", "target")

    def __init__(self, text, tag=None):
        self.text = text
        self.tag = tag
        t = text.split(";")[0].strip()
        self.defs, self.uses, self.srcc, self.srcab = [], [], [], []
        self.wide_store = False
        self.nwait = 1
        self.dpp = False
        self.target = None
        if t.endswith(":"):
            self.mn, self.kind, self.cost, self.nwait = t, "label", 0, 0
            return
        if t.startswith(".") or not t:
            self.mn, self.kind, self.cost, self.nwait = t, "dir", 0, 0
            return
        parts = t.split(None, 1)
        mn = parts[0]
        self.mn = mn
        rest = parts[1] if len(parts) > 1 else ""
        ops = [o.strip() for o in re.split(r",(?![^\[]*\])", rest)] if rest else []
        mods = ""
        if ops:
            sp = ops[-1].split(None, 1)
            ops[-1] = sp[0]
            mods = sp[1] if len(sp) > 1 else ""
        R = lambda i: regs_of(ops[i]) if i < len(ops) else []
        self.cost = 4
        if mn.startswith("v_mfma"):
            self.kind = "mfma"
            self.defs = R(0)
            self.srcab = R(1) + R(2)
            self.srcc = R(3)
            self.uses = self.srcab + self.srcc
            self.cost = 8
        elif mn.startswith("v_"):
            self.kind = "trans" if mn.startswith(TRANS) else "valu"
            if self.kind == "trans":
                self.cost = 8
            self.dpp = mn.endswith("_dpp")
            if mn.startswith("v_permlane"):
                self.defs = R(0) + R(1)
                self.uses = R(0) + R(1)
            elif mn.startswith(("v_add_co", "v_addc_co", "v_sub_co")):
                self.defs = R(0) + R(1)
                self.uses = sum((R(i) for i in range(2, len(ops))), [])
            else:
                self.defs = R(0)
                self.uses = sum((R(i) for i in range(1, len(ops))), [])
                if mn.startswith(("v_fmac", "v_writelane", "v_dot2c")) or self.dpp:
                    self.uses += R(0)
        elif mn.startswith("ds_read"):
            self.kind = "dsread"
            self.defs = R(0)
            self.uses = R(1)
        elif mn.startswith("ds_write"):
            self.kind = "dswrite"
            self.uses = sum((R(i) for i in range(len(ops))), [])
        elif mn.startswith("buffer_load"):
            if " lds" in " " + mods:
                self.kind = "dma"
                self.uses = sum((R(i) for i in range(len(ops))), []) + ["m0"]
            else:
                self.kind = "vload"
                self.defs = R(0)
                self.uses = sum((R(i) for i in range(1, len(ops))), [])
            self.cost = 8
        elif mn.startswith(("buffer_store", "buffer_atomic")):
            self.kind = "vstore"
            self.uses = sum((R(i) for i in range(len(ops))), [])
            self.wide_store = mn.endswith(("x3", "x4"))
            self.srcab = R(0)
            self.cost = 8
        elif mn in ("buffer_inv", "buffer_wbl2"):
            self.kind = "vstore"
        elif mn.startswith("s_load"):
            self.kind = "smem"
            self.defs = R(0)
            self.uses = R(1)
        elif mn in ("s_memtime", "s_memrealtime"):
            self.kind = "smem"
            self.defs = R(0)
        elif mn == "s_waitcnt":
            self.kind = "wait"
        elif mn == "s_nop":
            self.kind = "nop"
            self.nwait = int(ops[0]) + 1
            self.cost = 4 * self.nwait
        elif mn == "s_barrier":
            self.kind = "barrier"
        elif mn in ("s_branch",) or mn.startswith("s_cbranch"):
            self.kind = "branch"
            self.target = ops[0]
            if "vcc" in mn:
                self.uses = ["vcc"]
        elif mn == "s_endpgm":
            self.kind = "end"
        elif mn.startswith("s_"):
            self.kind = "salu"
            if mn.startswith(("s_cmp", "s_bitcmp", "s_setprio", "s_sleep")):
                self.uses = sum((R(i) for i in range(len(ops))), [])
            else:
                self.defs = R(0)
                self.uses = sum((R(i) for i in range(1, len(ops))), [])
                if mn.startswith(("s_bitset", "s_addk", "s_mulk")):
                    self.uses += R(0)
                if "saveexec" in mn:
                    self.defs = self.defs + ["exec"]
        else:
            raise ValueError("unknown instruction: " + text)

    def __repr__(self):
        return self.text


def I(text, tag=None):
    return Ins(text, tag)


VM_KINDS = ("vload", "vstore", "dma")
LG_KINDS = ("dsread", "dswrite")


class Scoreboard:
    def __init__(self):
        self.vm = []
        self.lg = []
        self.smem = False
        self.pend = {}

    def copy(self):
        s = Scoreboard()
        s.vm, s.lg, s.smem, s.pend = list(self.vm), list(self.lg), self.smem, dict(self.pend)
        return s

    def _need(self, op):
        if op.kind in VM_KINDS:
            if op in self.vm:
                return (len(self.vm) - 1 - self.vm.index(op), None)
        elif op.kind in LG_KINDS:
            if op in self.lg:
                return (None, len(self.lg) - 1 - self.lg.index(op))
        elif op.kind == "smem":
            if self.smem:
                return (None, 0)
        return (None, None)

    def wait(self, vmN, lgN):
        parts = []
        if vmN is not None and vmN < len(self.vm):
            vmN = min(vmN, 63)
            parts.append(f"vmcnt({vmN})")
            self.vm = self.vm[len(self.vm) - vmN:] if vmN else []
        if lgN is not None and (lgN < len(self.lg) or (lgN == 0 and self.smem)):
            if self.smem:
                lgN = 0
            lgN = min(lgN, 15)
            parts.append(f"lgkmcnt({lgN})")
            self.lg = self.lg[len(self.lg) - lgN:] if lgN else []
            if lgN == 0:
                self.smem = False
        if not parts:
            return None
        live = set(map(id, self.vm)) | set(map(id, self.lg))
        self.pend = {r: o for r, o in self.pend.items() if id(o) in live or (o.kind == "smem" and self.smem)}
        return I("s_waitcnt " + " ".join(parts))

    def wait_ops(self, ops, lg0=False):
        vmN = None
        lgN = 0 if lg0 else None
        ops = [y for x in ops for y in (x.tag if isinstance(x.tag, list) else [x])]
        for op in ops:
            a, b = self._need(op)
            if a is not None:
                vmN = a if vmN is None else min(vmN, a)
            if b is not None:
                lgN = b if lgN is None else min(lgN, b)
        return self.wait(vmN, lgN)

    def before(self, ins):
        ops = [self.pend[r] for r in ins.uses + ins.defs if r in self.pend]
        return self.wait_ops(ops) if ops else None

    def after(self, ins):
        if ins.kind in VM_KINDS:
            self.vm.append(ins)
        elif ins.kind in LG_KINDS:
            self.lg.append(ins)
        elif ins.kind == "smem":
            self.smem = True
        if ins.kind in ("vload", "dsread", "smem"):
            for r in ins.defs:
                self.pend[r] = ins
        if ins.kind == "wait":
            m = re.search(r"vmcnt\((\d+)\)", ins.text)
            n = re.search(r"lgkmcnt\((\d+)\)", ins.text)
            self.wait(int(m.group(1)) if m else None, int(n.group(1)) if n else None)


class Group:
    kind = "group"

    def __init__(self, instrs):
        self.instrs = instrs
        self.cost = sum(i.cost for i in instrs)


def flatten(seq):
    out = []
    for x in seq:
        if x.kind == "group":
            out += flatten(x.instrs)
        else:
            out.append(x)
    return out


class Need:
    kind = "need"
    cost = 4
    nwait = 0
    defs = uses = ()

    def __init__(self, ops, lg0=False):
        self.ops = ops
        self.lg0 = lg0

    def resolve(self):
        out = []
        for o in self.ops:
            o = o() if callable(o) else o
            out += o if isinstance(o, (list, tuple)) else [o]
        return out


def add_waits(seq, sb):
    out = []
    seq = flatten(seq)
    n = len(seq)
    i = 0
    start = True
    while i < n:
        ins = seq[i]
        if start:
            ops = []
            j = i
            while j < n:
                x = seq[j]
                if x.kind in ("label", "branch", "barrier", "need", "wait", "dir", "smem"):
                    break
                ops += [sb.pend[r] for r in list(x.uses) + list(x.defs) if r in sb.pend]
                if x.kind == "mfma" or j - i > 6:
                    break
                j += 1
            if ops:
                w = sb.wait_ops(ops)
                if w:
                    out.append(w)
            start = False
        i += 1
        if ins.kind == "need":
            w = sb.wait_ops(ins.resolve(), ins.lg0)
            if w:
                out.append(w)
            continue
        if ins.kind in ("label", "dir"):
            out.append(ins)
            start = True
            continue
        w = sb.before(ins)
        if w:
            out.append(w)
        if ins.kind in VM_KINDS and len(sb.vm) >= 62:
            out.append(sb.wait(46, None))
        out.append(ins)
        sb.after(ins)
        if ins.kind == "mfma":
            start = True
        if len(sb.vm) > 63:
            raise RuntimeError("more than 63 vm ops outstanding at " + ins.text)
    return out


def batch(ops):
    for o in ops:
        o.tag = ops
    return ops


def _isv(r):
    return r[0] in "va" and r != "vcc"


def _iss(r):
    return (r[0] == "s") or r == "vcc"


def hazard_dist(p, c):
    need = 0
    pk, ck = p.kind, c.kind
    pv = pk in ("valu", "trans")
    cv = ck in ("valu", "trans")
    D = set(p.defs)
    if pv:
        dv = {r for r in D if _isv(r)}
        ds = {r for r in D if _iss(r)}
        if dv:
            if ck == "mfma" and dv & set(c.uses):
                need = max(need, 2)
            if cv and dv & set(c.uses):
                if c.mn.startswith("v_permlane") or c.dpp:
                    need = max(need, 2)
                if c.mn.startswith(("v_readfirstlane", "v_readlane")):
                    need = max(need, 1)
                if pk == "trans" and ck != "trans":
                    need = max(need, 1)
                if pk == "trans" and ck == "trans":
                    need = max(need, 1)
        if ds:
            if cv and ds & set(c.uses):
                need = max(need, 4 if c.mn.startswith(("v_readlane", "v_writelane")) else 2)
            if ck in ("vload", "vstore", "dma") and ds & set(c.uses):
                need = max(need, 5)
            if ck in ("salu", "branch") and ds & set(c.uses):
                need = max(need, 1)
    if pk == "mfma":
        if ck == "mfma":
            if D & set(c.srcab):
                need = max(need, 8)
            ov = D & set(c.srcc)
            if ov and list(c.srcc) != list(p.defs):
                need = max(need, 6)
        elif cv or ck in ("vload", "vstore", "dma", "dsread", "dswrite"):
            if D & (set(c.uses) | set(c.defs)):
                need = max(need, 8)
        if cv and set(p.srcc) & set(c.defs):
            need = max(need, 3)
    if pk == "salu" and "m0" in D and (ck == "dma" or (cv and "m0" in c.uses)):
        need = max(need, 4 if cv else 1)
    if pk == "vstore" and p.wide_store and set(p.srcab) & set(c.defs):
        need = max(need, 2)
    return need


WINDOW = 10


def pad_hazards(seq, prev=()):
    hist = [x for x in prev if x.nwait]
    out = []
    for ins in seq:
        if ins.kind in ("label", "dir"):
            out.append(ins)
            continue
        dist = 0
        short = 0
        for p in reversed(hist[-WINDOW:]):
            n = hazard_dist(p, ins)
            if n > dist:
                short = max(short, n - dist)
            dist += p.nwait
            if dist >= WINDOW:
                break
        if short:
            nop = I(f"s_nop {short - 1}")
            out.append(nop)
            hist.append(nop)
        out.append(ins)
        hist.append(ins)
    return out


def check_hazards(prev, seq):
    a = [x for x in seq if x.kind not in ("label", "dir")][:WINDOW + 2]
    p = pad_hazards(a, prev)
    if len(p) != len(a):
        raise RuntimeError("hazard on edge into: " + " | ".join(x.text for x in p))


class Task:
    def __init__(self, name, instrs, lo=None, hi=None, prio=1, tight=False):
        self.name, self.instrs, self.lo, self.hi, self.prio, self.tight = name, instrs, lo, hi, prio, tight


SCALAR = ("salu", "wait", "nop", "branch", "barrier", "need", "smem")


class Item:
    __slots__ = ("ins", "lo", "hi", "mind", "tgt", "task", "idx", "gap", "n", "rank", "flat", "lds")

    def __init__(self, ins, lo, hi, mind, tgt, task, idx):
        self.ins, self.lo, self.hi, self.mind, self.tgt, self.task, self.idx = ins, lo, hi, mind, tgt, task, idx
        self.gap = None
        flat = [x for x in flatten([ins]) if x.kind not in ("label", "dir")]
        self.flat = flat
        n = {"s": 0, "d": 0, "v": 0, "t": 0, "m": 0}
        for x in flat:
            k = x.kind
            if k in SCALAR:
                n["s"] += 1
            elif k in LG_KINDS:
                n["d"] += 1
            elif k == "trans":
                n["t"] += 1
            elif k in VM_KINDS:
                n["m"] += 1
            else:
                n["v"] += 1
        self.n = n
        self.lds = sum((2 if "b128" in x.mn else 1) for x in flat if x.kind in LG_KINDS)
        if ins.kind == "group" or ins.kind == "need":
            self.rank = 0 if not (n["d"] or n["v"] or n["t"] or n["m"]) else (1 if not n["t"] else 4)
        elif n["s"]:
            self.rank = 0
        elif n["d"]:
            self.rank = 1
        elif n["m"]:
            self.rank = 2
        elif n["v"]:
            self.rank = 3
        else:
            self.rank = 4


def _dep(a, b):
    if a.ins.kind in ("group", "need", "barrier", "branch") or b.ins.kind in ("group", "need", "barrier", "branch"):
        return True
    if a.n["s"] and b.n["s"]:
        return True
    if (a.n["d"] or a.n["m"]) and (b.n["d"] or b.n["m"]):
        return True
    for x in a.flat:
        for y in b.flat:
            if set(x.defs) & (set(y.uses) | set(y.defs)) or set(x.uses) & set(y.defs):
                return True
    return False


def order_gap(items):
    out = []
    rest = sorted(items, key=lambda it: (it.rank, it.task.prio, getattr(it.task, 'num', 0), it.idx))
    while rest:
        for k, it in enumerate(rest):
            if not any(o is not it and o.task is it.task and o.idx < it.idx and _dep(o, it) for o in rest):
                out.append(rest.pop(k))
                break
    return out


def gap_cost(items, reserved=False):
    if not items:
        return 0
    seq = [x for it in order_gap(items) for x in it.flat]
    t = 4 if reserved else 0
    free_scalar = not reserved
    v = 0
    seen_valu = seen_trans = False
    nval = 0
    for x in seq:
        k = x.kind
        if k in SCALAR:
            if k == "need":
                pass
            if free_scalar and v == 0:
                free_scalar = False
            else:
                v += 1
        elif k in LG_KINDS:
            v += 1 + (2 if seen_valu else 0) + (2 if seen_trans else 0)
        elif k == "trans":
            v += 2
            seen_trans = True
        elif k in VM_KINDS:
            v += 2 + (0 if free_scalar else 1) + (1 if seen_valu else 0)
            free_scalar = False
        else:
            v += 1
            nval += 1
            seen_valu = True
    c = max(0, v - 2) * 4
    if nval == 2 and v == 2:
        c += 1
    return c


def schedule(mf, tasks, budget=8, overflow_report=None, reserve=(), iters=4000, seed=1, vmsp=4, vmw=8, ldw=0):
    import random
    rnd = random.Random(seed)
    n = len(mf)
    reserve = set(reserve)
    slots = [[] for _ in range(n + 1)]
    cost = [0] * (n + 1)
    vm = [0] * (n + 1 + 2 * vmsp)
    chains = []

    def vmpen(g, k):
        if not k:
            return 0
        p = 0
        for d in range(1, vmsp):
            p += (vm[vmsp + g - d] + vm[vmsp + g + d]) * (vmsp - d)
        return vmw * k * (p + vm[vmsp + g] * vmsp)

    ld = [0] * (n + 5)

    def ldpen(g, k):
        if not k or not ldw:
            return 0
        f = lambda a, b, c: max(0, a + b + c - 5) + max(0, b + c - 3) * 0.5 + max(0, c - 2) * 0.5
        i = g + 2
        tot = 0
        for d in range(3):
            x = [ld[i + d - 2], ld[i + d - 1], ld[i + d]]
            before = f(*x)
            x[2 - d] += k
            tot += f(*x) - before
        return ldw * tot

    for num, t in enumerate(tasks):
        t.num = num
    for t in sorted(tasks, key=lambda t: t.prio):
        k = len(t.instrs)
        items = []
        for i, e in enumerate(t.instrs):
            if isinstance(e, tuple):
                ins, lo, hi = e[:3]
                mind = e[3] if len(e) > 3 else 0
                lo = t.lo if lo is None else lo
                hi = t.hi if hi is None else hi
                tgt = lo if (t.tight or t.lo is None) else max(lo, min(hi, t.lo + int(i * (t.hi - t.lo + 1) / k)))
            else:
                ins, lo, hi, mind = e, t.lo, t.hi, 0
                tgt = lo if t.tight else lo + int(i * (hi - lo + 1) / k)
            items.append(Item(ins, max(0, lo), min(n, hi), mind, tgt, t, i))
        for i in range(k - 2, -1, -1):
            items[i].hi = min(items[i].hi, items[i + 1].hi - items[i + 1].mind)
        cur = -1
        for i, it in enumerate(items):
            lo = max(it.lo, (cur + it.mind) if i else it.lo)
            if lo > it.hi:
                raise RuntimeError(f"empty window for task {t.name}[{i}]: {lo}..{it.hi}")
            tgt = min(max(it.tgt, lo), it.hi)
            span = 6 if not t.tight else 3
            best = None
            for g in range(max(lo, tgt - (0 if t.tight else 2)), min(it.hi, tgt + span) + 1):
                d = gap_cost(slots[g] + [it], g in reserve) - cost[g] + vmpen(g, it.n["m"]) + ldpen(g, it.lds)
                key = (d, abs(g - tgt))
                if best is None or key < best[0]:
                    best = (key, g)
            g = best[1]
            it.gap = g
            slots[g].append(it)
            vm[vmsp + g] += it.n["m"]
            ld[g + 2] += it.lds
            cost[g] = gap_cost(slots[g], g in reserve)
            cur = g
        chains.append(items)
    allit = [(c, i) for c in chains for i in range(len(c))]

    def rng(c, i):
        it = c[i]
        lo = max(it.lo, c[i - 1].gap + it.mind) if i else it.lo
        hi = min(it.hi, c[i + 1].gap - c[i + 1].mind) if i + 1 < len(c) else it.hi
        return lo, hi

    def move(it, g):
        slots[it.gap].remove(it)
        vm[vmsp + it.gap] -= it.n["m"]
        ld[it.gap + 2] -= it.lds
        ld[g + 2] += it.lds
        cost[it.gap] = gap_cost(slots[it.gap], it.gap in reserve)
        it.gap = g
        slots[g].append(it)
        vm[vmsp + g] += it.n["m"]
        cost[g] = gap_cost(slots[g], g in reserve)

    def delta(it, g):
        g0 = it.gap
        m = it.n["m"]
        rest = [x for x in slots[g0] if x is not it]
        vm[vmsp + g0] -= m
        ld[g0 + 2] -= it.lds
        d = (gap_cost(slots[g] + [it], g in reserve) - cost[g] + vmpen(g, m) + ldpen(g, it.lds)
             - (cost[g0] - gap_cost(rest, g0 in reserve)) - vmpen(g0, m) - ldpen(g0, it.lds))
        vm[vmsp + g0] += m
        ld[g0 + 2] += it.lds
        return d

    def is_hot(it):
        if cost[it.gap] > 0:
            return True
        if it.lds and ldw:
            ld[it.gap + 2] -= it.lds
            p = ldpen(it.gap, it.lds)
            ld[it.gap + 2] += it.lds
            if p > 0:
                return True
        m = it.n["m"]
        if not m:
            return False
        vm[vmsp + it.gap] -= m
        p = vmpen(it.gap, m)
        vm[vmsp + it.gap] += m
        return p > 0

    for rounds in range(iters):
        hot = [(c, i) for (c, i) in allit if is_hot(c[i])]
        if not hot:
            break
        improved = False
        rnd.shuffle(hot)
        for c, i in hot:
            it = c[i]
            if not is_hot(it):
                continue
            lo, hi = rng(c, i)
            g0 = it.gap
            best = None
            for g in range(max(lo, g0 - 24), min(hi, g0 + 24) + 1):
                if g == g0:
                    continue
                key = (delta(it, g), abs(g - it.tgt))
                if best is None or key < best[0]:
                    best = (key, g)
            if best and best[0][0] < 0:
                move(it, best[1])
                improved = True
        if not improved:
            for _ in range(min(200 if n < 200 else 1500, 4 * len(allit))):
                c, i = rnd.choice(allit)
                it = c[i]
                lo, hi = rng(c, i)
                if hi <= lo:
                    continue
                g = rnd.randint(max(lo, it.gap - 3), min(hi, it.gap + 3))
                if g != it.gap and delta(it, g) <= 0:
                    move(it, g)
            if rounds > 4 and n > 200:
                break
            if rounds > 300:
                break
    out = []
    for g in range(n + 1):
        out += [it.ins for it in order_gap(slots[g])]
        if g < n:
            out.append(mf[g])
    if overflow_report is not None:
        pen = 0
        for g in range(n + 1):
            m = vm[vmsp + g]
            vm[vmsp + g] = 0
            pen += vmpen(g, m) + vmw * vmsp * m * (m - 1) // 2
        overflow_report.append((sum(cost), pen, n))
    return out


def estimate(seq):
    tot = 0
    cur = []

    class T:
        prio = 0
    for x in seq:
        if x.kind in ("label", "dir"):
            continue
        if x.kind == "mfma":
            tot += 16 + gap_cost([Item(Group(cur), 0, 0, 0, 0, T, 0)] if cur else [])
            cur = []
        else:
            cur.append(x)
    return tot + 4 * len(cur)


def render(seq):
    lines = []
    for ins in seq:
        if ins.kind == "label":
            lines.append(ins.text)
        elif ins.kind == "dir":
            lines.append(ins.text)
        else:
            lines.append("    " + ins.text)
    return "\n".join(lines) + "\n"


def verify_order(ref, got):
    def scan(seq):
        last, seen = {}, {}
        for x in flatten(seq):
            if x.kind in ("label", "dir", "need", "wait", "nop"):
                continue
            seen[id(x)] = (x, tuple((r, last.get(r)) for r in x.uses if r != "vcc" or True))
            for r in x.defs:
                last[r] = id(x)
        return seen, last
    a, la = scan(ref)
    b, lb = scan(got)
    assert set(a) == set(b), "instruction sets differ: " + str([a[k][0].text for k in set(a) - set(b)] +
                                                                [b[k][0].text for k in set(b) - set(a)])
    for k in a:
        if a[k][1] != b[k][1]:
            bad = [(r, a.get(p, [None])[0], b.get(q, [None])[0]) for (r, p), (_, q) in zip(a[k][1], b[k][1]) if p != q]
            raise RuntimeError(f"order violated for {a[k][0].text}: {bad}")
    for r in la:
        if la[r] != lb[r]:
            raise RuntimeError(f"last writer of {r} differs")


def merge_waits(x, y):
    def split(seq):
        out, w = [], {}
        for i in seq:
            if i.kind == "wait":
                for nm, v in re.findall(r"(vmcnt|lgkmcnt)\((\d+)\)", i.text):
                    w[nm] = min(w.get(nm, 99), int(v))
            else:
                out.append((w, i))
                w = {}
        return out
    a, b = split(x), split(y)
    assert [i.text for _, i in a] == [i.text for _, i in b], "loop bodies differ in more than waits"
    out = []
    for (wa, i), (wb, _) in zip(a, b):
        w = {k: min(wa.get(k, 99), wb.get(k, 99)) for k in set(wa) | set(wb)}
        if w:
            out.append(I("s_waitcnt " + " ".join(f"{k}({w[k]})" for k in ("vmcnt", "lgkmcnt") if k in w)))
        out.append(i)
    return out
```

```python
import math
import struct
import sys

from asmir import (I, Ins, Group, Need, Task, Scoreboard, add_waits, pad_hazards, check_hazards, schedule, render,
                   flatten, batch, estimate, verify_order, merge_waits)

KNAME = "parallel_sum__compressed_kv_cla__geglu_ffn__prompt_kernel"


class Opt:
    stop = None
    stamps = 0
    G = 4
    NS = 10
    LEAD = 6
    spin = 1 << 20
    prefetch = 2
    xnslope = 88
    xn0 = 600
    vmw = 8
    rot = 1
    pfcode = 1
    lead4 = 8
    chk4 = 8
    G12 = 4
    lead12 = 11
    st_lo = 575
    st_hi = 1420
    seed = 1
    budget = 8
    timeit = ""
    xnchk = 566
    pfxw = 40
    tokmode = 0
    lnlate = 0
    wflag = 1
    vmwa = 4
    tune = 1
    ldw = 4
    ldw12 = 0
    gearly = 0
    ge0 = 460
    gestep = 30
    delay = 0
    sentinel = 2
    p4fix = 1
    unroll = 1
    gfake = 0
    wdist = 2
    wwin = 7
    xnsrc = 0
    stampat = "160,512,1024,1408,1916"
    drop = ""
    stflag = "sc1"
    ldflag = "sc1"


def fbits(x):
    return "0x%08x" % struct.unpack("<I", struct.pack("<f", x))[0]


XN_OFF = 0
KF_OFF = 2 << 20
VF_OFF = 18 << 20
ZC_OFF = 34 << 20
ZH_OFF = 50 << 20
FL_OFF = 56 << 20
FL_XN, FL_KV, FL_H, FL_C = FL_OFF, FL_OFF + 1024, FL_OFF + 5120, FL_OFF + 6144
FL_E = FL_OFF + 7168
FL_CW = FL_OFF + 7168
TS_OFF = 57 << 20
EX_OFF = 64 << 20
WS_SIZE = 72 << 20
OOB = 0x7FFFFF00

S_X, S_CKV, S_WQ, S_WUK, S_WUV, S_WO, S_WG, S_WU, S_WD, S_OUT, S_DBG, S_WS = range(4, 52, 4)
S_KV = S_WU
S_ZH = S_CKV
S_ZC = S_WQ
sWAVE, sH, sW, sB, sT0, sW2K, sTOKB, sKFB, sVFB = range(52, 61)
sXN = [61, 62, 63, 64]
sZH = [65, 66, 67, 68]
sZC = [69, 70, 71, 72]
sT1, sT2, sT3 = 73, 74, 75
sM0, sM1 = 76, 78
sEV = 80
sJ, sSOFF, sWR, sRD = 82, 83, 84, 85
sNM1 = [86, 87, 88, 89]
sNM2 = [90, 91, 92, 93]
sFXN, sFKV, sFH, sFC = 94, 95, 96, 97
sSPIN, sGBD, sPOLL = sT3, 99, 100
sST = 101
sJL = 65
sKQ, sTB, sCB, sTID, sZo, sWo = 58, 59, 60, 64, 94, 95
vWo4 = [243, 244]
sMASK, sSP = 61, 62
sK2 = [80, 81, 82, 85]
sACC = 98
TS = 2


def srd(b):
    return f"s[{b}:{b+3}]"


def vr(b, n=4):
    return f"v[{b}:{b+n-1}]" if n > 1 else f"v{b}"


def ar(b, n=4):
    return f"a[{b}:{b+n-1}]" if n > 1 else f"a{b}"


MF = "v_mfma_f32_16x16x32_bf16"


def mfma(d, a, b, c):
    return I(f"{MF} {d}, {a}, {b}, {c}")


ACC = [0, 64, 128]
WFB = [192, 200, 208, 220]
PK = [216, 220, 224]
vG0, vG1, vGK = 228, 229, 230
vPOLL = 231
vRD = [232, 233, 234, 235]
vRD64 = [236, 237]
vRD32 = 238
vWO = [239, 240]
vGA = [241, 242]
vGB = [243, 244]
vTRD = [241, 242]
vL16 = [245, 246, 247, 248]
vONE = 249
vPO32 = 250
vPO8 = 251
vGBS = 252
vC0, vC1 = 253, 254
vLANE = 255
vPOLL2 = 220
vX16 = [216, 217, 218, 219]
vTO = list(range(128, 136))
vLN = 136
vPFW = 176
LNBUF = 7 * 8192
TOKB = 65536
HV = dict(K0=(0, 1), K1=(2, 3), V0=(4, 5), V1=(1, 3), GA=(0, 5), GB=(3, 3), Q0=(2, 4), Q1=(1, 0))


def areg(ps, wb, tb):
    if ps == "Q1":
        return (wb >> 1) * 32 + (tb * 2 + (wb & 1)) * 4
    t = 4 * wb + tb
    return 32 * HV[ps][t >> 3] + 4 * (t & 7)


aO = lambda db, q: 64 + (q * 8 + db) * 4
aS = lambda q, kb: (q * 2 + kb) * 4
aC = lambda q, kb: 32 + (q * 2 + kb) * 4
aP = lambda q: 192 + q * 4
aE = [208, 216, 224]
vOR, vOR2 = 232, 233
vARD = 234
vDM = [236, 237]
vT = [238, 239, 240, 233]
vHP = 241
vHO = 242
sHB = 99
gQ = lambda q, ds: ds * 16 + q * 4
gK = lambda kb, ds: 64 + (kb * 4 + ds) * 4
gV = lambda db: 96 + db * 4
gL = lambda q: 128 + q * 4
gONE = 144
TF = lambda tb, ks: (ks * 4 + tb) * 4


class Gen:
    def __init__(self, opt):
        self.o = opt
        self.out = []
        self.cold = []
        self.nlab = 0
        self.reports = []
        self.nstamp = 0

    def lab(self, p):
        self.nlab += 1
        return f"L_{p}_{self.nlab}"

    def stamp(self, vt=None):
        if not self.o.stamps:
            return []
        vt = vPOLL if vt is None else vt
        k = self.nstamp
        self.nstamp += 1
        if self.o.stamps == 2:
            g = [I(f"s_memrealtime s[{sT2}:{sT2+1}]"), I("s_waitcnt lgkmcnt(0)"), I(f"v_mov_b32 v{vt}, s{sT2}"),
                 I(f"buffer_atomic_umax v{vt}, v{vONE}, {srd(S_DBG)}, 0 offen offset:{8+4*k} sc1"), I("s_nop 1")]
            if k == 0:
                g += [I(f"v_not_b32 v{vt}, v{vt}"),
                      I(f"buffer_atomic_umax v{vt}, v{vONE}, {srd(S_DBG)}, 0 offen offset:4 sc1"), I("s_nop 1")]
            return [Group(g)]
        return [Group([I(f"s_memtime s[{TS}:{TS+1}]"), I(f"s_memrealtime s[{sT2}:{sT2+1}]"),
                       I("s_waitcnt lgkmcnt(0)"), I("s_mov_b64 exec, 1"),
                       I(f"v_mov_b32 v{vt}, s{TS}"),
                       I(f"s_add_u32 s{TS}, s{sST}, {k*4}"),
                       I(f"buffer_store_dword v{vt}, v{vC0}, {srd(S_WS)}, s{TS} offen"),
                       I("s_nop 1"),
                       I(f"v_mov_b32 v{vt}, s{sT2}"),
                       I(f"buffer_store_dword v{vt}, v{vC0}, {srd(S_WS)}, s{TS} offen offset:64"),
                       I("s_nop 1"),
                       I(f"v_mov_b32 v{vt}, s{sACC}"),
                       I(f"buffer_store_dword v{vt}, v{vC0}, {srd(S_WS)}, s{TS} offen offset:128"),
                       I("s_nop 1"), I("s_mov_b64 exec, -1")])]

    def timed(self, seq):
        if self.o.stamps != 1 or (self.o.timeit == "spin"):
            return seq
        return [I("s_memtime s[0:1]")] + seq + [I(f"s_memtime s[{sM0}:{sM0+1}]"), I("s_waitcnt lgkmcnt(0)"),
                                                I(f"s_sub_u32 s0, s{sM0}, s0"), I(f"s_add_u32 s{sACC}, s{sACC}, s0")]

    def poll_check(self, vreg, srdb, voff, soff, val, cmp="ne", split=False):
        slow, back = self.lab("spin"), self.lab("back")
        tm = self.o.timeit == "spin"
        t0 = "    s_memtime s[0:1]\n" if tm else ""
        ret = back
        if tm:
            ret = slow + "_x"
        x = f"""{ret}:
    s_memtime s[{sM0}:{sM0+1}]
    s_waitcnt lgkmcnt(0)
    s_sub_u32 s0, s{sM0}, s0
    s_add_u32 s{sACC}, s{sACC}, s0
    s_branch {back}
""" if tm else ""
        self.cold.append(f"""{slow}:
{t0}    s_mov_b32 s{sSPIN}, {self.o.spin}
{slow}_l:
    buffer_load_dword v{vreg}, v{voff}, {srd(srdb)}, {soff} offen sc1
    s_waitcnt vmcnt(0)
    v_cmp_{cmp}_u32 vcc, {val}, v{vreg}
    s_nop 1
    s_cbranch_vccz {ret}
    s_sub_u32 s{sSPIN}, s{sSPIN}, 1
    s_cmp_lg_u32 s{sSPIN}, 0
    s_cbranch_scc1 {slow}_l
    s_branch {ret}
{x}""")
        a, b = I(f"v_cmp_{cmp}_u32 vcc, {val}, v{vreg}"), Group([I(f"s_cbranch_vccnz {slow}"), I(f"{back}:")])
        return [a, (b, None, None, 2)] if split else Group([a, b])

    def poll_load(self, vreg, srdb, voff, soff):
        return I(f"buffer_load_dword v{vreg}, v{voff}, {srd(srdb)}, {soff} offen sc1")

    def setup(self):
        c = []
        A = c.append
        A(I("s_cmp_ge_u32 s2, 256"))
        A(I("s_cbranch_scc1 L_exit"))
        ptrs = [(S_CKV, 8, 2097152), (S_WUK, 24, 4194304), (S_X, 0, 2097152), (S_WS, 96, WS_SIZE), (S_DBG, 88, 256),
                (S_WUV, 32, 4194304), (S_WQ, 16, 4194304), (S_WO, 40, 4194304), (S_WG, 56, 1409024),
                (S_WU, 64, 1409024), (S_WD, 72, 1409024), (S_OUT, 80, 2097152)]
        for b, off, n in ptrs:
            A(I(f"s_load_dwordx2 s[{b}:{b+1}], s[0:1], {off}"))
        A(I(f"v_and_b32 v{vLANE}, 63, v0"))
        A(I("v_lshrrev_b32 v1, 6, v0"))
        A(I(f"s_mov_b32 s{sB}, s2"))
        if self.o.delay:
            A(I(f"s_mov_b32 s{sT0}, {self.o.delay}"))
            A(I("L_delay:"))
            A(I("s_nop 15")); A(I("s_nop 15")); A(I("s_nop 15")); A(I("s_nop 15"))
            A(I(f"s_sub_u32 s{sT0}, s{sT0}, 1"))
            A(I(f"s_cmp_lg_u32 s{sT0}, 0"))
            A(I("s_cbranch_scc1 L_delay"))
        A(I(f"v_readfirstlane_b32 s{sWAVE}, v1"))
        for b, off, n in ptrs:
            A(I(f"s_mov_b32 s{b+2}, {n}"))
            A(I(f"s_mov_b32 s{b+3}, 0x20000"))
        A(I(f"s_and_b32 s{sT0}, s{sB}, 7"))
        A(I(f"s_lshl_b32 s{sT0}, s{sT0}, 2"))
        A(I(f"s_bfe_u32 s{sT1}, s{sB}, 0x20003"))
        A(I(f"s_add_u32 s{sH}, s{sT0}, s{sT1}"))
        A(I(f"s_lshr_b32 s{sW}, s{sB}, 5"))
        A(I(f"s_lshl_b32 s{sW2K}, s{sWAVE}, 11"))
        A(I(f"s_mul_i32 s{sTOKB}, s{sWAVE}, 24576"))
        A(I(f"s_add_u32 s{sTOKB}, s{sTOKB}, {TOKB}"))
        A(I(f"s_add_u32 s{sT0}, s{sH}, s{sW}"))
        if self.o.rot == 2:
            A(I(f"s_lshl_b32 s{sT0}, s{sT0}, 1"))
        A(I(f"s_and_b32 s{sT0}, s{sT0}, {self.o.rot}"))
        for i in range(4):
            A(I(f"s_add_u32 s{sT1}, s{sT0}, {i}"))
            A(I(f"s_and_b32 s{sT1}, s{sT1}, 3"))
            A(I(f"s_lshl_b32 s{sK2[i]}, s{sT1}, 8"))
        L = vLANE
        A(I(f"v_lshrrev_b32 v1, 3, v{L}"))
        A(I(f"v_lshrrev_b32 v2, 4, v{L}"))
        A(I(f"v_and_b32 v3, 7, v{L}"))
        A(I(f"s_lshl_b32 s{sT0}, s{sW}, 2"))
        A(I(f"s_add_u32 s{sT0}, s{sT0}, s{sWAVE}"))
        A(I(f"s_lshl_b32 s{sT0}, s{sT0}, 16"))
        A(I(f"v_xor_b32 v4, v3, v2"))
        A(I(f"v_lshlrev_b32 v5, 10, v1"))
        A(I(f"v_lshl_add_u32 v6, v4, 4, v5"))
        A(I(f"v_add_u32 v{vTO[0]}, s{sT0}, v6"))
        A(I(f"v_xor_b32 v7, 64, v{vTO[0]}"))
        for p in range(1, 8):
            src = 7 if p & 1 else vTO[0]
            A(I(f"v_add_u32 v{vTO[p]}, {p*8192 - (p&3)*1024}, v{src}"))
        A(I(f"v_lshrrev_b32 v8, 5, v{L}"))
        A(I(f"v_and_b32 v9, 3, v1"))
        A(I(f"v_lshl_add_u32 v9, v8, 3, v9"))
        A(I(f"s_lshr_b32 s{sT0}, s{sWAVE}, 1"))
        A(I(f"s_lshl_b32 s{sT0}, s{sT0}, 5"))
        A(I(f"s_and_b32 s{sT1}, s{sWAVE}, 1"))
        A(I(f"s_lshl_b32 s{sT1}, s{sT1}, 2"))
        A(I(f"s_add_u32 s{sT0}, s{sT0}, s{sT1}"))
        A(I(f"v_add_u32 v9, s{sT0}, v9"))
        A(I(f"v_lshlrev_b32 v10, 1, v2"))
        A(I(f"v_xor_b32 v10, v3, v10"))
        A(I(f"v_lshlrev_b32 v10, 4, v10"))
        A(I(f"s_lshl_b32 s{sT0}, s{sH}, 8"))
        A(I(f"v_lshl_add_u32 v11, v9, 13, v10"))
        A(I(f"v_add_u32 v{vWO[0]}, s{sT0}, v11"))
        A(I(f"v_add_u32 v{vWO[1]}, {16*8192-1024}, v{vWO[0]}"))
        A(I(f"s_lshl_b32 s{sT0}, s{sB}, 2"))
        A(I(f"s_add_u32 s{sT0}, s{sT0}, s{sWAVE}"))
        A(I(f"s_lshl_b32 s{sT0}, s{sT0}, 11"))
        A(I(f"v_and_b32 v12, 31, v{L}"))
        A(I(f"v_lshlrev_b32 v13, 10, v8"))
        A(I(f"v_lshl_add_u32 v13, v12, 4, v13"))
        A(I(f"v_add_u32 v{vLN+32}, s{sT0}, v13"))
        A(I(f"v_mov_b32 v{vC0}, 0"))
        A(I(f"v_mov_b32 v{vC1}, 1"))
        A(I(f"v_mov_b32 v14, {OOB}"))
        A(I("v_cmp_eq_u32 vcc, 0, v0"))
        A(I(f"v_lshlrev_b32 v{vPO32}, 2, v12"))
        A(I(f"v_lshlrev_b32 v{vPO8}, 2, v3"))
        A(I(f"v_cndmask_b32 v{vONE}, v14, v{vC0}, vcc"))
        A(I(f"s_lshr_b32 s{sT0}, s{sB}, 4"))
        A(I(f"s_sub_u32 s{sT1}, 15, s{sT0}"))
        A(I(f"s_min_u32 s{sT1}, s{sT0}, s{sT1}"))
        A(I(f"s_lshl_b32 s{sT1}, s{sT1}, 7"))
        A(I(f"s_lshr_b32 s{sT0}, s{sB}, 7"))
        A(I(f"s_lshl_b32 s{sT0}, s{sT0}, 4"))
        A(I(f"s_and_b32 s{sT2}, s{sB}, 15"))
        A(I(f"s_add_u32 s{sT0}, s{sT0}, s{sT2}"))
        A(I(f"s_lshl_b32 s{sT0}, s{sT0}, 2"))
        A(I(f"s_add_u32 s{sFXN}, s{sT0}, s{sT1}"))
        A(I(f"s_add_u32 s{sFXN}, s{sFXN}, {FL_XN}"))
        A(I(f"s_lshl_b32 s{sT0}, s{sH}, 7"))
        A(I(f"s_lshl_b32 s{sT1}, s{sW}, 2"))
        A(I(f"s_add_u32 s{sFKV}, s{sT0}, s{sT1}"))
        A(I(f"s_add_u32 s{sFKV}, s{sFKV}, {FL_KV}"))
        A(I(f"s_lshl_b32 s{sT0}, s{sW}, 7"))
        A(I(f"s_lshl_b32 s{sT1}, s{sH}, 2"))
        A(I(f"s_add_u32 s{sT0}, s{sT0}, s{sT1}"))
        A(I(f"s_add_u32 s{sFH}, s{sT0}, {FL_H}"))
        A(I(f"s_add_u32 s{sFC}, s{sT0}, {FL_C}"))
        if self.o.stamps == 1:
            A(I(f"s_lshl_b32 s{sST}, s{sB}, 2"))
            A(I(f"s_add_u32 s{sST}, s{sST}, s{sWAVE}"))
            A(I(f"s_lshl_b32 s{sST}, s{sST}, 8"))
            A(I(f"s_mov_b32 s{sACC}, 0"))
            A(I(f"s_add_u32 s{sST}, s{sST}, {TS_OFF}"))
        return c

    def setup2(self):
        c = []
        A = c.append
        L = vLANE
        t = vLN + 24
        g, i16 = t, t + 1
        A(I(f"v_lshrrev_b32 v{g}, 4, v{L}"))
        A(I(f"v_and_b32 v{i16}, 15, v{L}"))
        A(I(f"v_lshrrev_b32 v{t+2}, 2, v{i16}"))
        A(I(f"v_lshl_add_u32 v{t+2}, v{g}, 2, v{t+2}"))
        A(I(f"v_and_b32 v{t+3}, 3, v{i16}"))
        A(I(f"v_lshlrev_b32 v{t+3}, 3, v{t+3}"))
        A(I(f"v_bfe_u32 v{t+4}, v{t+2}, 1, 2"))
        A(I(f"v_lshlrev_b32 v{t+4}, 5, v{t+4}"))
        A(I(f"v_lshl_add_u32 v{t+5}, v{t+2}, 7, v{t+3}"))
        A(I(f"v_add_u32 v{vRD[0]}, v{t+5}, v{t+4}"))
        for cb in range(1, 4):
            A(I(f"v_xor_b32 v{vRD[cb]}, {cb*32}, v{vRD[0]}"))
        A(I(f"v_and_b32 v{t+4}, 1, v{g}"))
        A(I(f"v_lshlrev_b32 v{t+4}, 5, v{t+4}"))
        A(I(f"v_lshl_add_u32 v{t+5}, v{t+2}, 6, v{t+3}"))
        A(I(f"v_add_u32 v{vRD64[0]}, v{t+5}, v{t+4}"))
        A(I(f"v_xor_b32 v{vRD64[1]}, 32, v{vRD64[0]}"))
        A(I(f"v_lshl_add_u32 v{vRD32}, v{t+2}, 5, v{t+3}"))
        A(I(f"v_lshrrev_b32 v{t+4}, 1, v{i16}"))
        A(I(f"v_xor_b32 v{t+4}, v{g}, v{t+4}"))
        A(I(f"v_lshlrev_b32 v{t+4}, 4, v{t+4}"))
        A(I(f"v_lshl_add_u32 v{t+4}, v{i16}, 7, v{t+4}"))
        A(I(f"v_add_u32 v{vTRD[0]}, s{sTOKB}, v{t+4}"))
        A(I(f"v_xor_b32 v{vTRD[1]}, 64, v{vTRD[0]}"))
        A(I(f"v_lshlrev_b32 v{vL16[0]}, 4, v{L}"))
        for i in range(1, 4):
            A(I(f"v_add_u32 v{vL16[i]}, {4096*i}, v{vL16[0]}"))
        return c

    def setup3(self):
        c = []
        A = c.append
        L = vLANE
        A(I(f"s_lshl_b32 s{sT1}, s{sH}, 6"))
        A(I(f"s_lshl_b32 s{sT2}, s{sW}, 3"))
        A(I(f"s_add_u32 s{sT1}, s{sT1}, s{sT2}"))
        A(I(f"s_lshl_b32 s{sT2}, s{sWAVE}, 1"))
        A(I(f"s_add_u32 s{sT1}, s{sT1}, s{sT2}"))
        A(I(f"s_lshl_b32 s{sT1}, s{sT1}, 13"))
        A(I(f"s_add_u32 s{sKFB}, s{sT1}, {KF_OFF}"))
        A(I(f"s_add_u32 s{sVFB}, s{sT1}, {VF_OFF}"))
        B = sNM2
        A(I(f"s_sub_u32 s{sT1}, 15, s{sW}"))
        A(I(f"s_lshl_b32 s{sT1}, s{sT1}, 3"))
        A(I(f"s_lshl_b32 s{sT2}, s{sW}, 3"))
        A(I(f"s_sub_u32 s{sT3}, 7, s{sWAVE}"))
        A(I(f"s_add_u32 s{B[0]}, s{sT1}, s{sT3}"))
        A(I(f"s_add_u32 s{B[1]}, s{sT1}, s{sWAVE}"))
        A(I(f"s_add_u32 s{B[2]}, s{sT2}, s{sT3}"))
        A(I(f"s_add_u32 s{B[3]}, s{sT2}, s{sWAVE}"))
        for q in range(4):
            A(I(f"s_lshl_b32 s{sXN[q]}, s{B[q]}, 14"))
            if XN_OFF:
                A(I(f"s_add_u32 s{sXN[q]}, s{sXN[q]}, {XN_OFF}"))
            A(I(f"s_lshr_b32 s{sT1}, s{B[q]}, 2"))
            A(I(f"s_and_b32 s{sT2}, s{B[q]}, 3"))
            A(I(f"s_lshl_b32 s{sT2}, s{sT2}, 10"))
            A(I(f"s_mul_i32 s{sZH[q]}, s{sT1}, {43*4096}"))
            A(I(f"s_add_u32 s{sZH[q]}, s{sZH[q]}, s{sT2}"))
            A(I(f"s_lshl_b32 s{sT3}, s{sH}, 12"))
            A(I(f"s_add_u32 s{sZH[q]}, s{sZH[q]}, s{sT3}"))
            A(I(f"s_add_u32 s{sZH[q]}, s{sZH[q]}, {ZH_OFF}"))
            A(I(f"s_lshl_b32 s{sZC[q]}, s{sT1}, 19"))
            A(I(f"s_add_u32 s{sZC[q]}, s{sZC[q]}, s{sT2}"))
            A(I(f"s_lshl_b32 s{sT3}, s{sH}, 14"))
            A(I(f"s_add_u32 s{sZC[q]}, s{sZC[q]}, s{sT3}"))
            A(I(f"s_add_u32 s{sZC[q]}, s{sZC[q]}, {ZC_OFF}"))
        A(I(f"s_lshr_b32 s{sT1}, s{sH}, 1"))
        A(I(f"s_add_u32 s{sT1}, s{sT1}, 32"))
        A(I(f"s_sub_u32 s{sT1}, s{sT1}, s{sH}"))
        A(I(f"s_lshl_b32 s{sGBD}, s{sT1}, 12"))
        A(Group([I(f"s_cmp_lt_u32 s{sWAVE}, 2"), I(f"s_cselect_b32 s{S_WG}, s{S_WG}, s{S_WU}"),
                 I(f"s_cselect_b32 s{S_WG+1}, s{S_WG+1}, s{S_WU+1}")]))
        A(I(f"v_mov_b32 v{vGK}, {fbits(GK1)}"))
        for i in range(4):
            A(I(f"s_lshl_b32 s{sT1}, s{sK2[i]}, 4"))
            A(I(f"v_add_u32 v{vX16[i]}, s{sT1}, v{vL16[0]}"))
        return c

    def setup4(self):
        c = []
        A = c.append
        L = vLANE
        t = vLN + 24
        A(I(f"v_lshrrev_b32 v{t}, 4, v{L}"))
        A(I(f"v_bfe_u32 v{t+1}, v{L}, 2, 2"))
        A(I(f"v_lshl_add_u32 v{t+1}, v{t}, 3, v{t+1}"))
        A(I(f"s_and_b32 s{sT1}, s{sWAVE}, 1"))
        A(I(f"s_lshl_b32 s{sT2}, s{sT1}, 5"))
        A(I(f"v_add_u32 v{t+1}, s{sT2}, v{t+1}"))
        A(I(f"v_mul_u32_u24 v{t+1}, 2752, v{t+1}"))
        A(I(f"v_and_b32 v{t}, 1, v{t}"))
        A(I(f"v_lshlrev_b32 v{t}, 1, v{t}"))
        A(I(f"v_and_b32 v{t+2}, 3, v{L}"))
        A(I(f"v_xor_b32 v{t}, v{t}, v{t+2}"))
        A(I(f"v_lshl_add_u32 v{t}, v{t}, 4, v{t+1}"))
        A(I(f"s_lshl_b32 s{sT2}, s{sH}, 6"))
        A(I(f"v_add_u32 v{vGA[0]}, s{sT2}, v{t}"))
        A(I(f"v_add_u32 v{vGA[1]}, {4*2752-1024}, v{vGA[0]}"))
        A(I(f"v_bfe_u32 v{t}, v{L}, 3, 2"))
        A(I(f"v_bfe_u32 v{t+1}, v{L}, 1, 2"))
        A(I(f"v_lshl_add_u32 v{t}, v{t}, 3, v{t+1}"))
        A(I(f"v_lshrrev_b32 v{t+1}, 5, v{L}"))
        A(I(f"v_lshl_add_u32 v{t}, v{t+1}, 2, v{t}"))
        A(I(f"s_lshl_b32 s{sT2}, s{sT1}, 6"))
        A(I(f"v_add_u32 v{t}, s{sT2}, v{t}"))
        A(I(f"v_mul_u32_u24 v{t}, 2752, v{t}"))
        A(I(f"v_and_b32 v{t+1}, 1, v{L}"))
        A(I(f"v_lshl_add_u32 v{t}, v{t+1}, 4, v{t}"))
        A(I(f"s_min_u32 s{sT2}, s{sH}, 21"))
        A(I(f"s_lshl_b32 s{sT2}, s{sT2}, 5"))
        A(I(f"s_add_u32 s{sT2}, s{sT2}, 2048"))
        A(Group([I(f"s_cmp_lt_u32 s{sH}, 22"), I(f"s_cselect_b32 s{sT2}, s{sT2}, {OOB}")]))
        A(I(f"v_add_u32 v{vGB[0]}, s{sT2}, v{t}"))
        A(I(f"v_add_u32 v{vGB[1]}, {32*2752-1024}, v{vGB[0]}"))
        A(I(f"s_and_b32 s{sT2}, s{sH}, 1"))
        A(I(f"s_lshl_b32 s{sT2}, s{sT2}, 3"))
        A(Group([I(f"s_cmp_lt_u32 s{sH}, 22"), I(f"s_cselect_b32 s{sT2}, s{sT2}, {OOB}")]))
        A(I(f"v_add_u32 v{vGBS}, s{sT2}, v{vL16[0]}"))
        return c

    def ln_compute(self):
        R = vLN
        X = vLN + 8
        t = vLN + 24
        c = []
        A = c.append
        for i in range(8):
            A(I(f"v_lshlrev_b32 v{X+2*i}, 16, v{R+i}"))
            A(I(f"v_and_b32 v{X+2*i+1}, 0xffff0000, v{R+i}"))

        def reduce32(r):
            for sh in (8, 4, 2, 1):
                A(I(f"v_add_f32_dpp v{r}, v{r}, v{r} row_ror:{sh} row_mask:0xf bank_mask:0xf"))
            A(I(f"v_mov_b32 v{t+7}, v{r}"))
            A(I(f"v_permlane16_swap_b32 v{r}, v{t+7}"))
            A(I(f"v_add_f32 v{r}, v{r}, v{t+7}"))
        A(I(f"v_add_f32 v{t}, v{X}, v{X+1}"))
        A(I(f"v_add_f32 v{t+1}, v{X+2}, v{X+3}"))
        for i in range(4, 16, 2):
            A(I(f"v_add_f32 v{t}, v{t}, v{X+i}"))
            A(I(f"v_add_f32 v{t+1}, v{t+1}, v{X+i+1}"))
        A(I(f"v_add_f32 v{t}, v{t}, v{t+1}"))
        reduce32(t)
        A(I(f"v_mul_f32 v{t}, {fbits(1.0/512)}, v{t}"))
        for i in range(16):
            A(I(f"v_sub_f32 v{X+i}, v{X+i}, v{t}"))
        A(I(f"v_mul_f32 v{t+1}, v{X}, v{X}"))
        A(I(f"v_mul_f32 v{t+2}, v{X+1}, v{X+1}"))
        for i in range(2, 16, 2):
            A(I(f"v_fmac_f32 v{t+1}, v{X+i}, v{X+i}"))
            A(I(f"v_fmac_f32 v{t+2}, v{X+i+1}, v{X+i+1}"))
        A(I(f"v_add_f32 v{t+1}, v{t+1}, v{t+2}"))
        reduce32(t + 1)
        A(I(f"v_mul_f32 v{t+1}, {fbits(1.0/512)}, v{t+1}"))
        A(I(f"v_cvt_pk_bf16_f32 v{t+2}, v{t}, v{t+1}"))
        A(I(f"v_and_b32 v{t+3}, 0xffff0000, v{t+2}"))
        A(I(f"v_lshlrev_b32 v{t+2}, 16, v{t+2}"))
        A(I(f"v_add_f32 v{t+3}, {fbits(1e-5)}, v{t+3}"))
        A(I(f"v_cvt_pk_bf16_f32 v{t+3}, v{t+3}, v{t+3}"))
        A(I(f"v_and_b32 v{t+3}, 0xffff0000, v{t+3}"))
        A(I(f"v_sqrt_f32 v{t+3}, v{t+3}"))
        A(I(f"v_sub_f32 v{t+2}, v{t}, v{t+2}"))
        A(I(f"v_cvt_pk_bf16_f32 v{t+3}, v{t+3}, v{t+3}"))
        A(I(f"v_and_b32 v{t+3}, 0xffff0000, v{t+3}"))
        A(I(f"v_rcp_f32 v{t+3}, v{t+3}"))
        A(I(f"v_and_b32 v{t+4}, 31, v{vLANE}"))
        A(I(f"v_lshrrev_b32 v{t+5}, 5, v{vLANE}"))
        A(I(f"v_mul_f32 v{t+2}, v{t+2}, v{t+3}"))
        A(I(f"v_lshl_add_u32 v{t+4}, v{t+4}, 3, v{t+5}"))
        A(I(f"s_lshl_b32 s{sT1}, s{sWAVE}, 5"))
        A(I(f"s_add_u32 s{sT1}, s{sT1}, {LNBUF}"))
        A(I(f"v_lshl_add_u32 v{t+4}, v{t+4}, 4, s{sT1}"))
        for i in range(16):
            A(I(f"v_fma_f32 v{X+i}, v{X+i}, v{t+3}, v{t+2}"))
        for i in range(8):
            A(I(f"v_cvt_pk_bf16_f32 v{R+i}, v{X+2*i}, v{X+2*i+1}"))
        A(I(f"ds_write_b128 v{t+4}, {vr(R)}"))
        A(I(f"ds_write_b128 v{t+4}, {vr(R+4)} offset:4096"))
        return c

    def ln_store(self):
        R = vLN
        t = vLN + 24
        c = []
        A = c.append
        A(I(f"s_lshl_b32 s{sT1}, s{sWAVE}, 11"))
        A(I(f"s_add_u32 s{sT1}, s{sT1}, {LNBUF}"))
        A(I(f"v_add_u32 v{t}, s{sT1}, v{vL16[0]}"))
        A(I(f"ds_read_b128 {vr(R)}, v{t}"))
        A(I(f"ds_read_b128 {vr(R+4)}, v{t} offset:1024"))
        A(I(f"v_lshrrev_b32 v{t+1}, 3, v{vLANE}"))
        A(I(f"v_and_b32 v{t+2}, 7, v{vLANE}"))
        A(I(f"v_lshlrev_b32 v{t+2}, 4, v{t+2}"))
        A(I(f"v_lshl_add_u32 v{t+1}, v{t+1}, 8, v{t+2}"))
        A(I(f"s_lshr_b32 s{sT1}, s{sB}, 1"))
        A(I(f"s_lshl_b32 s{sT1}, s{sT1}, 14"))
        A(I(f"s_and_b32 s{sT2}, s{sB}, 1"))
        A(I(f"s_lshl_b32 s{sT2}, s{sT2}, 7"))
        A(I(f"s_add_u32 s{sT1}, s{sT1}, s{sT2}"))
        A(I(f"s_lshl_b32 s{sT2}, s{sWAVE}, 12"))
        A(I(f"s_add_u32 s{sT1}, s{sT1}, s{sT2}"))
        if XN_OFF:
            A(I(f"s_add_u32 s{sT1}, s{sT1}, {XN_OFF}"))
        A(I(f"v_add_u32 v{t+1}, s{sT1}, v{t+1}"))
        st = [I(f"buffer_store_dwordx4 {vr(R)}, v{t+1}, {srd(S_WS)}, 0 offen sc1"),
              I(f"buffer_store_dwordx4 {vr(R+4)}, v{t+1}, {srd(S_WS)}, 0 offen offset:2048 sc1")]
        return c + st, st

    def tiles(self):
        T = []
        for c in range(8):
            for half in range(2):
                T.append(dict(typ="R128", srd=S_WUK, kc=c, col=half * 128, vo=vWO, acc=f"K{half}", swap=False,
                              ks0=2 * c, first=(c == 0)))
        for c in range(8):
            for half in range(2):
                T.append(dict(typ="R128", srd=S_WUV, kc=c, col=half * 128, vo=vWO, acc=f"V{half}", swap=True,
                              ks0=2 * c, first=(c == 0)))
        for c in range(4):
            for cc in (2 * c, 2 * c + 1):
                T.append(dict(typ="R64", srd=S_WG, kc=cc, col=0, vo=vGA, acc="GA", swap=False, ks0=2 * cc,
                              first=(cc == 0)))
            T.append(dict(typ="R32", srd=S_WG, kc=2 * c, col=0, vo=vGB, acc="GB", swap=False, ks0=4 * c,
                          first=(c == 0)))
        for half in range(2):
            for c in range(8):
                T.append(dict(typ="R128", srd=S_WQ, kc=c, col=half * 128, vo=vWO, acc=f"Q{half}", swap=False,
                              ks0=2 * c, first=(c == 0)))
        return T

    def tile_dma(self, t):
        fake = self.o.gfake and t["typ"] != "R128" and (self.o.gfake == 1 or t["typ"] == "R32")
        if fake:
            t = t
            vo, sr = vWO, S_WQ
        else:
            vo, sr = t["vo"], t["srd"]
        ops = [I(f"buffer_load_dwordx4 v{vo[p]}, {srd(sr)}, s{sT0} offen offset:{p*1024} lds")
               for p in range(2)]
        t["dma"] = ops
        stride = 8192 if (t["typ"] == "R128" or fake) else 2752
        kc = t["kc"]
        so = [I(f"s_mul_i32 s{sT0}, s{sK2[kc >> 1]}, {stride // 2}")]
        add = (kc & 1) * 64 * stride + t["col"]
        if add:
            so.append(I(f"s_add_u32 s{sT0}, s{sT0}, {add}"))
        return so + [I(f"s_add_u32 m0, s{sW2K}, {t['slot']}"), ops[0], ops[1]]

    def unit_reads(self, t, u, buf):
        base = t["slot"] & 0xffff
        r = []
        for k in range(2):
            for a in range(2):
                d = WFB[buf] + 4 * k + 2 * a
                if t["typ"] == "R128":
                    addr, off = vRD[u], base + k * 4096 + a * 2048
                elif t["typ"] == "R64":
                    addr, off = vRD64[u & 1], base + (u >> 1) * 4096 + k * 2048 + a * 1024
                else:
                    addr, off = vRD32, base + (u & 1) * 4096 + (2 * (u >> 1) + k) * 1024 + a * 512
                r.append(I(f"ds_read_b64_tr_b16 {vr(d,2)}, v{addr} offset:{off}"))
        return batch(r)

    def unit_mfma(self, t, u, buf):
        m = []
        if t["typ"] == "R32":
            wb, ksb, first = u & 1, t["ks0"] + 2 * (u >> 1), t["first"] and u < 2
        else:
            wb, ksb, first = u, t["ks0"], t["first"]
        for tb in range(4):
            d = vr(areg(t["acc"], wb, tb))
            for k in range(2):
                wf, tf = vr(WFB[buf] + 4 * k), ar(TF(tb, ksb + k))
                a, b = (tf, wf) if t["swap"] else (wf, tf)
                m.append(mfma(d, a, b, "0" if (first and k == 0) else d))
        return m

    def tok_dma(self, c):
        ops = [I(f"buffer_load_dwordx4 v{vTO[p]}, {srd(S_CKV)}, s{sT0} offen offset:{(p&3)*1024} lds") for p in range(8)]
        seq = [I(f"s_add_u32 s{sT0}, s{sK2[c >> 1]}, {(c & 1) * 128}")]
        for p in range(8):
            if p & 3 == 0:
                seq.append(I(f"s_add_u32 m0, s{sTOKB}, {(c%3)*8192 + (p>>2)*4096}"))
            seq.append(ops[p])
        return seq, ops

    def tok_reads(self, c):
        return batch([I(f"ds_read_b128 {ar(TF(tb, 2*c+k))}, v{vTRD[k]} offset:{(c%3)*8192 + tb*2048}")
                      for k in range(2) for tb in range(4)])

    def pk_frag(self, d, t0, t1):
        return [I(f"v_cvt_pk_bf16_f32 v{d}, v{t0}, v{t0+1}"), I(f"v_cvt_pk_bf16_f32 v{d+1}, v{t0+2}, v{t0+3}"),
                I(f"v_cvt_pk_bf16_f32 v{d+2}, v{t1}, v{t1+1}"), I(f"v_cvt_pk_bf16_f32 v{d+3}, v{t1+2}, v{t1+3}")]

    def epi_K(self, half):
        c, st = [], []
        ps = f"K{half}"
        for tb in range(4):
            for d2 in range(2):
                p = areg(ps, d2, tb)
                c += self.pk_frag(p, areg(ps, 2 * d2, tb), areg(ps, 2 * d2 + 1, tb))
                st.append(I(f"buffer_store_dwordx4 {vr(p)}, v{vL16[tb]}, {srd(S_WS)}, s{sKFB} offen "
                            f"offset:{(2*half+d2)*1024} {self.o.stflag}"))
        return c, st

    def epi_V(self, half):
        c, st = [], []
        ps = f"V{half}"
        for wb in range(4):
            for sp in range(2):
                p = areg(ps, wb & 1, 2 * sp + (wb >> 1))
                c += self.pk_frag(p, areg(ps, wb, 2 * sp), areg(ps, wb, 2 * sp + 1))
                st.append(I(f"buffer_store_dwordx4 {vr(p)}, v{vL16[2*sp+half]}, {srd(S_WS)}, s{sVFB} offen "
                            f"offset:{wb*1024} {self.o.stflag}"))
        return c, st

    def gelu4(self, g, u):
        c = []
        for i in (0, 2):
            a, b = g + i, g + i + 1
            c += [I(f"v_mul_f32 v{vG0}, v{a}, v{a}"), I(f"v_mul_f32 v{vG1}, v{b}, v{b}"),
                  I(f"v_fmaak_f32 v{vG0}, v{vG0}, v{vGK}, {fbits(GK0)}"),
                  I(f"v_fmaak_f32 v{vG1}, v{vG1}, v{vGK}, {fbits(GK0)}"),
                  I(f"v_mul_f32 v{vG0}, v{vG0}, v{a}"), I(f"v_mul_f32 v{vG1}, v{vG1}, v{b}"),
                  I(f"v_exp_f32 v{vG0}, v{vG0}"), I(f"v_exp_f32 v{vG1}, v{vG1}"),
                  I(f"v_mul_f32 v{a}, v{a}, v{u+i}"), I(f"v_mul_f32 v{b}, v{b}, v{u+i+1}"),
                  I(f"v_add_f32 v{vG0}, 1.0, v{vG0}"), I(f"v_add_f32 v{vG1}, 1.0, v{vG1}"),
                  I(f"v_rcp_f32 v{vG0}, v{vG0}"), I(f"v_rcp_f32 v{vG1}, v{vG1}"),
                  I(f"v_mul_f32 v{a}, v{a}, v{vG0}"), I(f"v_mul_f32 v{b}, v{b}, v{vG1}")]
        return c

    def epi_GA(self):
        c, st = [], []
        for tb in range(4):
            T = lambda wb: areg("GA", wb, tb)
            c += self.gelu4(T(0), T(2)) + self.gelu4(T(1), T(3))
            p = T(0)
            c += self.pk_frag(p, T(0), T(1))
            s = I(f"buffer_store_dwordx4 {vr(p)}, v{vL16[0]}, {srd(S_WS)}, s{sZH[tb]} offen {self.o.stflag}")
            c.append(s)
            st.append(s)
        return c, st

    def epi_GB(self):
        c, st = [], []
        for tb in range(4):
            g, u = areg("GB", 0, tb), areg("GB", 1, tb)
            c += self.gelu4(g, u)
            p = g
            c += [I(f"v_cvt_pk_bf16_f32 v{p}, v{g}, v{g+1}"), I(f"v_cvt_pk_bf16_f32 v{p+1}, v{g+2}, v{g+3}")]
            s = I(f"buffer_store_dwordx2 {vr(p,2)}, v{vGBS}, {srd(S_WS)}, s{sT3} offen {self.o.stflag}")
            c.append(Group([I(f"s_add_u32 s{sT3}, s{sZH[tb]}, s{sGBD}"), s]))
            st.append(s)
        return c, st

    def epi_Q(self, half, q):
        c = []
        for d2 in range(2):
            t0, t1 = areg(f"Q{half}", 2 * d2, q), areg(f"Q{half}", 2 * d2 + 1, q)
            for r in list(range(t0, t0 + 4)) + list(range(t1, t1 + 4)):
                c.append(I(f"v_mul_f32 v{r}, s{sQS}, v{r}"))
            p = t0
            c += self.pk_frag(p, t0, t1)
            for r in range(4):
                c.append(I(f"v_accvgpr_write_b32 a{gQ(q, 2*half+d2)+r}, v{p+r}"))
        return c

    def flag_store(self, s):
        return I(f"buffer_store_dword v{vC1}, v{vONE}, {srd(S_WS)}, s{s} offen sc1")

    def att_setup(self):
        c = []
        A = c.append
        A(I(f"s_lshl_b32 s{sT1}, s{sH}, 19"))
        A(I(f"s_and_b32 s{sT2}, s{sWAVE}, 1"))
        A(I(f"s_lshl_b32 s{sT2}, s{sT2}, 12"))
        A(I(f"s_add_u32 s{sT1}, s{sT1}, s{sT2}"))
        A(I(f"s_lshl_b32 s{sT3}, s{sW}, 2"))
        A(I(f"s_sub_u32 s{sT3}, 64, s{sT3}"))
        A(I(f"s_lshl_b32 s{sT3}, s{sT3}, 13"))
        A(I(f"s_sub_u32 s{sT3}, s{sT3}, s{sT2}"))
        A(Group([I(f"s_cmp_lt_u32 s{sWAVE}, 2"), I(f"s_cselect_b32 s{sT2}, {VF_OFF - KF_OFF - 16384}, 0")]))
        A(I(f"s_add_u32 s{sT1}, s{sT1}, s{sT2}"))
        A(I(f"s_add_u32 s{sT1}, s{sT1}, {KF_OFF + 16384}"))
        A(Group([I(f"s_cmp_lt_u32 s{sWAVE}, 2"), I(f"s_cselect_b32 s{sT2}, 0, 16384")]))
        A(I(f"s_sub_u32 s{S_KV+2}, s{sT3}, s{sT2}"))
        A(Group([I(f"s_add_u32 s{S_KV}, s{S_WS}, s{sT1}"), I(f"s_addc_u32 s{S_KV+1}, s{S_WS+1}, 0")]))
        A(I(f"s_lshr_b32 s{sT1}, s{sWAVE}, 1"))
        A(I(f"s_sub_u32 s{sT2}, 3, s{sT1}"))
        A(I(f"s_lshl_b32 s{sT3}, s{sW}, 2"))
        A(I(f"s_add_u32 s{sNM1[3]}, s{sT3}, s{sT1}"))
        A(I(f"s_add_u32 s{sNM1[2]}, s{sT3}, s{sT2}"))
        A(I(f"s_sub_u32 s{sT3}, 60, s{sT3}"))
        A(I(f"s_add_u32 s{sNM1[1]}, s{sT3}, s{sT1}"))
        A(I(f"s_add_u32 s{sNM1[0]}, s{sT3}, s{sT2}"))
        for q in range(4):
            A(I(f"s_sub_u32 s{sNM2[q]}, s{sNM1[q]}, 1"))
        return c

    def att_events(self):
        c = []
        A = c.append
        m = sum(1 << j for j in range(0, 64, self.o.G))
        A(I(f"s_mov_b32 s{sEV}, {m & 0xffffffff:#x}"))
        A(I(f"s_mov_b32 s{sEV+1}, {m >> 32:#x}"))
        m = (1 << (2 * self.o.G)) | (1 << (3 * self.o.G))
        A(I(f"s_lshl_b32 s{sJL}, s{sW}, 2"))
        A(I(f"s_sub_u32 s{sJL}, 60, s{sJL}"))
        A(I(f"s_mov_b32 s{sSP}, {m:#x}"))
        A(I(f"s_mov_b32 s{sSP+1}, 0"))
        A(I(f"s_mov_b32 s{sMASK}, 0x40004000"))
        for q in range(4):
            A(I(f"s_bitset1_b64 s[{sSP}:{sSP+1}], s{sNM1[q]}"))
            A(I(f"s_bitset1_b64 s[{sSP}:{sSP+1}], s{sNM2[q]}"))
        A(I(f"s_bitset1_b64 s[{sSP}:{sSP+1}], s{sJL}"))
        A(I(f"s_or_b64 s[{sEV}:{sEV+1}], s[{sEV}:{sEV+1}], s[{sSP}:{sSP+1}]"))
        return c

    def att_dma(self, tile=None):
        return [I(f"buffer_load_dwordx4 v{vL16[0]}, {srd(S_KV)}, s{sSOFF} offen offset:{p*1024} {self.o.ldflag} lds")
                for p in range(4)]

    def pf_load(self, voff, sr, soff="0", dst=None):
        x = I(f"buffer_load_dword {dst or 'v%d' % vG0}, v{voff}, {srd(sr)}, {soff} offen")
        x.defs = []
        return x

    def prefetch0(self):
        L = vLANE
        t = 16
        c = [I(f"v_lshrrev_b32 v{t}, 1, v{L}"), I(f"v_and_b32 v{t+1}, 1, v{L}"),
             I(f"s_lshl_b32 s{sT1}, s{sW}, 2"), I(f"s_add_u32 s{sT1}, s{sT1}, s{sWAVE}"),
             I(f"s_lshl_b32 s{sT2}, s{sT1}, 17"), I(f"s_lshl_b32 s{sT3}, s{sH}, 8"),
             I(f"s_add_u32 s{sT2}, s{sT2}, s{sT3}"),
             I(f"v_lshlrev_b32 v{t}, 13, v{t}"), I(f"v_lshl_add_u32 v{t}, v{t+1}, 7, v{t}"),
             I(f"v_add_u32 v{t}, s{sT2}, v{t}"),
             I(f"v_mov_b32 v{t+2}, {OOB}"), I(f"v_cmp_gt_u32 vcc, 32, v{L}"),
             I(f"s_lshl_b32 s{sT1}, s{sT1}, 16"), I(f"s_and_b32 s{sT3}, s{sH}, 3"),
             I(f"v_cndmask_b32 v{vPFW}, v{t+2}, v{t}, vcc"),
             I(f"s_lshl_b32 s{sT3}, s{sT3}, 14"), I(f"s_add_u32 s{sT1}, s{sT1}, s{sT3}"),
             I(f"s_add_u32 s{sT1}, s{sT1}, {3*128}"),
             I(f"v_and_b32 v{t}, 15, v{L}"), I(f"v_lshrrev_b32 v{t+1}, 4, v{L}"),
             I(f"v_lshlrev_b32 v{t}, 10, v{t}"), I(f"v_lshl_add_u32 v{t}, v{t+1}, 7, v{t}"),
             I(f"v_add_u32 v{vPFW+1}, s{sT1}, v{t}")]
        return c, self.pf_load(vPFW + 1, S_CKV), self.pf_load(vPFW, S_WUK)

    def prefetch_code(self):
        c = [I(f"s_getpc_b64 s[{sM0}:{sM0+1}]"), I("L_pc:"),
             I(f"s_sub_u32 s{sM0}, s{sM0}, L_pc-{KNAME}"), I(f"s_subb_u32 s{sM0+1}, s{sM0+1}, 0"),
             I(f"s_mov_b32 s{sM0+2}, L_exit-{KNAME}"), I(f"s_mov_b32 s{sM0+3}, 0x20000"),
             I(f"s_lshr_b32 s{sT1}, s{sB}, 3"), I(f"s_lshl_b32 s{sT1}, s{sT1}, 2"),
             I(f"s_add_u32 s{sT1}, s{sT1}, s{sWAVE}"), I(f"s_lshl_b32 s{sT1}, s{sT1}, 10"),
             I(f"v_lshlrev_b32 v21, 4, v{vLANE}"),
             I(f"buffer_load_dwordx4 {vr(172)}, v21, {srd(sM0)}, s{sT1} offen")]
        return c

    def ex_prefill(self):
        D = WFB[3]
        c = [I(f"v_mov_b32 v{D+r}, -1") for r in range(4)]
        c += [I(f"s_bfe_u32 s{sT1}, s{sB}, 0x10002"), I(f"s_lshl_b32 s{sT1}, s{sT1}, 5"),
              I(f"s_lshr_b32 s{sT2}, s{sB}, 3"), I(f"s_add_u32 s{sT1}, s{sT1}, s{sT2}"),
              I(f"s_mul_i32 s{sT1}, s{sT1}, {4*3*8192}"), I(f"s_lshl_b32 s{sT2}, s{sWAVE}, 11"),
              I(f"s_add_u32 s{sT1}, s{sT1}, s{sT2}"), I(f"s_add_u32 s{sT1}, s{sT1}, {EX_OFF}")]
        st = []
        for p in range(1, 4):
            c += [I(f"s_add_u32 s{sT2}, s{sB}, {p}"), I(f"s_and_b32 s{sT2}, s{sT2}, 3"),
                  I(f"s_mul_i32 s{sT2}, s{sT2}, {3*8192}"), I(f"s_add_u32 s{sT2}, s{sT2}, s{sT1}"),
                  I(f"s_add_u32 s{sT3}, s{sT2}, {(p-1)*8192}")]
            x = [I(f"buffer_store_dwordx4 {vr(D)}, v{vL16[0]}, {srd(S_WS)}, s{sT3} offen offset:{tb*1024} sc1")
                 for tb in range(2)]
            c += x
            st += x
        return c, st

    def prefetch_xn(self):
        L = vLANE
        t = WFB[3]
        c = [I(f"s_and_b32 s{sT1}, s{sH}, 3"), I(f"s_lshl_b32 s{sT1}, s{sT1}, 12"),
             I(f"v_and_b32 v{t}, 31, v{L}"), I(f"v_lshlrev_b32 v{t}, 7, v{t}"), I(f"v_add_u32 v{t}, s{sT1}, v{t}"),
             I(f"v_cmp_gt_u32 vcc, 32, v{L}")]
        for k in range(2):
            c += [I(f"v_mov_b32 v{t+1}, s{sXN[2*k]}"), I(f"v_mov_b32 v{t+2}, s{sXN[2*k+1]}"),
                  I(f"v_cndmask_b32 v{t+1}, v{t+2}, v{t+1}, vcc"), I(f"v_add_u32 v{t+4+k}, v{t}, v{t+1}"),
                  self.pf_load(t + 4 + k, S_WS)]
        return c

    def prefetch1(self):
        L = vLANE
        t = vLN + 34
        a = [self.pf_load(vPFW, S_WUV)]
        b = [self.pf_load(vPFW, S_WQ)]
        c = [I(f"s_lshr_b32 s{sT1}, s{sB}, 3"), I(f"s_lshl_b32 s{sT1}, s{sT1}, 2"),
             I(f"s_add_u32 s{sT1}, s{sT1}, s{sWAVE}"), I(f"s_lshl_b32 s{sT1}, s{sT1}, 2"),
             I(f"v_lshrrev_b32 v{t}, 4, v{L}"), I(f"v_add_u32 v{t}, s{sT1}, v{t}"),
             I(f"v_mul_u32_u24 v{t}, 2752, v{t}"),
             I(f"v_and_b32 v{t+1}, 7, v{L}"), I(f"v_lshlrev_b32 v{t+1}, 6, v{t+1}"),
             I(f"s_and_b32 s{sT2}, s{sB}, 7"), I(f"s_lshl_b32 s{sT3}, s{sT2}, 8"),
             I(f"s_lshl_b32 s{sT2}, s{sT2}, 7"), I(f"s_add_u32 s{sT2}, s{sT2}, {2048 - 5*64}"),
             I(f"v_mov_b32 v{t+2}, s{sT3}"), I(f"v_mov_b32 v{t+3}, s{sT2}"),
             I(f"v_cmp_gt_u32 vcc, {5*64}, v{t+1}"),
             I(f"v_cndmask_b32 v{t+2}, v{t+3}, v{t+2}, vcc"),
             I(f"v_add3_u32 v{t}, v{t}, v{t+1}, v{t+2}")]
        c += [self.pf_load(t, S_WG), self.pf_load(t, S_WU)]
        return a, b, c

    def prefetch2(self):
        L = vLANE
        t = vT[0]
        c = [I(f"s_and_b32 s{sT1}, s{sB}, 0xfc"), I(f"s_add_u32 s{sT1}, s{sT1}, s{sWAVE}"),
             I(f"s_lshl_b32 s{sT2}, s{sT1}, 12"),
             I(f"s_lshl_b32 s{sT1}, s{sB}, 2"), I(f"s_add_u32 s{sT1}, s{sT1}, s{sWAVE}"),
             I(f"v_and_b32 v{t}, 31, v{L}"),
             I(f"v_lshlrev_b32 v{t}, 7, v{t}"), I(f"v_add_u32 v{t}, s{sT2}, v{t}"),
             I(f"s_mul_i32 s{sT2}, s{sT1}, {11*128}"), I(f"v_min_u32 v{t+1}, 10, v{L}"),
             I(f"v_lshlrev_b32 v{t+1}, 7, v{t+1}"), I(f"v_add_u32 v{t+1}, s{sT2}, v{t+1}"),
             self.pf_load(t, S_WO, dst="a200"), self.pf_load(t + 1, S_WD, dst="a200")]
        return c

    def phase12(self):
        o = self.o
        T = self.tiles()
        NT = len(T)
        pre = self.setup()
        A = pre.append
        if o.pfcode == 1:
            pre += self.prefetch_code()
        A(I("s_waitcnt lgkmcnt(0)"))
        pre += self.stamp()
        zpre = [I(f"s_mul_i32 s{sT1}, s{sWAVE}, 3072"), I(f"s_add_u32 s{sT1}, s{sT1}, {FL_OFF}"),
                I(f"s_cmp_eq_u32 s{sB}, 0"), I(f"s_cselect_b32 s{sT1}, s{sT1}, {OOB}"),
                I(f"v_lshlrev_b32 v20, 4, v{vLANE}")] + [I(f"v_mov_b32 v{r}, 0") for r in range(24, 28)]
        zero = [I(f"buffer_store_dwordx4 v[24:27], v20, {srd(S_WS)}, s{sT1} offen offset:{k*1024} sc1") for k in range(3)]
        s0, tok0 = self.tok_dma(0)
        pre += s0
        for n in range(4):
            T[n]["slot"] = n * 8192
        pre += self.tile_dma(T[0]) + self.tile_dma(T[1])
        c, pfa, pfb = self.prefetch0()
        pre += c
        if o.prefetch & 16:
            pre += [pfa, pfb]
        if o.pfcode == 2:
            pre += self.prefetch_code()
        pre += zpre + zero
        lnl = [I(f"buffer_load_dwordx4 {vr(vLN)}, v{vLN+32}, {srd(S_X)}, 0 offen"),
               I(f"buffer_load_dwordx4 {vr(vLN+4)}, v{vLN+32}, {srd(S_X)}, 0 offen offset:512")]
        pre += self.setup2()
        s1, tok1 = self.tok_dma(1)
        pre += s1
        pre += self.tile_dma(T[2]) + self.tile_dma(T[3])
        if not o.lnlate:
            pre += lnl
        tokd = {0: tok0, 1: tok1}
        pre.append(Need(tok0))
        rd0 = self.tok_reads(0)
        pre += rd0
        pre.append(Need([T[n]["dma"] for n in range(2)] + zero, lg0=True))
        pre.append(I("s_barrier"))
        pre += [I(f"s_cmp_eq_u32 s{sB}, 0"), I(f"s_cselect_b32 s{sT1}, 0, {OOB}"),
                I(f"buffer_store_dword v{vC1}, v{vONE}, {srd(S_DBG)}, s{sT1} offen sc1")]
        pre += self.stamp()
        NB = o.wdist + 1
        for U in range(o.wdist):
            pre += self.unit_reads(T[0], U, U)

        mf = []
        for n, t in enumerate(T):
            for u in range(4):
                mf += self.unit_mfma(t, u, (4 * n + u) % NB)
        tasks = []
        bstart = list(range(2, 16, 2)) + list(range(16, NT, o.G12))
        bg = lambda n0: 32 * n0 - 8 * o.wdist + 3
        extra_need = {n0: [] for n0 in bstart}
        release = lambda n: bg(min([b for b in bstart if b > n] + [NT + 1]))
        own_bar = lambda n: bg(max(b for b in bstart if b <= n))
        KVF = 1712
        free_at = {sl: -1 for sl in range(7)}
        free_at.update({sl: bg(14) + 1 for sl in range(7, 20)})
        for n in range(4):
            free_at[n] = release(n)
        want = {4: 0, 5: 50, 6: 84, 7: 120, 8: 130, 9: 180, 10: 200, 11: 236, 12: 260, 13: 300, 14: 320, 15: 340}
        for n in range(16, NT):
            want[n] = max(360 + 14 * (n - 16), 32 * (n - o.lead12))
        if o.gearly:
            early = [34, 32, 37, 33, 40, 35, 43, 36][:o.gearly]
            for n in range(16, 32):
                want[n] = max(360 + 14 * (n - 16), 32 * (n - 7))
            for i, n in enumerate(early):
                want[n] = o.ge0 + o.gestep * i
            for n in range(32, NT):
                if n not in early:
                    want[n] = 32 * (n - (7 if n < 44 else o.lead12))
        events = [(want[n], "W", n) for n in range(4, NT)]
        tokwant = {(2, 0): 8, (2, 1): 24, (3, 0): 40, (3, 1): 64, (4, 0): 92, (4, 1): 106, (5, 0): 154, (5, 1): 168,
                   (6, 0): 218, (6, 1): 242, (7, 0): 282, (7, 1): 308}
        if o.tokmode == 1:
            tokwant = {}
            for c in range(2, 8):
                tokwant[(c, 0)] = 64 * (c - 2) + 10
                tokwant[(c, 1)] = 64 * (c - 2) + 27
            for n in range(4, 16):
                want[n] = 64 * ((n - 4) // 2) + (0 if n % 2 == 0 else 46)
            events = [(want[n], "W", n) for n in range(4, NT)]
        events += [(v, "T", k) for k, v in tokwant.items()]
        events.append((KVF, "KV", None))
        events.sort(key=lambda e: e[0])
        tokrd = {c: self.tok_reads(c) for c in range(1, 8)}
        tokrd[0] = rd0
        tokw = {1: (18, 36) if o.tokmode == 0 else (30, 50)}
        for c in range(2, 8):
            tokw[c] = (64 * (c - 1) + 2, 64 * (c - 1) + 22) if o.tokmode == 0 else (64 * (c - 1) + 30, 64 * (c - 1) + 50)
            tasks.append(Task(f"tokrd{c}", [Need([lambda c=c: tokd[c]])] + tokrd[c], *tokw[c], prio=1))
        tasks.append(Task("tokrd1", [Need(tok1)] + tokrd[1], *tokw[1], prio=1))
        tseq = {}
        for c in range(2, 8):
            seq, ops = self.tok_dma(c)
            tokd[c] = ops
            tseq[(c, 0)] = ([Need(tokrd[c - 3])] if c >= 4 else []) + seq[:6]
            tseq[(c, 1)] = [I(seq[0].text)] + seq[6:]
        k01 = [I(f"buffer_load_dwordx4 v{vL16[0]}, {srd(S_WS)}, s{sT0} offen offset:{p*1024} {self.o.ldflag} lds")
               for p in range(4)]
        kvseq = [I(f"s_lshl_b32 s{sT0}, s{sH}, 19"), I(f"s_lshl_b32 s{sWR}, s{sWAVE}, 12"),
                 I(f"s_add_u32 s{sT0}, s{sT0}, s{sWR}"), I(f"s_add_u32 s{sT0}, s{sT0}, {KF_OFF}"),
                 I(f"s_add_u32 m0, s{sWR}, {6*16384}")] + k01
        self.att_first = list(k01)
        for j in range(3):
            d = self.att_dma()
            kvseq += [I(f"s_add_u32 m0, s{sWR}, {(7+j)*16384}"), I(f"s_mov_b32 s{sSOFF}, {j*8192}")] + d
            self.att_first += d
        m0ent = []
        cur = 0
        for w, kind, k in events:
            lo = max(w, cur)
            if kind == "W":
                ok = [sl for sl in free_at if sl < 12 or release(k) <= KVF]
                sl = min(ok, key=lambda x: (max(free_at[x], lo), x))
                lo = max(lo, free_at[sl] + 1)
                free_at[sl] = release(k)
                T[k]["slot"] = sl * 8192
                seq = self.tile_dma(T[k])
                ln = 10 if lo < 512 else (14 if o.gearly and lo < 760 else 24)
                assert lo + ln < own_bar(k) - 24, (k, lo, own_bar(k))
                T[k]["issue"] = lo
            elif kind == "T":
                seq = tseq[k]
                if k[0] >= 4:
                    lo = max(lo, tokw[k[0] - 3][1] + 1)
                ln = 15
                assert lo + ln < tokw[k[0]][0] - 24, (k, lo)
            else:
                seq = kvseq
                ln = 110
            prev_scalar = False
            for x in seq:
                mind = 1 if (x.kind == "dma" and prev_scalar) else 0
                prev_scalar = x.kind == "salu"
                m0ent.append((x, lo, lo + ln, mind))
            cur = lo + (ln if ln < 100 else 0) - 2
        tasks.append(Task("m0", m0ent, prio=1))
        print("W issue gap / slot:", [(T[n]["issue"], T[n]["slot"] >> 13) for n in range(4, NT)], file=sys.stderr)
        win = {"R128": 0, "R64": 0, "R32": 0}
        aregs = {"R128": vRD, "R64": vRD64, "R32": [vRD32]}
        for U in range(o.wdist, 4 * NT):
            n, u = divmod(U, 4)
            lo = 8 * (U - o.wdist)
            rd = self.unit_reads(T[n], u, U % NB)
            ty, wn = T[n]["typ"], T[n]["slot"] >> 16
            if wn != win[ty]:
                sw = "v_add_u32" if wn > win[ty] else "v_subrev_u32"
                fix = [I(f"{sw} v{r}, {abs(wn - win[ty]) << 16:#x}, v{r}") for r in aregs[ty]]
                win[ty] = wn
                if T[n - 1]["typ"] == ty:
                    rd = [Group(fix + [rd[0]])] + rd[1:]
                else:
                    tasks.append(Task(f"rdfix{U}", fix, lo - 24, lo - 1, prio=1))
            if u == 0 and n in bstart:
                tasks.append(Task(f"rd{U}", rd, lo + 4, lo + 7, prio=0, tight=True))
            elif u == 3 and n + 1 in bstart:
                tasks.append(Task(f"rd{U}", rd, lo, lo + 3, prio=0, tight=True))
            else:
                tasks.append(Task(f"rd{U}", rd, lo, lo + o.wwin, prio=0))
        k = 2 * o.lnlate
        if o.lnlate:
            tasks.append(Task("lnld", lnl, 2, 12, prio=2))
        tasks.append(Task("ln", self.ln_compute(), 2 + 32 * k, bg(4 + k) - 2, prio=3))
        c, lnst = self.ln_store()
        tasks.append(Task("lnst", c, bg(4 + k) + 2, 145 + 32 * k, prio=3))
        extra_need[8 + k] += lnst
        tasks.append(Task("flagxn", [self.flag_store(sFXN)], bg(8 + k) + 4, bg(8 + k) + 10, prio=3))
        if o.prefetch & 1:
            tasks.append(Task("pf0a", [pfa], 1, 4, prio=0))
        if o.prefetch & 4:
            tasks.append(Task("pf0b", [pfb], 30, 36, prio=0))
        if o.prefetch & 8:
            tasks.append(Task("pfxn", self.prefetch_xn(), o.xnchk + 14, o.xnchk + 14 + o.pfxw, prio=3))
        if o.prefetch & 2:
            a, b, c = self.prefetch1()
            tasks = tasks if o.prefetch & 32 == 0 else tasks + [Task("pf1a", a, 130, 140, prio=3)]
            if o.prefetch & 32:
                tasks.append(Task("pf1c", c, bg(12) - 28, bg(12) - 1, prio=3))
                tasks.append(Task("pf1b", b, 300, 310, prio=3))
        tasks.append(Task("setup3", self.setup3(), 153, 218, prio=4))
        tasks.append(Task("setup4", self.setup4(), 472, 510, prio=4))
        tasks.append(Task("gate", [self.poll_load(vPOLL, S_DBG, vC0, "0")], 146 + 32 * k, 152 + 32 * k, prio=3))
        tasks.append(Task("gatechk", self.poll_check(vPOLL, S_DBG, vC0, "0", "1", split=True), 220 + 32 * k, 232 + 32 * k, prio=3))
        tasks.append(Task("xnpoll", [I(f"s_lshl_b32 s{sPOLL}, s{sW}, 7"), I(f"s_add_u32 s{sPOLL}, s{sPOLL}, {FL_XN}"),
                                     self.poll_load(vPOLL, S_WS, vPO32, f"s{sPOLL}")], o.xnchk - 90, o.xnchk - 80, prio=3))
        tasks.append(Task("xnchk", self.poll_check(vPOLL, S_WS, vPO32, f"s{sPOLL}", "1", split=True), o.xnchk, o.xnchk + 12, prio=3))
        pk, sts = zip(self.epi_K(0), self.epi_K(1), self.epi_V(0), self.epi_V(1))
        tasks.append(Task("epiK0", pk[0], 490, 540, prio=5))
        tasks.append(Task("epiK1", pk[1], 521, 558, prio=4))
        tasks.append(Task("epiV0", pk[2], 1001, 1038, prio=4))
        tasks.append(Task("epiV1", pk[3], 1039, 1086, prio=5))
        allst = [x for l in sts for x in l]
        ent = []
        for k, x in enumerate(allst):
            if k < 16:
                lo = int(545 + k * (1020 - 545) / 16)
            else:
                lo = max(int(1045 + (k - 16) * (o.st_hi - 1045) / 16), 1088 if k >= 24 else 0)
            ent.append((x, lo, lo + 12))
        tasks.append(Task("epistores", ent, prio=2))
        extra_need[48] += allst
        tasks.append(Task("flagkv", [self.flag_store(sFKV)], bg(48) + 4, bg(48) + 10, prio=3))
        for c in range(8):
            ld = [I(f"buffer_load_dwordx4 {ar(TF(tb, 2*c+k))}, v{vX16[(2*c+k)>>2]}, {srd(S_CKV if o.xnsrc else S_WS)}, s{sXN[tb]} offen "
                    f"offset:{((2*c+k)&3)*1024} {self.o.ldflag}") for k in range(2) for tb in range(4)]
            lo = max(580 + 64 * c, o.xn0 + o.xnslope * c)
            tasks.append(Task(f"xn{c}", batch(ld), lo, lo + o.xnslope - 2, prio=2))
        c, stA = self.epi_GA()
        tasks.append(Task("epiGA", c, 1416, 1660, prio=5))
        c, stB = self.epi_GB()
        tasks.append(Task("epiGB", c, 1661, 1790, prio=5))
        self.h_stores = stA + stB
        if o.sentinel:
            c, stP = self.ex_prefill()
            tasks.append(Task("exfill", c, 1425, 1565, prio=3))
            self.h_stores += stP
        c = [I(f"s_mov_b32 s{sQS}, {fbits(QSCALE)}")]
        for q in range(4):
            c += self.epi_Q(0, q)
        tasks.append(Task("epiQ0", c, 1700, 1830, prio=5))
        tasks.append(Task("attsetup", self.att_setup(), 1570, 1655, prio=4))
        tasks.append(Task("attev", self.att_events(), 1840, 1900, prio=4))
        tasks.append(Task("p4setup", self.p4_setup(), 1795, 1915, prio=4))
        kvp = [I(f"s_lshl_b32 s{sPOLL}, s{sH}, 7"), I(f"s_add_u32 s{sPOLL}, s{sPOLL}, {FL_KV}"),
               self.poll_load(vPOLL, S_WS, vPO8, f"s{sPOLL}")]
        tasks.append(Task("kvpoll", kvp, 1620, 1630, prio=3))
        tasks.append(Task("kvchk", self.poll_check(vPOLL, S_WS, vPO8, f"s{sPOLL}", "1", split=True), 1700, 1710, prio=3))
        zr = lambda a, b: [I(f"v_mov_b32 v{r}, 0") for r in range(a, b)]
        tasks.append(Task("zeroO5", zr(160, 192), 1662, 1760, prio=6))
        tasks.append(Task("zeroO3", zr(96, 128), 1792, 1870, prio=6))
        tasks.append(Task("zeroO24", zr(64, 96) + zr(128, 160), 1832, 1920, prio=6))
        g = [I(f"v_lshrrev_b32 v{vT[0]}, 4, v{vLANE}"), I(f"v_and_b32 v{vT[1]}, 15, v{vLANE}"),
             I(f"v_lshlrev_b32 v{vT[0]}, 2, v{vT[0]}"), I(f"v_sub_u32 v{vT[1]}, v{vT[1]}, v{vT[0]}"),
             I(f"v_and_b32 v{vT[0]}, 64, v0") if False else I(f"v_mov_b32 v{vT[0]}, s{sWAVE}"),
             I(f"v_and_b32 v{vT[0]}, 1, v{vT[0]}"), I(f"v_lshlrev_b32 v{vT[0]}, 4, v{vT[0]}"),
             I(f"v_add_u32 v{vDM[1]}, v{vT[0]}, v{vT[1]}"), I(f"v_sub_u32 v{vT[0]}, 16, v{vT[0]}"),
             I(f"v_add_u32 v{vDM[0]}, v{vT[0]}, v{vT[1]}"), I(f"v_mov_b32 v{vT[2]}, 0x3f803f80")]
        tasks.append(Task("attvec", g, 1610, 1655, prio=6))
        g = [I(f"v_accvgpr_write_b32 a{gONE+r}, v{vT[2]}") for r in range(4)]
        g += [I(f"v_accvgpr_write_b32 a{r}, 0") for r in range(gL(0), gL(0) + 16)]
        tasks.append(Task("attacc", g, 1828, 1900, prio=6))
        for k, n0 in enumerate(bstart):
            n1 = bstart[k + 1] if k + 1 < len(bstart) else NT
            ops = [T[n]["dma"] for n in range(n0, n1)] + extra_need[n0]
            bar = [Need(ops, lg0=True), I("s_barrier")]
            tasks.append(Task(f"bar{n0}", [Group(bar if o.timeit else self.timed(bar))], bg(n0), bg(n0),
                              prio=-1))
        if o.stamps:
            for gp in [int(x) for x in o.stampat.split(",")]:
                tasks.append(Task("stamp", self.stamp(), gp + 2, gp + 2, prio=7))
        if o.drop:
            dr = o.drop.split(",")
            if "stores" in dr:
                dr = [d for d in dr if d != "stores"] + ["epistores"]
            for t in tasks:
                if "epistores" in dr and t.name.startswith("epiG"):
                    t.instrs = [x for x in t.instrs if not any(y.kind == "vstore" for y in flatten([x]))]
            tasks = [t for t in tasks if not any(t.name.startswith(d) for d in dr)]
        body = schedule(mf, tasks, o.budget, self.reports, reserve=range(0, len(mf), 8), seed=o.seed, vmw=o.vmw, ldw=o.ldw12)
        if o.timeit:
            nb = []
            for x in flatten(body):
                hit = {"st": x.kind == "vstore", "ld": x.kind == "vload", "dma": x.kind == "dma",
                       "need": x.kind == "need"}.get(o.timeit, False)
                nb += self.timed([x]) if hit else [x]
            body = nb
        return pre + body

    def mask(self, q, scores=False):
        c = []
        D = vDM[q & 1]
        if scores:
            c.append(I(f"v_mov_b32 v{vT[2]}, 0xff800000"))
            for i in range(0, 8, 2):
                c.append(I(f"v_cmp_gt_i32 s[{sM0}:{sM0+1}], {16*(i>>2)+(i&3)}, v{D}"))
                c.append(I(f"v_cmp_gt_i32 s[{sM1}:{sM1+1}], {16*(i>>2)+(i&3)+1}, v{D}"))
                c.append(I(f"v_cndmask_b32 v{aS(q,0)+i}, v{aS(q,0)+i}, v{vT[2]}, s[{sM0}:{sM0+1}]"))
                c.append(I(f"v_cndmask_b32 v{aS(q,0)+i+1}, v{aS(q,0)+i+1}, v{vT[2]}, s[{sM1}:{sM1+1}]"))
            return c
        src = aC(q, 0)
        c.append(I(f"v_mov_b32 v{vT[0]}, 0xff800000"))
        order = [(1, r) for r in range(4)] + [(0, 3), (0, 2), (0, 1), (0, 0)]
        for i in range(0, 8, 2):
            (k0, r0), (k1, r1) = order[i], order[i + 1]
            c.append(I(f"v_cmp_gt_i32 s[{sM0}:{sM0+1}], {16*k0+r0}, v{D}"))
            c.append(I(f"v_cmp_gt_i32 s[{sM1}:{sM1+1}], {16*k1+r1}, v{D}"))
            c.append(I("s_nop 0"))
            c.append(I(f"v_cndmask_b32 v{aC(q,k0)+r0}, v{src}, v{vT[0]}, s[{sM0}:{sM0+1}]"))
            c.append(I(f"v_cndmask_b32 v{aC(q,k1)+r1}, v{src}, v{vT[0]}, s[{sM1}:{sM1+1}]"))
        return c

    def rowmax(self, q, t0, t1):
        S = aS(q, 0)
        return [I(f"v_max3_f32 v{t0}, v{S}, v{S+1}, v{S+2}"), I(f"v_max3_f32 v{t1}, v{S+3}, v{S+4}, v{S+5}"),
                I(f"v_max3_f32 v{t0}, v{t0}, v{S+6}, v{S+7}"), I(f"v_max_f32 v{t0}, v{t0}, v{t1}"),
                I(f"v_mov_b32 v{t1}, v{t0}"), I(f"v_permlane32_swap_b32 v{t0}, v{t1}"),
                I(f"v_max_f32 v{t0}, v{t0}, v{t1}"),
                I(f"v_mov_b32 v{t1}, v{t0}"), I(f"v_permlane16_swap_b32 v{t0}, v{t1}"),
                I(f"v_max_f32 v{t0}, v{t0}, v{t1}"),
                I(f"v_add_f32 v{t0}, {fbits(BIAS)}, v{t0}")]

    def exps(self, q, E):
        S = aS(q, 0)
        return [I(f"v_exp_f32 v{E+i}, v{S+i}") for i in range(8)]

    def cvts(self, q, E):
        return [I(f"v_cvt_pk_bf16_f32 v{aP(q)+i}, v{E+2*i}, v{E+2*i+1}") for i in range(4)]

    def fix(self, q):
        t0, t1 = aE[2], aE[2] + 1
        S = aS(q, 0)
        c = [I("s_nop 7"), I("s_nop 1")] + self.rowmax(q, t0, t1)
        c.append(I(f"v_max_f32 v{t0}, 0, v{t0}"))
        c.append(I(f"v_exp_f32 v{t1}, -v{t0}"))
        for i in range(8):
            c.append(I(f"v_sub_f32 v{S+i}, v{S+i}, v{t0}"))
            c.append(I(f"v_sub_f32 v{aC(q,0)+i}, v{aC(q,0)+i}, v{t0}"))
        for r in range(aO(0, q), aO(0, q) + 32):
            c.append(I(f"v_mul_f32 v{r}, v{r}, v{t1}"))
        for r in range(4):
            c.append(I(f"v_accvgpr_read_b32 v{t0+2+r}, a{gL(q)+r}"))
        for r in range(4):
            c.append(I(f"v_mul_f32 v{t0+2+r}, v{t0+2+r}, v{t1}"))
        for r in range(4):
            c.append(I(f"v_accvgpr_write_b32 a{gL(q)+r}, v{t0+2+r}"))
        c += self.exps(q, aE[1]) + self.cvts(q, aE[1])
        return c

    def check(self, qs, mind=2):
        P = [aP(q) + i for q in qs for i in range(4)]
        ors = []
        cur = None
        while P:
            if cur is None:
                ors.append(I(f"v_or3_b32 v{vOR}, v{P[0]}, v{P[1]}, v{P[2]}"))
                P = P[3:]
                cur = vOR
            elif len(P) >= 2:
                ors.append(I(f"v_or3_b32 v{vOR}, v{vOR}, v{P[0]}, v{P[1]}"))
                P = P[2:]
            else:
                ors.append(I(f"v_bitop3_b32 v{vOR}, v{vOR}, v{P[0]}, s{sMASK} bitop3:0xa8"))
                P = []
        slow, back = self.lab("fix"), self.lab("fixb")
        body = []
        for q in qs:
            body += self.fix(q)
        body += [I("s_nop 1"), I(f"s_branch {back}")]
        self.cold.append(f"{slow}:\n" + render(pad_hazards(body)))
        tail = [I(f"v_cmp_ne_u32 vcc, 0, v{vOR}"),
                (Group([I(f"s_cbranch_vccnz {slow}"), I(f"{back}:")]), None, None, mind)]
        return ors, tail

    def k_reads(self, half_off=8192):
        r = [I(f"ds_read_b128 {ar(gK(kb, ds))}, v{vARD} offset:{half_off + (kb*4+ds)*1024}")
             for kb in range(2) for ds in range(4)]
        return batch(r[:4]) + batch(r[4:])

    def qk(self, q, first=False):
        m = []
        for kb in range(2):
            for ds in range(4):
                d = vr(aS(q, kb))
                m.append(mfma(d, ar(gK(kb, ds)), ar(gQ(q, ds)), ("0" if first else vr(aC(q, kb))) if ds == 0 else d))
        return m

    def pv(self, q):
        m = [mfma(vr(aO(db, q)), ar(gV(db)), vr(aP(q)), vr(aO(db, q))) for db in range(8)]
        m.append(mfma(ar(gL(q)), ar(gONE), vr(aP(q)), ar(gL(q))))
        return m

    def iteration(self, nc, nn):
        o = self.o
        X = [m for q in range(nn) for m in self.qk(q)]
        Y = [m for q in range(nc) for m in self.pv(q)]
        y0 = len(X)
        n = y0 + len(Y)
        late = nc - 1
        tasks = []
        hi = 8 * (nn - 1) if nn == nc else y0 + 9 * late
        hi = max(0, min(hi, 8))
        ors, tail = self.check([late], 2 if hi >= 6 else 0)
        tasks.append(Task("late", self.cvts(late, aE[0]) + ors + tail, 0, hi, prio=1, tight=True))
        vrd = [I(f"ds_read_b128 {ar(gV(db))}, v{vARD} offset:{db*1024}") for db in range(8)]
        vrd = batch(vrd[:4]) + batch(vrd[4:])
        tasks.append(Task("vrd", [(r, 0, max(0, y0 - 5 + (4 if k >= 4 else 0))) for k, r in enumerate(vrd)],
                          0, max(0, min(y0 - 3, 12)), prio=2))
        ES = [aE[1], aE[2], aE[1]]
        early = list(range(nn - 1))
        if nn > 0:
            start = 9
            span = (n - start) / nn
            pos = [int(start + span * i) for i in range(nn + 1)]
            last = []
            for q in range(nn):
                rdy = [8 * q + 9] * 4 + [8 * q + 13] * 4
                if q in early:
                    cv_lo = y0 + 9 * (q + 1)
                    cv_hi = min(n - 5, (y0 + 9 * (q + 1) + 9) if q + 1 < len(early) else n - 5)
                    if q == 0 and len(early) == 3:
                        cv_hi = y0 + 9 + 5
                    lo2 = (y0 + 9 + 6) if q == 2 else 0
                    ent = [(e, max(rdy[k], lo2), cv_hi - 2) for k, e in enumerate(self.exps(q, ES[q]))]
                    ent += [(x, cv_lo, cv_hi) for x in self.cvts(q, ES[q])]
                    tasks.append(Task(f"exp{q}", ent, max(pos[q], lo2), max(pos[q + 1] + 3, cv_lo + 4), prio=0))
                    last.append(cv_hi)
                else:
                    ent = [(e, min(n, max(rdy[k], 10)), n) for k, e in enumerate(self.exps(q, aE[0]))]
                    tasks.append(Task(f"exp{q}", ent, min(n, pos[q]), n, prio=0))
            if early:
                ors, tail = self.check(early)
                need = []
                for x in ors:
                    qs = [(int(u[1:]) - aP(0)) // 4 for u in x.uses if aP(0) <= int(u[1:]) < aP(0) + 16]
                    need.append(last[max(qs)] + 1)
                ent = [(x, min(need[k], n - 3), n - 2) for k, x in enumerate(ors)]
                ent += [(tail[0], min(need[-1], n - 2), n - 2), (tail[1][0], 0, n, 2)]
                tasks.append(Task("chk1", ent, prio=3, tight=True))
            krd = self.k_reads()
            adv = I(f"v_add_u32 v{vARD}, s{sRD}, v{vL16[0]}")
            tasks.append(Task("krd", [(r, y0, n - (7 if k < 4 else 4)) for k, r in enumerate(krd)] + [(adv, y0, n)],
                              y0, n - 3, prio=2))
            d = self.att_dma()
            R = o.NS * 16384
            sc = [I(f"s_mov_b32 m0, s{sWR}"), I(f"s_add_u32 s{sSOFF}, s{sSOFF}, 8192"), (d[0], None, None, 1)] + d[1:]
            sc += [I(f"s_add_u32 s{sWR}, s{sWR}, 16384"), I(f"s_sub_u32 s{sT0}, s{sWR}, {R}"),
                   I(f"s_min_u32 s{sWR}, s{sWR}, s{sT0}")]
            rdp = [I(f"s_add_u32 s{sRD}, s{sRD}, 16384"), I(f"s_sub_u32 s{sT1}, s{sRD}, {R}"),
                   I(f"s_min_u32 s{sRD}, s{sRD}, s{sT1}")]
            tasks.append(Task("rdp", rdp, 1, max(3, y0 - 1), prio=4))
            tasks.append(Task("dma", sc, 1, n - 4, prio=1))
        tasks.append(Task("j", [I(f"s_add_u32 s{sJ}, s{sJ}, 1")], max(0, n - 6), max(0, n - 3), prio=5))
        res = {0, 4, y0, y0 + 4}
        seed, ldw = (o.seed, o.ldw) if o.tune == 0 else {4: (11, 12), 3: (2, 12)}.get(max(nc, nn), (1, 0))
        seq = schedule(X + Y, tasks, o.budget, self.reports, reserve=res, seed=seed, vmw=o.vmwa, ldw=ldw)
        by = {t.name: [e[0] if isinstance(e, tuple) else e for e in t.instrs] for t in tasks}
        ref = by["late"] + by["vrd"] + X + Y
        for nm in ("exp0", "exp1", "exp2", "exp3", "chk1", "krd", "dma", "j"):
            if nm == "krd":
                ref += by.get("rdp", [])
            ref += by.get(nm, [])
        verify_order(ref, seq)
        return seq

    def att_state(self):
        sb = Scoreboard()
        for r in self.k_reads():
            sb.after(r)
        for i in range(40):
            sb.after(I("buffer_inv sc1"))
        return sb

    def finalize(self, q):
        t0 = vT[0]
        c = [I(f"v_accvgpr_read_b32 v{t0}, a{gL(q)}"), I(f"v_rcp_f32 v{t0}, v{t0}")]
        st = []
        for k in range(4):
            a, b = aO(2 * k, q), aO(2 * k + 1, q)
            for r in list(range(a, a + 4)) + list(range(b, b + 4)):
                c.append(I(f"v_mul_f32 v{r}, v{r}, v{t0}"))
            p = aE[1] + 4 * k
            c += self.pk_frag(p, a, b)
            s = I(f"buffer_store_dwordx4 {vr(p)}, v{vL16[k]}, {srd(S_WS)}, s{sZC[q]} offen {self.o.stflag}")
            c.append(s)
            st.append(s)
        return c, st

    def seg(self, seq, sb, prev=()):
        s = add_waits(seq, sb)
        return pad_hazards(s, prev)

    def attention(self, sb, prev):
        o = self.o
        out = []
        pro = []
        A = pro.append
        pro += [I(f"v_add_u32 v{vARD}, {6*16384}, v{vL16[0]}")]
        pro += [Need(self.att_first + self.h_stores, lg0=True), I("s_barrier")]
        pro += self.k_reads(0)
        pro.append(self.flag_store(sFH))
        dm = []
        for j in range(3, o.LEAD):
            d = self.att_dma()
            dm += [I(f"s_add_u32 m0, s{sWR}, {((7+j) % o.NS)*16384}"), I(f"s_mov_b32 s{sSOFF}, {j*8192}"),
                   (d[0], None, None, 1)] + d[1:]
        dm += [I(f"s_add_u32 s{sWR}, s{sWR}, {((7+o.LEAD-1) % o.NS + 1)*16384}"),
               I(f"s_mov_b32 s{sRD}, {7*16384}"), I(f"s_mov_b32 s{sJ}, 0")]
        assert ((7 + o.LEAD - 1) % o.NS) + 1 < o.NS
        e0 = self.epi_Q(1, 0)
        pro += e0[:16] + dm[:2] + e0[16:24] + [dm[2][0]] + e0[24:]
        dm = dm[3:]

        def init(q):
            t0, t1 = vT[0], vT[1]
            S = aS(q, 0)
            c = self.rowmax(q, t0, t1)
            c += [I(f"v_sub_f32 v{S+i}, v{S+i}, v{t0}") for i in range(8)]
            c += [I(f"v_sub_f32 v{aC(q,0)+i}, 0, v{t0}") for i in range(8)]
            if q < 3:
                E = [aE[1], aE[2], aE[1]][q]
                return c + self.exps(q, E) + self.cvts(q, E)
            return c + self.exps(q, aE[0])
        X = [m for q in range(4) for m in self.qk(q, True)]
        tasks = [Task("dm", dm, 0, 32, prio=0)]
        for q in range(1, 4):
            tasks.append(Task(f"epiQ1_{q}", self.epi_Q(1, q), 8 * (q - 1), 8 * q - 1, prio=1))
        tasks.append(Task("init01", [(x, 11, 32) for x in init(0)] + [(x, 19, 32) for x in init(1)], 11, 32, prio=2))
        pro += schedule(X, tasks, o.budget, self.reports, vmw=0)
        pro += self.k_reads()
        pro += [I(f"v_add_u32 v{vARD}, s{sRD}, v{vL16[0]}")]
        pro += init(2)
        skip = self.lab("nomask")
        pro += [I(f"s_cmp_lg_u32 s{sNM1[3]}, 0"), I(f"s_cbranch_scc1 {skip}")] + self.mask(3, True) + [I(f"{skip}:")]
        pro += init(3)
        pro += [I("s_waitcnt lgkmcnt(0)")]
        pro += self.stamp(vT[3])
        pro = self.seg(pro, sb, prev)
        out += pro
        out.append(I(f"s_branch L_ev4"))
        wait_n = (o.LEAD - o.G) * 4
        last_st = None
        for n in (4, 3, 2, 1):
            b = []
            for u in range(o.unroll):
                ctl = [I(f"s_bitcmp1_b64 s[{sEV}:{sEV+1}], s{sJ}"),
                       I(f"s_cbranch_scc0 L_body{n}") if u == o.unroll - 1 else I(f"s_cbranch_scc1 L_ev{n}")]
                b += self.seg(self.iteration(n, n) + ctl, self.att_state(), b)
            print("iteration", n, "estimate", estimate(b) // o.unroll, file=sys.stderr)
            check_hazards(b, b)
            out += [I(".p2align 6"), I(f"L_body{n}:")] + b
            bar = self.timed([I(f"s_waitcnt vmcnt({wait_n}) lgkmcnt(0)"), I("s_barrier")])
            nb, nm, nh, nh2, sp = self.lab("nb"), self.lab("nm"), self.lab("nh"), self.lab("nh2"), self.lab("sp")
            ev = [I(f"L_ev{n}:"), I(f"s_bitcmp1_b64 s[{sSP}:{sSP+1}], s{sJ}"), I(f"s_cbranch_scc1 {sp}")]
            ev += bar + [I(f"s_branch L_body{n}"), I(f"{sp}:")]
            ev += [I(f"s_and_b32 s{sT0}, s{sJ}, {o.G-1}"), I(f"s_cbranch_scc1 {nb}")]
            ev += self.timed([I(f"s_waitcnt vmcnt({wait_n}) lgkmcnt(0)"), I("s_barrier")])
            ev += [I(f"s_cmp_eq_u32 s{sJ}, {2*o.G}"), I(f"s_cbranch_scc0 {nh}")]
            ev += (self.prefetch2() if o.prefetch & 2 else []) + self.p4_scalars()
            ev += self.h_offsets() + [self.poll_load(vHP, S_WS, vHO, f"s{sHB}"), I(f"{nh}:")]
            ev += [I(f"s_cmp_eq_u32 s{sJ}, {3*o.G}"), I(f"s_cbranch_scc0 {nh2}"),
                   self.poll_check(vHP, S_WS, vHO, f"s{sHB}", "1"), I(f"{nh2}:")]
            if n == 2:
                ne = self.lab("ne")
                ev += [I(f"s_cmp_eq_u32 s{sJ}, s{sJL}"), I(f"s_cbranch_scc0 {ne}")] + self.p4_early() + [I(f"{ne}:")]
            ev += [I(f"{nb}:"), I(f"s_cmp_eq_u32 s{sJ}, s{sNM2[n-1]}"), I(f"s_cbranch_scc0 {nm}")]
            ev += self.mask(n - 1) + [I(f"{nm}:"), I(f"s_cmp_eq_u32 s{sJ}, s{sNM1[n-1]}"),
                                      I(f"s_cbranch_scc0 L_body{n}")]
            if n >= 2:
                nm2 = self.lab("nm")
                ev += [I(f"s_cmp_eq_u32 s{sJ}, s{sNM2[n-2]}"), I(f"s_cbranch_scc0 {nm2}")]
                ev += self.mask(n - 2) + [I(f"{nm2}:")]
            ev = pad_hazards(flatten(ev), b)
            tr = self.iteration(n, n - 1)
            fin, st = self.finalize(n - 1)
            last_st = st
            tail = []
            if n >= 2:
                tail = [I(f"s_bitcmp1_b64 s[{sEV}:{sEV+1}], s{sJ}"),
                        I(f"s_cbranch_scc1 L_ev{n-1}")]
            sbt = self.att_state()
            t = self.seg(tr + fin + tail, sbt, ev)
            out += ev + t
        self.ctx_stores = last_st
        return out, sbt

    def p4_scalars(self):
        return [I(f"s_bfe_u32 s{sT1}, s{sB}, 0x10002"), I(f"s_lshl_b32 s{sT1}, s{sT1}, 3"),
                I(f"s_bfe_u32 s{sT2}, s{sB}, 0x30003"), I(f"s_add_u32 s{sT2}, s{sT1}, s{sT2}"),
                I(f"s_sub_u32 s{sT3}, 15, s{sT2}"),
                I(f"s_min_u32 s{sT2}, s{sT2}, s{sT3}"), I(f"s_lshl_b32 s{sPOLL}, s{sT2}, 7"),
                I(f"s_add_u32 s{sPOLL}, s{sPOLL}, {FL_H}")]

    def p4_setup(self):
        c = []
        A = c.append
        L = vLANE
        A(I(f"s_and_b32 s{sKQ}, s{sB}, 3"))
        A(I(f"s_bfe_u32 s{sT1}, s{sB}, 0x10002"))
        A(I(f"s_lshr_b32 s{sT2}, s{sB}, 3"))
        A(I(f"s_lshl_b32 s{sTID}, s{sT1}, 5"))
        A(I(f"s_add_u32 s{sTID}, s{sTID}, s{sT2}"))
        A(I(f"s_lshr_b32 s{sCB}, s{sT2}, 3"))
        A(I(f"s_and_b32 s{sT2}, s{sT2}, 7"))
        A(I(f"s_lshl_b32 s{sT1}, s{sT1}, 3"))
        A(I(f"s_add_u32 s{sTB}, s{sT1}, s{sT2}"))
        t = WFB[3]
        A(I(f"v_lshrrev_b32 v{t}, 4, v{L}"))
        A(I(f"v_and_b32 v{t+1}, 15, v{L}"))
        A(I(f"v_lshlrev_b32 v{t+2}, 1, v{t}"))
        A(I(f"v_xor_b32 v{t+2}, v{t+2}, v{t+1}"))
        A(I(f"v_lshlrev_b32 v{t+2}, 4, v{t+2}"))
        A(I(f"v_lshl_add_u32 v{t+2}, v{t}, 10, v{t+2}"))
        A(I(f"s_lshl_b32 s{sT1}, s{sWAVE}, 13"))
        A(I(f"s_lshl_b32 s{sT2}, s{sCB}, 8"))
        A(I(f"s_add_u32 s{sT1}, s{sT1}, s{sT2}"))
        A(I(f"v_add_u32 v{vWo4[0]}, s{sT1}, v{t+2}"))
        A(I(f"v_xor_b32 v{vWo4[1]}, 128, v{vWo4[0]}"))
        A(I(f"v_add_u32 v{vWo4[1]}, {4096-1024}, v{vWo4[1]}"))
        A(I(f"s_lshl_b32 s{sT1}, s{sTB}, 1"))
        A(I(f"s_lshr_b32 s{sT2}, s{sWAVE}, 1"))
        A(I(f"s_add_u32 s{sT1}, s{sT1}, s{sT2}"))
        A(I(f"s_and_b32 s{sT2}, s{sWAVE}, 1"))
        A(I(f"s_lshl_b32 s{sT2}, s{sT2}, 11"))
        A(I(f"s_mul_i32 s{sT3}, s{sT1}, {43*4096}"))
        A(I(f"s_add_u32 s{sT3}, s{sT3}, s{sT2}"))
        A(I(f"s_add_u32 s{sT3}, s{sT3}, {ZH_OFF}"))
        A(Group([I(f"s_add_u32 s{S_ZH}, s{S_WS}, s{sT3}"), I(f"s_addc_u32 s{S_ZH+1}, s{S_WS+1}, 0")]))
        A(I(f"s_sub_u32 s{S_ZH+2}, {43*4096}, s{sT2}"))
        A(I(f"s_lshl_b32 s{sT1}, s{sT1}, 19"))
        A(I(f"s_lshl_b32 s{sT3}, s{sKQ}, 17"))
        A(I(f"s_add_u32 s{sT1}, s{sT1}, s{sT3}"))
        A(I(f"s_add_u32 s{sT1}, s{sT1}, s{sT2}"))
        A(I(f"s_add_u32 s{sT1}, s{sT1}, {ZC_OFF}"))
        A(Group([I(f"s_add_u32 s{S_ZC}, s{S_WS}, s{sT1}"), I(f"s_addc_u32 s{S_ZC+1}, s{S_WS+1}, 0")]))
        A(I(f"s_sub_u32 s{S_ZC+2}, {32*4096}, s{sT2}"))
        A(I(f"s_lshl_b32 s{sT2}, s{sKQ}, 20"))
        A(Group([I(f"s_add_u32 s{S_WO}, s{S_WO}, s{sT2}"), I(f"s_addc_u32 s{S_WO+1}, s{S_WO+1}, 0")]))
        A(I(f"s_mov_b32 s{S_WO+2}, {1 << 20}"))
        A(I(f"s_mul_i32 s{sZo}, s{sKQ}, {11*4096}"))
        A(I(f"s_mul_i32 s{sWo}, s{sKQ}, {11*32768}"))

        return c

    def p4_early(self):
        t = vT[0]
        c = []
        for n in range(4):
            c += [I(f"buffer_load_dwordx4 {vr(128 + (n*2 + tb)*4)}, v{vL16[0]}, {srd(S_ZH)}, s{sZo} offen "
                    f"offset:{tb*1024} {self.o.ldflag}") for tb in range(2)]
            c.append(I(f"s_add_u32 s{sZo}, s{sZo}, 4096"))
        if self.o.prefetch & 2:
            c += [I(f"s_and_b32 s{sT1}, s{sTB}, 7"), I(f"s_mul_i32 s{sT1}, s{sT1}, 44"),
                  I(f"s_mul_i32 s{sT2}, s{sWAVE}, 11"), I(f"s_add_u32 s{sT1}, s{sT1}, s{sT2}"),
                  I(f"s_lshl_b32 s{sT1}, s{sT1}, 10"), I(f"s_add_u32 s{sT1}, s{sT1}, s{sWo}"),
                  I(f"s_lshl_b32 s{sT2}, s{sCB}, 8"), I(f"s_add_u32 s{sT1}, s{sT1}, s{sT2}"),
                  I(f"v_min_u32 v{t}, 21, v{vLANE}"), I(f"v_lshrrev_b32 v{t+1}, 1, v{t}"),
                  I(f"v_and_b32 v{t}, 1, v{t}"), I(f"v_lshlrev_b32 v{t}, 7, v{t}"),
                  I(f"v_lshl_add_u32 v{t}, v{t+1}, 10, v{t}"),
                  self.pf_load(t, S_WD, f"s{sT1}", dst="a200")]
        return c

    def h_offsets(self):
        t = vT[0]
        return [I(f"s_mov_b32 s{sHB}, {FL_H}"), I(f"s_sub_u32 s{sT1}, s{sPOLL}, s{sHB}"),
                I(f"v_add_u32 v{t}, s{sT1}, v{vPO32}"),
                I(f"s_bfe_u32 s{sT1}, s{sB}, 0x10002"), I(f"s_lshl_b32 s{sT1}, s{sT1}, 4"),
                I(f"s_and_b32 s{sT2}, s{sH}, 3"), I(f"s_add_u32 s{sT1}, s{sT1}, s{sT2}"),
                I(f"s_lshl_b32 s{sT2}, s{sW}, 5"), I(f"s_add_u32 s{sT1}, s{sT1}, s{sT2}"),
                I(f"s_lshl_b32 s{sT1}, s{sT1}, 2"),
                I(f"v_and_b32 v{t+1}, 3, v{vLANE}"), I(f"v_lshlrev_b32 v{t+1}, 4, v{t+1}"),
                I(f"v_cmp_gt_u32 vcc, 32, v{vLANE}"), I(f"v_add_u32 v{t+1}, s{sT1}, v{t+1}"),
                I(f"v_cndmask_b32 v{vHO}, v{t+1}, v{t}, vcc")]

    def phase4(self, sb, prev):
        o = self.o
        ACC4, ZR, WR = 0, 64, 192
        vRd4 = list(range(224, 232))
        vXo, vP4, vW1, XR = 234, 235, 252, 236
        sEXs, sEXd, sFE, sOo = sNM2
        L = vLANE
        NH, NS, LEAD = 11, 16, o.lead4
        c = []
        A = c.append
        sb.vm = sb.vm[-24:]
        A(I("s_waitcnt lgkmcnt(0)"))
        A(I("s_barrier"))
        c += self.stamp(232)
        t = WR
        Wd, Zd = {}, {}

        def wload(n):
            ws = S_WD if n < NH else S_WO
            d = [I(f"buffer_load_dwordx4 v{vWo4[e]}, {srd(ws)}, s{sWo} offen offset:{e*1024} lds") for e in range(2)]
            Wd[n % NS] = d
            pre = [I(f"s_mov_b32 s{sWo}, 0")] if n == NH else []
            return pre + [I(f"s_add_u32 m0, s{sW2K}, {(n % NS)*8192}"), d[0], d[1],
                          I(f"s_add_u32 s{sWo}, s{sWo}, 32768")]

        def zload(n):
            zs, so = (S_ZH, sZo) if n < NH else (S_ZC, sSOFF)
            d = [I(f"buffer_load_dwordx4 {vr(ZR + (((n + 8) % NS)*2 + tb)*4)}, v{vL16[0]}, {srd(zs)}, s{so} offen "
                   f"offset:{tb*1024} {o.ldflag}") for tb in range(2)]
            batch(d)
            pre = [I(f"s_mov_b32 s{so}, 0")] if n == NH else []
            return pre + d + [I(f"s_add_u32 s{so}, s{so}, 4096")]

        def reads(n, wb):
            slot = (n % NS) * 8192
            return batch([I(f"ds_read_b64_tr_b16 {vr(WR + 4*wb + 2*a, 2)}, v{vRd4[wb]} offset:{(slot & 0xffff) + a*4096}")
                          for a in range(2)])

        def winfix(n):
            a, b = ((n - 1) % NS) >> 3, (n % NS) >> 3
            if a == b:
                return lambda wb: []
            op = "v_add_u32" if b else "v_subrev_u32"
            return lambda wb: [I(f"{op} v{vRd4[wb]}, 0x10000, v{vRd4[wb]}")]

        for n in range(4):
            c += wload(n)
        A(I(f"s_sub_u32 s{sPOLL}, s{sPOLL}, {FL_H}"))
        A(I(f"s_lshl_b32 s{sT1}, s{sKQ}, 5"))
        A(I(f"s_add_u32 s{sPOLL}, s{sPOLL}, s{sT1}"))
        if o.wflag:
            A(I(f"s_lshl_b32 s{sPOLL}, s{sPOLL}, 2"))
        A(I(f"s_add_u32 s{sPOLL}, s{sPOLL}, {FL_CW if o.wflag else FL_C}"))
        g, i16 = t, t + 1
        A(I(f"v_lshrrev_b32 v{g}, 4, v{L}"))
        A(I(f"v_and_b32 v{i16}, 15, v{L}"))
        A(I(f"v_lshrrev_b32 v{t+2}, 2, v{i16}"))
        A(I(f"v_lshl_add_u32 v{t+2}, v{g}, 2, v{t+2}"))
        A(I(f"v_and_b32 v{t+3}, 3, v{i16}"))
        A(I(f"v_lshlrev_b32 v{t+3}, 3, v{t+3}"))
        A(I(f"v_lshl_add_u32 v{t+3}, v{t+2}, 8, v{t+3}"))
        A(I(f"v_and_b32 v{t+2}, 7, v{t+2}"))
        A(I(f"v_lshl_add_u32 v{t+3}, v{t+2}, 5, v{t+3}"))
        for i in range(8):
            A(I(f"s_lshl_b32 s{sT1}, s{sKQ}, 1"))
            A(I(f"s_add_u32 s{sT1}, s{sT1}, {i}"))
            A(I(f"s_and_b32 s{sT1}, s{sT1}, 7"))
            A(I(f"s_lshl_b32 s{sT1}, s{sT1}, 5"))
            A(I(f"v_xor_b32 v{vRd4[i]}, s{sT1}, v{t+3}"))
        A(I(f"s_lshl_b32 s{sT1}, s{sTB}, 2"))
        A(I(f"s_add_u32 s{sT1}, s{sT1}, s{sWAVE}"))
        A(I(f"s_lshl_b32 s{sT1}, s{sT1}, 15"))
        A(I(f"s_lshl_b32 s{sT2}, s{sCB}, 8"))
        A(I(f"s_add_u32 s{sT1}, s{sT1}, s{sT2}"))
        A(I(f"s_lshl_b32 s{sT2}, s{sKQ}, 6"))
        A(I(f"s_add_u32 s{sT1}, s{sT1}, s{sT2}"))
        A(I(f"v_lshlrev_b32 v{t+2}, 10, v{i16}"))
        A(I(f"v_lshl_add_u32 v{t+2}, v{g}, 3, v{t+2}"))
        A(I(f"v_add_u32 v{vXo}, s{sT1}, v{t+2}"))
        A(I(f"s_mov_b32 s{sOo}, 16384"))
        A(I(f"s_mul_i32 s{sT1}, s{sTID}, {4*3*8192}"))
        A(I(f"s_lshl_b32 s{sT2}, s{sWAVE}, 11"))
        A(I(f"s_add_u32 s{sT1}, s{sT1}, s{sT2}"))
        A(I(f"s_add_u32 s{sEXs}, s{sT1}, {EX_OFF}"))
        A(I(f"s_mul_i32 s{sT2}, s{sKQ}, {3*8192}"))
        A(I(f"s_add_u32 s{sEXd}, s{sEXs}, s{sT2}"))
        A(I(f"s_lshl_b32 s{sFE}, s{sTID}, 2"))
        A(I(f"s_add_u32 s{sFE}, s{sFE}, s{sWAVE}"))
        A(I(f"s_lshl_b32 s{sFE}, s{sFE}, 4"))
        A(I(f"s_add_u32 s{sFE}, s{sFE}, {FL_E}"))
        A(I(f"v_mov_b32 v{t+2}, {OOB}"))
        A(I(f"v_cmp_eq_u32 vcc, 0, v{L}"))
        A(I(f"s_lshl_b32 s{sT1}, s{sKQ}, 2"))
        A(I(f"v_mov_b32 v{t+3}, s{sT1}"))
        A(I(f"v_cndmask_b32 v{vW1}, v{t+2}, v{t+3}, vcc"))
        first = [Wd[k] for k in range(4)]
        if o.wflag:
            assert o.sentinel
            A(I(f"s_sub_u32 s{sT1}, s{sFC}, {FL_C}"))
            A(I(f"s_lshl_b32 s{sT1}, s{sT1}, 2"))
            A(I(f"s_lshl_b32 s{sT2}, s{sWAVE}, 2"))
            A(I(f"s_add_u32 s{sT1}, s{sT1}, s{sT2}"))
            A(I(f"s_add_u32 s{sT1}, s{sT1}, {FL_CW}"))
            A(I(f"v_cndmask_b32 v{vW1}, v{t+2}, v{vC0}, vcc"))
            A(Need([self.ctx_stores]))
            A(I(f"buffer_store_dword v{vC1}, v{vW1}, {srd(S_WS)}, s{sT1} offen sc1"))
            A(Need(first, lg0=True))
            A(I("s_barrier"))
        else:
            A(Need(first + [self.ctx_stores], lg0=True))
            A(I("s_barrier"))
            A(self.flag_store(sFC))
        for n in range(4, LEAD):
            c += wload(n)
        rr = [reads(0, wb) for wb in range(8)]
        c += batch(sum(rr[:4], [])) + batch(sum(rr[4:], []))

        def steps(n0, n1, first, zplan, extra):
            mf, tasks = [], []
            wch, zch = [], []
            for n in range(n0, n1):
                b = 16 * (n - n0)
                for wb in range(8):
                    for tb in range(2):
                        d = vr(ACC4 + (wb * 2 + tb) * 4)
                        mf.append(mfma(d, vr(WR + 4 * wb), vr(ZR + (((n + 8) % NS) * 2 + tb) * 4),
                                       "0" if (first and n == n0) else d))
                bar = (n + 1) % 4 == 0
                fx = winfix(n + 1)
                ent = []
                rr = [reads(n + 1, wb) for wb in range(8)]
                batch(sum(rr[:4], []))
                batch(sum(rr[4:], []))
                for wb in range(8):
                    lo = b + 2 * wb + 2
                    if bar:
                        lo = max(lo, b + 5)
                    ent += [(x, lo, min(b + 16, lo + 3)) for x in fx(wb) + rr[wb]]
                tasks.append(Task(f"rd{n}", ent, prio=0, tight=True))
                if bar:
                    need = [Wd[k % NS] for k in range(n + 1, n + 5)]
                    tasks.append(Task(f"bar{n}", [Group([Need(need, lg0=True), I("s_barrier")])], b + 4, b + 4, prio=-1))
                seq = wload(n + LEAD)
                zs = [zload(zn) for zn in zplan(n)]
                if o.p4fix and len(zs) == 1:
                    pos = iter((b + 6, b + 10))
                    for x in seq:
                        g = next(pos) if x.kind == "dma" else None
                        wch.append((x, g, g) if g else (x, b + (5 if (bar and False) else 0), b + 15))
                    pos = iter((b + 2, b + 14))
                    for x in zs[0]:
                        g = next(pos) if x.kind == "vload" else None
                        zch.append((x, g, g) if g else (x, b, b + 16))
                else:
                    lo = b + (5 if bar else 0)
                    wch += [(x, lo, b + 15, 1 if (x.kind == "dma" and k and seq[k-1].kind == "salu") else 0)
                            for k, x in enumerate(seq)]
                    for z in zs:
                        zch += [(x, b + 1, b + 16) for x in z]
                for x in extra.get(n, []):
                    tasks.append(Task("ex", x, b + 1, b + 12, prio=2))
            tasks.append(Task("w", wch, prio=-1))
            if zch:
                tasks.append(Task("z", zch, prio=-1))
            if extra.get("tasks"):
                tasks += extra["tasks"]
            return schedule(mf, tasks, 8, self.reports, reserve=range(0, len(mf), 8), seed=o.seed, iters=40, vmw=o.vmw)

        CH = o.chk4
        pend = list(range(NH, NH + LEAD))

        def zplan_head(n):
            z = [n + 4] if n + 4 < NH else []
            if n > CH:
                k = -(-len(pend) // (NH - n))
                z += pend[:k]
                del pend[:k]
            return z
        vPC = vPO32 if o.wflag else vPO8
        ex = {CH - 2: [[self.poll_load(vP4, S_WS, vPC, f"s{sPOLL}")]],
              CH: [self.poll_check(vP4, S_WS, vPC, f"s{sPOLL}", "1", split=True) + self.stamp(232)]}
        c += steps(0, NH, True, zplan_head, ex)
        assert not pend
        c += [I(f"s_mov_b32 s{sJ}, 0")]
        head = self.seg(c, sb, prev)

        def loop_body(sbx, pv):
            b = steps(NH, NH + NS, False, lambda n: [n + LEAD], {})
            b += [I(f"s_add_u32 s{sJ}, s{sJ}, 1"), I(f"s_cmp_lt_u32 s{sJ}, 2"), I("s_cbranch_scc1 L_p4loop")]
            return add_waits(b, sbx)
        b1 = loop_body(sb, head)
        b2 = loop_body(sb, b1)
        b1 = pad_hazards(merge_waits(b1, b2), head)
        check_hazards(b1, b1)
        b2 = b1
        print("phase 4 head / loop estimate", estimate(head), estimate(b1), file=sys.stderr)
        e = []
        A = e.append
        e += self.stamp(232)
        xl = [I(f"buffer_load_dwordx2 {vr(XR + 4*tb + 2*i, 2)}, v{vXo}, {srd(S_X)}, {'s%d' % sOo if tb else '0'} offen "
                f"offset:{i*32}") for tb in range(2) for i in range(2)]
        e += xl
        st = []
        for p in range(1, 4):
            A(I(f"s_add_u32 s{sT1}, s{sKQ}, {p}"))
            A(I(f"s_and_b32 s{sT1}, s{sT1}, 3"))
            A(I(f"s_mul_i32 s{sT1}, s{sT1}, {3*8192}"))
            A(I(f"s_add_u32 s{sT1}, s{sT1}, s{sEXs}"))
            A(I(f"s_add_u32 s{sT1}, s{sT1}, {(p-1)*8192}"))
            for tb in range(2):
                t0, t1 = ACC4 + ((2 * p) * 2 + tb) * 4, ACC4 + ((2 * p + 1) * 2 + tb) * 4
                d = ZR + ((p - 1) * 2 + tb) * 4
                e += self.pk_frag(d, t0, t1)
                x = I(f"buffer_store_dwordx4 {vr(d)}, v{vL16[0]}, {srd(S_WS)}, s{sT1} offen offset:{tb*1024} {o.stflag}")
                A(x)
                st.append(x)
        for tb in range(2):
            for i in range(2):
                a = ACC4 + (i * 2 + tb) * 4
                x = XR + 4 * tb + 2 * i
                u = WR
                e += [I(f"v_lshlrev_b32 v{u}, 16, v{x}"), I(f"v_and_b32 v{u+1}, 0xffff0000, v{x}"),
                      I(f"v_lshlrev_b32 v{u+2}, 16, v{x+1}"), I(f"v_and_b32 v{u+3}, 0xffff0000, v{x+1}")]
                e += [I(f"v_add_f32 v{a+r}, v{a+r}, v{u+r}") for r in range(4)]
        R = ZR + 32
        sX = [sZo, sWo, sTB]
        exl = []
        for p in range(3):
            A(I(f"s_add_u32 s{sX[p]}, s{sEXd}, {p*8192}"))
            exl += [I(f"buffer_load_dwordx4 {vr(R + (p*2+tb)*4)}, v{vL16[0]}, {srd(S_WS)}, s{sX[p]} offen "
                      f"offset:{tb*1024} {o.ldflag}") for tb in range(2)]
        if not o.sentinel:
            A(Need(st))
            A(I(f"buffer_store_dword v{vC1}, v{vW1}, {srd(S_WS)}, s{sFE} offen sc1"))
            A(I(f"v_and_b32 v{vW1}, 12, v{vPO8}"))
            A(self.poll_load(vP4, S_WS, vW1, f"s{sFE}"))
            A(self.poll_check(vP4, S_WS, vW1, f"s{sFE}", "1"))
            e += self.stamp(232)
            e += exl
        else:
            chk = [I(f"v_max3_u32 v{vP4}, v{R}, v{R+1}, v{R+2}")]
            chk += [I(f"v_max3_u32 v{vP4}, v{vP4}, v{R+k}, v{R+k+1}") for k in range(3, 23, 2)]
            chk += [I(f"v_max_u32 v{vP4}, v{vP4}, v{R+23}"), I(f"v_cmp_eq_u32 vcc, -1, v{vP4}")]
            slow, back = self.lab("exs"), self.lab("exb")
            tm = o.timeit == "spin"
            self.cold.append(f"{slow}:\n" + ("    s_memtime s[0:1]\n" if tm else "") +
                             f"    s_mov_b32 s{sSPIN}, {o.spin}\n{slow}_l:\n" +
                             render([I(x.text) for x in exl] + [I("s_waitcnt vmcnt(0)")] + [I(x.text) for x in chk]) +
                             f"    s_nop 1\n    s_cbranch_vccz {slow}_x\n    s_sub_u32 s{sSPIN}, s{sSPIN}, 1\n"
                             f"    s_cmp_lg_u32 s{sSPIN}, 0\n    s_cbranch_scc1 {slow}_l\n{slow}_x:\n" +
                             (f"    s_memtime s[{sM0}:{sM0+1}]\n    s_waitcnt lgkmcnt(0)\n    s_sub_u32 s0, s{sM0}, s0\n"
                              f"    s_add_u32 s{sACC}, s{sACC}, s0\n" if tm else "") + f"    s_branch {back}\n")
            if o.sentinel == 2:
                A(Need(st))
            e += exl + chk + [I(f"s_cbranch_vccnz {slow}"), I(f"{back}:")]
            e += self.stamp(232)
        for p in range(3):
            for tb in range(2):
                for k in range(4):
                    a = ACC4 + ((k >> 1) * 2 + tb) * 4 + (k & 1) * 2
                    x = R + (p * 2 + tb) * 4 + k
                    u = WR + 2 * (k & 1)
                    e += [I(f"v_lshlrev_b32 v{u}, 16, v{x}"), I(f"v_and_b32 v{u+1}, 0xffff0000, v{x}"),
                          I(f"v_add_f32 v{a}, v{a}, v{u}"), I(f"v_add_f32 v{a+1}, v{a+1}, v{u+1}")]
        for tb in range(2):
            for i in range(2):
                a = ACC4 + (i * 2 + tb) * 4
                d = WR + 4 + 2 * (tb * 2 + i)
                e += [I(f"v_cvt_pk_bf16_f32 v{d}, v{a}, v{a+1}"), I(f"v_cvt_pk_bf16_f32 v{d+1}, v{a+2}, v{a+3}"),
                      I(f"buffer_store_dwordx2 {vr(d,2)}, v{vXo}, {srd(S_OUT)}, {'s%d' % sOo if tb else '0'} offen "
                        f"offset:{i*32}")]
        e += self.stamp(232)
        tail = self.seg(e, sb, b2)
        return head + [I(".p2align 6"), I("L_p4loop:")] + b1 + tail

    def build(self):
        o = self.o
        sb = Scoreboard()
        p12 = self.phase12()
        if o.stop == "p2":
            for q in range(4):
                p12 += self.epi_Q(1, q)
            p12 += [I(f"s_lshl_b32 s{sT1}, s{sB}, 2"), I(f"s_add_u32 s{sT1}, s{sT1}, s{sWAVE}"),
                    I(f"s_lshl_b32 s{sT1}, s{sT1}, 14"), I(f"s_add_u32 s{sT1}, s{sT1}, {ZC_OFF}")]
            for q in range(4):
                for ds in range(4):
                    p12.append(I(f"buffer_store_dwordx4 {ar(gQ(q, ds))}, v{vL16[q]}, {srd(S_WS)}, s{sT1} offen "
                                 f"offset:{ds*1024}"))
        code = add_waits(p12, sb)
        if o.timeit.startswith("vmw"):
            nb, k = [], 0
            for x in code:
                if x.kind == "wait" and "vmcnt" in x.text and k < 48:
                    nb += [I("s_memtime s[0:1]"), I("s_waitcnt lgkmcnt(0)"), x, I(f"s_memtime s[{sM0}:{sM0+1}]"),
                           I("s_waitcnt lgkmcnt(0)"), I(f"s_sub_u32 s0, s{sM0}, s0"), I("s_mov_b64 exec, 1"),
                           I(f"v_mov_b32 v{vPOLL2}, s0"), I(f"s_add_u32 s0, s{sST}, {4*k}"),
                           I(f"ds_write_b32 v{vC0}, v{vPOLL2} offset:{60*1024+4*k}") if False else
                           I(f"v_writelane_b32 v{vPOLL2+1}, s0, 0") if False else I("s_nop 0"),
                           I("s_mov_b64 exec, -1"), I(f"v_readlane_b32 s1, v{vPOLL2}, 0"), I("s_nop 3"),
                           I(f"v_writelane_b32 v{vPOLL2+1}, s1, {k}")]
                    print("vmwait", k, x.text, "at mfma", sum(1 for y in nb if y.kind == "mfma"), file=sys.stderr)
                    k += 1
                else:
                    nb.append(x)
            nb += [I(f"v_lshlrev_b32 v{vPOLL2}, 2, v{vLANE}"), I(f"s_add_u32 s0, s{sST}, {1<<18}"),
                   I(f"buffer_store_dword v{vPOLL2+1}, v{vPOLL2}, {srd(S_WS)}, s0 offen")]
            code = nb
        code = pad_hazards(code)
        print("phase 1/2 estimate", estimate(code), file=sys.stderr)
        if o.stop not in ("p1a", "p2"):
            a, sb3 = self.attention(sb, code)
            code += a
            if o.stop != "p3":
                code += self.phase4(sb3, code)
        code += [I("s_waitcnt vmcnt(0) lgkmcnt(0)"), I("L_exit:"), I("s_endpgm")]
        self.code = code
        labels = {x.text for x in code if x.kind == "label"}
        import re
        cold = [c for c in self.cold if re.findall(r"s_branch (\S+)", c)[-1] + ":" in labels]
        txt = HEADER + render(code) + "".join(cold) + FOOTER
        return txt


GK0 = -2.0 * math.sqrt(2.0 / math.pi) * math.log2(math.e)
GK1 = GK0 * 0.044715
QSCALE = math.log2(math.e) / math.sqrt(128.0)
BIAS = 8.0
sQS = sGBD + 0
sQS = 3

HEADER = f"""; Fused LayerNorm + compressed-KV causal attention + GeGLU FFN, one persistent launch.
; @launch grid=(256,1,1) block=(256,1,1) lds=163840
.amdgcn_target "amdgcn-amd-amdhsa--gfx950"
.text
.globl {KNAME}
.p2align 8
.type {KNAME},@function
{KNAME}:
"""
FOOTER = f"""    s_endpgm
.section .rodata,"a"
.p2align 6
.amdhsa_kernel {KNAME}
  .amdhsa_next_free_vgpr 512
  .amdhsa_next_free_sgpr 102
  .amdhsa_accum_offset 256
  .amdhsa_group_segment_fixed_size 0
  .amdhsa_kernarg_size 104
  .amdhsa_user_sgpr_count 2
  .amdhsa_user_sgpr_kernarg_segment_ptr 1
  .amdhsa_system_sgpr_workgroup_id_x 1
  .amdhsa_float_denorm_mode_32 3
.end_amdhsa_kernel
"""


def main():
    o = Opt()
    out = "k.s"
    for a in sys.argv[1:]:
        if "=" in a:
            k, v = a.split("=")
            if k == "out":
                out = v
            else:
                cur = getattr(o, k)
                setattr(o, k, v if (cur is None or isinstance(cur, str)) else type(cur)(int(v)))
    g = Gen(o)
    txt = g.build()
    open(out, "w").write(txt)
    for r in g.reports:
        print("sched overflow/total/gaps:", r, file=sys.stderr)


if __name__ == "__main__":
    main()
```

```python
import math
import struct
import sys

from asmir import (I, Ins, Group, Need, Task, Scoreboard, add_waits, pad_hazards, check_hazards, schedule, render,
                   flatten, batch, estimate, verify_order, merge_waits)

KNAME = "parallel_sum__compressed_kv_cla__geglu_ffn__prompt_kernel"


class Opt:
    stop = None
    stamps = 0
    G = 4
    NS = 10
    LEAD = 6
    spin = 1 << 20
    prefetch = 34
    xnslope = 88
    xn0 = 600
    vmw = 8
    rot = 3
    pfcode = 1
    lead4 = 8
    chk4 = 8
    G12 = 4
    lead12 = 11
    st_lo = 575
    st_hi = 1480
    seed = 1
    budget = 8
    timeit = ""
    wflg = "sc1"
    pa = 130
    pb = 300
    pc = 343
    p2early = 0
    rot4 = 0
    xat = 2
    hold = 0
    holdat = "start"
    xnchk = 566
    pfxw = 40
    tokmode = 0
    lnlate = 0
    wflag = 1
    vmwa = 4
    tune = 1
    ldw = 4
    ldw12 = 0
    gearly = 0
    ge0 = 460
    gestep = 30
    delay = 0
    sentinel = 2
    p4fix = 1
    unroll = 1
    gfake = 0
    wdist = 2
    wwin = 7
    xnsrc = 0
    stampat = "160,512,1024,1408,1916"
    drop = ""
    stflag = "sc1"
    ldflag = "sc1"


def fbits(x):
    return "0x%08x" % struct.unpack("<I", struct.pack("<f", x))[0]


XN_OFF = 0
KF_OFF = 2 << 20
VF_OFF = 18 << 20
ZC_OFF = 34 << 20
ZH_OFF = 50 << 20
FL_OFF = 56 << 20
FL_XN, FL_KV, FL_H, FL_C = FL_OFF, FL_OFF + 1024, FL_OFF + 5120, FL_OFF + 6144
FL_E = FL_OFF + 7168
FL_CW = FL_OFF + 7168
TS_OFF = 57 << 20
EX_OFF = 64 << 20
WS_SIZE = 72 << 20
OOB = 0x7FFFFF00

S_X, S_CKV, S_WQ, S_WUK, S_WUV, S_WO, S_WG, S_WU, S_WD, S_OUT, S_DBG, S_WS = range(4, 52, 4)
S_KV = S_WU
S_ZH = S_CKV
S_ZC = S_WQ
sWAVE, sH, sW, sB, sT0, sW2K, sTOKB, sKFB, sVFB = range(52, 61)
sXN = [61, 62, 63, 64]
sZH = [65, 66, 67, 68]
sZC = [69, 70, 71, 72]
sT1, sT2, sT3 = 73, 74, 75
sM0, sM1 = 76, 78
sEV = 80
sJ, sSOFF, sWR, sRD = 82, 83, 84, 85
sNM1 = [86, 87, 88, 89]
sNM2 = [90, 91, 92, 93]
sFXN, sFKV, sFH, sFC = 94, 95, 96, 97
sSPIN, sGBD, sPOLL = sT3, 99, 100
sST = 101
sJL = 65
sKQ, sTB, sCB, sTID, sZo, sWo = 58, 59, 60, 64, 94, 95
vWo4 = [243, 244]
vXo, XR = 252, 208
sMASK, sSP = 61, 62
sK2 = [80, 81, 82, 85]
sACC = 98
TS = 2


def srd(b):
    return f"s[{b}:{b+3}]"


def vr(b, n=4):
    return f"v[{b}:{b+n-1}]" if n > 1 else f"v{b}"


def ar(b, n=4):
    return f"a[{b}:{b+n-1}]" if n > 1 else f"a{b}"


MF = "v_mfma_f32_16x16x32_bf16"


def mfma(d, a, b, c):
    return I(f"{MF} {d}, {a}, {b}, {c}")


ACC = [0, 64, 128]
WFB = [192, 200, 208, 220]
PK = [216, 220, 224]
vG0, vG1, vGK = 228, 229, 230
vPOLL = 231
vRD = [232, 233, 234, 235]
vRD64 = [236, 237]
vRD32 = 238
vWO = [239, 240]
vGA = [241, 242]
vGB = [243, 244]
vTRD = [241, 242]
vL16 = [245, 246, 247, 248]
vONE = 249
vPO32 = 250
vPO8 = 251
vGBS = 252
vC0, vC1 = 253, 254
vLANE = 255
vPOLL2 = 220
vX16 = [216, 217, 218, 219]
vTO = list(range(128, 136))
vLN = 136
vPFW = 226
LNBUF = 7 * 8192
TOKB = 65536
HV = dict(K0=(0, 1), K1=(2, 3), V0=(4, 5), V1=(1, 3), GA=(0, 5), GB=(3, 3), Q0=(2, 4), Q1=(1, 0))


def areg(ps, wb, tb):
    if ps == "Q1":
        return (wb >> 1) * 32 + (tb * 2 + (wb & 1)) * 4
    t = 4 * wb + tb
    return 32 * HV[ps][t >> 3] + 4 * (t & 7)


aO = lambda db, q: 64 + (q * 8 + db) * 4
aS = lambda q, kb: (q * 2 + kb) * 4
aC = lambda q, kb: 32 + (q * 2 + kb) * 4
aP = lambda q: 192 + q * 4
aE = [208, 216, 224]
vOR, vOR2 = 232, 233
vARD = 234
vDM = [236, 237]
vT = [238, 239, 240, 233]
vHP = 241
vHO = 242
sHB = 99
gQ = lambda q, ds: ds * 16 + q * 4
gK = lambda kb, ds: 64 + (kb * 4 + ds) * 4
gV = lambda db: 96 + db * 4
gL = lambda q: 128 + q * 4
gONE = 144
TF = lambda tb, ks: (ks * 4 + tb) * 4


class Gen:
    def __init__(self, opt):
        self.o = opt
        self.out = []
        self.cold = []
        self.nlab = 0
        self.reports = []
        self.nstamp = 0

    def lab(self, p):
        self.nlab += 1
        return f"L_{p}_{self.nlab}"

    def stamp(self, vt=None):
        if not self.o.stamps:
            return []
        vt = vPOLL if vt is None else vt
        k = self.nstamp
        self.nstamp += 1
        if self.o.stamps == 2:
            g = [I(f"s_memrealtime s[{sT2}:{sT2+1}]"), I("s_waitcnt lgkmcnt(0)"), I(f"v_mov_b32 v{vt}, s{sT2}"),
                 I(f"buffer_atomic_umax v{vt}, v{vONE}, {srd(S_DBG)}, 0 offen offset:{8+4*k} sc1"), I("s_nop 1")]
            if k == 0:
                g += [I(f"v_not_b32 v{vt}, v{vt}"),
                      I(f"buffer_atomic_umax v{vt}, v{vONE}, {srd(S_DBG)}, 0 offen offset:4 sc1"), I("s_nop 1")]
            return [Group(g)]
        return [Group([I(f"s_memtime s[{TS}:{TS+1}]"), I(f"s_memrealtime s[{sT2}:{sT2+1}]"),
                       I("s_waitcnt lgkmcnt(0)"), I("s_mov_b64 exec, 1"),
                       I(f"v_mov_b32 v{vt}, s{TS}"),
                       I(f"s_add_u32 s{TS}, s{sST}, {k*4}"),
                       I(f"buffer_store_dword v{vt}, v{vC0}, {srd(S_WS)}, s{TS} offen"),
                       I("s_nop 1"),
                       I(f"v_mov_b32 v{vt}, s{sT2}"),
                       I(f"buffer_store_dword v{vt}, v{vC0}, {srd(S_WS)}, s{TS} offen offset:64"),
                       I("s_nop 1"),
                       I(f"v_mov_b32 v{vt}, s{sACC}"),
                       I(f"buffer_store_dword v{vt}, v{vC0}, {srd(S_WS)}, s{TS} offen offset:128"),
                       I("s_nop 1"), I("s_mov_b64 exec, -1")])]

    def holdmark(self, name):
        if not self.o.hold or self.o.holdat != name:
            return []
        return [Group([I(f"s_memrealtime s[{sM0}:{sM0+1}]"), I("s_waitcnt lgkmcnt(0)"),
                       I(f"s_add_u32 s{sACC}, s{sM0}, {self.o.hold}")])]

    def timed(self, seq):
        if self.o.stamps != 1 or (self.o.timeit == "spin"):
            return seq
        return [I("s_memtime s[0:1]")] + seq + [I(f"s_memtime s[{sM0}:{sM0+1}]"), I("s_waitcnt lgkmcnt(0)"),
                                                I(f"s_sub_u32 s0, s{sM0}, s0"), I(f"s_add_u32 s{sACC}, s{sACC}, s0")]

    def poll_check(self, vreg, srdb, voff, soff, val, cmp="ne", split=False):
        slow, back = self.lab("spin"), self.lab("back")
        tm = self.o.timeit == "spin"
        t0 = "    s_memtime s[0:1]\n" if tm else ""
        ret = back
        if tm:
            ret = slow + "_x"
        x = f"""{ret}:
    s_memtime s[{sM0}:{sM0+1}]
    s_waitcnt lgkmcnt(0)
    s_sub_u32 s0, s{sM0}, s0
    s_add_u32 s{sACC}, s{sACC}, s0
    s_branch {back}
""" if tm else ""
        self.cold.append(f"""{slow}:
{t0}    s_mov_b32 s{sSPIN}, {self.o.spin}
{slow}_l:
    buffer_load_dword v{vreg}, v{voff}, {srd(srdb)}, {soff} offen sc1
    s_waitcnt vmcnt(0)
    v_cmp_{cmp}_u32 vcc, {val}, v{vreg}
    s_nop 1
    s_cbranch_vccz {ret}
    s_sub_u32 s{sSPIN}, s{sSPIN}, 1
    s_cmp_lg_u32 s{sSPIN}, 0
    s_cbranch_scc1 {slow}_l
    s_branch {ret}
{x}""")
        a, b = I(f"v_cmp_{cmp}_u32 vcc, {val}, v{vreg}"), Group([I(f"s_cbranch_vccnz {slow}"), I(f"{back}:")])
        return [a, (b, None, None, 2)] if split else Group([a, b])

    def poll_load(self, vreg, srdb, voff, soff):
        return I(f"buffer_load_dword v{vreg}, v{voff}, {srd(srdb)}, {soff} offen sc1")

    def setup(self):
        c = []
        A = c.append
        A(I("s_cmp_ge_u32 s2, 256"))
        A(I("s_cbranch_scc1 L_exit"))
        ptrs = [(S_CKV, 8, 2097152), (S_WUK, 24, 4194304), (S_X, 0, 2097152), (S_WS, 96, WS_SIZE), (S_DBG, 88, 256),
                (S_WUV, 32, 4194304), (S_WQ, 16, 4194304), (S_WO, 40, 4194304), (S_WG, 56, 1409024),
                (S_WU, 64, 1409024), (S_WD, 72, 1409024), (S_OUT, 80, 2097152)]
        for b, off, n in ptrs:
            A(I(f"s_load_dwordx2 s[{b}:{b+1}], s[0:1], {off}"))
        A(I(f"v_and_b32 v{vLANE}, 63, v0"))
        A(I("v_lshrrev_b32 v1, 6, v0"))
        A(I(f"s_mov_b32 s{sB}, s2"))
        if self.o.hold and self.o.holdat == "start":
            A(I("s_memrealtime s[2:3]"))
            A(I("s_waitcnt lgkmcnt(0)"))
            A(I(f"s_add_u32 s{sACC}, s2, {self.o.hold}"))
        if self.o.delay:
            A(I(f"s_mov_b32 s{sT0}, {self.o.delay}"))
            A(I("L_delay:"))
            A(I("s_nop 15")); A(I("s_nop 15")); A(I("s_nop 15")); A(I("s_nop 15"))
            A(I(f"s_sub_u32 s{sT0}, s{sT0}, 1"))
            A(I(f"s_cmp_lg_u32 s{sT0}, 0"))
            A(I("s_cbranch_scc1 L_delay"))
        A(I(f"v_readfirstlane_b32 s{sWAVE}, v1"))
        for b, off, n in ptrs:
            A(I(f"s_mov_b32 s{b+2}, {n}"))
            A(I(f"s_mov_b32 s{b+3}, 0x20000"))
        A(I(f"s_and_b32 s{sT0}, s{sB}, 7"))
        A(I(f"s_lshl_b32 s{sT0}, s{sT0}, 2"))
        A(I(f"s_bfe_u32 s{sT1}, s{sB}, 0x20003"))
        A(I(f"s_add_u32 s{sH}, s{sT0}, s{sT1}"))
        A(I(f"s_lshr_b32 s{sW}, s{sB}, 5"))
        A(I(f"s_lshl_b32 s{sW2K}, s{sWAVE}, 11"))
        A(I(f"s_mul_i32 s{sTOKB}, s{sWAVE}, 24576"))
        A(I(f"s_add_u32 s{sTOKB}, s{sTOKB}, {TOKB}"))
        A(I(f"s_add_u32 s{sT0}, s{sH}, s{sW}"))
        if self.o.rot == 2:
            A(I(f"s_lshl_b32 s{sT0}, s{sT0}, 1"))
        A(I(f"s_and_b32 s{sT0}, s{sT0}, {self.o.rot}"))
        for i in range(4):
            A(I(f"s_add_u32 s{sT1}, s{sT0}, {i}"))
            A(I(f"s_and_b32 s{sT1}, s{sT1}, 3"))
            A(I(f"s_lshl_b32 s{sK2[i]}, s{sT1}, 8"))
        L = vLANE
        A(I(f"v_lshrrev_b32 v1, 3, v{L}"))
        A(I(f"v_lshrrev_b32 v2, 4, v{L}"))
        A(I(f"v_and_b32 v3, 7, v{L}"))
        A(I(f"s_lshl_b32 s{sT0}, s{sW}, 2"))
        A(I(f"s_add_u32 s{sT0}, s{sT0}, s{sWAVE}"))
        A(I(f"s_lshl_b32 s{sT0}, s{sT0}, 16"))
        A(I(f"v_xor_b32 v4, v3, v2"))
        A(I(f"v_lshlrev_b32 v5, 10, v1"))
        A(I(f"v_lshl_add_u32 v6, v4, 4, v5"))
        A(I(f"v_add_u32 v{vTO[0]}, s{sT0}, v6"))
        A(I(f"v_xor_b32 v7, 64, v{vTO[0]}"))
        for p in range(1, 8):
            src = 7 if p & 1 else vTO[0]
            A(I(f"v_add_u32 v{vTO[p]}, {p*8192 - (p&3)*1024}, v{src}"))
        A(I(f"v_lshrrev_b32 v8, 5, v{L}"))
        A(I(f"v_and_b32 v9, 3, v1"))
        A(I(f"v_lshl_add_u32 v9, v8, 3, v9"))
        A(I(f"s_lshr_b32 s{sT0}, s{sWAVE}, 1"))
        A(I(f"s_lshl_b32 s{sT0}, s{sT0}, 5"))
        A(I(f"s_and_b32 s{sT1}, s{sWAVE}, 1"))
        A(I(f"s_lshl_b32 s{sT1}, s{sT1}, 2"))
        A(I(f"s_add_u32 s{sT0}, s{sT0}, s{sT1}"))
        A(I(f"v_add_u32 v9, s{sT0}, v9"))
        A(I(f"v_lshlrev_b32 v10, 1, v2"))
        A(I(f"v_xor_b32 v10, v3, v10"))
        A(I(f"v_lshlrev_b32 v10, 4, v10"))
        A(I(f"s_lshl_b32 s{sT0}, s{sH}, 8"))
        A(I(f"v_lshl_add_u32 v11, v9, 13, v10"))
        A(I(f"v_add_u32 v{vWO[0]}, s{sT0}, v11"))
        A(I(f"v_add_u32 v{vWO[1]}, {16*8192-1024}, v{vWO[0]}"))
        A(I(f"v_mov_b32 v{vC0}, 0"))
        A(I(f"v_mov_b32 v{vC1}, 1"))
        if self.o.stamps == 1:
            A(I(f"s_lshl_b32 s{sST}, s{sB}, 2"))
            A(I(f"s_add_u32 s{sST}, s{sST}, s{sWAVE}"))
            A(I(f"s_lshl_b32 s{sST}, s{sST}, 8"))
            A(I(f"s_mov_b32 s{sACC}, 0"))
            A(I(f"s_add_u32 s{sST}, s{sST}, {TS_OFF}"))
        self.n_first = len(c)
        A(I(f"s_lshl_b32 s{sT0}, s{sB}, 2"))
        A(I(f"s_add_u32 s{sT0}, s{sT0}, s{sWAVE}"))
        A(I(f"s_lshl_b32 s{sT0}, s{sT0}, 11"))
        A(I(f"v_and_b32 v12, 31, v{L}"))
        A(I(f"v_lshlrev_b32 v13, 10, v8"))
        A(I(f"v_lshl_add_u32 v13, v12, 4, v13"))
        A(I(f"v_add_u32 v{vLN+32}, s{sT0}, v13"))
        A(I(f"v_mov_b32 v14, {OOB}"))
        A(I("v_cmp_eq_u32 vcc, 0, v0"))
        A(I(f"v_lshlrev_b32 v{vPO32}, 2, v12"))
        A(I(f"v_lshlrev_b32 v{vPO8}, 2, v3"))
        A(I(f"v_cndmask_b32 v{vONE}, v14, v{vC0}, vcc"))
        A(I(f"s_lshr_b32 s{sT0}, s{sB}, 4"))
        A(I(f"s_sub_u32 s{sT1}, 15, s{sT0}"))
        A(I(f"s_min_u32 s{sT1}, s{sT0}, s{sT1}"))
        A(I(f"s_lshl_b32 s{sT1}, s{sT1}, 7"))
        A(I(f"s_lshr_b32 s{sT0}, s{sB}, 7"))
        A(I(f"s_lshl_b32 s{sT0}, s{sT0}, 4"))
        A(I(f"s_and_b32 s{sT2}, s{sB}, 15"))
        A(I(f"s_add_u32 s{sT0}, s{sT0}, s{sT2}"))
        A(I(f"s_lshl_b32 s{sT0}, s{sT0}, 2"))
        A(I(f"s_add_u32 s{sFXN}, s{sT0}, s{sT1}"))
        A(I(f"s_add_u32 s{sFXN}, s{sFXN}, {FL_XN}"))
        A(I(f"s_lshl_b32 s{sT0}, s{sH}, 7"))
        A(I(f"s_lshl_b32 s{sT1}, s{sW}, 2"))
        A(I(f"s_add_u32 s{sFKV}, s{sT0}, s{sT1}"))
        A(I(f"s_add_u32 s{sFKV}, s{sFKV}, {FL_KV}"))
        A(I(f"s_lshl_b32 s{sT0}, s{sW}, 7"))
        A(I(f"s_lshl_b32 s{sT1}, s{sH}, 2"))
        A(I(f"s_add_u32 s{sT0}, s{sT0}, s{sT1}"))
        A(I(f"s_add_u32 s{sFH}, s{sT0}, {FL_H}"))
        A(I(f"s_add_u32 s{sFC}, s{sT0}, {FL_C}"))
        return c

    def setup2(self):
        c = []
        A = c.append
        L = vLANE
        t = vLN + 24
        g, i16 = t, t + 1
        A(I(f"v_lshrrev_b32 v{g}, 4, v{L}"))
        A(I(f"v_and_b32 v{i16}, 15, v{L}"))
        A(I(f"v_lshrrev_b32 v{t+2}, 2, v{i16}"))
        A(I(f"v_lshl_add_u32 v{t+2}, v{g}, 2, v{t+2}"))
        A(I(f"v_and_b32 v{t+3}, 3, v{i16}"))
        A(I(f"v_lshlrev_b32 v{t+3}, 3, v{t+3}"))
        A(I(f"v_bfe_u32 v{t+4}, v{t+2}, 1, 2"))
        A(I(f"v_lshlrev_b32 v{t+4}, 5, v{t+4}"))
        A(I(f"v_lshl_add_u32 v{t+5}, v{t+2}, 7, v{t+3}"))
        A(I(f"v_add_u32 v{vRD[0]}, v{t+5}, v{t+4}"))
        for cb in range(1, 4):
            A(I(f"v_xor_b32 v{vRD[cb]}, {cb*32}, v{vRD[0]}"))
        A(I(f"v_and_b32 v{t+4}, 1, v{g}"))
        A(I(f"v_lshlrev_b32 v{t+4}, 5, v{t+4}"))
        A(I(f"v_lshl_add_u32 v{t+5}, v{t+2}, 6, v{t+3}"))
        A(I(f"v_add_u32 v{vRD64[0]}, v{t+5}, v{t+4}"))
        A(I(f"v_xor_b32 v{vRD64[1]}, 32, v{vRD64[0]}"))
        A(I(f"v_lshl_add_u32 v{vRD32}, v{t+2}, 5, v{t+3}"))
        A(I(f"v_lshrrev_b32 v{t+4}, 1, v{i16}"))
        A(I(f"v_xor_b32 v{t+4}, v{g}, v{t+4}"))
        A(I(f"v_lshlrev_b32 v{t+4}, 4, v{t+4}"))
        A(I(f"v_lshl_add_u32 v{t+4}, v{i16}, 7, v{t+4}"))
        A(I(f"v_add_u32 v{vTRD[0]}, s{sTOKB}, v{t+4}"))
        A(I(f"v_xor_b32 v{vTRD[1]}, 64, v{vTRD[0]}"))
        A(I(f"v_lshlrev_b32 v{vL16[0]}, 4, v{L}"))
        for i in range(1, 4):
            A(I(f"v_add_u32 v{vL16[i]}, {4096*i}, v{vL16[0]}"))
        return c

    def setup3(self):
        c = []
        A = c.append
        L = vLANE
        A(I(f"s_lshl_b32 s{sT1}, s{sH}, 6"))
        A(I(f"s_lshl_b32 s{sT2}, s{sW}, 3"))
        A(I(f"s_add_u32 s{sT1}, s{sT1}, s{sT2}"))
        A(I(f"s_lshl_b32 s{sT2}, s{sWAVE}, 1"))
        A(I(f"s_add_u32 s{sT1}, s{sT1}, s{sT2}"))
        A(I(f"s_lshl_b32 s{sT1}, s{sT1}, 13"))
        A(I(f"s_add_u32 s{sKFB}, s{sT1}, {KF_OFF}"))
        A(I(f"s_add_u32 s{sVFB}, s{sT1}, {VF_OFF}"))
        B = sNM2
        A(I(f"s_sub_u32 s{sT1}, 15, s{sW}"))
        A(I(f"s_lshl_b32 s{sT1}, s{sT1}, 3"))
        A(I(f"s_lshl_b32 s{sT2}, s{sW}, 3"))
        A(I(f"s_sub_u32 s{sT3}, 7, s{sWAVE}"))
        A(I(f"s_add_u32 s{B[0]}, s{sT1}, s{sT3}"))
        A(I(f"s_add_u32 s{B[1]}, s{sT1}, s{sWAVE}"))
        A(I(f"s_add_u32 s{B[2]}, s{sT2}, s{sT3}"))
        A(I(f"s_add_u32 s{B[3]}, s{sT2}, s{sWAVE}"))
        for q in range(4):
            A(I(f"s_lshl_b32 s{sXN[q]}, s{B[q]}, 14"))
            if XN_OFF:
                A(I(f"s_add_u32 s{sXN[q]}, s{sXN[q]}, {XN_OFF}"))
            A(I(f"s_lshr_b32 s{sT1}, s{B[q]}, 2"))
            A(I(f"s_and_b32 s{sT2}, s{B[q]}, 3"))
            A(I(f"s_lshl_b32 s{sT2}, s{sT2}, 10"))
            A(I(f"s_mul_i32 s{sZH[q]}, s{sT1}, {43*4096}"))
            A(I(f"s_add_u32 s{sZH[q]}, s{sZH[q]}, s{sT2}"))
            A(I(f"s_lshl_b32 s{sT3}, s{sH}, 12"))
            A(I(f"s_add_u32 s{sZH[q]}, s{sZH[q]}, s{sT3}"))
            A(I(f"s_add_u32 s{sZH[q]}, s{sZH[q]}, {ZH_OFF}"))
            A(I(f"s_lshl_b32 s{sZC[q]}, s{sT1}, 19"))
            A(I(f"s_add_u32 s{sZC[q]}, s{sZC[q]}, s{sT2}"))
            A(I(f"s_lshl_b32 s{sT3}, s{sH}, 14"))
            A(I(f"s_add_u32 s{sZC[q]}, s{sZC[q]}, s{sT3}"))
            A(I(f"s_add_u32 s{sZC[q]}, s{sZC[q]}, {ZC_OFF}"))
        A(I(f"s_lshr_b32 s{sT1}, s{sH}, 1"))
        A(I(f"s_add_u32 s{sT1}, s{sT1}, 32"))
        A(I(f"s_sub_u32 s{sT1}, s{sT1}, s{sH}"))
        A(I(f"s_lshl_b32 s{sGBD}, s{sT1}, 12"))
        A(Group([I(f"s_cmp_lt_u32 s{sWAVE}, 2"), I(f"s_cselect_b32 s{S_WG}, s{S_WG}, s{S_WU}"),
                 I(f"s_cselect_b32 s{S_WG+1}, s{S_WG+1}, s{S_WU+1}")]))
        A(I(f"v_mov_b32 v{vGK}, {fbits(GK1)}"))
        for i in range(4):
            A(I(f"s_lshl_b32 s{sT1}, s{sK2[i]}, 4"))
            A(I(f"v_add_u32 v{vX16[i]}, s{sT1}, v{vL16[0]}"))
        return c

    def setup4(self):
        c = []
        A = c.append
        L = vLANE
        t = vLN + 24
        A(I(f"v_lshrrev_b32 v{t}, 4, v{L}"))
        A(I(f"v_bfe_u32 v{t+1}, v{L}, 2, 2"))
        A(I(f"v_lshl_add_u32 v{t+1}, v{t}, 3, v{t+1}"))
        A(I(f"s_and_b32 s{sT1}, s{sWAVE}, 1"))
        A(I(f"s_lshl_b32 s{sT2}, s{sT1}, 5"))
        A(I(f"v_add_u32 v{t+1}, s{sT2}, v{t+1}"))
        A(I(f"v_mul_u32_u24 v{t+1}, 2752, v{t+1}"))
        A(I(f"v_and_b32 v{t}, 1, v{t}"))
        A(I(f"v_lshlrev_b32 v{t}, 1, v{t}"))
        A(I(f"v_and_b32 v{t+2}, 3, v{L}"))
        A(I(f"v_xor_b32 v{t}, v{t}, v{t+2}"))
        A(I(f"v_lshl_add_u32 v{t}, v{t}, 4, v{t+1}"))
        A(I(f"s_lshl_b32 s{sT2}, s{sH}, 6"))
        A(I(f"v_add_u32 v{vGA[0]}, s{sT2}, v{t}"))
        A(I(f"v_add_u32 v{vGA[1]}, {4*2752-1024}, v{vGA[0]}"))
        A(I(f"v_bfe_u32 v{t}, v{L}, 3, 2"))
        A(I(f"v_bfe_u32 v{t+1}, v{L}, 1, 2"))
        A(I(f"v_lshl_add_u32 v{t}, v{t}, 3, v{t+1}"))
        A(I(f"v_lshrrev_b32 v{t+1}, 5, v{L}"))
        A(I(f"v_lshl_add_u32 v{t}, v{t+1}, 2, v{t}"))
        A(I(f"s_lshl_b32 s{sT2}, s{sT1}, 6"))
        A(I(f"v_add_u32 v{t}, s{sT2}, v{t}"))
        A(I(f"v_mul_u32_u24 v{t}, 2752, v{t}"))
        A(I(f"v_and_b32 v{t+1}, 1, v{L}"))
        A(I(f"v_lshl_add_u32 v{t}, v{t+1}, 4, v{t}"))
        A(I(f"s_min_u32 s{sT2}, s{sH}, 21"))
        A(I(f"s_lshl_b32 s{sT2}, s{sT2}, 5"))
        A(I(f"s_add_u32 s{sT2}, s{sT2}, 2048"))
        A(Group([I(f"s_cmp_lt_u32 s{sH}, 22"), I(f"s_cselect_b32 s{sT2}, s{sT2}, {OOB}")]))
        A(I(f"v_add_u32 v{vGB[0]}, s{sT2}, v{t}"))
        A(I(f"v_add_u32 v{vGB[1]}, {32*2752-1024}, v{vGB[0]}"))
        A(I(f"s_and_b32 s{sT2}, s{sH}, 1"))
        A(I(f"s_lshl_b32 s{sT2}, s{sT2}, 3"))
        A(Group([I(f"s_cmp_lt_u32 s{sH}, 22"), I(f"s_cselect_b32 s{sT2}, s{sT2}, {OOB}")]))
        A(I(f"v_add_u32 v{vGBS}, s{sT2}, v{vL16[0]}"))
        return c

    def ln_compute(self):
        R = vLN
        X = vLN + 8
        t = vLN + 24
        c = []
        A = c.append
        for i in range(8):
            A(I(f"v_lshlrev_b32 v{X+2*i}, 16, v{R+i}"))
            A(I(f"v_and_b32 v{X+2*i+1}, 0xffff0000, v{R+i}"))

        def reduce32(r):
            for sh in (8, 4, 2, 1):
                A(I(f"v_add_f32_dpp v{r}, v{r}, v{r} row_ror:{sh} row_mask:0xf bank_mask:0xf"))
            A(I(f"v_mov_b32 v{t+7}, v{r}"))
            A(I(f"v_permlane16_swap_b32 v{r}, v{t+7}"))
            A(I(f"v_add_f32 v{r}, v{r}, v{t+7}"))
        A(I(f"v_add_f32 v{t}, v{X}, v{X+1}"))
        A(I(f"v_add_f32 v{t+1}, v{X+2}, v{X+3}"))
        for i in range(4, 16, 2):
            A(I(f"v_add_f32 v{t}, v{t}, v{X+i}"))
            A(I(f"v_add_f32 v{t+1}, v{t+1}, v{X+i+1}"))
        A(I(f"v_add_f32 v{t}, v{t}, v{t+1}"))
        reduce32(t)
        A(I(f"v_mul_f32 v{t}, {fbits(1.0/512)}, v{t}"))
        for i in range(16):
            A(I(f"v_sub_f32 v{X+i}, v{X+i}, v{t}"))
        A(I(f"v_mul_f32 v{t+1}, v{X}, v{X}"))
        A(I(f"v_mul_f32 v{t+2}, v{X+1}, v{X+1}"))
        for i in range(2, 16, 2):
            A(I(f"v_fmac_f32 v{t+1}, v{X+i}, v{X+i}"))
            A(I(f"v_fmac_f32 v{t+2}, v{X+i+1}, v{X+i+1}"))
        A(I(f"v_add_f32 v{t+1}, v{t+1}, v{t+2}"))
        reduce32(t + 1)
        A(I(f"v_mul_f32 v{t+1}, {fbits(1.0/512)}, v{t+1}"))
        A(I(f"v_cvt_pk_bf16_f32 v{t+2}, v{t}, v{t+1}"))
        A(I(f"v_and_b32 v{t+3}, 0xffff0000, v{t+2}"))
        A(I(f"v_lshlrev_b32 v{t+2}, 16, v{t+2}"))
        A(I(f"v_add_f32 v{t+3}, {fbits(1e-5)}, v{t+3}"))
        A(I(f"v_cvt_pk_bf16_f32 v{t+3}, v{t+3}, v{t+3}"))
        A(I(f"v_and_b32 v{t+3}, 0xffff0000, v{t+3}"))
        A(I(f"v_sqrt_f32 v{t+3}, v{t+3}"))
        A(I(f"v_sub_f32 v{t+2}, v{t}, v{t+2}"))
        A(I(f"v_cvt_pk_bf16_f32 v{t+3}, v{t+3}, v{t+3}"))
        A(I(f"v_and_b32 v{t+3}, 0xffff0000, v{t+3}"))
        A(I(f"v_rcp_f32 v{t+3}, v{t+3}"))
        A(I(f"v_and_b32 v{t+4}, 31, v{vLANE}"))
        A(I(f"v_lshrrev_b32 v{t+5}, 5, v{vLANE}"))
        A(I(f"v_mul_f32 v{t+2}, v{t+2}, v{t+3}"))
        A(I(f"v_lshl_add_u32 v{t+4}, v{t+4}, 3, v{t+5}"))
        A(I(f"s_lshl_b32 s{sT1}, s{sWAVE}, 5"))
        A(I(f"s_add_u32 s{sT1}, s{sT1}, {LNBUF}"))
        A(I(f"v_lshl_add_u32 v{t+4}, v{t+4}, 4, s{sT1}"))
        for i in range(16):
            A(I(f"v_fma_f32 v{X+i}, v{X+i}, v{t+3}, v{t+2}"))
        for i in range(8):
            A(I(f"v_cvt_pk_bf16_f32 v{R+i}, v{X+2*i}, v{X+2*i+1}"))
        A(I(f"ds_write_b128 v{t+4}, {vr(R)}"))
        A(I(f"ds_write_b128 v{t+4}, {vr(R+4)} offset:4096"))
        return c

    def ln_store(self):
        R = vLN
        t = vLN + 24
        c = []
        A = c.append
        A(I(f"s_lshl_b32 s{sT1}, s{sWAVE}, 11"))
        A(I(f"s_add_u32 s{sT1}, s{sT1}, {LNBUF}"))
        A(I(f"v_add_u32 v{t}, s{sT1}, v{vL16[0]}"))
        A(I(f"ds_read_b128 {vr(R)}, v{t}"))
        A(I(f"ds_read_b128 {vr(R+4)}, v{t} offset:1024"))
        A(I(f"v_lshrrev_b32 v{t+1}, 3, v{vLANE}"))
        A(I(f"v_and_b32 v{t+2}, 7, v{vLANE}"))
        A(I(f"v_lshlrev_b32 v{t+2}, 4, v{t+2}"))
        A(I(f"v_lshl_add_u32 v{t+1}, v{t+1}, 8, v{t+2}"))
        A(I(f"s_lshr_b32 s{sT1}, s{sB}, 1"))
        A(I(f"s_lshl_b32 s{sT1}, s{sT1}, 14"))
        A(I(f"s_and_b32 s{sT2}, s{sB}, 1"))
        A(I(f"s_lshl_b32 s{sT2}, s{sT2}, 7"))
        A(I(f"s_add_u32 s{sT1}, s{sT1}, s{sT2}"))
        A(I(f"s_lshl_b32 s{sT2}, s{sWAVE}, 12"))
        A(I(f"s_add_u32 s{sT1}, s{sT1}, s{sT2}"))
        if XN_OFF:
            A(I(f"s_add_u32 s{sT1}, s{sT1}, {XN_OFF}"))
        A(I(f"v_add_u32 v{t+1}, s{sT1}, v{t+1}"))
        st = [I(f"buffer_store_dwordx4 {vr(R)}, v{t+1}, {srd(S_WS)}, 0 offen sc1"),
              I(f"buffer_store_dwordx4 {vr(R+4)}, v{t+1}, {srd(S_WS)}, 0 offen offset:2048 sc1")]
        return c + st, st

    def tiles(self):
        T = []
        for c in range(8):
            for half in range(2):
                T.append(dict(typ="R128", srd=S_WUK, kc=c, col=half * 128, vo=vWO, acc=f"K{half}", swap=False,
                              ks0=2 * c, first=(c == 0)))
        for c in range(8):
            for half in range(2):
                T.append(dict(typ="R128", srd=S_WUV, kc=c, col=half * 128, vo=vWO, acc=f"V{half}", swap=True,
                              ks0=2 * c, first=(c == 0)))
        for c in range(4):
            for cc in (2 * c, 2 * c + 1):
                T.append(dict(typ="R64", srd=S_WG, kc=cc, col=0, vo=vGA, acc="GA", swap=False, ks0=2 * cc,
                              first=(cc == 0)))
            T.append(dict(typ="R32", srd=S_WG, kc=2 * c, col=0, vo=vGB, acc="GB", swap=False, ks0=4 * c,
                          first=(c == 0)))
        for half in range(2):
            for c in range(8):
                T.append(dict(typ="R128", srd=S_WQ, kc=c, col=half * 128, vo=vWO, acc=f"Q{half}", swap=False,
                              ks0=2 * c, first=(c == 0)))
        return T

    def tile_dma(self, t):
        fake = self.o.gfake and t["typ"] != "R128" and (self.o.gfake == 1 or t["typ"] == "R32")
        if fake:
            t = t
            vo, sr = vWO, S_WQ
        else:
            vo, sr = t["vo"], t["srd"]
        ops = [I(f"buffer_load_dwordx4 v{vo[p]}, {srd(sr)}, s{sT0} offen offset:{p*1024} {self.o.wflg} lds")
               for p in range(2)]
        t["dma"] = ops
        stride = 8192 if (t["typ"] == "R128" or fake) else 2752
        kc = t["kc"]
        so = [I(f"s_mul_i32 s{sT0}, s{sK2[kc >> 1]}, {stride // 2}")]
        add = (kc & 1) * 64 * stride + t["col"]
        if add:
            so.append(I(f"s_add_u32 s{sT0}, s{sT0}, {add}"))
        return so + [I(f"s_add_u32 m0, s{sW2K}, {t['slot']}"), ops[0], ops[1]]

    def unit_reads(self, t, u, buf):
        base = t["slot"] & 0xffff
        r = []
        for k in range(2):
            for a in range(2):
                d = WFB[buf] + 4 * k + 2 * a
                if t["typ"] == "R128":
                    addr, off = vRD[u], base + k * 4096 + a * 2048
                elif t["typ"] == "R64":
                    addr, off = vRD64[u & 1], base + (u >> 1) * 4096 + k * 2048 + a * 1024
                else:
                    addr, off = vRD32, base + (u & 1) * 4096 + (2 * (u >> 1) + k) * 1024 + a * 512
                r.append(I(f"ds_read_b64_tr_b16 {vr(d,2)}, v{addr} offset:{off}"))
        return batch(r)

    def unit_mfma(self, t, u, buf):
        m = []
        if t["typ"] == "R32":
            wb, ksb, first = u & 1, t["ks0"] + 2 * (u >> 1), t["first"] and u < 2
        else:
            wb, ksb, first = u, t["ks0"], t["first"]
        for tb in range(4):
            d = vr(areg(t["acc"], wb, tb))
            for k in range(2):
                wf, tf = vr(WFB[buf] + 4 * k), ar(TF(tb, ksb + k))
                a, b = (tf, wf) if t["swap"] else (wf, tf)
                m.append(mfma(d, a, b, "0" if (first and k == 0) else d))
        return m

    def tok_dma(self, c):
        ops = [I(f"buffer_load_dwordx4 v{vTO[p]}, {srd(S_CKV)}, s{sT0} offen offset:{(p&3)*1024} {self.o.wflg} lds") for p in range(8)]
        seq = [I(f"s_add_u32 s{sT0}, s{sK2[c >> 1]}, {(c & 1) * 128}")]
        for p in range(8):
            if p & 3 == 0:
                seq.append(I(f"s_add_u32 m0, s{sTOKB}, {(c%3)*8192 + (p>>2)*4096}"))
            seq.append(ops[p])
        return seq, ops

    def tok_reads(self, c):
        return batch([I(f"ds_read_b128 {ar(TF(tb, 2*c+k))}, v{vTRD[k]} offset:{(c%3)*8192 + tb*2048}")
                      for k in range(2) for tb in range(4)])

    def pk_frag(self, d, t0, t1):
        return [I(f"v_cvt_pk_bf16_f32 v{d}, v{t0}, v{t0+1}"), I(f"v_cvt_pk_bf16_f32 v{d+1}, v{t0+2}, v{t0+3}"),
                I(f"v_cvt_pk_bf16_f32 v{d+2}, v{t1}, v{t1+1}"), I(f"v_cvt_pk_bf16_f32 v{d+3}, v{t1+2}, v{t1+3}")]

    def epi_K(self, half):
        c, st = [], []
        ps = f"K{half}"
        for tb in range(4):
            for d2 in range(2):
                p = areg(ps, d2, tb)
                c += self.pk_frag(p, areg(ps, 2 * d2, tb), areg(ps, 2 * d2 + 1, tb))
                st.append(I(f"buffer_store_dwordx4 {vr(p)}, v{vL16[tb]}, {srd(S_WS)}, s{sKFB} offen "
                            f"offset:{(2*half+d2)*1024} {self.o.stflag}"))
        return c, st

    def epi_V(self, half):
        c, st = [], []
        ps = f"V{half}"
        for wb in range(4):
            for sp in range(2):
                p = areg(ps, wb & 1, 2 * sp + (wb >> 1))
                c += self.pk_frag(p, areg(ps, wb, 2 * sp), areg(ps, wb, 2 * sp + 1))
                st.append(I(f"buffer_store_dwordx4 {vr(p)}, v{vL16[2*sp+half]}, {srd(S_WS)}, s{sVFB} offen "
                            f"offset:{wb*1024} {self.o.stflag}"))
        return c, st

    def gelu4(self, g, u):
        c = []
        for i in (0, 2):
            a, b = g + i, g + i + 1
            c += [I(f"v_mul_f32 v{vG0}, v{a}, v{a}"), I(f"v_mul_f32 v{vG1}, v{b}, v{b}"),
                  I(f"v_fmaak_f32 v{vG0}, v{vG0}, v{vGK}, {fbits(GK0)}"),
                  I(f"v_fmaak_f32 v{vG1}, v{vG1}, v{vGK}, {fbits(GK0)}"),
                  I(f"v_mul_f32 v{vG0}, v{vG0}, v{a}"), I(f"v_mul_f32 v{vG1}, v{vG1}, v{b}"),
                  I(f"v_exp_f32 v{vG0}, v{vG0}"), I(f"v_exp_f32 v{vG1}, v{vG1}"),
                  I(f"v_mul_f32 v{a}, v{a}, v{u+i}"), I(f"v_mul_f32 v{b}, v{b}, v{u+i+1}"),
                  I(f"v_add_f32 v{vG0}, 1.0, v{vG0}"), I(f"v_add_f32 v{vG1}, 1.0, v{vG1}"),
                  I(f"v_rcp_f32 v{vG0}, v{vG0}"), I(f"v_rcp_f32 v{vG1}, v{vG1}"),
                  I(f"v_mul_f32 v{a}, v{a}, v{vG0}"), I(f"v_mul_f32 v{b}, v{b}, v{vG1}")]
        return c

    def epi_GA(self):
        c, st = [], []
        for tb in range(4):
            T = lambda wb: areg("GA", wb, tb)
            c += self.gelu4(T(0), T(2)) + self.gelu4(T(1), T(3))
            p = T(0)
            c += self.pk_frag(p, T(0), T(1))
            s = I(f"buffer_store_dwordx4 {vr(p)}, v{vL16[0]}, {srd(S_WS)}, s{sZH[tb]} offen {self.o.stflag}")
            c.append(s)
            st.append(s)
        return c, st

    def epi_GB(self):
        c, st = [], []
        for tb in range(4):
            g, u = areg("GB", 0, tb), areg("GB", 1, tb)
            c += self.gelu4(g, u)
            p = g
            c += [I(f"v_cvt_pk_bf16_f32 v{p}, v{g}, v{g+1}"), I(f"v_cvt_pk_bf16_f32 v{p+1}, v{g+2}, v{g+3}")]
            s = I(f"buffer_store_dwordx2 {vr(p,2)}, v{vGBS}, {srd(S_WS)}, s{sT3} offen {self.o.stflag}")
            c.append(Group([I(f"s_add_u32 s{sT3}, s{sZH[tb]}, s{sGBD}"), s]))
            st.append(s)
        return c, st

    def epi_Q(self, half, q):
        c = []
        for d2 in range(2):
            t0, t1 = areg(f"Q{half}", 2 * d2, q), areg(f"Q{half}", 2 * d2 + 1, q)
            for r in list(range(t0, t0 + 4)) + list(range(t1, t1 + 4)):
                c.append(I(f"v_mul_f32 v{r}, s{sQS}, v{r}"))
            p = t0
            c += self.pk_frag(p, t0, t1)
            for r in range(4):
                c.append(I(f"v_accvgpr_write_b32 a{gQ(q, 2*half+d2)+r}, v{p+r}"))
        return c

    def flag_store(self, s):
        return I(f"buffer_store_dword v{vC1}, v{vONE}, {srd(S_WS)}, s{s} offen sc1")

    def att_setup(self):
        c = []
        A = c.append
        A(I(f"s_lshl_b32 s{sT1}, s{sH}, 19"))
        A(I(f"s_and_b32 s{sT2}, s{sWAVE}, 1"))
        A(I(f"s_lshl_b32 s{sT2}, s{sT2}, 12"))
        A(I(f"s_add_u32 s{sT1}, s{sT1}, s{sT2}"))
        A(I(f"s_lshl_b32 s{sT3}, s{sW}, 2"))
        A(I(f"s_sub_u32 s{sT3}, 64, s{sT3}"))
        A(I(f"s_lshl_b32 s{sT3}, s{sT3}, 13"))
        A(I(f"s_sub_u32 s{sT3}, s{sT3}, s{sT2}"))
        A(Group([I(f"s_cmp_lt_u32 s{sWAVE}, 2"), I(f"s_cselect_b32 s{sT2}, {VF_OFF - KF_OFF - 16384}, 0")]))
        A(I(f"s_add_u32 s{sT1}, s{sT1}, s{sT2}"))
        A(I(f"s_add_u32 s{sT1}, s{sT1}, {KF_OFF + 16384}"))
        A(Group([I(f"s_cmp_lt_u32 s{sWAVE}, 2"), I(f"s_cselect_b32 s{sT2}, 0, 16384")]))
        A(I(f"s_sub_u32 s{S_KV+2}, s{sT3}, s{sT2}"))
        A(Group([I(f"s_add_u32 s{S_KV}, s{S_WS}, s{sT1}"), I(f"s_addc_u32 s{S_KV+1}, s{S_WS+1}, 0")]))
        A(I(f"s_lshr_b32 s{sT1}, s{sWAVE}, 1"))
        A(I(f"s_sub_u32 s{sT2}, 3, s{sT1}"))
        A(I(f"s_lshl_b32 s{sT3}, s{sW}, 2"))
        A(I(f"s_add_u32 s{sNM1[3]}, s{sT3}, s{sT1}"))
        A(I(f"s_add_u32 s{sNM1[2]}, s{sT3}, s{sT2}"))
        A(I(f"s_sub_u32 s{sT3}, 60, s{sT3}"))
        A(I(f"s_add_u32 s{sNM1[1]}, s{sT3}, s{sT1}"))
        A(I(f"s_add_u32 s{sNM1[0]}, s{sT3}, s{sT2}"))
        for q in range(4):
            A(I(f"s_sub_u32 s{sNM2[q]}, s{sNM1[q]}, 1"))
        return c

    def att_events(self):
        c = []
        A = c.append
        m = sum(1 << j for j in range(0, 64, self.o.G))
        A(I(f"s_mov_b32 s{sEV}, {m & 0xffffffff:#x}"))
        A(I(f"s_mov_b32 s{sEV+1}, {m >> 32:#x}"))
        m = (1 << (2 * self.o.G)) | (1 << (3 * self.o.G))
        A(I(f"s_lshl_b32 s{sJL}, s{sW}, 2"))
        A(I(f"s_sub_u32 s{sJL}, 60, s{sJL}"))
        A(I(f"s_mov_b32 s{sSP}, {m:#x}"))
        A(I(f"s_mov_b32 s{sSP+1}, 0"))
        A(I(f"s_mov_b32 s{sMASK}, 0x40004000"))
        for q in range(4):
            A(I(f"s_bitset1_b64 s[{sSP}:{sSP+1}], s{sNM1[q]}"))
            A(I(f"s_bitset1_b64 s[{sSP}:{sSP+1}], s{sNM2[q]}"))
        A(I(f"s_bitset1_b64 s[{sSP}:{sSP+1}], s{sJL}"))
        A(I(f"s_or_b64 s[{sEV}:{sEV+1}], s[{sEV}:{sEV+1}], s[{sSP}:{sSP+1}]"))
        return c

    def att_dma(self, tile=None):
        return [I(f"buffer_load_dwordx4 v{vL16[0]}, {srd(S_KV)}, s{sSOFF} offen offset:{p*1024} {self.o.ldflag} lds")
                for p in range(4)]

    def pf_load(self, voff, sr, soff="0", dst=None):
        x = I(f"buffer_load_dword {dst or 'v%d' % vG0}, v{voff}, {srd(sr)}, {soff} offen")
        x.defs = []
        return x

    def prefetch0(self):
        L = vLANE
        t = 16
        c = [I(f"v_lshrrev_b32 v{t}, 1, v{L}"), I(f"v_and_b32 v{t+1}, 1, v{L}"),
             I(f"s_lshl_b32 s{sT1}, s{sW}, 2"), I(f"s_add_u32 s{sT1}, s{sT1}, s{sWAVE}"),
             I(f"s_lshl_b32 s{sT2}, s{sT1}, 17"), I(f"s_lshl_b32 s{sT3}, s{sH}, 8"),
             I(f"s_add_u32 s{sT2}, s{sT2}, s{sT3}"),
             I(f"v_lshlrev_b32 v{t}, 13, v{t}"), I(f"v_lshl_add_u32 v{t}, v{t+1}, 7, v{t}"),
             I(f"v_add_u32 v{t}, s{sT2}, v{t}"),
             I(f"v_mov_b32 v{t+2}, {OOB}"), I(f"v_cmp_gt_u32 vcc, 32, v{L}"),
             I(f"s_lshl_b32 s{sT1}, s{sT1}, 16"), I(f"s_and_b32 s{sT3}, s{sH}, 3"),
             I(f"v_cndmask_b32 v{vPFW}, v{t+2}, v{t}, vcc"),
             I(f"s_lshl_b32 s{sT3}, s{sT3}, 14"), I(f"s_add_u32 s{sT1}, s{sT1}, s{sT3}"),
             I(f"s_add_u32 s{sT1}, s{sT1}, {3*128}"),
             I(f"v_and_b32 v{t}, 15, v{L}"), I(f"v_lshrrev_b32 v{t+1}, 4, v{L}"),
             I(f"v_lshlrev_b32 v{t}, 10, v{t}"), I(f"v_lshl_add_u32 v{t}, v{t+1}, 7, v{t}"),
             I(f"v_add_u32 v{vPFW+1}, s{sT1}, v{t}")]
        return c, self.pf_load(vPFW + 1, S_CKV), self.pf_load(vPFW, S_WUK)

    def prefetch_code(self, lo=None, hi="L_exit", dst=None, vl=None, st=sT1):
        pc = self.lab("pc")
        c = [Group([I(f"s_getpc_b64 s[{sM0}:{sM0+1}]"), I(f"{pc}:"),
                    I(f"s_sub_u32 s{sM0}, s{sM0}, {pc}-{KNAME}"), I(f"s_subb_u32 s{sM0+1}, s{sM0+1}, 0")]),
             I(f"s_mov_b32 s{sM0+2}, {hi}-{KNAME}"), I(f"s_mov_b32 s{sM0+3}, 0x20000"),
             I(f"s_lshr_b32 s{st}, s{sB}, 3"), I(f"s_lshl_b32 s{st}, s{st}, 2"),
             I(f"s_add_u32 s{st}, s{st}, s{sWAVE}"), I(f"s_lshl_b32 s{st}, s{st}, 10")]
        if lo:
            c.append(I(f"s_add_u32 s{st}, s{st}, {lo}-{KNAME}"))
        if vl is None:
            c.append(I(f"v_lshlrev_b32 v21, 4, v{vLANE}"))
            vl = 21
        x = I(f"buffer_load_dwordx4 {dst or vr(172)}, v{vl}, {srd(sM0)}, s{st} offen")
        if dst and dst.startswith("a"):
            x.defs = []
        return c + [x]

    def ex_prefill(self):
        D = WFB[3]
        c = [I(f"v_mov_b32 v{D+r}, -1") for r in range(4)]
        c += [I(f"s_bfe_u32 s{sT1}, s{sB}, 0x10002"), I(f"s_lshl_b32 s{sT1}, s{sT1}, 5"),
              I(f"s_lshr_b32 s{sT2}, s{sB}, 3"), I(f"s_add_u32 s{sT1}, s{sT1}, s{sT2}"),
              I(f"s_mul_i32 s{sT1}, s{sT1}, {4*3*8192}"), I(f"s_lshl_b32 s{sT2}, s{sWAVE}, 11"),
              I(f"s_add_u32 s{sT1}, s{sT1}, s{sT2}"), I(f"s_add_u32 s{sT1}, s{sT1}, {EX_OFF}")]
        st = []
        for p in range(1, 4):
            c += [I(f"s_add_u32 s{sT2}, s{sB}, {p}"), I(f"s_and_b32 s{sT2}, s{sT2}, 3"),
                  I(f"s_mul_i32 s{sT2}, s{sT2}, {3*8192}"), I(f"s_add_u32 s{sT2}, s{sT2}, s{sT1}"),
                  I(f"s_add_u32 s{sT3}, s{sT2}, {(p-1)*8192}")]
            x = [I(f"buffer_store_dwordx4 {vr(D)}, v{vL16[0]}, {srd(S_WS)}, s{sT3} offen offset:{tb*1024} sc1")
                 for tb in range(2)]
            c += x
            st += x
        return c, st

    def prefetch_xn(self):
        L = vLANE
        t = WFB[3]
        c = [I(f"s_and_b32 s{sT1}, s{sH}, 3"), I(f"s_lshl_b32 s{sT1}, s{sT1}, 12"),
             I(f"v_and_b32 v{t}, 31, v{L}"), I(f"v_lshlrev_b32 v{t}, 7, v{t}"), I(f"v_add_u32 v{t}, s{sT1}, v{t}"),
             I(f"v_cmp_gt_u32 vcc, 32, v{L}")]
        for k in range(2):
            c += [I(f"v_mov_b32 v{t+1}, s{sXN[2*k]}"), I(f"v_mov_b32 v{t+2}, s{sXN[2*k+1]}"),
                  I(f"v_cndmask_b32 v{t+1}, v{t+2}, v{t+1}, vcc"), I(f"v_add_u32 v{t+4+k}, v{t}, v{t+1}"),
                  self.pf_load(t + 4 + k, S_WS)]
        return c

    def prefetch1(self):
        L = vLANE
        t = vLN + 34
        a = [self.pf_load(vPFW, S_WUV)]
        b = [self.pf_load(vPFW, S_WQ)]
        t = WFB[3]
        c = [I(f"s_lshr_b32 s{sT1}, s{sB}, 3"), I(f"s_lshl_b32 s{sT1}, s{sT1}, 2"),
             I(f"s_add_u32 s{sT1}, s{sT1}, s{sWAVE}"), I(f"s_lshl_b32 s{sT1}, s{sT1}, 2"),
             I(f"v_lshrrev_b32 v{t}, 3, v{L}"), I(f"v_add_u32 v{t}, s{sT1}, v{t}"),
             I(f"v_mul_u32_u24 v{t}, 2752, v{t}"),
             I(f"s_and_b32 s{sT2}, s{sB}, 7"), I(f"s_lshl_b32 s{sT3}, s{sT2}, 8"),
             I(f"s_lshl_b32 s{sT2}, s{sT2}, 7"), I(f"s_add_u32 s{sT2}, s{sT2}, {2048 - 3*124}"),
             I(f"v_and_b32 v{t+1}, 7, v{L}"), I(f"v_mul_u32_u24 v{t+2}, 124, v{t+1}"),
             I(f"v_mov_b32 v{t+3}, s{sT3}"), I(f"v_mov_b32 v{t+4}, s{sT2}"),
             I(f"v_cmp_gt_u32 vcc, 3, v{t+1}"),
             I(f"v_cndmask_b32 v{t+3}, v{t+4}, v{t+3}, vcc"),
             I(f"v_add3_u32 v{t}, v{t}, v{t+2}, v{t+3}"),
             I(f"v_lshrrev_b32 v{t+2}, 5, v{L}"), I(f"v_lshlrev_b32 v{t+2}, 3, v{t+2}"),
             I(f"v_add_u32 v{t+1}, v{t+1}, v{t+2}"), I(f"v_mov_b32 v{t+2}, {OOB}"),
             I(f"v_cmp_gt_u32 vcc, 5, v{t+1}"),
             I(f"v_cndmask_b32 v{t}, v{t+2}, v{t}, vcc")]
        c += [self.pf_load(t, S_WG), self.pf_load(t, S_WU)]
        return a, b, c

    def prefetch2(self, early=False):
        L = vLANE
        t = WFB[3] + 4 if early else vT[0]
        dst = f"v{vG0+3}" if early else "a200"
        c = [I(f"s_lshl_b32 s{sT1}, s{sB}, 2") if early else I(f"s_and_b32 s{sT1}, s{sB}, 0xfc"),
             I(f"s_add_u32 s{sT1}, s{sT1}, s{sWAVE}"),
             I(f"s_lshl_b32 s{sT2}, s{sT1}, 12"),
             I(f"s_lshl_b32 s{sT1}, s{sB}, 2"), I(f"s_add_u32 s{sT1}, s{sT1}, s{sWAVE}"),
             I(f"v_and_b32 v{t}, 31, v{L}"),
             I(f"v_lshlrev_b32 v{t}, 7, v{t}"), I(f"v_add_u32 v{t}, s{sT2}, v{t}"),
             I(f"s_mul_i32 s{sT2}, s{sT1}, {11*128}"), I(f"v_min_u32 v{t+1}, 10, v{L}"),
             I(f"v_lshlrev_b32 v{t+1}, 7, v{t+1}"), I(f"v_add_u32 v{t+1}, s{sT2}, v{t+1}"),
             self.pf_load(t, S_WO, dst=dst), self.pf_load(t + 1, S_WD, dst=dst)]
        return c

    def phase12(self):
        o = self.o
        T = self.tiles()
        NT = len(T)
        pre = self.setup()
        later = pre[self.n_first:]
        pre = pre[:self.n_first]
        A = pre.append
        A(I("s_waitcnt lgkmcnt(0)"))
        pre += self.stamp()
        zpre = [I(f"s_mul_i32 s{sT1}, s{sWAVE}, 3072"), I(f"s_add_u32 s{sT1}, s{sT1}, {FL_OFF}"),
                I(f"s_cmp_eq_u32 s{sB}, 0"), I(f"s_cselect_b32 s{sT1}, s{sT1}, {OOB}"),
                I(f"v_lshlrev_b32 v20, 4, v{vLANE}")] + [I(f"v_mov_b32 v{r}, 0") for r in range(24, 28)]
        zero = [I(f"buffer_store_dwordx4 v[24:27], v20, {srd(S_WS)}, s{sT1} offen offset:{k*1024} sc1") for k in range(3)]
        s0, tok0 = self.tok_dma(0)
        pre += s0
        for n in range(4):
            T[n]["slot"] = n * 8192
        pre += self.tile_dma(T[0]) + self.tile_dma(T[1])
        pre += later
        c, pfa, pfb = self.prefetch0()
        if o.prefetch & (1 | 4 | 16 | 32):
            pre += c
        if o.prefetch & 16:
            pre += [pfa, pfb]
        if o.pfcode & 1:
            pre += self.prefetch_code()
        pre += zpre + zero
        lnl = [I(f"buffer_load_dwordx4 {vr(vLN)}, v{vLN+32}, {srd(S_X)}, 0 offen"),
               I(f"buffer_load_dwordx4 {vr(vLN+4)}, v{vLN+32}, {srd(S_X)}, 0 offen offset:512")]
        pre += self.setup2()
        s1, tok1 = self.tok_dma(1)
        pre += s1
        pre += self.tile_dma(T[2]) + self.tile_dma(T[3])
        if not o.lnlate:
            pre += lnl
        tokd = {0: tok0, 1: tok1}
        pre.append(Need(tok0))
        rd0 = self.tok_reads(0)
        pre += rd0
        pre.append(Need([T[n]["dma"] for n in range(2)] + zero, lg0=True))
        pre.append(I("s_barrier"))
        pre += [I(f"s_cmp_eq_u32 s{sB}, 0"), I(f"s_cselect_b32 s{sT1}, 0, {OOB}"),
                I(f"buffer_store_dword v{vC1}, v{vONE}, {srd(S_DBG)}, s{sT1} offen sc1")]
        pre += self.stamp() + self.holdmark("bar0")
        NB = o.wdist + 1
        for U in range(o.wdist):
            pre += self.unit_reads(T[0], U, U)

        mf = []
        for n, t in enumerate(T):
            for u in range(4):
                mf += self.unit_mfma(t, u, (4 * n + u) % NB)
        tasks = []
        bstart = list(range(2, 16, 2)) + list(range(16, NT, o.G12))
        bg = lambda n0: 32 * n0 - 8 * o.wdist + 3
        extra_need = {n0: [] for n0 in bstart}
        release = lambda n: bg(min([b for b in bstart if b > n] + [NT + 1]))
        own_bar = lambda n: bg(max(b for b in bstart if b <= n))
        KVF = 1712
        free_at = {sl: -1 for sl in range(7)}
        free_at.update({sl: bg(14) + 1 for sl in range(7, 20)})
        for n in range(4):
            free_at[n] = release(n)
        want = {4: 0, 5: 50, 6: 84, 7: 120, 8: 130, 9: 180, 10: 200, 11: 236, 12: 260, 13: 300, 14: 320, 15: 340}
        for n in range(16, NT):
            want[n] = max(360 + 14 * (n - 16), 32 * (n - o.lead12))
        if o.gearly:
            early = [34, 32, 37, 33, 40, 35, 43, 36][:o.gearly]
            for n in range(16, 32):
                want[n] = max(360 + 14 * (n - 16), 32 * (n - 7))
            for i, n in enumerate(early):
                want[n] = o.ge0 + o.gestep * i
            for n in range(32, NT):
                if n not in early:
                    want[n] = 32 * (n - (7 if n < 44 else o.lead12))
        events = [(want[n], "W", n) for n in range(4, NT)]
        tokwant = {(2, 0): 8, (2, 1): 24, (3, 0): 40, (3, 1): 64, (4, 0): 92, (4, 1): 106, (5, 0): 154, (5, 1): 168,
                   (6, 0): 218, (6, 1): 242, (7, 0): 282, (7, 1): 308}
        if o.tokmode == 1:
            tokwant = {}
            for c in range(2, 8):
                tokwant[(c, 0)] = 64 * (c - 2) + 10
                tokwant[(c, 1)] = 64 * (c - 2) + 27
            for n in range(4, 16):
                want[n] = 64 * ((n - 4) // 2) + (0 if n % 2 == 0 else 46)
            events = [(want[n], "W", n) for n in range(4, NT)]
        events += [(v, "T", k) for k, v in tokwant.items()]
        events.append((KVF, "KV", None))
        events.sort(key=lambda e: e[0])
        tokrd = {c: self.tok_reads(c) for c in range(1, 8)}
        tokrd[0] = rd0
        tokw = {1: (18, 36) if o.tokmode == 0 else (30, 50)}
        for c in range(2, 8):
            tokw[c] = (64 * (c - 1) + 2, 64 * (c - 1) + 22) if o.tokmode == 0 else (64 * (c - 1) + 30, 64 * (c - 1) + 50)
            tasks.append(Task(f"tokrd{c}", [Need([lambda c=c: tokd[c]])] + tokrd[c], *tokw[c], prio=1))
        tasks.append(Task("tokrd1", [Need(tok1)] + tokrd[1], *tokw[1], prio=1))
        tseq = {}
        for c in range(2, 8):
            seq, ops = self.tok_dma(c)
            tokd[c] = ops
            tseq[(c, 0)] = ([Need(tokrd[c - 3])] if c >= 4 else []) + seq[:6]
            tseq[(c, 1)] = [I(seq[0].text)] + seq[6:]
        k01 = [I(f"buffer_load_dwordx4 v{vL16[0]}, {srd(S_WS)}, s{sT0} offen offset:{p*1024} {self.o.ldflag} lds")
               for p in range(4)]
        kvseq = [I(f"s_lshl_b32 s{sT0}, s{sH}, 19"), I(f"s_lshl_b32 s{sWR}, s{sWAVE}, 12"),
                 I(f"s_add_u32 s{sT0}, s{sT0}, s{sWR}"), I(f"s_add_u32 s{sT0}, s{sT0}, {KF_OFF}"),
                 I(f"s_add_u32 m0, s{sWR}, {6*16384}")] + k01
        self.att_first = list(k01)
        for j in range(3):
            d = self.att_dma()
            kvseq += [I(f"s_add_u32 m0, s{sWR}, {(7+j)*16384}"), I(f"s_mov_b32 s{sSOFF}, {j*8192}")] + d
            self.att_first += d
        m0ent = []
        cur = 0
        for w, kind, k in events:
            lo = max(w, cur)
            if kind == "W":
                ok = [sl for sl in free_at if sl < 12 or release(k) <= KVF]
                sl = min(ok, key=lambda x: (max(free_at[x], lo), x))
                lo = max(lo, free_at[sl] + 1)
                free_at[sl] = release(k)
                T[k]["slot"] = sl * 8192
                seq = self.tile_dma(T[k])
                ln = 10 if lo < 512 else (14 if o.gearly and lo < 760 else 24)
                assert lo + ln < own_bar(k) - 24, (k, lo, own_bar(k))
                T[k]["issue"] = lo
            elif kind == "T":
                seq = tseq[k]
                if k[0] >= 4:
                    lo = max(lo, tokw[k[0] - 3][1] + 1)
                ln = 15
                assert lo + ln < tokw[k[0]][0] - 24, (k, lo)
            else:
                seq = kvseq
                ln = 110
            prev_scalar = False
            for x in seq:
                mind = 1 if (x.kind == "dma" and prev_scalar) else 0
                prev_scalar = x.kind == "salu"
                m0ent.append((x, lo, lo + ln, mind))
            cur = lo + (ln if ln < 100 else 0) - 2
        tasks.append(Task("m0", m0ent, prio=1))
        print("W issue gap / slot:", [(T[n]["issue"], T[n]["slot"] >> 13) for n in range(4, NT)], file=sys.stderr)
        win = {"R128": 0, "R64": 0, "R32": 0}
        aregs = {"R128": vRD, "R64": vRD64, "R32": [vRD32]}
        for U in range(o.wdist, 4 * NT):
            n, u = divmod(U, 4)
            lo = 8 * (U - o.wdist)
            rd = self.unit_reads(T[n], u, U % NB)
            ty, wn = T[n]["typ"], T[n]["slot"] >> 16
            if wn != win[ty]:
                sw = "v_add_u32" if wn > win[ty] else "v_subrev_u32"
                fix = [I(f"{sw} v{r}, {abs(wn - win[ty]) << 16:#x}, v{r}") for r in aregs[ty]]
                win[ty] = wn
                if T[n - 1]["typ"] == ty:
                    rd = [Group(fix + [rd[0]])] + rd[1:]
                else:
                    tasks.append(Task(f"rdfix{U}", fix, lo - 24, lo - 1, prio=1))
            if u == 0 and n in bstart:
                tasks.append(Task(f"rd{U}", rd, lo + 4, lo + 7, prio=0, tight=True))
            elif u == 3 and n + 1 in bstart:
                tasks.append(Task(f"rd{U}", rd, lo, lo + 3, prio=0, tight=True))
            else:
                tasks.append(Task(f"rd{U}", rd, lo, lo + o.wwin, prio=0))
        k = 2 * o.lnlate
        if o.lnlate:
            tasks.append(Task("lnld", lnl, 2, 12, prio=2))
        tasks.append(Task("ln", self.ln_compute(), 2 + 32 * k, bg(4 + k) - 2, prio=3))
        c, lnst = self.ln_store()
        tasks.append(Task("lnst", c, bg(4 + k) + 2, 145 + 32 * k, prio=3))
        extra_need[8 + k] += lnst
        tasks.append(Task("flagxn", [self.flag_store(sFXN)], bg(8 + k) + 4, bg(8 + k) + 10, prio=3))
        if o.prefetch & 1:
            tasks.append(Task("pf0a", [pfa], 1, 4, prio=0))
        if o.prefetch & 4:
            tasks.append(Task("pf0b", [pfb], 30, 36, prio=0))
        if o.prefetch & 8:
            tasks.append(Task("pfxn", self.prefetch_xn(), o.xnchk + 14, o.xnchk + 14 + o.pfxw, prio=3))
        if o.prefetch & 2:
            a, b, c = self.prefetch1()
            if o.prefetch & 32:
                if o.pa:
                    tasks.append(Task("pf1a", a, o.pa, o.pa + 8, prio=3))
                if o.pb:
                    tasks.append(Task("pf1b", b, o.pb, o.pb + 8, prio=3))
                if o.pc:
                    tasks.append(Task("pf1c", c, o.pc, o.pc + 30, prio=3))
        tasks.append(Task("setup3", self.setup3(), 153, 218, prio=4))
        tasks.append(Task("setup4", self.setup4(), 472, 510, prio=4))
        tasks.append(Task("gate", [self.poll_load(vPOLL, S_DBG, vC0, "0")], 146 + 32 * k, 152 + 32 * k, prio=3))
        tasks.append(Task("gatechk", self.poll_check(vPOLL, S_DBG, vC0, "0", "1", split=True), 220 + 32 * k, 232 + 32 * k, prio=3))
        tasks.append(Task("xnpoll", [I(f"s_lshl_b32 s{sPOLL}, s{sW}, 7"), I(f"s_add_u32 s{sPOLL}, s{sPOLL}, {FL_XN}"),
                                     self.poll_load(vPOLL, S_WS, vPO32, f"s{sPOLL}")], o.xnchk - 90, o.xnchk - 80, prio=3))
        tasks.append(Task("xnchk", self.poll_check(vPOLL, S_WS, vPO32, f"s{sPOLL}", "1", split=True), o.xnchk, o.xnchk + 12, prio=3))
        pk, sts = zip(self.epi_K(0), self.epi_K(1), self.epi_V(0), self.epi_V(1))
        tasks.append(Task("epiK0", pk[0], 490, 540, prio=5))
        tasks.append(Task("epiK1", pk[1], 521, 558, prio=4))
        tasks.append(Task("epiV0", pk[2], 1001, 1038, prio=4))
        tasks.append(Task("epiV1", pk[3], 1039, 1086, prio=5))
        allst = [x for l in sts for x in l]
        ent = []
        for k, x in enumerate(allst):
            if k < 16:
                lo = int(545 + k * (1020 - 545) / 16)
            else:
                lo = max(int(1045 + (k - 16) * (o.st_hi - 1045) / 16), 1088 if k >= 24 else 0)
            ent.append((x, lo, lo + 12))
        tasks.append(Task("epistores", ent, prio=2))
        extra_need[48] += allst
        tasks.append(Task("flagkv", [self.flag_store(sFKV)], bg(48) + 4, bg(48) + 10, prio=3))
        for c in range(8):
            ld = [I(f"buffer_load_dwordx4 {ar(TF(tb, 2*c+k))}, v{vX16[(2*c+k)>>2]}, {srd(S_CKV if o.xnsrc else S_WS)}, s{sXN[tb]} offen "
                    f"offset:{((2*c+k)&3)*1024} {self.o.ldflag}") for k in range(2) for tb in range(4)]
            lo = max(580 + 64 * c, o.xn0 + o.xnslope * c)
            tasks.append(Task(f"xn{c}", batch(ld), lo, lo + o.xnslope - 2, prio=2))
        c, stA = self.epi_GA()
        tasks.append(Task("epiGA", c, 1416, 1660, prio=5))
        c, stB = self.epi_GB()
        tasks.append(Task("epiGB", c, 1661, 1790, prio=5))
        self.h_stores = stA + stB
        if o.sentinel:
            c, stP = self.ex_prefill()
            if o.p2early and o.prefetch & 2:
                c = self.prefetch2(True) + c
            tasks.append(Task("exfill", c, 1425, 1565, prio=3))
            self.h_stores += stP
        c = [I(f"s_mov_b32 s{sQS}, {fbits(QSCALE)}")]
        for q in range(4):
            c += self.epi_Q(0, q)
        tasks.append(Task("epiQ0", c, 1700, 1830, prio=5))
        tasks.append(Task("attsetup", self.att_setup(), 1570, 1655, prio=4))
        tasks.append(Task("attev", self.att_events(), 1840, 1900, prio=4))
        if o.pfcode & 2:
            tasks.append(Task("pfcode2", self.prefetch_code("L_att", "L_p4", vr(WFB[3] + 4), vL16[0], sJL + 1),
                              1800, 1830, prio=3))
        tasks.append(Task("p4setup", self.p4_setup() + self.p4_setup_vec(), 1795, 1915, prio=4))
        kvp = [I(f"s_lshl_b32 s{sPOLL}, s{sH}, 7"), I(f"s_add_u32 s{sPOLL}, s{sPOLL}, {FL_KV}"),
               self.poll_load(vPOLL, S_WS, vPO8, f"s{sPOLL}")]
        tasks.append(Task("kvpoll", kvp, 1620, 1630, prio=3))
        tasks.append(Task("kvchk", self.poll_check(vPOLL, S_WS, vPO8, f"s{sPOLL}", "1", split=True), 1700, 1710, prio=3))
        zr = lambda a, b: [I(f"v_mov_b32 v{r}, 0") for r in range(a, b)]
        tasks.append(Task("zeroO5", zr(160, 192), 1662, 1760, prio=6))
        tasks.append(Task("zeroO3", zr(96, 128), 1792, 1870, prio=6))
        tasks.append(Task("zeroO24", zr(64, 96) + zr(128, 160), 1832, 1920, prio=6))
        g = [I(f"v_lshrrev_b32 v{vT[0]}, 4, v{vLANE}"), I(f"v_and_b32 v{vT[1]}, 15, v{vLANE}"),
             I(f"v_lshlrev_b32 v{vT[0]}, 2, v{vT[0]}"), I(f"v_sub_u32 v{vT[1]}, v{vT[1]}, v{vT[0]}"),
             I(f"v_and_b32 v{vT[0]}, 64, v0") if False else I(f"v_mov_b32 v{vT[0]}, s{sWAVE}"),
             I(f"v_and_b32 v{vT[0]}, 1, v{vT[0]}"), I(f"v_lshlrev_b32 v{vT[0]}, 4, v{vT[0]}"),
             I(f"v_add_u32 v{vDM[1]}, v{vT[0]}, v{vT[1]}"), I(f"v_sub_u32 v{vT[0]}, 16, v{vT[0]}"),
             I(f"v_add_u32 v{vDM[0]}, v{vT[0]}, v{vT[1]}"), I(f"v_mov_b32 v{vT[2]}, 0x3f803f80")]
        tasks.append(Task("attvec", g, 1610, 1655, prio=6))
        g = [I(f"v_accvgpr_write_b32 a{gONE+r}, v{vT[2]}") for r in range(4)]
        g += [I(f"v_accvgpr_write_b32 a{r}, 0") for r in range(gL(0), gL(0) + 16)]
        tasks.append(Task("attacc", g, 1828, 1900, prio=6))
        for k, n0 in enumerate(bstart):
            n1 = bstart[k + 1] if k + 1 < len(bstart) else NT
            ops = [T[n]["dma"] for n in range(n0, n1)] + extra_need[n0]
            bar = [Need(ops, lg0=True), I("s_barrier")]
            tasks.append(Task(f"bar{n0}", [Group(bar if o.timeit else self.timed(bar))], bg(n0), bg(n0),
                              prio=-1))
        for nm, gp in (("K", 514), ("V", 1026), ("Q", 1916)):
            if self.holdmark(nm):
                tasks.append(Task("holdmark", self.holdmark(nm), gp, gp, prio=7))
        if o.stamps:
            for gp in [int(x) for x in o.stampat.split(",")]:
                tasks.append(Task("stamp", self.stamp(), gp + 2, gp + 2, prio=7))
        if o.drop:
            dr = o.drop.split(",")
            if "stores" in dr:
                dr = [d for d in dr if d != "stores"] + ["epistores"]
            for t in tasks:
                if "epistores" in dr and t.name.startswith("epiG"):
                    t.instrs = [x for x in t.instrs if not any(y.kind == "vstore" for y in flatten([x]))]
            tasks = [t for t in tasks if not any(t.name.startswith(d) for d in dr)]
        body = schedule(mf, tasks, o.budget, self.reports, reserve=range(0, len(mf), 8), seed=o.seed, vmw=o.vmw, ldw=o.ldw12)
        if o.timeit:
            nb = []
            for x in flatten(body):
                hit = {"st": x.kind == "vstore", "ld": x.kind == "vload", "dma": x.kind == "dma",
                       "need": x.kind == "need"}.get(o.timeit, False)
                nb += self.timed([x]) if hit else [x]
            body = nb
        return pre + body

    def mask(self, q, scores=False):
        c = []
        D = vDM[q & 1]
        if scores:
            c.append(I(f"v_mov_b32 v{vT[2]}, 0xff800000"))
            for i in range(0, 8, 2):
                c.append(I(f"v_cmp_gt_i32 s[{sM0}:{sM0+1}], {16*(i>>2)+(i&3)}, v{D}"))
                c.append(I(f"v_cmp_gt_i32 s[{sM1}:{sM1+1}], {16*(i>>2)+(i&3)+1}, v{D}"))
                c.append(I(f"v_cndmask_b32 v{aS(q,0)+i}, v{aS(q,0)+i}, v{vT[2]}, s[{sM0}:{sM0+1}]"))
                c.append(I(f"v_cndmask_b32 v{aS(q,0)+i+1}, v{aS(q,0)+i+1}, v{vT[2]}, s[{sM1}:{sM1+1}]"))
            return c
        src = aC(q, 0)
        c.append(I(f"v_mov_b32 v{vT[0]}, 0xff800000"))
        order = [(1, r) for r in range(4)] + [(0, 3), (0, 2), (0, 1), (0, 0)]
        for i in range(0, 8, 2):
            (k0, r0), (k1, r1) = order[i], order[i + 1]
            c.append(I(f"v_cmp_gt_i32 s[{sM0}:{sM0+1}], {16*k0+r0}, v{D}"))
            c.append(I(f"v_cmp_gt_i32 s[{sM1}:{sM1+1}], {16*k1+r1}, v{D}"))
            c.append(I("s_nop 0"))
            c.append(I(f"v_cndmask_b32 v{aC(q,k0)+r0}, v{src}, v{vT[0]}, s[{sM0}:{sM0+1}]"))
            c.append(I(f"v_cndmask_b32 v{aC(q,k1)+r1}, v{src}, v{vT[0]}, s[{sM1}:{sM1+1}]"))
        return c

    def rowmax(self, q, t0, t1):
        S = aS(q, 0)
        return [I(f"v_max3_f32 v{t0}, v{S}, v{S+1}, v{S+2}"), I(f"v_max3_f32 v{t1}, v{S+3}, v{S+4}, v{S+5}"),
                I(f"v_max3_f32 v{t0}, v{t0}, v{S+6}, v{S+7}"), I(f"v_max_f32 v{t0}, v{t0}, v{t1}"),
                I(f"v_mov_b32 v{t1}, v{t0}"), I(f"v_permlane32_swap_b32 v{t0}, v{t1}"),
                I(f"v_max_f32 v{t0}, v{t0}, v{t1}"),
                I(f"v_mov_b32 v{t1}, v{t0}"), I(f"v_permlane16_swap_b32 v{t0}, v{t1}"),
                I(f"v_max_f32 v{t0}, v{t0}, v{t1}"),
                I(f"v_add_f32 v{t0}, {fbits(BIAS)}, v{t0}")]

    def exps(self, q, E):
        S = aS(q, 0)
        return [I(f"v_exp_f32 v{E+i}, v{S+i}") for i in range(8)]

    def cvts(self, q, E):
        return [I(f"v_cvt_pk_bf16_f32 v{aP(q)+i}, v{E+2*i}, v{E+2*i+1}") for i in range(4)]

    def fix(self, q):
        t0, t1 = aE[2], aE[2] + 1
        S = aS(q, 0)
        c = [I("s_nop 7"), I("s_nop 1")] + self.rowmax(q, t0, t1)
        c.append(I(f"v_max_f32 v{t0}, 0, v{t0}"))
        c.append(I(f"v_exp_f32 v{t1}, -v{t0}"))
        for i in range(8):
            c.append(I(f"v_sub_f32 v{S+i}, v{S+i}, v{t0}"))
            c.append(I(f"v_sub_f32 v{aC(q,0)+i}, v{aC(q,0)+i}, v{t0}"))
        for r in range(aO(0, q), aO(0, q) + 32):
            c.append(I(f"v_mul_f32 v{r}, v{r}, v{t1}"))
        for r in range(4):
            c.append(I(f"v_accvgpr_read_b32 v{t0+2+r}, a{gL(q)+r}"))
        for r in range(4):
            c.append(I(f"v_mul_f32 v{t0+2+r}, v{t0+2+r}, v{t1}"))
        for r in range(4):
            c.append(I(f"v_accvgpr_write_b32 a{gL(q)+r}, v{t0+2+r}"))
        c += self.exps(q, aE[1]) + self.cvts(q, aE[1])
        return c

    def check(self, qs, mind=2):
        P = [aP(q) + i for q in qs for i in range(4)]
        ors = []
        cur = None
        while P:
            if cur is None:
                ors.append(I(f"v_or3_b32 v{vOR}, v{P[0]}, v{P[1]}, v{P[2]}"))
                P = P[3:]
                cur = vOR
            elif len(P) >= 2:
                ors.append(I(f"v_or3_b32 v{vOR}, v{vOR}, v{P[0]}, v{P[1]}"))
                P = P[2:]
            else:
                ors.append(I(f"v_bitop3_b32 v{vOR}, v{vOR}, v{P[0]}, s{sMASK} bitop3:0xa8"))
                P = []
        slow, back = self.lab("fix"), self.lab("fixb")
        body = []
        for q in qs:
            body += self.fix(q)
        body += [I("s_nop 1"), I(f"s_branch {back}")]
        self.cold.append(f"{slow}:\n" + render(pad_hazards(body)))
        tail = [I(f"v_cmp_ne_u32 vcc, 0, v{vOR}"),
                (Group([I(f"s_cbranch_vccnz {slow}"), I(f"{back}:")]), None, None, mind)]
        return ors, tail

    def k_reads(self, half_off=8192):
        r = [I(f"ds_read_b128 {ar(gK(kb, ds))}, v{vARD} offset:{half_off + (kb*4+ds)*1024}")
             for kb in range(2) for ds in range(4)]
        return batch(r[:4]) + batch(r[4:])

    def qk(self, q, first=False):
        m = []
        for kb in range(2):
            for ds in range(4):
                d = vr(aS(q, kb))
                m.append(mfma(d, ar(gK(kb, ds)), ar(gQ(q, ds)), ("0" if first else vr(aC(q, kb))) if ds == 0 else d))
        return m

    def pv(self, q):
        m = [mfma(vr(aO(db, q)), ar(gV(db)), vr(aP(q)), vr(aO(db, q))) for db in range(8)]
        m.append(mfma(ar(gL(q)), ar(gONE), vr(aP(q)), ar(gL(q))))
        return m

    def iteration(self, nc, nn):
        o = self.o
        X = [m for q in range(nn) for m in self.qk(q)]
        Y = [m for q in range(nc) for m in self.pv(q)]
        y0 = len(X)
        n = y0 + len(Y)
        late = nc - 1
        tasks = []
        hi = 8 * (nn - 1) if nn == nc else y0 + 9 * late
        hi = max(0, min(hi, 8))
        ors, tail = self.check([late], 2 if hi >= 6 else 0)
        tasks.append(Task("late", self.cvts(late, aE[0]) + ors + tail, 0, hi, prio=1, tight=True))
        vrd = [I(f"ds_read_b128 {ar(gV(db))}, v{vARD} offset:{db*1024}") for db in range(8)]
        vrd = batch(vrd[:4]) + batch(vrd[4:])
        tasks.append(Task("vrd", [(r, 0, max(0, y0 - 5 + (4 if k >= 4 else 0))) for k, r in enumerate(vrd)],
                          0, max(0, min(y0 - 3, 12)), prio=2))
        ES = [aE[1], aE[2], aE[1]]
        early = list(range(nn - 1))
        if nn > 0:
            start = 9
            span = (n - start) / nn
            pos = [int(start + span * i) for i in range(nn + 1)]
            last = []
            for q in range(nn):
                rdy = [8 * q + 9] * 4 + [8 * q + 13] * 4
                if q in early:
                    cv_lo = y0 + 9 * (q + 1)
                    cv_hi = min(n - 5, (y0 + 9 * (q + 1) + 9) if q + 1 < len(early) else n - 5)
                    if q == 0 and len(early) == 3:
                        cv_hi = y0 + 9 + 5
                    lo2 = (y0 + 9 + 6) if q == 2 else 0
                    ent = [(e, max(rdy[k], lo2), cv_hi - 2) for k, e in enumerate(self.exps(q, ES[q]))]
                    ent += [(x, cv_lo, cv_hi) for x in self.cvts(q, ES[q])]
                    tasks.append(Task(f"exp{q}", ent, max(pos[q], lo2), max(pos[q + 1] + 3, cv_lo + 4), prio=0))
                    last.append(cv_hi)
                else:
                    ent = [(e, min(n, max(rdy[k], 10)), n) for k, e in enumerate(self.exps(q, aE[0]))]
                    tasks.append(Task(f"exp{q}", ent, min(n, pos[q]), n, prio=0))
            if early:
                ors, tail = self.check(early)
                need = []
                for x in ors:
                    qs = [(int(u[1:]) - aP(0)) // 4 for u in x.uses if aP(0) <= int(u[1:]) < aP(0) + 16]
                    need.append(last[max(qs)] + 1)
                ent = [(x, min(need[k], n - 3), n - 2) for k, x in enumerate(ors)]
                ent += [(tail[0], min(need[-1], n - 2), n - 2), (tail[1][0], 0, n, 2)]
                tasks.append(Task("chk1", ent, prio=3, tight=True))
            krd = self.k_reads()
            adv = I(f"v_add_u32 v{vARD}, s{sRD}, v{vL16[0]}")
            tasks.append(Task("krd", [(r, y0, n - (7 if k < 4 else 4)) for k, r in enumerate(krd)] + [(adv, y0, n)],
                              y0, n - 3, prio=2))
            d = self.att_dma()
            R = o.NS * 16384
            sc = [I(f"s_mov_b32 m0, s{sWR}"), I(f"s_add_u32 s{sSOFF}, s{sSOFF}, 8192"), (d[0], None, None, 1)] + d[1:]
            sc += [I(f"s_add_u32 s{sWR}, s{sWR}, 16384"), I(f"s_sub_u32 s{sT0}, s{sWR}, {R}"),
                   I(f"s_min_u32 s{sWR}, s{sWR}, s{sT0}")]
            rdp = [I(f"s_add_u32 s{sRD}, s{sRD}, 16384"), I(f"s_sub_u32 s{sT1}, s{sRD}, {R}"),
                   I(f"s_min_u32 s{sRD}, s{sRD}, s{sT1}")]
            tasks.append(Task("rdp", rdp, 1, max(3, y0 - 1), prio=4))
            tasks.append(Task("dma", sc, 1, n - 4, prio=1))
        tasks.append(Task("j", [I(f"s_add_u32 s{sJ}, s{sJ}, 1")], max(0, n - 6), max(0, n - 3), prio=5))
        res = {0, 4, y0, y0 + 4}
        seed, ldw = (o.seed, o.ldw) if o.tune == 0 else {4: (11, 12), 3: (2, 12)}.get(max(nc, nn), (1, 0))
        seq = schedule(X + Y, tasks, o.budget, self.reports, reserve=res, seed=seed, vmw=o.vmwa, ldw=ldw)
        by = {t.name: [e[0] if isinstance(e, tuple) else e for e in t.instrs] for t in tasks}
        ref = by["late"] + by["vrd"] + X + Y
        for nm in ("exp0", "exp1", "exp2", "exp3", "chk1", "krd", "dma", "j"):
            if nm == "krd":
                ref += by.get("rdp", [])
            ref += by.get(nm, [])
        verify_order(ref, seq)
        return seq

    def att_state(self):
        sb = Scoreboard()
        for r in self.k_reads():
            sb.after(r)
        for i in range(40):
            sb.after(I("buffer_inv sc1"))
        return sb

    def finalize(self, q):
        t0 = vT[0]
        c = [I(f"v_accvgpr_read_b32 v{t0}, a{gL(q)}"), I(f"v_rcp_f32 v{t0}, v{t0}")]
        st = []
        for k in range(4):
            a, b = aO(2 * k, q), aO(2 * k + 1, q)
            for r in (a, a + 2, b, b + 2):
                c.append(I(f"v_pk_mul_f32 {vr(r,2)}, {vr(r,2)}, {vr(t0,2)} op_sel_hi:[1,0]"))
            p = aE[1] + 4 * k
            c += self.pk_frag(p, a, b)
            s = I(f"buffer_store_dwordx4 {vr(p)}, v{vL16[k]}, {srd(S_WS)}, s{sZC[q]} offen {self.o.stflag}")
            c.append(s)
            st.append(s)
        return c, st

    def seg(self, seq, sb, prev=()):
        s = add_waits(seq, sb)
        return pad_hazards(s, prev)

    def attention(self, sb, prev):
        o = self.o
        out = []
        pro = []
        A = pro.append
        pro += [I("L_att:"), I(f"v_add_u32 v{vARD}, {6*16384}, v{vL16[0]}")]
        pro += [Need(self.att_first + self.h_stores, lg0=True), I("s_barrier")]
        pro += self.k_reads(0)
        pro.append(self.flag_store(sFH))
        dm = []
        for j in range(3, o.LEAD):
            d = self.att_dma()
            dm += [I(f"s_add_u32 m0, s{sWR}, {((7+j) % o.NS)*16384}"), I(f"s_mov_b32 s{sSOFF}, {j*8192}"),
                   (d[0], None, None, 1)] + d[1:]
        dm += [I(f"s_add_u32 s{sWR}, s{sWR}, {((7+o.LEAD-1) % o.NS + 1)*16384}"),
               I(f"s_mov_b32 s{sRD}, {7*16384}"), I(f"s_mov_b32 s{sJ}, 0")]
        assert ((7 + o.LEAD - 1) % o.NS) + 1 < o.NS
        e0 = self.epi_Q(1, 0)
        pro += e0[:16] + dm[:2] + e0[16:24] + [dm[2][0]] + e0[24:]
        dm = dm[3:]

        def init(q):
            t0, t1 = vT[0], vT[1]
            S = aS(q, 0)
            c = self.rowmax(q, t0, t1)
            if q < 2:
                c += [I(f"v_sub_f32 v{S+i}, v{S+i}, v{t0}") for i in range(8)]
                c += [I(f"v_sub_f32 v{aC(q,0)+i}, 0, v{t0}") for i in range(8)]
            else:
                c.append(I(f"v_sub_f32 v{t0}, 0, v{t0}"))
                c += [I(f"v_pk_add_f32 {vr(S+i,2)}, {vr(S+i,2)}, {vr(t0,2)} op_sel_hi:[1,0]") for i in range(0, 8, 2)]
                c += [I(f"v_pk_mov_b32 {vr(aC(q,0)+i,2)}, {vr(t0,2)}, {vr(t0,2)} op_sel:[0,0]") for i in range(0, 8, 2)]
            if q < 3:
                E = [aE[1], aE[2], aE[1]][q]
                return c + self.exps(q, E) + self.cvts(q, E)
            return c + self.exps(q, aE[0])
        X = [m for q in range(4) for m in self.qk(q, True)]
        tasks = [Task("dm", dm, 0, 32, prio=0)]
        for q in range(1, 4):
            tasks.append(Task(f"epiQ1_{q}", self.epi_Q(1, q), 8 * (q - 1), 8 * q - 1, prio=1))
        tasks.append(Task("init01", [(x, 11, 32) for x in init(0)] + [(x, 19, 32) for x in init(1)], 11, 32, prio=2))
        pro += schedule(X, tasks, o.budget, self.reports, vmw=0)
        pro += self.k_reads()
        pro += [I(f"v_add_u32 v{vARD}, s{sRD}, v{vL16[0]}")]
        pro += init(2)
        skip = self.lab("nomask")
        pro += [I(f"s_cmp_lg_u32 s{sNM1[3]}, 0"), I(f"s_cbranch_scc1 {skip}")] + self.mask(3, True) + [I(f"{skip}:")]
        pro += init(3)
        pro += [I("s_waitcnt lgkmcnt(0)")]
        pro += self.stamp(vT[3])
        pro = self.seg(pro, sb, prev)
        out += pro
        out.append(I(f"s_branch L_ev4"))
        wait_n = (o.LEAD - o.G) * 4
        last_st = None
        for n in (4, 3, 2, 1):
            b = []
            for u in range(o.unroll):
                ctl = [I(f"s_bitcmp1_b64 s[{sEV}:{sEV+1}], s{sJ}"),
                       I(f"s_cbranch_scc0 L_body{n}") if u == o.unroll - 1 else I(f"s_cbranch_scc1 L_ev{n}")]
                b += self.seg(self.iteration(n, n) + ctl, self.att_state(), b)
            print("iteration", n, "estimate", estimate(b) // o.unroll, file=sys.stderr)
            check_hazards(b, b)
            out += [I(".p2align 6"), I(f"L_body{n}:")] + b
            bar = self.timed([I(f"s_waitcnt vmcnt({wait_n}) lgkmcnt(0)"), I("s_barrier")])
            nb, nm, nh, nh2, sp = self.lab("nb"), self.lab("nm"), self.lab("nh"), self.lab("nh2"), self.lab("sp")
            ev = [I(f"L_ev{n}:"), I(f"s_bitcmp1_b64 s[{sSP}:{sSP+1}], s{sJ}"), I(f"s_cbranch_scc1 {sp}")]
            ev += bar + [I(f"s_branch L_body{n}"), I(f"{sp}:")]
            ev += [I(f"s_and_b32 s{sT0}, s{sJ}, {o.G-1}"), I(f"s_cbranch_scc1 {nb}")]
            ev += self.timed([I(f"s_waitcnt vmcnt({wait_n}) lgkmcnt(0)"), I("s_barrier")])
            ev += [I(f"s_cmp_eq_u32 s{sJ}, {2*o.G}"), I(f"s_cbranch_scc0 {nh}")]
            ev += (self.prefetch2() if (o.prefetch & 2 and not o.p2early) else []) + self.p4_scalars()
            ev += self.h_offsets() + [self.poll_load(vHP, S_WS, vHO, f"s{sHB}"), I(f"{nh}:")]
            ev += [I(f"s_cmp_eq_u32 s{sJ}, {3*o.G}"), I(f"s_cbranch_scc0 {nh2}"),
                   self.poll_check(vHP, S_WS, vHO, f"s{sHB}", "1"), I(f"{nh2}:")]
            if n == 2:
                ne = self.lab("ne")
                ev += [I(f"s_cmp_eq_u32 s{sJ}, s{sJL}"), I(f"s_cbranch_scc0 {ne}")] + self.p4_early() + [I(f"{ne}:")]
            ev += [I(f"{nb}:"), I(f"s_cmp_eq_u32 s{sJ}, s{sNM2[n-1]}"), I(f"s_cbranch_scc0 {nm}")]
            ev += self.mask(n - 1) + [I(f"{nm}:"), I(f"s_cmp_eq_u32 s{sJ}, s{sNM1[n-1]}"),
                                      I(f"s_cbranch_scc0 L_body{n}")]
            if n >= 2:
                nm2 = self.lab("nm")
                ev += [I(f"s_cmp_eq_u32 s{sJ}, s{sNM2[n-2]}"), I(f"s_cbranch_scc0 {nm2}")]
                ev += self.mask(n - 2) + [I(f"{nm2}:")]
            ev = pad_hazards(flatten(ev), b)
            tr = self.iteration(n, n - 1)
            fin, st = self.finalize(n - 1)
            last_st = st
            tail = []
            if n >= 2:
                tail = [I(f"s_bitcmp1_b64 s[{sEV}:{sEV+1}], s{sJ}"),
                        I(f"s_cbranch_scc1 L_ev{n-1}")]
            sbt = self.att_state()
            t = self.seg(tr + fin + tail, sbt, ev)
            out += ev + t
        self.ctx_stores = last_st
        return out, sbt

    def p4_scalars(self):
        return [I(f"s_bfe_u32 s{sT1}, s{sB}, 0x10002"), I(f"s_lshl_b32 s{sT1}, s{sT1}, 3"),
                I(f"s_bfe_u32 s{sT2}, s{sB}, 0x30003"), I(f"s_add_u32 s{sT2}, s{sT1}, s{sT2}"),
                I(f"s_sub_u32 s{sT3}, 15, s{sT2}"),
                I(f"s_min_u32 s{sT2}, s{sT2}, s{sT3}"), I(f"s_lshl_b32 s{sPOLL}, s{sT2}, 7"),
                I(f"s_add_u32 s{sPOLL}, s{sPOLL}, {FL_H}")]

    def p4_setup_vec(self):
        c = []
        A = c.append
        t = WFB[3]
        g, i16 = t, t + 1
        A(I(f"s_lshl_b32 s{sT1}, s{sTB}, 2"))
        A(I(f"s_add_u32 s{sT1}, s{sT1}, s{sWAVE}"))
        A(I(f"s_lshl_b32 s{sT1}, s{sT1}, 15"))
        A(I(f"s_lshl_b32 s{sT2}, s{sCB}, 8"))
        A(I(f"s_add_u32 s{sT1}, s{sT1}, s{sT2}"))
        A(I(f"s_lshl_b32 s{sT2}, s{sKQ}, 6"))
        A(I(f"s_add_u32 s{sT1}, s{sT1}, s{sT2}"))
        A(I(f"v_lshlrev_b32 v{t+2}, 10, v{i16}"))
        A(I(f"v_lshl_add_u32 v{t+2}, v{g}, 3, v{t+2}"))
        A(I(f"v_add_u32 v{vXo}, s{sT1}, v{t+2}"))
        return c

    def p4_setup(self):
        c = []
        A = c.append
        L = vLANE
        A(I(f"s_and_b32 s{sKQ}, s{sB}, 3"))
        A(I(f"s_bfe_u32 s{sT1}, s{sB}, 0x10002"))
        A(I(f"s_lshr_b32 s{sT2}, s{sB}, 3"))
        A(I(f"s_lshl_b32 s{sTID}, s{sT1}, 5"))
        A(I(f"s_add_u32 s{sTID}, s{sTID}, s{sT2}"))
        A(I(f"s_lshr_b32 s{sCB}, s{sT2}, 3"))
        A(I(f"s_and_b32 s{sT2}, s{sT2}, 7"))
        A(I(f"s_lshl_b32 s{sT1}, s{sT1}, 3"))
        A(I(f"s_add_u32 s{sTB}, s{sT1}, s{sT2}"))
        t = WFB[3]
        A(I(f"v_lshrrev_b32 v{t}, 4, v{L}"))
        A(I(f"v_and_b32 v{t+1}, 15, v{L}"))
        A(I(f"v_lshlrev_b32 v{t+2}, 1, v{t}"))
        A(I(f"v_xor_b32 v{t+2}, v{t+2}, v{t+1}"))
        A(I(f"v_lshlrev_b32 v{t+2}, 4, v{t+2}"))
        A(I(f"v_lshl_add_u32 v{t+2}, v{t}, 10, v{t+2}"))
        A(I(f"s_lshl_b32 s{sT1}, s{sWAVE}, 13"))
        A(I(f"s_lshl_b32 s{sT2}, s{sCB}, 8"))
        A(I(f"s_add_u32 s{sT1}, s{sT1}, s{sT2}"))
        A(I(f"v_add_u32 v{vWo4[0]}, s{sT1}, v{t+2}"))
        A(I(f"v_xor_b32 v{vWo4[1]}, 128, v{vWo4[0]}"))
        A(I(f"v_add_u32 v{vWo4[1]}, {4096-1024}, v{vWo4[1]}"))
        A(I(f"s_lshl_b32 s{sT1}, s{sTB}, 1"))
        A(I(f"s_lshr_b32 s{sT2}, s{sWAVE}, 1"))
        A(I(f"s_add_u32 s{sT1}, s{sT1}, s{sT2}"))
        A(I(f"s_and_b32 s{sT2}, s{sWAVE}, 1"))
        A(I(f"s_lshl_b32 s{sT2}, s{sT2}, 11"))
        A(I(f"s_mul_i32 s{sT3}, s{sT1}, {43*4096}"))
        A(I(f"s_add_u32 s{sT3}, s{sT3}, s{sT2}"))
        A(I(f"s_add_u32 s{sT3}, s{sT3}, {ZH_OFF}"))
        A(Group([I(f"s_add_u32 s{S_ZH}, s{S_WS}, s{sT3}"), I(f"s_addc_u32 s{S_ZH+1}, s{S_WS+1}, 0")]))
        A(I(f"s_sub_u32 s{S_ZH+2}, {43*4096}, s{sT2}"))
        A(I(f"s_lshl_b32 s{sT1}, s{sT1}, 19"))
        A(I(f"s_lshl_b32 s{sT3}, s{sKQ}, 17"))
        A(I(f"s_add_u32 s{sT1}, s{sT1}, s{sT3}"))
        A(I(f"s_add_u32 s{sT1}, s{sT1}, s{sT2}"))
        A(I(f"s_add_u32 s{sT1}, s{sT1}, {ZC_OFF}"))
        A(Group([I(f"s_add_u32 s{S_ZC}, s{S_WS}, s{sT1}"), I(f"s_addc_u32 s{S_ZC+1}, s{S_WS+1}, 0")]))
        A(I(f"s_sub_u32 s{S_ZC+2}, {32*4096}, s{sT2}"))
        A(I(f"s_lshl_b32 s{sT2}, s{sKQ}, 20"))
        A(Group([I(f"s_add_u32 s{S_WO}, s{S_WO}, s{sT2}"), I(f"s_addc_u32 s{S_WO+1}, s{S_WO+1}, 0")]))
        A(I(f"s_mov_b32 s{S_WO+2}, {1 << 20}"))
        A(I(f"s_mul_i32 s{sZo}, s{sKQ}, {11*4096}"))
        A(I(f"s_mul_i32 s{sWo}, s{sKQ}, {11*32768}"))

        return c

    def p4_early(self):
        t = vT[0]
        c = []
        for n in range(4):
            c += [I(f"buffer_load_dwordx4 {vr(128 + (n*2 + tb)*4)}, v{vL16[0]}, {srd(S_ZH)}, s{sZo} offen "
                    f"offset:{tb*1024} {self.o.ldflag}") for tb in range(2)]
            c.append(I(f"s_add_u32 s{sZo}, s{sZo}, 4096"))
        if self.o.xat == 2:
            c.append(I(f"s_mov_b32 s{sT1}, 16384"))
            c += [I(f"buffer_load_dwordx2 {ar(XR + 4*tb + 2*i, 2)}, v{vXo}, {srd(S_X)}, {'s%d' % sT1 if tb else '0'} offen "
                    f"offset:{i*32}") for tb in range(2) for i in range(2)]
        if self.o.prefetch & 64:
            c += [I(f"s_and_b32 s{sT1}, s{sTB}, 7"), I(f"s_lshl_b32 s{sT1}, s{sT1}, 2"),
                  I(f"s_add_u32 s{sT1}, s{sT1}, s{sWAVE}"), I(f"s_lshl_b32 s{sT1}, s{sT1}, 15"),
                  I(f"s_lshl_b32 s{sT2}, s{sCB}, 8"), I(f"s_add_u32 s{sT1}, s{sT1}, s{sT2}"),
                  I(f"v_lshrrev_b32 v{t+1}, 1, v{vLANE}"), I(f"v_and_b32 v{t}, 1, v{vLANE}"),
                  I(f"v_lshlrev_b32 v{t}, 7, v{t}"), I(f"v_lshl_add_u32 v{t}, v{t+1}, 10, v{t}"),
                  self.pf_load(t, S_WO, f"s{sT1}", dst="a200")]
        if self.o.pfcode & 4:
            c += self.prefetch_code("L_p4", "L_exit", "a[204:207]", vL16[0])
        if self.o.prefetch & 2:
            c += [I(f"s_and_b32 s{sT1}, s{sTB}, 7"), I(f"s_mul_i32 s{sT1}, s{sT1}, 44"),
                  I(f"s_mul_i32 s{sT2}, s{sWAVE}, 11"), I(f"s_add_u32 s{sT1}, s{sT1}, s{sT2}"),
                  I(f"s_lshl_b32 s{sT1}, s{sT1}, 10"), I(f"s_add_u32 s{sT1}, s{sT1}, s{sWo}"),
                  I(f"s_lshl_b32 s{sT2}, s{sCB}, 8"), I(f"s_add_u32 s{sT1}, s{sT1}, s{sT2}"),
                  I(f"v_min_u32 v{t}, 21, v{vLANE}"), I(f"v_lshrrev_b32 v{t+1}, 1, v{t}"),
                  I(f"v_and_b32 v{t}, 1, v{t}"), I(f"v_lshlrev_b32 v{t}, 7, v{t}"),
                  I(f"v_lshl_add_u32 v{t}, v{t+1}, 10, v{t}"),
                  self.pf_load(t, S_WD, f"s{sT1}", dst="a200")]
        return c

    def h_offsets(self):
        t = vT[0]
        return [I(f"s_mov_b32 s{sHB}, {FL_H}"), I(f"s_sub_u32 s{sT1}, s{sPOLL}, s{sHB}"),
                I(f"v_add_u32 v{t}, s{sT1}, v{vPO32}"),
                I(f"s_bfe_u32 s{sT1}, s{sB}, 0x10002"), I(f"s_lshl_b32 s{sT1}, s{sT1}, 4"),
                I(f"s_and_b32 s{sT2}, s{sH}, 3"), I(f"s_add_u32 s{sT1}, s{sT1}, s{sT2}"),
                I(f"s_lshl_b32 s{sT2}, s{sW}, 5"), I(f"s_add_u32 s{sT1}, s{sT1}, s{sT2}"),
                I(f"s_lshl_b32 s{sT1}, s{sT1}, 2"),
                I(f"v_and_b32 v{t+1}, 3, v{vLANE}"), I(f"v_lshlrev_b32 v{t+1}, 4, v{t+1}"),
                I(f"v_cmp_gt_u32 vcc, 32, v{vLANE}"), I(f"v_add_u32 v{t+1}, s{sT1}, v{t+1}"),
                I(f"v_cndmask_b32 v{vHO}, v{t+1}, v{t}, vcc")]

    def phase4(self, sb, prev):
        o = self.o
        ACC4, ZR, WR = 0, 64, 192
        vRd4 = list(range(224, 232))
        vP4, vW1 = 234, 235
        sEXs, sEXd, sFE, sOo = sNM2
        L = vLANE
        NH, NS, LEAD = 11, 16, o.lead4
        sR4 = sWR
        c = []
        A = c.append
        sb.vm = sb.vm[-24:]
        A(I("L_p4:"))
        c += self.holdmark("att")
        A(I("s_waitcnt lgkmcnt(0)"))
        A(I("s_barrier"))
        c += self.stamp(232)
        t = WR
        Wd, Zd = {}, {}

        def wload(n):
            ws = S_WD if n < NH else S_WO
            d = [I(f"buffer_load_dwordx4 v{vWo4[e]}, {srd(ws)}, s{sWo} offen offset:{e*1024} {o.wflg} lds") for e in range(2)]
            Wd[n % NS] = d
            pre = [I(f"s_lshl_b32 s{sWo}, s{sR4}, 17")] if n == NH else []
            post = [I(f"s_add_u32 s{sWo}, s{sWo}, 32768")]
            if o.rot4 and n >= NH:
                post.append(I(f"s_and_b32 s{sWo}, s{sWo}, 0xfffff"))
            return pre + [I(f"s_add_u32 m0, s{sW2K}, {(n % NS)*8192}"), d[0], d[1]] + post

        def zload(n):
            zs, so = (S_ZH, sZo) if n < NH else (S_ZC, sSOFF)
            d = [I(f"buffer_load_dwordx4 {vr(ZR + (((n + 8) % NS)*2 + tb)*4)}, v{vL16[0]}, {srd(zs)}, s{so} offen "
                   f"offset:{tb*1024} {o.ldflag}") for tb in range(2)]
            batch(d)
            pre = [I(f"s_lshl_b32 s{so}, s{sR4}, 14")] if n == NH else []
            post = [I(f"s_add_u32 s{so}, s{so}, 4096")]
            if o.rot4 and n >= NH:
                post.append(I(f"s_and_b32 s{so}, s{so}, 0x1ffff"))
            return pre + d + post

        def reads(n, wb):
            slot = (n % NS) * 8192
            return batch([I(f"ds_read_b64_tr_b16 {vr(WR + 4*wb + 2*a, 2)}, v{vRd4[wb]} offset:{(slot & 0xffff) + a*4096}")
                          for a in range(2)])

        def winfix(n):
            a, b = ((n - 1) % NS) >> 3, (n % NS) >> 3
            if a == b:
                return lambda wb: []
            op = "v_add_u32" if b else "v_subrev_u32"
            return lambda wb: [I(f"{op} v{vRd4[wb]}, 0x10000, v{vRd4[wb]}")]

        for n in range(4):
            c += wload(n)
        A(I(f"s_sub_u32 s{sPOLL}, s{sPOLL}, {FL_H}"))
        A(I(f"s_lshl_b32 s{sT1}, s{sKQ}, 5"))
        A(I(f"s_add_u32 s{sPOLL}, s{sPOLL}, s{sT1}"))
        if o.wflag:
            A(I(f"s_lshl_b32 s{sPOLL}, s{sPOLL}, 2"))
        A(I(f"s_add_u32 s{sPOLL}, s{sPOLL}, {FL_CW if o.wflag else FL_C}"))
        g, i16 = t, t + 1
        A(I(f"v_lshrrev_b32 v{g}, 4, v{L}"))
        A(I(f"v_and_b32 v{i16}, 15, v{L}"))
        A(I(f"v_lshrrev_b32 v{t+2}, 2, v{i16}"))
        A(I(f"v_lshl_add_u32 v{t+2}, v{g}, 2, v{t+2}"))
        A(I(f"v_and_b32 v{t+3}, 3, v{i16}"))
        A(I(f"v_lshlrev_b32 v{t+3}, 3, v{t+3}"))
        A(I(f"v_lshl_add_u32 v{t+3}, v{t+2}, 8, v{t+3}"))
        A(I(f"v_and_b32 v{t+2}, 7, v{t+2}"))
        A(I(f"v_lshl_add_u32 v{t+3}, v{t+2}, 5, v{t+3}"))
        for i in range(8):
            A(I(f"s_lshl_b32 s{sT1}, s{sKQ}, 1"))
            A(I(f"s_add_u32 s{sT1}, s{sT1}, {i}"))
            A(I(f"s_and_b32 s{sT1}, s{sT1}, 7"))
            A(I(f"s_lshl_b32 s{sT1}, s{sT1}, 5"))
            A(I(f"v_xor_b32 v{vRd4[i]}, s{sT1}, v{t+3}"))
        A(I(f"s_mov_b32 s{sOo}, 16384"))
        A(I(f"s_lshl_b32 s{sT1}, s{sCB}, 1"))
        A(I(f"s_add_u32 s{sT1}, s{sT1}, s{sTB}"))
        A(I(f"s_and_b32 s{sR4}, s{sT1}, {o.rot4}"))
        A(I(f"s_mul_i32 s{sT1}, s{sTID}, {4*3*8192}"))
        A(I(f"s_lshl_b32 s{sT2}, s{sWAVE}, 11"))
        A(I(f"s_add_u32 s{sT1}, s{sT1}, s{sT2}"))
        A(I(f"s_add_u32 s{sEXs}, s{sT1}, {EX_OFF}"))
        A(I(f"s_mul_i32 s{sT2}, s{sKQ}, {3*8192}"))
        A(I(f"s_add_u32 s{sEXd}, s{sEXs}, s{sT2}"))
        A(I(f"s_lshl_b32 s{sFE}, s{sTID}, 2"))
        A(I(f"s_add_u32 s{sFE}, s{sFE}, s{sWAVE}"))
        A(I(f"s_lshl_b32 s{sFE}, s{sFE}, 4"))
        A(I(f"s_add_u32 s{sFE}, s{sFE}, {FL_E}"))
        A(I(f"v_mov_b32 v{t+2}, {OOB}"))
        A(I(f"v_cmp_eq_u32 vcc, 0, v{L}"))
        A(I(f"s_lshl_b32 s{sT1}, s{sKQ}, 2"))
        A(I(f"v_mov_b32 v{t+3}, s{sT1}"))
        A(I(f"v_cndmask_b32 v{vW1}, v{t+2}, v{t+3}, vcc"))
        first = [Wd[k] for k in range(4)]
        if o.wflag:
            assert o.sentinel
            A(I(f"s_sub_u32 s{sT1}, s{sFC}, {FL_C}"))
            A(I(f"s_lshl_b32 s{sT1}, s{sT1}, 2"))
            A(I(f"s_lshl_b32 s{sT2}, s{sWAVE}, 2"))
            A(I(f"s_add_u32 s{sT1}, s{sT1}, s{sT2}"))
            A(I(f"s_add_u32 s{sT1}, s{sT1}, {FL_CW}"))
            A(I(f"v_cndmask_b32 v{vW1}, v{t+2}, v{vC0}, vcc"))
            A(Need([self.ctx_stores]))
            A(I(f"buffer_store_dword v{vC1}, v{vW1}, {srd(S_WS)}, s{sT1} offen sc1"))
            A(Need(first, lg0=True))
            A(I("s_barrier"))
        else:
            A(Need(first + [self.ctx_stores], lg0=True))
            A(I("s_barrier"))
            A(self.flag_store(sFC))
        for n in range(4, LEAD):
            c += wload(n)
        xl = [I(f"buffer_load_dwordx2 {ar(XR + 4*tb + 2*i, 2)}, v{vXo}, {srd(S_X)}, {'s%d' % sOo if tb else '0'} offen "
                f"offset:{i*32}") for tb in range(2) for i in range(2)]
        rr = [reads(0, wb) for wb in range(8)]
        c += batch(sum(rr[:4], [])) + batch(sum(rr[4:], []))

        def steps(n0, n1, first, zplan, extra):
            mf, tasks = [], []
            wch, zch = [], []
            for n in range(n0, n1):
                b = 16 * (n - n0)
                for wb in range(8):
                    for tb in range(2):
                        d = vr(ACC4 + (wb * 2 + tb) * 4)
                        mf.append(mfma(d, vr(WR + 4 * wb), vr(ZR + (((n + 8) % NS) * 2 + tb) * 4),
                                       "0" if (first and n == n0) else d))
                bar = (n + 1) % 4 == 0
                fx = winfix(n + 1)
                ent = []
                rr = [reads(n + 1, wb) for wb in range(8)]
                batch(sum(rr[:4], []))
                batch(sum(rr[4:], []))
                for wb in range(8):
                    lo = b + 2 * wb + 2
                    if bar:
                        lo = max(lo, b + 5)
                    ent += [(x, lo, min(b + 16, lo + 3)) for x in fx(wb) + rr[wb]]
                tasks.append(Task(f"rd{n}", ent, prio=0, tight=True))
                if bar:
                    need = [Wd[k % NS] for k in range(n + 1, n + 5)]
                    tasks.append(Task(f"bar{n}", [Group([Need(need, lg0=True), I("s_barrier")])], b + 4, b + 4, prio=-1))
                seq = wload(n + LEAD)
                zs = [zload(zn) for zn in zplan(n)]
                if o.p4fix and len(zs) == 1:
                    pos = iter((b + 6, b + 10))
                    for x in seq:
                        g = next(pos) if x.kind == "dma" else None
                        wch.append((x, g, g) if g else (x, b + (5 if (bar and False) else 0), b + 15))
                    pos = iter((b + 2, b + 14))
                    for x in zs[0]:
                        g = next(pos) if x.kind == "vload" else None
                        zch.append((x, g, g) if g else (x, b, b + 16))
                else:
                    lo = b + (5 if bar else 0)
                    wch += [(x, lo, b + 15, 1 if (x.kind == "dma" and k and seq[k-1].kind == "salu") else 0)
                            for k, x in enumerate(seq)]
                    for z in zs:
                        zch += [(x, b + 1, b + 16) for x in z]
                for x in extra.get(n, []):
                    tasks.append(Task("ex", x, b + 1, b + 12, prio=2))
            tasks.append(Task("w", wch, prio=-1))
            if zch:
                tasks.append(Task("z", zch, prio=-1))
            if extra.get("tasks"):
                tasks += extra["tasks"]
            return schedule(mf, tasks, 8, self.reports, reserve=range(0, len(mf), 8), seed=o.seed, iters=40, vmw=o.vmw)

        CH = o.chk4
        pend = list(range(NH, NH + LEAD))

        def zplan_head(n):
            z = [n + 4] if n + 4 < NH else []
            if n > CH:
                k = -(-len(pend) // (NH - n))
                z += pend[:k]
                del pend[:k]
            return z
        vPC = vPO32 if o.wflag else vPO8
        ex = {0: [xl[:2]] if o.xat == 0 else [], 1: [xl[2:]] if o.xat == 0 else [], CH - 2: [[self.poll_load(vP4, S_WS, vPC, f"s{sPOLL}")]],
              CH: [self.poll_check(vP4, S_WS, vPC, f"s{sPOLL}", "1", split=True) + self.stamp(232)]}
        c += steps(0, NH, True, zplan_head, ex)
        assert not pend
        c += [I(f"s_mov_b32 s{sJ}, 0")]
        head = self.seg(c, sb, prev)

        def loop_body(sbx, pv):
            b = steps(NH, NH + NS, False, lambda n: [n + LEAD], {})
            b += [I(f"s_add_u32 s{sJ}, s{sJ}, 1"), I(f"s_cmp_lt_u32 s{sJ}, 2"), I("s_cbranch_scc1 L_p4loop")]
            return add_waits(b, sbx)
        b1 = loop_body(sb, head)
        b2 = loop_body(sb, b1)
        b1 = pad_hazards(merge_waits(b1, b2), head)
        check_hazards(b1, b1)
        b2 = b1
        print("phase 4 head / loop estimate", estimate(head), estimate(b1), file=sys.stderr)
        e = []
        A = e.append
        e += self.stamp(232)
        st = []
        for p in range(1, 4):
            A(I(f"s_add_u32 s{sT1}, s{sKQ}, {p}"))
            A(I(f"s_and_b32 s{sT1}, s{sT1}, 3"))
            A(I(f"s_mul_i32 s{sT1}, s{sT1}, {3*8192}"))
            A(I(f"s_add_u32 s{sT1}, s{sT1}, s{sEXs}"))
            A(I(f"s_add_u32 s{sT1}, s{sT1}, {(p-1)*8192}"))
            for tb in range(2):
                t0, t1 = ACC4 + ((2 * p) * 2 + tb) * 4, ACC4 + ((2 * p + 1) * 2 + tb) * 4
                d = ZR + ((p - 1) * 2 + tb) * 4
                e += self.pk_frag(d, t0, t1)
                x = I(f"buffer_store_dwordx4 {vr(d)}, v{vL16[0]}, {srd(S_WS)}, s{sT1} offen offset:{tb*1024} {o.stflag}")
                A(x)
                st.append(x)
        if o.xat == 1:
            e += xl
        for tb in range(2):
            for i in range(2):
                a = ACC4 + (i * 2 + tb) * 4
                x = XR + 4 * tb + 2 * i
                u = WR
                e += [I(f"v_accvgpr_read_b32 v{u+4}, a{x}"), I(f"v_accvgpr_read_b32 v{u+5}, a{x+1}"),
                      I(f"v_lshlrev_b32 v{u}, 16, v{u+4}"), I(f"v_and_b32 v{u+1}, 0xffff0000, v{u+4}"),
                      I(f"v_lshlrev_b32 v{u+2}, 16, v{u+5}"), I(f"v_and_b32 v{u+3}, 0xffff0000, v{u+5}")]
                e += [I(f"v_pk_add_f32 {vr(a+r,2)}, {vr(a+r,2)}, {vr(u+r,2)}") for r in (0, 2)]
        R = ZR + 32
        sX = [sZo, sWo, sTB]
        exl = []
        for p in range(3):
            A(I(f"s_add_u32 s{sX[p]}, s{sEXd}, {p*8192}"))
            exl += [I(f"buffer_load_dwordx4 {vr(R + (p*2+tb)*4)}, v{vL16[0]}, {srd(S_WS)}, s{sX[p]} offen "
                      f"offset:{tb*1024} {o.ldflag}") for tb in range(2)]
        if not o.sentinel:
            A(Need(st))
            A(I(f"buffer_store_dword v{vC1}, v{vW1}, {srd(S_WS)}, s{sFE} offen sc1"))
            A(I(f"v_and_b32 v{vW1}, 12, v{vPO8}"))
            A(self.poll_load(vP4, S_WS, vW1, f"s{sFE}"))
            A(self.poll_check(vP4, S_WS, vW1, f"s{sFE}", "1"))
            e += self.stamp(232)
            e += exl
        else:
            chk = [I(f"v_max3_u32 v{vP4}, v{R}, v{R+1}, v{R+2}")]
            chk += [I(f"v_max3_u32 v{vP4}, v{vP4}, v{R+k}, v{R+k+1}") for k in range(3, 23, 2)]
            chk += [I(f"v_max_u32 v{vP4}, v{vP4}, v{R+23}"), I(f"v_cmp_eq_u32 vcc, -1, v{vP4}")]
            slow, back = self.lab("exs"), self.lab("exb")
            tm = o.timeit == "spin"
            self.cold.append(f"{slow}:\n" + ("    s_memtime s[0:1]\n" if tm else "") +
                             f"    s_mov_b32 s{sSPIN}, {o.spin}\n{slow}_l:\n" +
                             render([I(x.text) for x in exl] + [I("s_waitcnt vmcnt(0)")] + [I(x.text) for x in chk]) +
                             f"    s_nop 1\n    s_cbranch_vccz {slow}_x\n    s_sub_u32 s{sSPIN}, s{sSPIN}, 1\n"
                             f"    s_cmp_lg_u32 s{sSPIN}, 0\n    s_cbranch_scc1 {slow}_l\n{slow}_x:\n" +
                             (f"    s_memtime s[{sM0}:{sM0+1}]\n    s_waitcnt lgkmcnt(0)\n    s_sub_u32 s0, s{sM0}, s0\n"
                              f"    s_add_u32 s{sACC}, s{sACC}, s0\n" if tm else "") + f"    s_branch {back}\n")
            if o.sentinel == 2:
                A(Need(st))
            e += exl + chk + [I(f"s_cbranch_vccnz {slow}"), I(f"{back}:")]
            e += self.stamp(232)
        for p in range(3):
            for tb in range(2):
                for k in range(4):
                    a = ACC4 + ((k >> 1) * 2 + tb) * 4 + (k & 1) * 2
                    x = R + (p * 2 + tb) * 4 + k
                    u = WR + 2 * (k & 1)
                    e += [I(f"v_lshlrev_b32 v{u}, 16, v{x}"), I(f"v_and_b32 v{u+1}, 0xffff0000, v{x}"),
                          I(f"v_pk_add_f32 {vr(a,2)}, {vr(a,2)}, {vr(u,2)}")]
        for tb in range(2):
            for i in range(2):
                a = ACC4 + (i * 2 + tb) * 4
                d = WR + 4 + 2 * (tb * 2 + i)
                e += [I(f"v_cvt_pk_bf16_f32 v{d}, v{a}, v{a+1}"), I(f"v_cvt_pk_bf16_f32 v{d+1}, v{a+2}, v{a+3}"),
                      I(f"buffer_store_dwordx2 {vr(d,2)}, v{vXo}, {srd(S_OUT)}, {'s%d' % sOo if tb else '0'} offen "
                        f"offset:{i*32}")]
        e += self.stamp(232)
        tail = self.seg(e, sb, b2)
        return head + [I(".p2align 6"), I("L_p4loop:")] + b1 + tail

    def build(self):
        o = self.o
        sb = Scoreboard()
        p12 = self.phase12()
        if o.stop == "p2":
            for q in range(4):
                p12 += self.epi_Q(1, q)
            p12 += [I(f"s_lshl_b32 s{sT1}, s{sB}, 2"), I(f"s_add_u32 s{sT1}, s{sT1}, s{sWAVE}"),
                    I(f"s_lshl_b32 s{sT1}, s{sT1}, 14"), I(f"s_add_u32 s{sT1}, s{sT1}, {ZC_OFF}")]
            for q in range(4):
                for ds in range(4):
                    p12.append(I(f"buffer_store_dwordx4 {ar(gQ(q, ds))}, v{vL16[q]}, {srd(S_WS)}, s{sT1} offen "
                                 f"offset:{ds*1024}"))
        code = add_waits(p12, sb)
        if o.timeit.startswith("vmw"):
            nb, k = [], 0
            for x in code:
                if x.kind == "wait" and "vmcnt" in x.text and k < 48:
                    nb += [I("s_memtime s[0:1]"), I("s_waitcnt lgkmcnt(0)"), x, I(f"s_memtime s[{sM0}:{sM0+1}]"),
                           I("s_waitcnt lgkmcnt(0)"), I(f"s_sub_u32 s0, s{sM0}, s0"), I("s_mov_b64 exec, 1"),
                           I(f"v_mov_b32 v{vPOLL2}, s0"), I(f"s_add_u32 s0, s{sST}, {4*k}"),
                           I(f"ds_write_b32 v{vC0}, v{vPOLL2} offset:{60*1024+4*k}") if False else
                           I(f"v_writelane_b32 v{vPOLL2+1}, s0, 0") if False else I("s_nop 0"),
                           I("s_mov_b64 exec, -1"), I(f"v_readlane_b32 s1, v{vPOLL2}, 0"), I("s_nop 3"),
                           I(f"v_writelane_b32 v{vPOLL2+1}, s1, {k}")]
                    print("vmwait", k, x.text, "at mfma", sum(1 for y in nb if y.kind == "mfma"), file=sys.stderr)
                    k += 1
                else:
                    nb.append(x)
            nb += [I(f"v_lshlrev_b32 v{vPOLL2}, 2, v{vLANE}"), I(f"s_add_u32 s0, s{sST}, {1<<18}"),
                   I(f"buffer_store_dword v{vPOLL2+1}, v{vPOLL2}, {srd(S_WS)}, s0 offen")]
            code = nb
        code = pad_hazards(code)
        print("phase 1/2 estimate", estimate(code), file=sys.stderr)
        if o.stop not in ("p1a", "p2"):
            a, sb3 = self.attention(sb, code)
            code += a
            if o.stop != "p3":
                code += self.phase4(sb3, code)
        if o.hold:
            code += [I("L_hold:"), I("s_memrealtime s[2:3]"), I("s_waitcnt lgkmcnt(0)"),
                     I(f"s_sub_u32 s2, s2, s{sACC}"), I("s_cmp_lt_i32 s2, 0"), I("s_cbranch_scc1 L_hold")]
        if o.stop or o.stamps:
            code.append(I("s_waitcnt vmcnt(0) lgkmcnt(0)"))
        code += [I("L_exit:"), I("s_endpgm")]
        self.code = code
        labels = {x.text for x in code if x.kind == "label"}
        import re
        cold = [c for c in self.cold if re.findall(r"s_branch (\S+)", c)[-1] + ":" in labels]
        txt = HEADER + render(code) + "".join(cold) + FOOTER
        return txt


GK0 = -2.0 * math.sqrt(2.0 / math.pi) * math.log2(math.e)
GK1 = GK0 * 0.044715
QSCALE = math.log2(math.e) / math.sqrt(128.0)
BIAS = 8.0
sQS = sGBD + 0
sQS = 3

HEADER = f"""; Fused LayerNorm + compressed-KV causal attention + GeGLU FFN, one persistent launch.
; @launch grid=(256,1,1) block=(256,1,1) lds=163840
.amdgcn_target "amdgcn-amd-amdhsa--gfx950"
.text
.globl {KNAME}
.p2align 8
.type {KNAME},@function
{KNAME}:
"""
FOOTER = f"""    s_endpgm
.section .rodata,"a"
.p2align 6
.amdhsa_kernel {KNAME}
  .amdhsa_next_free_vgpr 512
  .amdhsa_next_free_sgpr 102
  .amdhsa_accum_offset 256
  .amdhsa_group_segment_fixed_size 0
  .amdhsa_kernarg_size 104
  .amdhsa_user_sgpr_count 2
  .amdhsa_user_sgpr_kernarg_segment_ptr 1
  .amdhsa_system_sgpr_workgroup_id_x 1
  .amdhsa_float_denorm_mode_32 3
.end_amdhsa_kernel
"""


def main():
    o = Opt()
    out = "k.s"
    for a in sys.argv[1:]:
        if "=" in a:
            k, v = a.split("=")
            if k == "out":
                out = v
            else:
                cur = getattr(o, k)
                setattr(o, k, v if (cur is None or isinstance(cur, str)) else type(cur)(int(v)))
    g = Gen(o)
    txt = g.build()
    open(out, "w").write(txt)
    for r in g.reports:
        print("sched overflow/total/gaps:", r, file=sys.stderr)


if __name__ == "__main__":
    main()
```

```python
import math
import struct
import sys

from asmir import (I, Ins, Group, Need, Task, Scoreboard, add_waits, pad_hazards, check_hazards, schedule, render,
                   flatten, batch, estimate, verify_order, merge_waits)

KNAME = "parallel_sum__compressed_kv_cla__geglu_ffn__prompt_kernel"


class Opt:
    stop = None
    stamps = 0
    G = 4
    NS = 10
    LEAD = 6
    spin = 1 << 20
    prefetch = 34
    xnslope = 88
    xn0 = 600
    vmw = 8
    rot = 4
    pfcode = 1
    lead4 = 8
    chk4 = 8
    G12 = 4
    lead12 = 13
    st_lo = 575
    st_hi = 1480
    seed = 1
    budget = 8
    timeit = ""
    wsoff = 0
    lnpos = 1
    lnstart = 40
    pfpos = 1
    wflg = "sc1"
    pa = 130
    pb = 300
    pc = 343
    p2early = 0
    rot4 = 0
    xat = 2
    hold = 0
    holdat = "start"
    xnchk = 566
    pfxw = 40
    tokmode = 0
    lnlate = 1
    wflag = 1
    vmwa = 4
    tune = 1
    ldw = 4
    ldw12 = 0
    gearly = 0
    ge0 = 460
    gestep = 30
    delay = 0
    sentinel = 2
    p4fix = 1
    unroll = 1
    gfake = 0
    wdist = 2
    wwin = 7
    xnsrc = 0
    stampat = "160,512,1024,1408,1916"
    drop = ""
    stflag = "sc1"
    ldflag = "sc1"


def fbits(x):
    return "0x%08x" % struct.unpack("<I", struct.pack("<f", x))[0]


XN_OFF = 0
KF_OFF = 2 << 20
VF_OFF = 18 << 20
ZC_OFF = 34 << 20
ZH_OFF = 50 << 20
FL_OFF = 56 << 20
FL_XN, FL_KV, FL_H, FL_C = FL_OFF, FL_OFF + 1024, FL_OFF + 5120, FL_OFF + 6144
FL_E = FL_OFF + 7168
FL_CW = FL_OFF + 7168
TS_OFF = 57 << 20
EX_OFF = 64 << 20
WS_SIZE = 72 << 20
OOB = 0x7FFFFF00

S_X, S_CKV, S_WQ, S_WUK, S_WUV, S_WO, S_WG, S_WU, S_WD, S_OUT, S_DBG, S_WS = range(4, 52, 4)
S_KV = S_WU
S_ZH = S_CKV
S_ZC = S_WQ
sWAVE, sH, sW, sB, sT0, sW2K, sTOKB, sKFB, sVFB = range(52, 61)
sXN = [61, 62, 63, 64]
sZH = [65, 66, 67, 68]
sZC = [69, 70, 71, 72]
sT1, sT2, sT3 = 73, 74, 75
sM0, sM1 = 76, 78
sEV = 80
sJ, sSOFF, sWR, sRD = 82, 83, 84, 85
sNM1 = [86, 87, 88, 89]
sNM2 = [90, 91, 92, 93]
sFXN, sFKV, sFH, sFC = 94, 95, 96, 97
sSPIN, sGBD, sPOLL = sT3, 99, 100
sST = 101
sJL = 65
sKQ, sTB, sCB, sTID, sZo, sWo = 58, 59, 60, 64, 94, 95
vWo4 = [243, 244]
vXo, XR = 252, 208
sMASK, sSP = 61, 62
sK2 = [80, 81, 82, 85]
sACC = 98
TS = 2


def srd(b):
    return f"s[{b}:{b+3}]"


def vr(b, n=4):
    return f"v[{b}:{b+n-1}]" if n > 1 else f"v{b}"


def ar(b, n=4):
    return f"a[{b}:{b+n-1}]" if n > 1 else f"a{b}"


MF = "v_mfma_f32_16x16x32_bf16"


def mfma(d, a, b, c):
    return I(f"{MF} {d}, {a}, {b}, {c}")


ACC = [0, 64, 128]
WFB = [192, 200, 208, 220]
PK = [216, 220, 224]
vG0, vG1, vGK = 228, 229, 230
vPOLL = 231
vRD = [232, 233, 234, 235]
vRD64 = [236, 237]
vRD32 = 238
vWO = [239, 240]
vGA = [241, 242]
vGB = [243, 244]
vTRD = [241, 242]
vL16 = [245, 246, 247, 248]
vONE = 249
vPO32 = 250
vPO8 = 251
vGBS = 252
vC0, vC1 = 253, 254
vLANE = 255
vPOLL2 = 220
vX16 = [216, 217, 218, 219]
vTO = list(range(128, 136))
vLN = 136
vPFW = 226
LNBUF = 7 * 8192
TOKB = 65536
HV = dict(K0=(0, 1), K1=(2, 3), V0=(4, 5), V1=(1, 3), GA=(0, 5), GB=(3, 3), Q0=(2, 4), Q1=(1, 0))


def areg(ps, wb, tb):
    if ps == "Q1":
        return (wb >> 1) * 32 + (tb * 2 + (wb & 1)) * 4
    t = 4 * wb + tb
    return 32 * HV[ps][t >> 3] + 4 * (t & 7)


aO = lambda db, q: 64 + (q * 8 + db) * 4
aS = lambda q, kb: (q * 2 + kb) * 4
aC = lambda q, kb: 32 + (q * 2 + kb) * 4
aP = lambda q: 192 + q * 4
aE = [208, 216, 224]
vOR, vOR2 = 232, 233
vARD = 234
vDM = [236, 237]
vT = [238, 239, 240, 233]
vHP = 241
vHO = 242
sHB = 99
gQ = lambda q, ds: ds * 16 + q * 4
gK = lambda kb, ds: 64 + (kb * 4 + ds) * 4
gV = lambda db: 96 + db * 4
gL = lambda q: 128 + q * 4
gONE = 144
TF = lambda tb, ks: (ks * 4 + tb) * 4


class Gen:
    def __init__(self, opt):
        self.o = opt
        self.out = []
        self.cold = []
        self.nlab = 0
        self.reports = []
        self.nstamp = 0

    def lab(self, p):
        self.nlab += 1
        return f"L_{p}_{self.nlab}"

    def stamp(self, vt=None):
        if not self.o.stamps:
            return []
        vt = vPOLL if vt is None else vt
        k = self.nstamp
        self.nstamp += 1
        if self.o.stamps == 2:
            g = [I(f"s_memrealtime s[{sT2}:{sT2+1}]"), I("s_waitcnt lgkmcnt(0)"), I(f"v_mov_b32 v{vt}, s{sT2}"),
                 I(f"buffer_atomic_umax v{vt}, v{vONE}, {srd(S_DBG)}, 0 offen offset:{8+4*k} sc1"), I("s_nop 1")]
            if k == 0:
                g += [I(f"v_not_b32 v{vt}, v{vt}"),
                      I(f"buffer_atomic_umax v{vt}, v{vONE}, {srd(S_DBG)}, 0 offen offset:4 sc1"), I("s_nop 1")]
            return [Group(g)]
        return [Group([I(f"s_memtime s[{TS}:{TS+1}]"), I(f"s_memrealtime s[{sT2}:{sT2+1}]"),
                       I("s_waitcnt lgkmcnt(0)"), I("s_mov_b64 exec, 1"),
                       I(f"v_mov_b32 v{vt}, s{TS}"),
                       I(f"s_add_u32 s{TS}, s{sST}, {k*4}"),
                       I(f"buffer_store_dword v{vt}, v{vC0}, {srd(S_WS)}, s{TS} offen"),
                       I("s_nop 1"),
                       I(f"v_mov_b32 v{vt}, s{sT2}"),
                       I(f"buffer_store_dword v{vt}, v{vC0}, {srd(S_WS)}, s{TS} offen offset:64"),
                       I("s_nop 1"),
                       I(f"v_mov_b32 v{vt}, s{sACC}"),
                       I(f"buffer_store_dword v{vt}, v{vC0}, {srd(S_WS)}, s{TS} offen offset:128"),
                       I("s_nop 1"), I("s_mov_b64 exec, -1")])]

    def holdmark(self, name):
        if not self.o.hold or self.o.holdat != name:
            return []
        return [Group([I(f"s_memrealtime s[{sM0}:{sM0+1}]"), I("s_waitcnt lgkmcnt(0)"),
                       I(f"s_add_u32 s{sACC}, s{sM0}, {self.o.hold}")])]

    def timed(self, seq):
        if self.o.stamps != 1 or (self.o.timeit == "spin"):
            return seq
        return [I("s_memtime s[0:1]")] + seq + [I(f"s_memtime s[{sM0}:{sM0+1}]"), I("s_waitcnt lgkmcnt(0)"),
                                                I(f"s_sub_u32 s0, s{sM0}, s0"), I(f"s_add_u32 s{sACC}, s{sACC}, s0")]

    def poll_check(self, vreg, srdb, voff, soff, val, cmp="ne", split=False):
        slow, back = self.lab("spin"), self.lab("back")
        tm = self.o.timeit == "spin"
        t0 = "    s_memtime s[0:1]\n" if tm else ""
        ret = back
        if tm:
            ret = slow + "_x"
        x = f"""{ret}:
    s_memtime s[{sM0}:{sM0+1}]
    s_waitcnt lgkmcnt(0)
    s_sub_u32 s0, s{sM0}, s0
    s_add_u32 s{sACC}, s{sACC}, s0
    s_branch {back}
""" if tm else ""
        self.cold.append(f"""{slow}:
{t0}    s_mov_b32 s{sSPIN}, {self.o.spin}
{slow}_l:
    buffer_load_dword v{vreg}, v{voff}, {srd(srdb)}, {soff} offen sc1
    s_waitcnt vmcnt(0)
    v_cmp_{cmp}_u32 vcc, {val}, v{vreg}
    s_nop 1
    s_cbranch_vccz {ret}
    s_sub_u32 s{sSPIN}, s{sSPIN}, 1
    s_cmp_lg_u32 s{sSPIN}, 0
    s_cbranch_scc1 {slow}_l
    s_branch {ret}
{x}""")
        a, b = I(f"v_cmp_{cmp}_u32 vcc, {val}, v{vreg}"), Group([I(f"s_cbranch_vccnz {slow}"), I(f"{back}:")])
        return [a, (b, None, None, 2)] if split else Group([a, b])

    def poll_load(self, vreg, srdb, voff, soff):
        return I(f"buffer_load_dword v{vreg}, v{voff}, {srd(srdb)}, {soff} offen sc1")

    def setup(self):
        c = []
        A = c.append
        A(I("s_cmp_ge_u32 s2, 256"))
        A(I("s_cbranch_scc1 L_exit"))
        ptrs = [(S_CKV, 8, 2097152), (S_WUK, 24, 4194304), (S_X, 0, 2097152), (S_WS, 96, WS_SIZE), (S_DBG, 88, 256),
                (S_WUV, 32, 4194304), (S_WQ, 16, 4194304), (S_WO, 40, 4194304), (S_WG, 56, 1409024),
                (S_WU, 64, 1409024), (S_WD, 72, 1409024), (S_OUT, 80, 2097152)]
        for b, off, n in ptrs:
            A(I(f"s_load_dwordx2 s[{b}:{b+1}], s[0:1], {off}"))
        A(I(f"v_and_b32 v{vLANE}, 63, v0"))
        A(I("v_lshrrev_b32 v1, 6, v0"))
        A(I(f"s_mov_b32 s{sB}, s2"))
        if self.o.hold and self.o.holdat == "start":
            A(I("s_memrealtime s[2:3]"))
            A(I("s_waitcnt lgkmcnt(0)"))
            A(I(f"s_add_u32 s{sACC}, s2, {self.o.hold}"))
        if self.o.delay:
            A(I(f"s_mov_b32 s{sT0}, {self.o.delay}"))
            A(I("L_delay:"))
            A(I("s_nop 15")); A(I("s_nop 15")); A(I("s_nop 15")); A(I("s_nop 15"))
            A(I(f"s_sub_u32 s{sT0}, s{sT0}, 1"))
            A(I(f"s_cmp_lg_u32 s{sT0}, 0"))
            A(I("s_cbranch_scc1 L_delay"))
        A(I(f"v_readfirstlane_b32 s{sWAVE}, v1"))
        for b, off, n in ptrs:
            A(I(f"s_mov_b32 s{b+2}, {n}"))
            A(I(f"s_mov_b32 s{b+3}, 0x20000"))
        A(I(f"s_and_b32 s{sT0}, s{sB}, 7"))
        A(I(f"s_lshl_b32 s{sT0}, s{sT0}, 2"))
        A(I(f"s_bfe_u32 s{sT1}, s{sB}, 0x20003"))
        A(I(f"s_add_u32 s{sH}, s{sT0}, s{sT1}"))
        A(I(f"s_lshr_b32 s{sW}, s{sB}, 5"))
        A(I(f"s_lshl_b32 s{sW2K}, s{sWAVE}, 11"))
        A(I(f"s_mul_i32 s{sTOKB}, s{sWAVE}, 24576"))
        A(I(f"s_add_u32 s{sTOKB}, s{sTOKB}, {TOKB}"))
        A(I(f"s_add_u32 s{sT0}, s{sH}, s{sW}"))
        if self.o.rot == 4:
            A(I(f"s_mul_i32 s{sT1}, s{sT0}, 86"))
            A(I(f"s_lshr_b32 s{sT1}, s{sT1}, 8"))
            A(I(f"s_mul_i32 s{sT1}, s{sT1}, 3"))
            A(I(f"s_sub_u32 s{sT0}, s{sT0}, s{sT1}"))
            A(I(f"s_mov_b32 s{sK2[0]}, 0"))
            for i in range(1, 4):
                A(I(f"s_add_u32 s{sT1}, s{sT0}, {i - 1}"))
                A(I(f"s_sub_u32 s{sT2}, s{sT1}, 3"))
                A(I(f"s_min_u32 s{sT1}, s{sT1}, s{sT2}"))
                A(I(f"s_add_u32 s{sT1}, s{sT1}, 1"))
                A(I(f"s_lshl_b32 s{sK2[i]}, s{sT1}, 8"))
        elif self.o.rot == 5:
            A(I(f"s_and_b32 s{sT0}, s{sT0}, 3"))
            A(I(f"s_and_b32 s{sT1}, s{sT0}, 1"))
            A(I(f"s_lshl_b32 s{sK2[0]}, s{sT1}, 8"))
            A(I(f"s_xor_b32 s{sK2[3]}, s{sK2[0]}, 256"))
            A(I(f"s_lshr_b32 s{sT1}, s{sT0}, 1"))
            A(I(f"s_add_u32 s{sT1}, s{sT1}, 2"))
            A(I(f"s_lshl_b32 s{sK2[1]}, s{sT1}, 8"))
            A(I(f"s_xor_b32 s{sK2[2]}, s{sK2[1]}, 256"))
        else:
            if self.o.rot == 2:
                A(I(f"s_lshl_b32 s{sT0}, s{sT0}, 1"))
            A(I(f"s_and_b32 s{sT0}, s{sT0}, {self.o.rot}"))
            for i in range(4):
                A(I(f"s_add_u32 s{sT1}, s{sT0}, {i}"))
                A(I(f"s_and_b32 s{sT1}, s{sT1}, 3"))
                A(I(f"s_lshl_b32 s{sK2[i]}, s{sT1}, 8"))
        L = vLANE
        A(I(f"v_lshrrev_b32 v1, 3, v{L}"))
        A(I(f"v_lshrrev_b32 v2, 4, v{L}"))
        A(I(f"v_and_b32 v3, 7, v{L}"))
        A(I(f"s_lshl_b32 s{sT0}, s{sW}, 2"))
        A(I(f"s_add_u32 s{sT0}, s{sT0}, s{sWAVE}"))
        A(I(f"s_lshl_b32 s{sT0}, s{sT0}, 16"))
        A(I(f"v_xor_b32 v4, v3, v2"))
        A(I(f"v_lshlrev_b32 v5, 10, v1"))
        A(I(f"v_lshl_add_u32 v6, v4, 4, v5"))
        A(I(f"v_add_u32 v{vTO[0]}, s{sT0}, v6"))
        A(I(f"v_xor_b32 v7, 64, v{vTO[0]}"))
        for p in range(1, 8):
            src = 7 if p & 1 else vTO[0]
            A(I(f"v_add_u32 v{vTO[p]}, {p*8192 - (p&3)*1024}, v{src}"))
        A(I(f"v_lshrrev_b32 v8, 5, v{L}"))
        A(I(f"v_and_b32 v9, 3, v1"))
        A(I(f"v_lshl_add_u32 v9, v8, 3, v9"))
        A(I(f"s_lshr_b32 s{sT0}, s{sWAVE}, 1"))
        A(I(f"s_lshl_b32 s{sT0}, s{sT0}, 5"))
        A(I(f"s_and_b32 s{sT1}, s{sWAVE}, 1"))
        A(I(f"s_lshl_b32 s{sT1}, s{sT1}, 2"))
        A(I(f"s_add_u32 s{sT0}, s{sT0}, s{sT1}"))
        A(I(f"v_add_u32 v9, s{sT0}, v9"))
        A(I(f"v_lshlrev_b32 v10, 1, v2"))
        A(I(f"v_xor_b32 v10, v3, v10"))
        A(I(f"v_lshlrev_b32 v10, 4, v10"))
        A(I(f"s_lshl_b32 s{sT0}, s{sH}, 8"))
        A(I(f"v_lshl_add_u32 v11, v9, 13, v10"))
        A(I(f"v_add_u32 v{vWO[0]}, s{sT0}, v11"))
        A(I(f"v_add_u32 v{vWO[1]}, {16*8192-1024}, v{vWO[0]}"))
        A(I(f"v_mov_b32 v{vC0}, 0"))
        A(I(f"v_mov_b32 v{vC1}, 1"))
        if self.o.stamps == 1:
            A(I(f"s_lshl_b32 s{sST}, s{sB}, 2"))
            A(I(f"s_add_u32 s{sST}, s{sST}, s{sWAVE}"))
            A(I(f"s_lshl_b32 s{sST}, s{sST}, 8"))
            A(I(f"s_mov_b32 s{sACC}, 0"))
            A(I(f"s_add_u32 s{sST}, s{sST}, {TS_OFF}"))
        self.n_first = len(c)
        A(I(f"s_lshl_b32 s{sT0}, s{sB}, 2"))
        A(I(f"s_add_u32 s{sT0}, s{sT0}, s{sWAVE}"))
        A(I(f"s_lshl_b32 s{sT0}, s{sT0}, 11"))
        A(I(f"v_and_b32 v12, 31, v{L}"))
        A(I(f"v_lshlrev_b32 v13, 10, v8"))
        A(I(f"v_lshl_add_u32 v13, v12, 4, v13"))
        A(I(f"v_add_u32 v{vLN+32}, s{sT0}, v13"))
        A(I(f"v_mov_b32 v14, {OOB}"))
        A(I("v_cmp_eq_u32 vcc, 0, v0"))
        A(I(f"v_lshlrev_b32 v{vPO32}, 2, v12"))
        A(I(f"v_lshlrev_b32 v{vPO8}, 2, v3"))
        A(I(f"v_cndmask_b32 v{vONE}, v14, v{vC0}, vcc"))
        A(I(f"s_lshr_b32 s{sT0}, s{sB}, 4"))
        A(I(f"s_sub_u32 s{sT1}, 15, s{sT0}"))
        A(I(f"s_min_u32 s{sT1}, s{sT0}, s{sT1}"))
        A(I(f"s_lshl_b32 s{sT1}, s{sT1}, 7"))
        A(I(f"s_lshr_b32 s{sT0}, s{sB}, 7"))
        A(I(f"s_lshl_b32 s{sT0}, s{sT0}, 4"))
        A(I(f"s_and_b32 s{sT2}, s{sB}, 15"))
        A(I(f"s_add_u32 s{sT0}, s{sT0}, s{sT2}"))
        A(I(f"s_lshl_b32 s{sT0}, s{sT0}, 2"))
        A(I(f"s_add_u32 s{sFXN}, s{sT0}, s{sT1}"))
        A(I(f"s_add_u32 s{sFXN}, s{sFXN}, {FL_XN}"))
        A(I(f"s_lshl_b32 s{sT0}, s{sH}, 7"))
        A(I(f"s_lshl_b32 s{sT1}, s{sW}, 2"))
        A(I(f"s_add_u32 s{sFKV}, s{sT0}, s{sT1}"))
        A(I(f"s_add_u32 s{sFKV}, s{sFKV}, {FL_KV}"))
        A(I(f"s_lshl_b32 s{sT0}, s{sW}, 7"))
        A(I(f"s_lshl_b32 s{sT1}, s{sH}, 2"))
        A(I(f"s_add_u32 s{sT0}, s{sT0}, s{sT1}"))
        A(I(f"s_add_u32 s{sFH}, s{sT0}, {FL_H}"))
        A(I(f"s_add_u32 s{sFC}, s{sT0}, {FL_C}"))
        return c

    def setup2(self):
        c = []
        A = c.append
        L = vLANE
        t = vLN + 24
        g, i16 = t, t + 1
        A(I(f"v_lshrrev_b32 v{g}, 4, v{L}"))
        A(I(f"v_and_b32 v{i16}, 15, v{L}"))
        A(I(f"v_lshrrev_b32 v{t+2}, 2, v{i16}"))
        A(I(f"v_lshl_add_u32 v{t+2}, v{g}, 2, v{t+2}"))
        A(I(f"v_and_b32 v{t+3}, 3, v{i16}"))
        A(I(f"v_lshlrev_b32 v{t+3}, 3, v{t+3}"))
        A(I(f"v_bfe_u32 v{t+4}, v{t+2}, 1, 2"))
        A(I(f"v_lshlrev_b32 v{t+4}, 5, v{t+4}"))
        A(I(f"v_lshl_add_u32 v{t+5}, v{t+2}, 7, v{t+3}"))
        A(I(f"v_add_u32 v{vRD[0]}, v{t+5}, v{t+4}"))
        for cb in range(1, 4):
            A(I(f"v_xor_b32 v{vRD[cb]}, {cb*32}, v{vRD[0]}"))
        A(I(f"v_and_b32 v{t+4}, 1, v{g}"))
        A(I(f"v_lshlrev_b32 v{t+4}, 5, v{t+4}"))
        A(I(f"v_lshl_add_u32 v{t+5}, v{t+2}, 6, v{t+3}"))
        A(I(f"v_add_u32 v{vRD64[0]}, v{t+5}, v{t+4}"))
        A(I(f"v_xor_b32 v{vRD64[1]}, 32, v{vRD64[0]}"))
        A(I(f"v_lshl_add_u32 v{vRD32}, v{t+2}, 5, v{t+3}"))
        A(I(f"v_lshrrev_b32 v{t+4}, 1, v{i16}"))
        A(I(f"v_xor_b32 v{t+4}, v{g}, v{t+4}"))
        A(I(f"v_lshlrev_b32 v{t+4}, 4, v{t+4}"))
        A(I(f"v_lshl_add_u32 v{t+4}, v{i16}, 7, v{t+4}"))
        A(I(f"v_add_u32 v{vTRD[0]}, s{sTOKB}, v{t+4}"))
        A(I(f"v_xor_b32 v{vTRD[1]}, 64, v{vTRD[0]}"))
        A(I(f"v_lshlrev_b32 v{vL16[0]}, 4, v{L}"))
        for i in range(1, 4):
            A(I(f"v_add_u32 v{vL16[i]}, {4096*i}, v{vL16[0]}"))
        return c

    def setup3(self):
        c = []
        A = c.append
        L = vLANE
        A(I(f"s_lshl_b32 s{sT1}, s{sH}, 6"))
        A(I(f"s_lshl_b32 s{sT2}, s{sW}, 3"))
        A(I(f"s_add_u32 s{sT1}, s{sT1}, s{sT2}"))
        A(I(f"s_lshl_b32 s{sT2}, s{sWAVE}, 1"))
        A(I(f"s_add_u32 s{sT1}, s{sT1}, s{sT2}"))
        A(I(f"s_lshl_b32 s{sT1}, s{sT1}, 13"))
        A(I(f"s_add_u32 s{sKFB}, s{sT1}, {KF_OFF}"))
        A(I(f"s_add_u32 s{sVFB}, s{sT1}, {VF_OFF}"))
        B = sNM2
        A(I(f"s_sub_u32 s{sT1}, 15, s{sW}"))
        A(I(f"s_lshl_b32 s{sT1}, s{sT1}, 3"))
        A(I(f"s_lshl_b32 s{sT2}, s{sW}, 3"))
        A(I(f"s_sub_u32 s{sT3}, 7, s{sWAVE}"))
        A(I(f"s_add_u32 s{B[0]}, s{sT1}, s{sT3}"))
        A(I(f"s_add_u32 s{B[1]}, s{sT1}, s{sWAVE}"))
        A(I(f"s_add_u32 s{B[2]}, s{sT2}, s{sT3}"))
        A(I(f"s_add_u32 s{B[3]}, s{sT2}, s{sWAVE}"))
        for q in range(4):
            A(I(f"s_lshl_b32 s{sXN[q]}, s{B[q]}, 14"))
            if XN_OFF:
                A(I(f"s_add_u32 s{sXN[q]}, s{sXN[q]}, {XN_OFF}"))
            A(I(f"s_lshr_b32 s{sT1}, s{B[q]}, 2"))
            A(I(f"s_and_b32 s{sT2}, s{B[q]}, 3"))
            A(I(f"s_lshl_b32 s{sT2}, s{sT2}, 10"))
            A(I(f"s_mul_i32 s{sZH[q]}, s{sT1}, {43*4096}"))
            A(I(f"s_add_u32 s{sZH[q]}, s{sZH[q]}, s{sT2}"))
            A(I(f"s_lshl_b32 s{sT3}, s{sH}, 12"))
            A(I(f"s_add_u32 s{sZH[q]}, s{sZH[q]}, s{sT3}"))
            A(I(f"s_add_u32 s{sZH[q]}, s{sZH[q]}, {ZH_OFF}"))
            A(I(f"s_lshl_b32 s{sZC[q]}, s{sT1}, 19"))
            A(I(f"s_add_u32 s{sZC[q]}, s{sZC[q]}, s{sT2}"))
            A(I(f"s_lshl_b32 s{sT3}, s{sH}, 14"))
            A(I(f"s_add_u32 s{sZC[q]}, s{sZC[q]}, s{sT3}"))
            A(I(f"s_add_u32 s{sZC[q]}, s{sZC[q]}, {ZC_OFF}"))
        A(I(f"s_lshr_b32 s{sT1}, s{sH}, 1"))
        A(I(f"s_add_u32 s{sT1}, s{sT1}, 32"))
        A(I(f"s_sub_u32 s{sT1}, s{sT1}, s{sH}"))
        A(I(f"s_lshl_b32 s{sGBD}, s{sT1}, 12"))
        A(I(f"v_mov_b32 v{vGK}, {fbits(GK1)}"))
        for i in range(4):
            A(I(f"s_lshl_b32 s{sT1}, s{sK2[i]}, 4"))
            A(I(f"v_add_u32 v{vX16[i]}, s{sT1}, v{vL16[0]}"))
        return c

    def setup4(self):
        c = []
        A = c.append
        A(Group([I(f"s_cmp_lt_u32 s{sWAVE}, 2"), I(f"s_cselect_b32 s{S_WG}, s{S_WG}, s{S_WU}"),
                 I(f"s_cselect_b32 s{S_WG+1}, s{S_WG+1}, s{S_WU+1}")]))
        L = vLANE
        t = vLN + 24
        A(I(f"v_lshrrev_b32 v{t}, 4, v{L}"))
        A(I(f"v_bfe_u32 v{t+1}, v{L}, 2, 2"))
        A(I(f"v_lshl_add_u32 v{t+1}, v{t}, 3, v{t+1}"))
        A(I(f"s_and_b32 s{sT1}, s{sWAVE}, 1"))
        A(I(f"s_lshl_b32 s{sT2}, s{sT1}, 5"))
        A(I(f"v_add_u32 v{t+1}, s{sT2}, v{t+1}"))
        A(I(f"v_mul_u32_u24 v{t+1}, 2752, v{t+1}"))
        A(I(f"v_and_b32 v{t}, 1, v{t}"))
        A(I(f"v_lshlrev_b32 v{t}, 1, v{t}"))
        A(I(f"v_and_b32 v{t+2}, 3, v{L}"))
        A(I(f"v_xor_b32 v{t}, v{t}, v{t+2}"))
        A(I(f"v_lshl_add_u32 v{t}, v{t}, 4, v{t+1}"))
        A(I(f"s_lshl_b32 s{sT2}, s{sH}, 6"))
        A(I(f"v_add_u32 v{vGA[0]}, s{sT2}, v{t}"))
        A(I(f"v_add_u32 v{vGA[1]}, {4*2752-1024}, v{vGA[0]}"))
        A(I(f"v_bfe_u32 v{t}, v{L}, 3, 2"))
        A(I(f"v_bfe_u32 v{t+1}, v{L}, 1, 2"))
        A(I(f"v_lshl_add_u32 v{t}, v{t}, 3, v{t+1}"))
        A(I(f"v_lshrrev_b32 v{t+1}, 5, v{L}"))
        A(I(f"v_lshl_add_u32 v{t}, v{t+1}, 2, v{t}"))
        A(I(f"s_lshl_b32 s{sT2}, s{sT1}, 6"))
        A(I(f"v_add_u32 v{t}, s{sT2}, v{t}"))
        A(I(f"v_mul_u32_u24 v{t}, 2752, v{t}"))
        A(I(f"v_and_b32 v{t+1}, 1, v{L}"))
        A(I(f"v_lshl_add_u32 v{t}, v{t+1}, 4, v{t}"))
        A(I(f"s_min_u32 s{sT2}, s{sH}, 21"))
        A(I(f"s_lshl_b32 s{sT2}, s{sT2}, 5"))
        A(I(f"s_add_u32 s{sT2}, s{sT2}, 2048"))
        A(Group([I(f"s_cmp_lt_u32 s{sH}, 22"), I(f"s_cselect_b32 s{sT2}, s{sT2}, {OOB}")]))
        A(I(f"v_add_u32 v{vGB[0]}, s{sT2}, v{t}"))
        A(I(f"v_add_u32 v{vGB[1]}, {32*2752-1024}, v{vGB[0]}"))
        A(I(f"s_and_b32 s{sT2}, s{sH}, 1"))
        A(I(f"s_lshl_b32 s{sT2}, s{sT2}, 3"))
        A(Group([I(f"s_cmp_lt_u32 s{sH}, 22"), I(f"s_cselect_b32 s{sT2}, s{sT2}, {OOB}")]))
        A(I(f"v_add_u32 v{vGBS}, s{sT2}, v{vL16[0]}"))
        return c

    def ln_compute(self):
        R = vLN
        X = vLN + 8
        t = vLN + 24
        c = []
        A = c.append
        for i in range(8):
            A(I(f"v_lshlrev_b32 v{X+2*i}, 16, v{R+i}"))
            A(I(f"v_and_b32 v{X+2*i+1}, 0xffff0000, v{R+i}"))

        def reduce32(r):
            for sh in (8, 4, 2, 1):
                A(I(f"v_add_f32_dpp v{r}, v{r}, v{r} row_ror:{sh} row_mask:0xf bank_mask:0xf"))
            A(I(f"v_mov_b32 v{t+7}, v{r}"))
            A(I(f"v_permlane16_swap_b32 v{r}, v{t+7}"))
            A(I(f"v_add_f32 v{r}, v{r}, v{t+7}"))
        A(I(f"v_add_f32 v{t}, v{X}, v{X+1}"))
        A(I(f"v_add_f32 v{t+1}, v{X+2}, v{X+3}"))
        for i in range(4, 16, 2):
            A(I(f"v_add_f32 v{t}, v{t}, v{X+i}"))
            A(I(f"v_add_f32 v{t+1}, v{t+1}, v{X+i+1}"))
        A(I(f"v_add_f32 v{t}, v{t}, v{t+1}"))
        reduce32(t)
        A(I(f"v_mul_f32 v{t}, {fbits(1.0/512)}, v{t}"))
        for i in range(16):
            A(I(f"v_sub_f32 v{X+i}, v{X+i}, v{t}"))
        A(I(f"v_mul_f32 v{t+1}, v{X}, v{X}"))
        A(I(f"v_mul_f32 v{t+2}, v{X+1}, v{X+1}"))
        for i in range(2, 16, 2):
            A(I(f"v_fmac_f32 v{t+1}, v{X+i}, v{X+i}"))
            A(I(f"v_fmac_f32 v{t+2}, v{X+i+1}, v{X+i+1}"))
        A(I(f"v_add_f32 v{t+1}, v{t+1}, v{t+2}"))
        reduce32(t + 1)
        A(I(f"v_mul_f32 v{t+1}, {fbits(1.0/512)}, v{t+1}"))
        A(I(f"v_cvt_pk_bf16_f32 v{t+2}, v{t}, v{t+1}"))
        A(I(f"v_and_b32 v{t+3}, 0xffff0000, v{t+2}"))
        A(I(f"v_lshlrev_b32 v{t+2}, 16, v{t+2}"))
        A(I(f"v_add_f32 v{t+3}, {fbits(1e-5)}, v{t+3}"))
        A(I(f"v_cvt_pk_bf16_f32 v{t+3}, v{t+3}, v{t+3}"))
        A(I(f"v_and_b32 v{t+3}, 0xffff0000, v{t+3}"))
        A(I(f"v_sqrt_f32 v{t+3}, v{t+3}"))
        A(I(f"v_sub_f32 v{t+2}, v{t}, v{t+2}"))
        A(I(f"v_cvt_pk_bf16_f32 v{t+3}, v{t+3}, v{t+3}"))
        A(I(f"v_and_b32 v{t+3}, 0xffff0000, v{t+3}"))
        A(I(f"v_rcp_f32 v{t+3}, v{t+3}"))
        A(I(f"v_and_b32 v{t+4}, 31, v{vLANE}"))
        A(I(f"v_lshrrev_b32 v{t+5}, 5, v{vLANE}"))
        A(I(f"v_mul_f32 v{t+2}, v{t+2}, v{t+3}"))
        A(I(f"v_lshl_add_u32 v{t+4}, v{t+4}, 3, v{t+5}"))
        A(I(f"s_lshl_b32 s{sT1}, s{sWAVE}, 5"))
        A(I(f"s_add_u32 s{sT1}, s{sT1}, {LNBUF}"))
        A(I(f"v_lshl_add_u32 v{t+4}, v{t+4}, 4, s{sT1}"))
        for i in range(16):
            A(I(f"v_fma_f32 v{X+i}, v{X+i}, v{t+3}, v{t+2}"))
        for i in range(8):
            A(I(f"v_cvt_pk_bf16_f32 v{R+i}, v{X+2*i}, v{X+2*i+1}"))
        A(I(f"ds_write_b128 v{t+4}, {vr(R)}"))
        A(I(f"ds_write_b128 v{t+4}, {vr(R+4)} offset:4096"))
        return c

    def ln_store(self):
        R = vLN
        t = vLN + 24
        c = []
        A = c.append
        A(I(f"s_lshl_b32 s{sT1}, s{sWAVE}, 11"))
        A(I(f"s_add_u32 s{sT1}, s{sT1}, {LNBUF}"))
        A(I(f"v_add_u32 v{t}, s{sT1}, v{vL16[0]}"))
        A(I(f"ds_read_b128 {vr(R)}, v{t}"))
        A(I(f"ds_read_b128 {vr(R+4)}, v{t} offset:1024"))
        A(I(f"v_lshrrev_b32 v{t+1}, 3, v{vLANE}"))
        A(I(f"v_and_b32 v{t+2}, 7, v{vLANE}"))
        A(I(f"v_lshlrev_b32 v{t+2}, 4, v{t+2}"))
        A(I(f"v_lshl_add_u32 v{t+1}, v{t+1}, 8, v{t+2}"))
        A(I(f"s_lshr_b32 s{sT1}, s{sB}, 1"))
        A(I(f"s_lshl_b32 s{sT1}, s{sT1}, 14"))
        A(I(f"s_and_b32 s{sT2}, s{sB}, 1"))
        A(I(f"s_lshl_b32 s{sT2}, s{sT2}, 7"))
        A(I(f"s_add_u32 s{sT1}, s{sT1}, s{sT2}"))
        A(I(f"s_lshl_b32 s{sT2}, s{sWAVE}, 12"))
        A(I(f"s_add_u32 s{sT1}, s{sT1}, s{sT2}"))
        if XN_OFF:
            A(I(f"s_add_u32 s{sT1}, s{sT1}, {XN_OFF}"))
        A(I(f"v_add_u32 v{t+1}, s{sT1}, v{t+1}"))
        st = [I(f"buffer_store_dwordx4 {vr(R)}, v{t+1}, {srd(S_WS)}, 0 offen sc1"),
              I(f"buffer_store_dwordx4 {vr(R+4)}, v{t+1}, {srd(S_WS)}, 0 offen offset:2048 sc1")]
        return c + st, st

    def tiles(self):
        T = []
        for c in range(8):
            for half in range(2):
                T.append(dict(typ="R128", srd=S_WUK, kc=c, col=half * 128, vo=vWO, acc=f"K{half}", swap=False,
                              ks0=2 * c, first=(c == 0)))
        for c in range(8):
            for half in range(2):
                T.append(dict(typ="R128", srd=S_WUV, kc=c, col=half * 128, vo=vWO, acc=f"V{half}", swap=True,
                              ks0=2 * c, first=(c == 0)))
        for c in range(4):
            for cc in (2 * c, 2 * c + 1):
                T.append(dict(typ="R64", srd=S_WG, kc=cc, col=0, vo=vGA, acc="GA", swap=False, ks0=2 * cc,
                              first=(cc == 0)))
            T.append(dict(typ="R32", srd=S_WG, kc=2 * c, col=0, vo=vGB, acc="GB", swap=False, ks0=4 * c,
                          first=(c == 0)))
        for half in range(2):
            for c in range(8):
                T.append(dict(typ="R128", srd=S_WQ, kc=c, col=half * 128, vo=vWO, acc=f"Q{half}", swap=False,
                              ks0=2 * c, first=(c == 0)))
        return T

    def tile_dma(self, t):
        fake = self.o.gfake and t["typ"] != "R128" and (self.o.gfake == 1 or t["typ"] == "R32")
        if fake:
            t = t
            vo, sr = vWO, S_WQ
        else:
            vo, sr = t["vo"], t["srd"]
        ops = [I(f"buffer_load_dwordx4 v{vo[p]}, {srd(sr)}, s{sT0} offen offset:{p*1024} {self.o.wflg} lds")
               for p in range(2)]
        t["dma"] = ops
        stride = 8192 if (t["typ"] == "R128" or fake) else 2752
        kc = t["kc"]
        so = [I(f"s_mul_i32 s{sT0}, s{sK2[kc >> 1]}, {stride // 2}")]
        add = (kc & 1) * 64 * stride + t["col"]
        if add:
            so.append(I(f"s_add_u32 s{sT0}, s{sT0}, {add}"))
        return so + [I(f"s_add_u32 m0, s{sW2K}, {t['slot']}"), ops[0], ops[1]]

    def unit_reads(self, t, u, buf):
        base = t["slot"] & 0xffff
        r = []
        for k in range(2):
            for a in range(2):
                d = WFB[buf] + 4 * k + 2 * a
                if t["typ"] == "R128":
                    addr, off = vRD[u], base + k * 4096 + a * 2048
                elif t["typ"] == "R64":
                    addr, off = vRD64[u & 1], base + (u >> 1) * 4096 + k * 2048 + a * 1024
                else:
                    addr, off = vRD32, base + (u & 1) * 4096 + (2 * (u >> 1) + k) * 1024 + a * 512
                r.append(I(f"ds_read_b64_tr_b16 {vr(d,2)}, v{addr} offset:{off}"))
        return batch(r)

    def unit_mfma(self, t, u, buf):
        m = []
        if t["typ"] == "R32":
            wb, ksb, first = u & 1, t["ks0"] + 2 * (u >> 1), t["first"] and u < 2
        else:
            wb, ksb, first = u, t["ks0"], t["first"]
        for tb in range(4):
            d = vr(areg(t["acc"], wb, tb))
            for k in range(2):
                wf, tf = vr(WFB[buf] + 4 * k), ar(TF(tb, ksb + k))
                a, b = (tf, wf) if t["swap"] else (wf, tf)
                m.append(mfma(d, a, b, "0" if (first and k == 0) else d))
        return m

    def tok_dma(self, c):
        ops = [I(f"buffer_load_dwordx4 v{vTO[p]}, {srd(S_CKV)}, s{sT0} offen offset:{(p&3)*1024} {self.o.wflg} lds") for p in range(8)]
        seq = [I(f"s_add_u32 s{sT0}, s{sK2[c >> 1]}, {(c & 1) * 128}")]
        for p in range(8):
            if p & 3 == 0:
                seq.append(I(f"s_add_u32 m0, s{sTOKB}, {(c%3)*8192 + (p>>2)*4096}"))
            seq.append(ops[p])
        return seq, ops

    def tok_reads(self, c):
        return batch([I(f"ds_read_b128 {ar(TF(tb, 2*c+k))}, v{vTRD[k]} offset:{(c%3)*8192 + tb*2048}")
                      for k in range(2) for tb in range(4)])

    def pk_frag(self, d, t0, t1):
        return [I(f"v_cvt_pk_bf16_f32 v{d}, v{t0}, v{t0+1}"), I(f"v_cvt_pk_bf16_f32 v{d+1}, v{t0+2}, v{t0+3}"),
                I(f"v_cvt_pk_bf16_f32 v{d+2}, v{t1}, v{t1+1}"), I(f"v_cvt_pk_bf16_f32 v{d+3}, v{t1+2}, v{t1+3}")]

    def epi_K(self, half):
        c, st = [], []
        ps = f"K{half}"
        for tb in range(4):
            for d2 in range(2):
                p = areg(ps, d2, tb)
                c += self.pk_frag(p, areg(ps, 2 * d2, tb), areg(ps, 2 * d2 + 1, tb))
                st.append(I(f"buffer_store_dwordx4 {vr(p)}, v{vL16[tb]}, {srd(S_WS)}, s{sKFB} offen "
                            f"offset:{(2*half+d2)*1024} {self.o.stflag}"))
        return c, st

    def epi_V(self, half):
        c, st = [], []
        ps = f"V{half}"
        for wb in range(4):
            for sp in range(2):
                p = areg(ps, wb & 1, 2 * sp + (wb >> 1))
                c += self.pk_frag(p, areg(ps, wb, 2 * sp), areg(ps, wb, 2 * sp + 1))
                st.append(I(f"buffer_store_dwordx4 {vr(p)}, v{vL16[2*sp+half]}, {srd(S_WS)}, s{sVFB} offen "
                            f"offset:{wb*1024} {self.o.stflag}"))
        return c, st

    def gelu4(self, g, u):
        c = []
        for i in (0, 2):
            a, b = g + i, g + i + 1
            c += [I(f"v_mul_f32 v{vG0}, v{a}, v{a}"), I(f"v_mul_f32 v{vG1}, v{b}, v{b}"),
                  I(f"v_fmaak_f32 v{vG0}, v{vG0}, v{vGK}, {fbits(GK0)}"),
                  I(f"v_fmaak_f32 v{vG1}, v{vG1}, v{vGK}, {fbits(GK0)}"),
                  I(f"v_mul_f32 v{vG0}, v{vG0}, v{a}"), I(f"v_mul_f32 v{vG1}, v{vG1}, v{b}"),
                  I(f"v_exp_f32 v{vG0}, v{vG0}"), I(f"v_exp_f32 v{vG1}, v{vG1}"),
                  I(f"v_mul_f32 v{a}, v{a}, v{u+i}"), I(f"v_mul_f32 v{b}, v{b}, v{u+i+1}"),
                  I(f"v_add_f32 v{vG0}, 1.0, v{vG0}"), I(f"v_add_f32 v{vG1}, 1.0, v{vG1}"),
                  I(f"v_rcp_f32 v{vG0}, v{vG0}"), I(f"v_rcp_f32 v{vG1}, v{vG1}"),
                  I(f"v_mul_f32 v{a}, v{a}, v{vG0}"), I(f"v_mul_f32 v{b}, v{b}, v{vG1}")]
        return c

    def epi_GA(self):
        c, st = [], []
        for tb in range(4):
            T = lambda wb: areg("GA", wb, tb)
            c += self.gelu4(T(0), T(2)) + self.gelu4(T(1), T(3))
            p = T(0)
            c += self.pk_frag(p, T(0), T(1))
            s = I(f"buffer_store_dwordx4 {vr(p)}, v{vL16[0]}, {srd(S_WS)}, s{sZH[tb]} offen {self.o.stflag}")
            c.append(s)
            st.append(s)
        return c, st

    def epi_GB(self):
        c, st = [], []
        for tb in range(4):
            g, u = areg("GB", 0, tb), areg("GB", 1, tb)
            c += self.gelu4(g, u)
            p = g
            c += [I(f"v_cvt_pk_bf16_f32 v{p}, v{g}, v{g+1}"), I(f"v_cvt_pk_bf16_f32 v{p+1}, v{g+2}, v{g+3}")]
            s = I(f"buffer_store_dwordx2 {vr(p,2)}, v{vGBS}, {srd(S_WS)}, s{sT3} offen {self.o.stflag}")
            c.append(Group([I(f"s_add_u32 s{sT3}, s{sZH[tb]}, s{sGBD}"), s]))
            st.append(s)
        return c, st

    def epi_Q(self, half, q):
        c = []
        for d2 in range(2):
            t0, t1 = areg(f"Q{half}", 2 * d2, q), areg(f"Q{half}", 2 * d2 + 1, q)
            for r in list(range(t0, t0 + 4)) + list(range(t1, t1 + 4)):
                c.append(I(f"v_mul_f32 v{r}, s{sQS}, v{r}"))
            p = t0
            c += self.pk_frag(p, t0, t1)
            for r in range(4):
                c.append(I(f"v_accvgpr_write_b32 a{gQ(q, 2*half+d2)+r}, v{p+r}"))
        return c

    def flag_store(self, s):
        return I(f"buffer_store_dword v{vC1}, v{vONE}, {srd(S_WS)}, s{s} offen sc1")

    def att_setup(self):
        c = []
        A = c.append
        A(I(f"s_lshl_b32 s{sT1}, s{sH}, 19"))
        A(I(f"s_and_b32 s{sT2}, s{sWAVE}, 1"))
        A(I(f"s_lshl_b32 s{sT2}, s{sT2}, 12"))
        A(I(f"s_add_u32 s{sT1}, s{sT1}, s{sT2}"))
        A(I(f"s_lshl_b32 s{sT3}, s{sW}, 2"))
        A(I(f"s_sub_u32 s{sT3}, 64, s{sT3}"))
        A(I(f"s_lshl_b32 s{sT3}, s{sT3}, 13"))
        A(I(f"s_sub_u32 s{sT3}, s{sT3}, s{sT2}"))
        A(Group([I(f"s_cmp_lt_u32 s{sWAVE}, 2"), I(f"s_cselect_b32 s{sT2}, {VF_OFF - KF_OFF - 16384}, 0")]))
        A(I(f"s_add_u32 s{sT1}, s{sT1}, s{sT2}"))
        A(I(f"s_add_u32 s{sT1}, s{sT1}, {KF_OFF + 16384}"))
        A(Group([I(f"s_cmp_lt_u32 s{sWAVE}, 2"), I(f"s_cselect_b32 s{sT2}, 0, 16384")]))
        A(I(f"s_sub_u32 s{S_KV+2}, s{sT3}, s{sT2}"))
        A(Group([I(f"s_add_u32 s{S_KV}, s{S_WS}, s{sT1}"), I(f"s_addc_u32 s{S_KV+1}, s{S_WS+1}, 0")]))
        A(I(f"s_lshr_b32 s{sT1}, s{sWAVE}, 1"))
        A(I(f"s_sub_u32 s{sT2}, 3, s{sT1}"))
        A(I(f"s_lshl_b32 s{sT3}, s{sW}, 2"))
        A(I(f"s_add_u32 s{sNM1[3]}, s{sT3}, s{sT1}"))
        A(I(f"s_add_u32 s{sNM1[2]}, s{sT3}, s{sT2}"))
        A(I(f"s_sub_u32 s{sT3}, 60, s{sT3}"))
        A(I(f"s_add_u32 s{sNM1[1]}, s{sT3}, s{sT1}"))
        A(I(f"s_add_u32 s{sNM1[0]}, s{sT3}, s{sT2}"))
        for q in range(4):
            A(I(f"s_sub_u32 s{sNM2[q]}, s{sNM1[q]}, 1"))
        return c

    def att_events(self):
        c = []
        A = c.append
        m = sum(1 << j for j in range(0, 64, self.o.G))
        A(I(f"s_mov_b32 s{sEV}, {m & 0xffffffff:#x}"))
        A(I(f"s_mov_b32 s{sEV+1}, {m >> 32:#x}"))
        m = (1 << (2 * self.o.G)) | (1 << (3 * self.o.G))
        A(I(f"s_lshl_b32 s{sJL}, s{sW}, 2"))
        A(I(f"s_sub_u32 s{sJL}, 60, s{sJL}"))
        A(I(f"s_mov_b32 s{sSP}, {m:#x}"))
        A(I(f"s_mov_b32 s{sSP+1}, 0"))
        A(I(f"s_mov_b32 s{sMASK}, 0x40004000"))
        for q in range(4):
            A(I(f"s_bitset1_b64 s[{sSP}:{sSP+1}], s{sNM1[q]}"))
            A(I(f"s_bitset1_b64 s[{sSP}:{sSP+1}], s{sNM2[q]}"))
        A(I(f"s_bitset1_b64 s[{sSP}:{sSP+1}], s{sJL}"))
        A(I(f"s_or_b64 s[{sEV}:{sEV+1}], s[{sEV}:{sEV+1}], s[{sSP}:{sSP+1}]"))
        return c

    def att_dma(self, tile=None):
        return [I(f"buffer_load_dwordx4 v{vL16[0]}, {srd(S_KV)}, s{sSOFF} offen offset:{p*1024} {self.o.ldflag} lds")
                for p in range(4)]

    def pf_load(self, voff, sr, soff="0", dst=None):
        x = I(f"buffer_load_dword {dst or 'v%d' % vG0}, v{voff}, {srd(sr)}, {soff} offen")
        x.defs = []
        return x

    def prefetch0(self):
        L = vLANE
        t = 16
        c = [I(f"v_lshrrev_b32 v{t}, 1, v{L}"), I(f"v_and_b32 v{t+1}, 1, v{L}"),
             I(f"s_lshl_b32 s{sT1}, s{sW}, 2"), I(f"s_add_u32 s{sT1}, s{sT1}, s{sWAVE}"),
             I(f"s_lshl_b32 s{sT2}, s{sT1}, 17"), I(f"s_lshl_b32 s{sT3}, s{sH}, 8"),
             I(f"s_add_u32 s{sT2}, s{sT2}, s{sT3}"),
             I(f"v_lshlrev_b32 v{t}, 13, v{t}"), I(f"v_lshl_add_u32 v{t}, v{t+1}, 7, v{t}"),
             I(f"v_add_u32 v{t}, s{sT2}, v{t}"),
             I(f"v_mov_b32 v{t+2}, {OOB}"), I(f"v_cmp_gt_u32 vcc, 32, v{L}"),
             I(f"s_lshl_b32 s{sT1}, s{sT1}, 16"), I(f"s_and_b32 s{sT3}, s{sH}, 3"),
             I(f"v_cndmask_b32 v{vPFW}, v{t+2}, v{t}, vcc"),
             I(f"s_lshl_b32 s{sT3}, s{sT3}, 14"), I(f"s_add_u32 s{sT1}, s{sT1}, s{sT3}"),
             I(f"s_add_u32 s{sT1}, s{sT1}, {3*128}"),
             I(f"v_and_b32 v{t}, 15, v{L}"), I(f"v_lshrrev_b32 v{t+1}, 4, v{L}"),
             I(f"v_lshlrev_b32 v{t}, 10, v{t}"), I(f"v_lshl_add_u32 v{t}, v{t+1}, 7, v{t}"),
             I(f"v_add_u32 v{vPFW+1}, s{sT1}, v{t}")]
        return c, self.pf_load(vPFW + 1, S_CKV), self.pf_load(vPFW, S_WUK)

    def prefetch_code(self, lo=None, hi="L_exit", dst=None, vl=None, st=sT1):
        pc = self.lab("pc")
        c = [Group([I(f"s_getpc_b64 s[{sM0}:{sM0+1}]"), I(f"{pc}:"),
                    I(f"s_sub_u32 s{sM0}, s{sM0}, {pc}-{KNAME}"), I(f"s_subb_u32 s{sM0+1}, s{sM0+1}, 0")]),
             I(f"s_mov_b32 s{sM0+2}, {hi}-{KNAME}"), I(f"s_mov_b32 s{sM0+3}, 0x20000"),
             I(f"s_lshr_b32 s{st}, s{sB}, 3"), I(f"s_lshl_b32 s{st}, s{st}, 2"),
             I(f"s_add_u32 s{st}, s{st}, s{sWAVE}"), I(f"s_lshl_b32 s{st}, s{st}, 10")]
        if lo:
            c.append(I(f"s_add_u32 s{st}, s{st}, {lo}-{KNAME}"))
        if vl is None:
            c.append(I(f"v_lshlrev_b32 v21, 4, v{vLANE}"))
            vl = 21
        x = I(f"buffer_load_dwordx4 {dst or vr(172)}, v{vl}, {srd(sM0)}, s{st} offen")
        if dst and dst.startswith("a"):
            x.defs = []
        return c + [x]

    def ex_prefill(self):
        D = WFB[3]
        c = [I(f"v_mov_b32 v{D+r}, -1") for r in range(4)]
        c += [I(f"s_bfe_u32 s{sT1}, s{sB}, 0x10002"), I(f"s_lshl_b32 s{sT1}, s{sT1}, 5"),
              I(f"s_lshr_b32 s{sT2}, s{sB}, 3"), I(f"s_add_u32 s{sT1}, s{sT1}, s{sT2}"),
              I(f"s_mul_i32 s{sT1}, s{sT1}, {4*3*8192}"), I(f"s_lshl_b32 s{sT2}, s{sWAVE}, 11"),
              I(f"s_add_u32 s{sT1}, s{sT1}, s{sT2}"), I(f"s_add_u32 s{sT1}, s{sT1}, {EX_OFF}")]
        st = []
        for p in range(1, 4):
            c += [I(f"s_add_u32 s{sT2}, s{sB}, {p}"), I(f"s_and_b32 s{sT2}, s{sT2}, 3"),
                  I(f"s_mul_i32 s{sT2}, s{sT2}, {3*8192}"), I(f"s_add_u32 s{sT2}, s{sT2}, s{sT1}"),
                  I(f"s_add_u32 s{sT3}, s{sT2}, {(p-1)*8192}")]
            x = [I(f"buffer_store_dwordx4 {vr(D)}, v{vL16[0]}, {srd(S_WS)}, s{sT3} offen offset:{tb*1024} sc1")
                 for tb in range(2)]
            c += x
            st += x
        return c, st

    def prefetch_xn(self):
        L = vLANE
        t = WFB[3]
        c = [I(f"s_and_b32 s{sT1}, s{sH}, 3"), I(f"s_lshl_b32 s{sT1}, s{sT1}, 12"),
             I(f"v_and_b32 v{t}, 31, v{L}"), I(f"v_lshlrev_b32 v{t}, 7, v{t}"), I(f"v_add_u32 v{t}, s{sT1}, v{t}"),
             I(f"v_cmp_gt_u32 vcc, 32, v{L}")]
        for k in range(2):
            c += [I(f"v_mov_b32 v{t+1}, s{sXN[2*k]}"), I(f"v_mov_b32 v{t+2}, s{sXN[2*k+1]}"),
                  I(f"v_cndmask_b32 v{t+1}, v{t+2}, v{t+1}, vcc"), I(f"v_add_u32 v{t+4+k}, v{t}, v{t+1}"),
                  self.pf_load(t + 4 + k, S_WS)]
        return c

    def prefetch1(self):
        L = vLANE
        t = vLN + 34
        a = [self.pf_load(vPFW, S_WUV)]
        b = [self.pf_load(vPFW, S_WQ)]
        t = WFB[3]
        c = [I(f"s_lshr_b32 s{sNM1[0]}, s{sB}, 3"), I(f"s_lshl_b32 s{sNM1[0]}, s{sNM1[0]}, 2"),
             I(f"s_add_u32 s{sNM1[0]}, s{sNM1[0]}, s{sWAVE}"), I(f"s_lshl_b32 s{sNM1[0]}, s{sNM1[0]}, 2"),
             I(f"v_lshrrev_b32 v{t}, 3, v{L}"), I(f"v_add_u32 v{t}, s{sNM1[0]}, v{t}"),
             I(f"v_mul_u32_u24 v{t}, 2752, v{t}"),
             I(f"s_and_b32 s{sNM1[1]}, s{sB}, 7"), I(f"s_lshl_b32 s{sNM1[2]}, s{sNM1[1]}, 8"),
             I(f"s_lshl_b32 s{sNM1[1]}, s{sNM1[1]}, 7"), I(f"s_add_u32 s{sNM1[1]}, s{sNM1[1]}, {2048 - 3*124}"),
             I(f"v_and_b32 v{t+1}, 7, v{L}"), I(f"v_mul_u32_u24 v{t+2}, 124, v{t+1}"),
             I(f"v_mov_b32 v{t+3}, s{sNM1[2]}"), I(f"v_mov_b32 v{t+4}, s{sNM1[1]}"),
             I(f"v_cmp_gt_u32 vcc, 3, v{t+1}"),
             I(f"v_cndmask_b32 v{t+3}, v{t+4}, v{t+3}, vcc"),
             I(f"v_add3_u32 v{t}, v{t}, v{t+2}, v{t+3}"),
             I(f"v_lshrrev_b32 v{t+2}, 5, v{L}"), I(f"v_lshlrev_b32 v{t+2}, 3, v{t+2}"),
             I(f"v_add_u32 v{t+1}, v{t+1}, v{t+2}"), I(f"v_mov_b32 v{t+2}, {OOB}"),
             I(f"v_cmp_gt_u32 vcc, 5, v{t+1}"),
             I(f"v_cndmask_b32 v{t}, v{t+2}, v{t}, vcc")]
        c += [self.pf_load(t, S_WG), self.pf_load(t, S_WU)]
        return a, b, c

    def prefetch2(self, early=False):
        L = vLANE
        t = WFB[3] + 4 if early else vT[0]
        dst = f"v{vG0+3}" if early else "a200"
        c = [I(f"s_lshl_b32 s{sT1}, s{sB}, 2") if early else I(f"s_and_b32 s{sT1}, s{sB}, 0xfc"),
             I(f"s_add_u32 s{sT1}, s{sT1}, s{sWAVE}"),
             I(f"s_lshl_b32 s{sT2}, s{sT1}, 12"),
             I(f"s_lshl_b32 s{sT1}, s{sB}, 2"), I(f"s_add_u32 s{sT1}, s{sT1}, s{sWAVE}"),
             I(f"v_and_b32 v{t}, 31, v{L}"),
             I(f"v_lshlrev_b32 v{t}, 7, v{t}"), I(f"v_add_u32 v{t}, s{sT2}, v{t}"),
             I(f"s_mul_i32 s{sT2}, s{sT1}, {11*128}"), I(f"v_min_u32 v{t+1}, 10, v{L}"),
             I(f"v_lshlrev_b32 v{t+1}, 7, v{t+1}"), I(f"v_add_u32 v{t+1}, s{sT2}, v{t+1}"),
             self.pf_load(t, S_WO, dst=dst), self.pf_load(t + 1, S_WD, dst=dst)]
        return c

    def phase12(self):
        o = self.o
        T = self.tiles()
        NT = len(T)
        pre = self.setup()
        later = pre[self.n_first:]
        pre = pre[:self.n_first]
        A = pre.append
        A(I("s_waitcnt lgkmcnt(0)"))
        if o.wsoff:
            pre += [I(f"s_add_u32 s{S_WS}, s{S_WS}, {o.wsoff << 20}"), I(f"s_addc_u32 s{S_WS+1}, s{S_WS+1}, 0")]
        pre += self.stamp()
        zpre = [I(f"s_mul_i32 s{sT1}, s{sWAVE}, 3072"), I(f"s_add_u32 s{sT1}, s{sT1}, {FL_OFF}"),
                I(f"s_cmp_eq_u32 s{sB}, 0"), I(f"s_cselect_b32 s{sT1}, s{sT1}, {OOB}"),
                I(f"v_lshlrev_b32 v20, 4, v{vLANE}")] + [I(f"v_mov_b32 v{r}, 0") for r in range(24, 28)]
        zero = [I(f"buffer_store_dwordx4 v[24:27], v20, {srd(S_WS)}, s{sT1} offen offset:{k*1024} sc1") for k in range(3)]
        s0, tok0 = self.tok_dma(0)
        pre += s0
        for n in range(4):
            T[n]["slot"] = n * 8192
        pre += self.tile_dma(T[0]) + self.tile_dma(T[1])
        lnl = [I(f"buffer_load_dwordx4 {vr(vLN)}, v{vLN+32}, {srd(S_X)}, 0 offen"),
               I(f"buffer_load_dwordx4 {vr(vLN+4)}, v{vLN+32}, {srd(S_X)}, 0 offen offset:512")]
        pre += later[:7]
        if o.lnpos == 1:
            pre += lnl
        pre += later[7:]
        c, pfa, pfb = self.prefetch0()
        if o.prefetch & (1 | 4 | 16 | 32):
            pre += c
        if o.prefetch & 16:
            pre += [pfa, pfb]
        aux = (self.prefetch_code() if o.pfcode & 1 else []) + zpre + zero
        if o.pfpos == 0:
            pre += aux
        pre += self.setup2()
        s1, tok1 = self.tok_dma(1)
        pre += s1
        pre += self.tile_dma(T[2]) + self.tile_dma(T[3])
        if not o.lnlate and o.lnpos == 0:
            pre += lnl
        if o.pfpos == 1:
            pre += aux
        tokd = {0: tok0, 1: tok1}
        pre.append(Need(tok0))
        rd0 = self.tok_reads(0)
        pre += rd0
        pre.append(Need([T[n]["dma"] for n in range(2)] + (zero if o.pfpos == 0 else []), lg0=True))
        pre.append(I("s_barrier"))
        ready = [I(f"s_cmp_eq_u32 s{sB}, 0"), I(f"s_cselect_b32 s{sPOLL}, 0, {OOB}"),
                 I(f"buffer_store_dword v{vC1}, v{vONE}, {srd(S_DBG)}, s{sPOLL} offen sc1")]
        if o.pfpos == 0:
            pre += ready
        pre += self.stamp() + self.holdmark("bar0")
        NB = o.wdist + 1
        for U in range(o.wdist):
            pre += self.unit_reads(T[0], U, U)

        mf = []
        for n, t in enumerate(T):
            for u in range(4):
                mf += self.unit_mfma(t, u, (4 * n + u) % NB)
        tasks = []
        bstart = list(range(2, 16, 2)) + list(range(16, NT, o.G12))
        bg = lambda n0: 32 * n0 - 8 * o.wdist + 3
        extra_need = {n0: [] for n0 in bstart}
        release = lambda n: bg(min([b for b in bstart if b > n] + [NT + 1]))
        own_bar = lambda n: bg(max(b for b in bstart if b <= n))
        KVF = 1712
        free_at = {sl: -1 for sl in range(7)}
        free_at.update({sl: bg(14) + 1 for sl in range(7, 20)})
        for n in range(4):
            free_at[n] = release(n)
        want = {4: 0, 5: 50, 6: 84, 7: 120, 8: 130, 9: 180, 10: 200, 11: 236, 12: 260, 13: 300, 14: 320, 15: 340}
        for n in range(16, NT):
            want[n] = max(360 + 14 * (n - 16), 32 * (n - o.lead12))
        if o.gearly:
            early = [34, 32, 37, 33, 40, 35, 43, 36][:o.gearly]
            for n in range(16, 32):
                want[n] = max(360 + 14 * (n - 16), 32 * (n - 7))
            for i, n in enumerate(early):
                want[n] = o.ge0 + o.gestep * i
            for n in range(32, NT):
                if n not in early:
                    want[n] = 32 * (n - (7 if n < 44 else o.lead12))
        events = [(want[n], "W", n) for n in range(4, NT)]
        tokwant = {(2, 0): 8, (2, 1): 24, (3, 0): 40, (3, 1): 64, (4, 0): 92, (4, 1): 106, (5, 0): 154, (5, 1): 168,
                   (6, 0): 218, (6, 1): 242, (7, 0): 282, (7, 1): 308}
        if o.tokmode == 1:
            tokwant = {}
            for c in range(2, 8):
                tokwant[(c, 0)] = 64 * (c - 2) + 10
                tokwant[(c, 1)] = 64 * (c - 2) + 27
            for n in range(4, 16):
                want[n] = 64 * ((n - 4) // 2) + (0 if n % 2 == 0 else 46)
            events = [(want[n], "W", n) for n in range(4, NT)]
        events += [(v, "T", k) for k, v in tokwant.items()]
        events.append((KVF, "KV", None))
        events.sort(key=lambda e: e[0])
        tokrd = {c: self.tok_reads(c) for c in range(1, 8)}
        tokrd[0] = rd0
        tokw = {1: (18, 36) if o.tokmode == 0 else (30, 50)}
        for c in range(2, 8):
            tokw[c] = (64 * (c - 1) + 2, 64 * (c - 1) + 22) if o.tokmode == 0 else (64 * (c - 1) + 30, 64 * (c - 1) + 50)
            tasks.append(Task(f"tokrd{c}", [Need([lambda c=c: tokd[c]])] + tokrd[c], *tokw[c], prio=1))
        tasks.append(Task("tokrd1", [Need(tok1)] + tokrd[1], *tokw[1], prio=1))
        tseq = {}
        for c in range(2, 8):
            seq, ops = self.tok_dma(c)
            tokd[c] = ops
            tseq[(c, 0)] = ([Need(tokrd[c - 3])] if c >= 4 else []) + seq[:6]
            tseq[(c, 1)] = [I(seq[0].text)] + seq[6:]
        k01 = [I(f"buffer_load_dwordx4 v{vL16[0]}, {srd(S_WS)}, s{sT0} offen offset:{p*1024} {self.o.ldflag} lds")
               for p in range(4)]
        kvseq = [I(f"s_lshl_b32 s{sT0}, s{sH}, 19"), I(f"s_lshl_b32 s{sWR}, s{sWAVE}, 12"),
                 I(f"s_add_u32 s{sT0}, s{sT0}, s{sWR}"), I(f"s_add_u32 s{sT0}, s{sT0}, {KF_OFF}"),
                 I(f"s_add_u32 m0, s{sWR}, {6*16384}")] + k01
        self.att_first = list(k01)
        for j in range(3):
            d = self.att_dma()
            kvseq += [I(f"s_add_u32 m0, s{sWR}, {(7+j)*16384}"), I(f"s_mov_b32 s{sSOFF}, {j*8192}")] + d
            self.att_first += d
        m0ent = []
        cur = 0
        for w, kind, k in events:
            lo = max(w, cur)
            if kind == "W":
                ok = [sl for sl in free_at if sl < 12 or release(k) <= KVF]
                sl = min(ok, key=lambda x: (max(free_at[x], lo), x))
                lo = max(lo, free_at[sl] + 1)
                free_at[sl] = release(k)
                T[k]["slot"] = sl * 8192
                seq = self.tile_dma(T[k])
                ln = 10 if lo < 512 else (14 if o.gearly and lo < 760 else 24)
                assert lo + ln < own_bar(k) - 24, (k, lo, own_bar(k))
                T[k]["issue"] = lo
            elif kind == "T":
                seq = tseq[k]
                if k[0] >= 4:
                    lo = max(lo, tokw[k[0] - 3][1] + 1)
                ln = 15
                assert lo + ln < tokw[k[0]][0] - 24, (k, lo)
            else:
                seq = kvseq
                ln = 110
            prev_scalar = False
            for x in seq:
                mind = 1 if (x.kind == "dma" and prev_scalar) else 0
                prev_scalar = x.kind == "salu"
                m0ent.append((x, lo, lo + ln, mind))
            cur = lo + (ln if ln < 100 else 0) - 2
        tasks.append(Task("m0", m0ent, prio=1))
        print("W issue gap / slot:", [(T[n]["issue"], T[n]["slot"] >> 13) for n in range(4, NT)], file=sys.stderr)
        win = {"R128": 0, "R64": 0, "R32": 0}
        aregs = {"R128": vRD, "R64": vRD64, "R32": [vRD32]}
        for U in range(o.wdist, 4 * NT):
            n, u = divmod(U, 4)
            lo = 8 * (U - o.wdist)
            rd = self.unit_reads(T[n], u, U % NB)
            ty, wn = T[n]["typ"], T[n]["slot"] >> 16
            if wn != win[ty]:
                sw = "v_add_u32" if wn > win[ty] else "v_subrev_u32"
                fix = [I(f"{sw} v{r}, {abs(wn - win[ty]) << 16:#x}, v{r}") for r in aregs[ty]]
                win[ty] = wn
                if T[n - 1]["typ"] == ty:
                    rd = [Group(fix + [rd[0]])] + rd[1:]
                else:
                    tasks.append(Task(f"rdfix{U}", fix, lo - 24, lo - 1, prio=1))
            if u == 0 and n in bstart:
                tasks.append(Task(f"rd{U}", rd, lo + 4, lo + 7, prio=0, tight=True))
            elif u == 3 and n + 1 in bstart:
                tasks.append(Task(f"rd{U}", rd, lo, lo + 3, prio=0, tight=True))
            else:
                tasks.append(Task(f"rd{U}", rd, lo, lo + o.wwin, prio=0))
        if o.pfpos == 1:
            extra_need[2] += zero
            tasks.append(Task("ready", [Group(ready[:2]), ready[2]], bg(2) + 2, bg(2) + 8, prio=3))
        k = 2 * o.lnlate
        if o.lnlate and o.lnpos == 0:
            tasks.append(Task("lnld", lnl, 2, 12, prio=2))
        tasks.append(Task("ln", self.ln_compute(), o.lnstart, bg(4 + k) - 2, prio=3))
        c, lnst = self.ln_store()
        tasks.append(Task("lnst", c, bg(4 + k) + 2, 145 + 32 * k, prio=3))
        extra_need[8 + k] += lnst
        tasks.append(Task("flagxn", [self.flag_store(sFXN)], bg(8 + k) + 4, bg(8 + k) + 10, prio=3))
        if o.prefetch & 1:
            tasks.append(Task("pf0a", [pfa], 1, 4, prio=0))
        if o.prefetch & 4:
            tasks.append(Task("pf0b", [pfb], 30, 36, prio=0))
        if o.prefetch & 8:
            tasks.append(Task("pfxn", self.prefetch_xn(), o.xnchk + 14, o.xnchk + 14 + o.pfxw, prio=3))
        if o.prefetch & 2:
            a, b, c = self.prefetch1()
            if o.prefetch & 32:
                if o.pa:
                    tasks.append(Task("pf1a", a, o.pa, o.pa + 8, prio=3))
                if o.pb:
                    tasks.append(Task("pf1b", b, o.pb, o.pb + 8, prio=3))
                if o.pc:
                    tasks.append(Task("pf1c", c, o.pc, o.pc + 30, prio=3))
        tasks.append(Task("setup3", self.setup3(), 153 + 32 * k, 218 + 32 * k, prio=4))
        tasks.append(Task("setup4", self.setup4(), 472, 510, prio=4))
        tasks.append(Task("gate", [self.poll_load(vPOLL, S_DBG, vC0, "0")], 146 + 32 * k, 152 + 32 * k, prio=3))
        tasks.append(Task("gatechk", self.poll_check(vPOLL, S_DBG, vC0, "0", "1", split=True), 220 + 32 * k, 232 + 32 * k, prio=3))
        tasks.append(Task("xnpoll", [I(f"s_lshl_b32 s{sPOLL}, s{sW}, 7"), I(f"s_add_u32 s{sPOLL}, s{sPOLL}, {FL_XN}"),
                                     self.poll_load(vPOLL, S_WS, vPO32, f"s{sPOLL}")], o.xnchk - 90, o.xnchk - 80, prio=3))
        tasks.append(Task("xnchk", self.poll_check(vPOLL, S_WS, vPO32, f"s{sPOLL}", "1", split=True), o.xnchk, o.xnchk + 12, prio=3))
        pk, sts = zip(self.epi_K(0), self.epi_K(1), self.epi_V(0), self.epi_V(1))
        tasks.append(Task("epiK0", pk[0], 490, 540, prio=5))
        tasks.append(Task("epiK1", pk[1], 521, 558, prio=4))
        tasks.append(Task("epiV0", pk[2], 1001, 1038, prio=4))
        tasks.append(Task("epiV1", pk[3], 1039, 1086, prio=5))
        allst = [x for l in sts for x in l]
        ent = []
        for k, x in enumerate(allst):
            if k < 16:
                lo = int(545 + k * (1020 - 545) / 16)
            else:
                lo = max(int(1045 + (k - 16) * (o.st_hi - 1045) / 16), 1088 if k >= 24 else 0)
            ent.append((x, lo, lo + 12))
        tasks.append(Task("epistores", ent, prio=2))
        extra_need[48] += allst
        tasks.append(Task("flagkv", [self.flag_store(sFKV)], bg(48) + 4, bg(48) + 10, prio=3))
        for c in range(8):
            ld = [I(f"buffer_load_dwordx4 {ar(TF(tb, 2*c+k))}, v{vX16[(2*c+k)>>2]}, {srd(S_CKV if o.xnsrc else S_WS)}, s{sXN[tb]} offen "
                    f"offset:{((2*c+k)&3)*1024} {self.o.ldflag}") for k in range(2) for tb in range(4)]
            lo = max(580 + 64 * c, o.xn0 + o.xnslope * c)
            tasks.append(Task(f"xn{c}", batch(ld), lo, lo + o.xnslope - 2, prio=2))
        c, stA = self.epi_GA()
        tasks.append(Task("epiGA", c, 1416, 1660, prio=5))
        c, stB = self.epi_GB()
        tasks.append(Task("epiGB", c, 1661, 1790, prio=5))
        self.h_stores = stA + stB
        if o.sentinel:
            c, stP = self.ex_prefill()
            if o.p2early and o.prefetch & 2:
                c = self.prefetch2(True) + c
            tasks.append(Task("exfill", c, 1425, 1565, prio=3))
            self.h_stores += stP
        c = [I(f"s_mov_b32 s{sQS}, {fbits(QSCALE)}")]
        for q in range(4):
            c += self.epi_Q(0, q)
        tasks.append(Task("epiQ0", c, 1700, 1830, prio=5))
        tasks.append(Task("attsetup", self.att_setup(), 1570, 1655, prio=4))
        tasks.append(Task("attev", self.att_events(), 1840, 1900, prio=4))
        if o.pfcode & 2:
            tasks.append(Task("pfcode2", self.prefetch_code("L_att", "L_p4", vr(WFB[3] + 4), vL16[0], sJL + 1),
                              1800, 1830, prio=3))
        tasks.append(Task("p4setup", self.p4_setup() + self.p4_setup_vec(), 1795, 1915, prio=4))
        kvp = [I(f"s_lshl_b32 s{sPOLL}, s{sH}, 7"), I(f"s_add_u32 s{sPOLL}, s{sPOLL}, {FL_KV}"),
               self.poll_load(vPOLL, S_WS, vPO8, f"s{sPOLL}")]
        tasks.append(Task("kvpoll", kvp, 1620, 1630, prio=3))
        tasks.append(Task("kvchk", self.poll_check(vPOLL, S_WS, vPO8, f"s{sPOLL}", "1", split=True), 1700, 1710, prio=3))
        zr = lambda a, b: [I(f"v_mov_b32 v{r}, 0") for r in range(a, b)]
        tasks.append(Task("zeroO5", zr(160, 192), 1662, 1760, prio=6))
        tasks.append(Task("zeroO3", zr(96, 128), 1792, 1870, prio=6))
        tasks.append(Task("zeroO24", zr(64, 96) + zr(128, 160), 1832, 1920, prio=6))
        g = [I(f"v_lshrrev_b32 v{vT[0]}, 4, v{vLANE}"), I(f"v_and_b32 v{vT[1]}, 15, v{vLANE}"),
             I(f"v_lshlrev_b32 v{vT[0]}, 2, v{vT[0]}"), I(f"v_sub_u32 v{vT[1]}, v{vT[1]}, v{vT[0]}"),
             I(f"v_and_b32 v{vT[0]}, 64, v0") if False else I(f"v_mov_b32 v{vT[0]}, s{sWAVE}"),
             I(f"v_and_b32 v{vT[0]}, 1, v{vT[0]}"), I(f"v_lshlrev_b32 v{vT[0]}, 4, v{vT[0]}"),
             I(f"v_add_u32 v{vDM[1]}, v{vT[0]}, v{vT[1]}"), I(f"v_sub_u32 v{vT[0]}, 16, v{vT[0]}"),
             I(f"v_add_u32 v{vDM[0]}, v{vT[0]}, v{vT[1]}"), I(f"v_mov_b32 v{vT[2]}, 0x3f803f80")]
        tasks.append(Task("attvec", g, 1610, 1655, prio=6))
        g = [I(f"v_accvgpr_write_b32 a{gONE+r}, v{vT[2]}") for r in range(4)]
        g += [I(f"v_accvgpr_write_b32 a{r}, 0") for r in range(gL(0), gL(0) + 16)]
        tasks.append(Task("attacc", g, 1828, 1900, prio=6))
        for k, n0 in enumerate(bstart):
            n1 = bstart[k + 1] if k + 1 < len(bstart) else NT
            ops = [T[n]["dma"] for n in range(n0, n1)] + extra_need[n0]
            bar = [Need(ops, lg0=True), I("s_barrier")]
            tasks.append(Task(f"bar{n0}", [Group(bar if o.timeit else self.timed(bar))], bg(n0), bg(n0),
                              prio=-1))
        for nm, gp in (("K", 514), ("V", 1026), ("Q", 1916)):
            if self.holdmark(nm):
                tasks.append(Task("holdmark", self.holdmark(nm), gp, gp, prio=7))
        if o.stamps:
            for gp in [int(x) for x in o.stampat.split(",")]:
                tasks.append(Task("stamp", self.stamp(), gp + 2, gp + 2, prio=7))
        if o.drop:
            dr = o.drop.split(",")
            if "stores" in dr:
                dr = [d for d in dr if d != "stores"] + ["epistores"]
            for t in tasks:
                if "epistores" in dr and t.name.startswith("epiG"):
                    t.instrs = [x for x in t.instrs if not any(y.kind == "vstore" for y in flatten([x]))]
            tasks = [t for t in tasks if not any(t.name.startswith(d) for d in dr)]
        body = schedule(mf, tasks, o.budget, self.reports, reserve=range(0, len(mf), 8), seed=o.seed, vmw=o.vmw, ldw=o.ldw12)
        if o.timeit:
            nb = []
            for x in flatten(body):
                hit = {"st": x.kind == "vstore", "ld": x.kind == "vload", "dma": x.kind == "dma",
                       "need": x.kind == "need"}.get(o.timeit, False)
                nb += self.timed([x]) if hit else [x]
            body = nb
        return pre + body

    def mask(self, q, scores=False):
        c = []
        D = vDM[q & 1]
        if scores:
            c.append(I(f"v_mov_b32 v{vT[2]}, 0xff800000"))
            for i in range(0, 8, 2):
                c.append(I(f"v_cmp_gt_i32 s[{sM0}:{sM0+1}], {16*(i>>2)+(i&3)}, v{D}"))
                c.append(I(f"v_cmp_gt_i32 s[{sM1}:{sM1+1}], {16*(i>>2)+(i&3)+1}, v{D}"))
                c.append(I(f"v_cndmask_b32 v{aS(q,0)+i}, v{aS(q,0)+i}, v{vT[2]}, s[{sM0}:{sM0+1}]"))
                c.append(I(f"v_cndmask_b32 v{aS(q,0)+i+1}, v{aS(q,0)+i+1}, v{vT[2]}, s[{sM1}:{sM1+1}]"))
            return c
        src = aC(q, 0)
        c.append(I(f"v_mov_b32 v{vT[0]}, 0xff800000"))
        order = [(1, r) for r in range(4)] + [(0, 3), (0, 2), (0, 1), (0, 0)]
        for i in range(0, 8, 2):
            (k0, r0), (k1, r1) = order[i], order[i + 1]
            c.append(I(f"v_cmp_gt_i32 s[{sM0}:{sM0+1}], {16*k0+r0}, v{D}"))
            c.append(I(f"v_cmp_gt_i32 s[{sM1}:{sM1+1}], {16*k1+r1}, v{D}"))
            c.append(I("s_nop 0"))
            c.append(I(f"v_cndmask_b32 v{aC(q,k0)+r0}, v{src}, v{vT[0]}, s[{sM0}:{sM0+1}]"))
            c.append(I(f"v_cndmask_b32 v{aC(q,k1)+r1}, v{src}, v{vT[0]}, s[{sM1}:{sM1+1}]"))
        return c

    def rowmax(self, q, t0, t1):
        S = aS(q, 0)
        return [I(f"v_max3_f32 v{t0}, v{S}, v{S+1}, v{S+2}"), I(f"v_max3_f32 v{t1}, v{S+3}, v{S+4}, v{S+5}"),
                I(f"v_max3_f32 v{t0}, v{t0}, v{S+6}, v{S+7}"), I(f"v_max_f32 v{t0}, v{t0}, v{t1}"),
                I(f"v_mov_b32 v{t1}, v{t0}"), I(f"v_permlane32_swap_b32 v{t0}, v{t1}"),
                I(f"v_max_f32 v{t0}, v{t0}, v{t1}"),
                I(f"v_mov_b32 v{t1}, v{t0}"), I(f"v_permlane16_swap_b32 v{t0}, v{t1}"),
                I(f"v_max_f32 v{t0}, v{t0}, v{t1}"),
                I(f"v_add_f32 v{t0}, {fbits(BIAS)}, v{t0}")]

    def exps(self, q, E):
        S = aS(q, 0)
        return [I(f"v_exp_f32 v{E+i}, v{S+i}") for i in range(8)]

    def cvts(self, q, E):
        return [I(f"v_cvt_pk_bf16_f32 v{aP(q)+i}, v{E+2*i}, v{E+2*i+1}") for i in range(4)]

    def fix(self, q):
        t0, t1 = aE[2], aE[2] + 1
        S = aS(q, 0)
        c = [I("s_nop 7"), I("s_nop 1")] + self.rowmax(q, t0, t1)
        c.append(I(f"v_max_f32 v{t0}, 0, v{t0}"))
        c.append(I(f"v_exp_f32 v{t1}, -v{t0}"))
        for i in range(8):
            c.append(I(f"v_sub_f32 v{S+i}, v{S+i}, v{t0}"))
            c.append(I(f"v_sub_f32 v{aC(q,0)+i}, v{aC(q,0)+i}, v{t0}"))
        for r in range(aO(0, q), aO(0, q) + 32):
            c.append(I(f"v_mul_f32 v{r}, v{r}, v{t1}"))
        for r in range(4):
            c.append(I(f"v_accvgpr_read_b32 v{t0+2+r}, a{gL(q)+r}"))
        for r in range(4):
            c.append(I(f"v_mul_f32 v{t0+2+r}, v{t0+2+r}, v{t1}"))
        for r in range(4):
            c.append(I(f"v_accvgpr_write_b32 a{gL(q)+r}, v{t0+2+r}"))
        c += self.exps(q, aE[1]) + self.cvts(q, aE[1])
        return c

    def check(self, qs, mind=2):
        P = [aP(q) + i for q in qs for i in range(4)]
        ors = []
        cur = None
        while P:
            if cur is None:
                ors.append(I(f"v_or3_b32 v{vOR}, v{P[0]}, v{P[1]}, v{P[2]}"))
                P = P[3:]
                cur = vOR
            elif len(P) >= 2:
                ors.append(I(f"v_or3_b32 v{vOR}, v{vOR}, v{P[0]}, v{P[1]}"))
                P = P[2:]
            else:
                ors.append(I(f"v_bitop3_b32 v{vOR}, v{vOR}, v{P[0]}, s{sMASK} bitop3:0xa8"))
                P = []
        slow, back = self.lab("fix"), self.lab("fixb")
        body = []
        for q in qs:
            body += self.fix(q)
        body += [I("s_nop 1"), I(f"s_branch {back}")]
        self.cold.append(f"{slow}:\n" + render(pad_hazards(body)))
        tail = [I(f"v_cmp_ne_u32 vcc, 0, v{vOR}"),
                (Group([I(f"s_cbranch_vccnz {slow}"), I(f"{back}:")]), None, None, mind)]
        return ors, tail

    def k_reads(self, half_off=8192):
        r = [I(f"ds_read_b128 {ar(gK(kb, ds))}, v{vARD} offset:{half_off + (kb*4+ds)*1024}")
             for kb in range(2) for ds in range(4)]
        return batch(r[:4]) + batch(r[4:])

    def qk(self, q, first=False):
        m = []
        for kb in range(2):
            for ds in range(4):
                d = vr(aS(q, kb))
                m.append(mfma(d, ar(gK(kb, ds)), ar(gQ(q, ds)), ("0" if first else vr(aC(q, kb))) if ds == 0 else d))
        return m

    def pv(self, q):
        m = [mfma(vr(aO(db, q)), ar(gV(db)), vr(aP(q)), vr(aO(db, q))) for db in range(8)]
        m.append(mfma(ar(gL(q)), ar(gONE), vr(aP(q)), ar(gL(q))))
        return m

    def iteration(self, nc, nn):
        o = self.o
        X = [m for q in range(nn) for m in self.qk(q)]
        Y = [m for q in range(nc) for m in self.pv(q)]
        y0 = len(X)
        n = y0 + len(Y)
        late = nc - 1
        tasks = []
        hi = 8 * (nn - 1) if nn == nc else y0 + 9 * late
        hi = max(0, min(hi, 8))
        ors, tail = self.check([late], 2 if hi >= 6 else 0)
        tasks.append(Task("late", self.cvts(late, aE[0]) + ors + tail, 0, hi, prio=1, tight=True))
        vrd = [I(f"ds_read_b128 {ar(gV(db))}, v{vARD} offset:{db*1024}") for db in range(8)]
        vrd = batch(vrd[:4]) + batch(vrd[4:])
        tasks.append(Task("vrd", [(r, 0, max(0, y0 - 5 + (4 if k >= 4 else 0))) for k, r in enumerate(vrd)],
                          0, max(0, min(y0 - 3, 12)), prio=2))
        ES = [aE[1], aE[2], aE[1]]
        early = list(range(nn - 1))
        if nn > 0:
            start = 9
            span = (n - start) / nn
            pos = [int(start + span * i) for i in range(nn + 1)]
            last = []
            for q in range(nn):
                rdy = [8 * q + 9] * 4 + [8 * q + 13] * 4
                if q in early:
                    cv_lo = y0 + 9 * (q + 1)
                    cv_hi = min(n - 5, (y0 + 9 * (q + 1) + 9) if q + 1 < len(early) else n - 5)
                    if q == 0 and len(early) == 3:
                        cv_hi = y0 + 9 + 5
                    lo2 = (y0 + 9 + 6) if q == 2 else 0
                    ent = [(e, max(rdy[k], lo2), cv_hi - 2) for k, e in enumerate(self.exps(q, ES[q]))]
                    ent += [(x, cv_lo, cv_hi) for x in self.cvts(q, ES[q])]
                    tasks.append(Task(f"exp{q}", ent, max(pos[q], lo2), max(pos[q + 1] + 3, cv_lo + 4), prio=0))
                    last.append(cv_hi)
                else:
                    ent = [(e, min(n, max(rdy[k], 10)), n) for k, e in enumerate(self.exps(q, aE[0]))]
                    tasks.append(Task(f"exp{q}", ent, min(n, pos[q]), n, prio=0))
            if early:
                ors, tail = self.check(early)
                need = []
                for x in ors:
                    qs = [(int(u[1:]) - aP(0)) // 4 for u in x.uses if aP(0) <= int(u[1:]) < aP(0) + 16]
                    need.append(last[max(qs)] + 1)
                ent = [(x, min(need[k], n - 3), n - 2) for k, x in enumerate(ors)]
                ent += [(tail[0], min(need[-1], n - 2), n - 2), (tail[1][0], 0, n, 2)]
                tasks.append(Task("chk1", ent, prio=3, tight=True))
            krd = self.k_reads()
            adv = I(f"v_add_u32 v{vARD}, s{sRD}, v{vL16[0]}")
            tasks.append(Task("krd", [(r, y0, n - (7 if k < 4 else 4)) for k, r in enumerate(krd)] + [(adv, y0, n)],
                              y0, n - 3, prio=2))
            d = self.att_dma()
            R = o.NS * 16384
            sc = [I(f"s_mov_b32 m0, s{sWR}"), I(f"s_add_u32 s{sSOFF}, s{sSOFF}, 8192"), (d[0], None, None, 1)] + d[1:]
            sc += [I(f"s_add_u32 s{sWR}, s{sWR}, 16384"), I(f"s_sub_u32 s{sT0}, s{sWR}, {R}"),
                   I(f"s_min_u32 s{sWR}, s{sWR}, s{sT0}")]
            rdp = [I(f"s_add_u32 s{sRD}, s{sRD}, 16384"), I(f"s_sub_u32 s{sT1}, s{sRD}, {R}"),
                   I(f"s_min_u32 s{sRD}, s{sRD}, s{sT1}")]
            tasks.append(Task("rdp", rdp, 1, max(3, y0 - 1), prio=4))
            tasks.append(Task("dma", sc, 1, n - 4, prio=1))
        tasks.append(Task("j", [I(f"s_add_u32 s{sJ}, s{sJ}, 1")], max(0, n - 6), max(0, n - 3), prio=5))
        res = {0, 4, y0, y0 + 4}
        seed, ldw = (o.seed, o.ldw) if o.tune == 0 else {4: (11, 12), 3: (2, 12)}.get(max(nc, nn), (1, 0))
        seq = schedule(X + Y, tasks, o.budget, self.reports, reserve=res, seed=seed, vmw=o.vmwa, ldw=ldw)
        by = {t.name: [e[0] if isinstance(e, tuple) else e for e in t.instrs] for t in tasks}
        ref = by["late"] + by["vrd"] + X + Y
        for nm in ("exp0", "exp1", "exp2", "exp3", "chk1", "krd", "dma", "j"):
            if nm == "krd":
                ref += by.get("rdp", [])
            ref += by.get(nm, [])
        verify_order(ref, seq)
        return seq

    def att_state(self):
        sb = Scoreboard()
        for r in self.k_reads():
            sb.after(r)
        for i in range(40):
            sb.after(I("buffer_inv sc1"))
        return sb

    def finalize(self, q):
        t0 = vT[0]
        c = [I(f"v_accvgpr_read_b32 v{t0}, a{gL(q)}"), I(f"v_rcp_f32 v{t0}, v{t0}")]
        st = []
        for k in range(4):
            a, b = aO(2 * k, q), aO(2 * k + 1, q)
            for r in (a, a + 2, b, b + 2):
                c.append(I(f"v_pk_mul_f32 {vr(r,2)}, {vr(r,2)}, {vr(t0,2)} op_sel_hi:[1,0]"))
            p = aE[1] + 4 * k
            c += self.pk_frag(p, a, b)
            s = I(f"buffer_store_dwordx4 {vr(p)}, v{vL16[k]}, {srd(S_WS)}, s{sZC[q]} offen {self.o.stflag}")
            c.append(s)
            st.append(s)
        return c, st

    def seg(self, seq, sb, prev=()):
        s = add_waits(seq, sb)
        return pad_hazards(s, prev)

    def attention(self, sb, prev):
        o = self.o
        out = []
        pro = []
        A = pro.append
        pro += [I("L_att:"), I(f"v_add_u32 v{vARD}, {6*16384}, v{vL16[0]}")]
        pro += [Need(self.att_first + self.h_stores, lg0=True), I("s_barrier")]
        pro += self.k_reads(0)
        pro.append(self.flag_store(sFH))
        dm = []
        for j in range(3, o.LEAD):
            d = self.att_dma()
            dm += [I(f"s_add_u32 m0, s{sWR}, {((7+j) % o.NS)*16384}"), I(f"s_mov_b32 s{sSOFF}, {j*8192}"),
                   (d[0], None, None, 1)] + d[1:]
        dm += [I(f"s_add_u32 s{sWR}, s{sWR}, {((7+o.LEAD-1) % o.NS + 1)*16384}"),
               I(f"s_mov_b32 s{sRD}, {7*16384}"), I(f"s_mov_b32 s{sJ}, 0")]
        assert ((7 + o.LEAD - 1) % o.NS) + 1 < o.NS
        e0 = self.epi_Q(1, 0)
        pro += e0[:16] + dm[:2] + e0[16:24] + [dm[2][0]] + e0[24:]
        dm = dm[3:]

        def init(q):
            t0, t1 = vT[0], vT[1]
            S = aS(q, 0)
            c = self.rowmax(q, t0, t1)
            if q < 2:
                c += [I(f"v_sub_f32 v{S+i}, v{S+i}, v{t0}") for i in range(8)]
                c += [I(f"v_sub_f32 v{aC(q,0)+i}, 0, v{t0}") for i in range(8)]
            else:
                c.append(I(f"v_sub_f32 v{t0}, 0, v{t0}"))
                c += [I(f"v_pk_add_f32 {vr(S+i,2)}, {vr(S+i,2)}, {vr(t0,2)} op_sel_hi:[1,0]") for i in range(0, 8, 2)]
                c += [I(f"v_pk_mov_b32 {vr(aC(q,0)+i,2)}, {vr(t0,2)}, {vr(t0,2)} op_sel:[0,0]") for i in range(0, 8, 2)]
            if q < 3:
                E = [aE[1], aE[2], aE[1]][q]
                return c + self.exps(q, E) + self.cvts(q, E)
            return c + self.exps(q, aE[0])
        X = [m for q in range(4) for m in self.qk(q, True)]
        tasks = [Task("dm", dm, 0, 32, prio=0)]
        for q in range(1, 4):
            tasks.append(Task(f"epiQ1_{q}", self.epi_Q(1, q), 8 * (q - 1), 8 * q - 1, prio=1))
        tasks.append(Task("init01", [(x, 11, 32) for x in init(0)] + [(x, 19, 32) for x in init(1)], 11, 32, prio=2))
        pro += schedule(X, tasks, o.budget, self.reports, vmw=0)
        pro += self.k_reads()
        pro += [I(f"v_add_u32 v{vARD}, s{sRD}, v{vL16[0]}")]
        pro += init(2)
        skip = self.lab("nomask")
        pro += [I(f"s_cmp_lg_u32 s{sNM1[3]}, 0"), I(f"s_cbranch_scc1 {skip}")] + self.mask(3, True) + [I(f"{skip}:")]
        pro += init(3)
        pro += [I("s_waitcnt lgkmcnt(0)")]
        pro += self.stamp(vT[3])
        pro = self.seg(pro, sb, prev)
        out += pro
        out.append(I(f"s_branch L_ev4"))
        wait_n = (o.LEAD - o.G) * 4
        last_st = None
        for n in (4, 3, 2, 1):
            b = []
            for u in range(o.unroll):
                ctl = [I(f"s_bitcmp1_b64 s[{sEV}:{sEV+1}], s{sJ}"),
                       I(f"s_cbranch_scc0 L_body{n}") if u == o.unroll - 1 else I(f"s_cbranch_scc1 L_ev{n}")]
                b += self.seg(self.iteration(n, n) + ctl, self.att_state(), b)
            print("iteration", n, "estimate", estimate(b) // o.unroll, file=sys.stderr)
            check_hazards(b, b)
            out += [I(".p2align 6"), I(f"L_body{n}:")] + b
            bar = self.timed([I(f"s_waitcnt vmcnt({wait_n}) lgkmcnt(0)"), I("s_barrier")])
            nb, nm, nh, nh2, sp = self.lab("nb"), self.lab("nm"), self.lab("nh"), self.lab("nh2"), self.lab("sp")
            ev = [I(f"L_ev{n}:"), I(f"s_bitcmp1_b64 s[{sSP}:{sSP+1}], s{sJ}"), I(f"s_cbranch_scc1 {sp}")]
            ev += bar + [I(f"s_branch L_body{n}"), I(f"{sp}:")]
            ev += [I(f"s_and_b32 s{sT0}, s{sJ}, {o.G-1}"), I(f"s_cbranch_scc1 {nb}")]
            ev += self.timed([I(f"s_waitcnt vmcnt({wait_n}) lgkmcnt(0)"), I("s_barrier")])
            ev += [I(f"s_cmp_eq_u32 s{sJ}, {2*o.G}"), I(f"s_cbranch_scc0 {nh}")]
            ev += (self.prefetch2() if (o.prefetch & 2 and not o.p2early) else []) + self.p4_scalars()
            ev += self.h_offsets() + [self.poll_load(vHP, S_WS, vHO, f"s{sHB}"), I(f"{nh}:")]
            ev += [I(f"s_cmp_eq_u32 s{sJ}, {3*o.G}"), I(f"s_cbranch_scc0 {nh2}"),
                   self.poll_check(vHP, S_WS, vHO, f"s{sHB}", "1"), I(f"{nh2}:")]
            if n == 2:
                ne = self.lab("ne")
                ev += [I(f"s_cmp_eq_u32 s{sJ}, s{sJL}"), I(f"s_cbranch_scc0 {ne}")] + self.p4_early() + [I(f"{ne}:")]
            ev += [I(f"{nb}:"), I(f"s_cmp_eq_u32 s{sJ}, s{sNM2[n-1]}"), I(f"s_cbranch_scc0 {nm}")]
            ev += self.mask(n - 1) + [I(f"{nm}:"), I(f"s_cmp_eq_u32 s{sJ}, s{sNM1[n-1]}"),
                                      I(f"s_cbranch_scc0 L_body{n}")]
            if n >= 2:
                nm2 = self.lab("nm")
                ev += [I(f"s_cmp_eq_u32 s{sJ}, s{sNM2[n-2]}"), I(f"s_cbranch_scc0 {nm2}")]
                ev += self.mask(n - 2) + [I(f"{nm2}:")]
            ev = pad_hazards(flatten(ev), b)
            tr = self.iteration(n, n - 1)
            fin, st = self.finalize(n - 1)
            last_st = st
            tail = []
            if n >= 2:
                tail = [I(f"s_bitcmp1_b64 s[{sEV}:{sEV+1}], s{sJ}"),
                        I(f"s_cbranch_scc1 L_ev{n-1}")]
            sbt = self.att_state()
            t = self.seg(tr + fin + tail, sbt, ev)
            out += ev + t
        self.ctx_stores = last_st
        return out, sbt

    def p4_scalars(self):
        return [I(f"s_bfe_u32 s{sT1}, s{sB}, 0x10002"), I(f"s_lshl_b32 s{sT1}, s{sT1}, 3"),
                I(f"s_bfe_u32 s{sT2}, s{sB}, 0x30003"), I(f"s_add_u32 s{sT2}, s{sT1}, s{sT2}"),
                I(f"s_sub_u32 s{sT3}, 15, s{sT2}"),
                I(f"s_min_u32 s{sT2}, s{sT2}, s{sT3}"), I(f"s_lshl_b32 s{sPOLL}, s{sT2}, 7"),
                I(f"s_add_u32 s{sPOLL}, s{sPOLL}, {FL_H}")]

    def p4_setup_vec(self):
        c = []
        A = c.append
        t = WFB[3]
        g, i16 = t, t + 1
        A(I(f"s_lshl_b32 s{sT1}, s{sTB}, 2"))
        A(I(f"s_add_u32 s{sT1}, s{sT1}, s{sWAVE}"))
        A(I(f"s_lshl_b32 s{sT1}, s{sT1}, 15"))
        A(I(f"s_lshl_b32 s{sT2}, s{sCB}, 8"))
        A(I(f"s_add_u32 s{sT1}, s{sT1}, s{sT2}"))
        A(I(f"s_lshl_b32 s{sT2}, s{sKQ}, 6"))
        A(I(f"s_add_u32 s{sT1}, s{sT1}, s{sT2}"))
        A(I(f"v_lshlrev_b32 v{t+2}, 10, v{i16}"))
        A(I(f"v_lshl_add_u32 v{t+2}, v{g}, 3, v{t+2}"))
        A(I(f"v_add_u32 v{vXo}, s{sT1}, v{t+2}"))
        return c

    def p4_setup(self):
        c = []
        A = c.append
        L = vLANE
        A(I(f"s_and_b32 s{sKQ}, s{sB}, 3"))
        A(I(f"s_bfe_u32 s{sT1}, s{sB}, 0x10002"))
        A(I(f"s_lshr_b32 s{sT2}, s{sB}, 3"))
        A(I(f"s_lshl_b32 s{sTID}, s{sT1}, 5"))
        A(I(f"s_add_u32 s{sTID}, s{sTID}, s{sT2}"))
        A(I(f"s_lshr_b32 s{sCB}, s{sT2}, 3"))
        A(I(f"s_and_b32 s{sT2}, s{sT2}, 7"))
        A(I(f"s_lshl_b32 s{sT1}, s{sT1}, 3"))
        A(I(f"s_add_u32 s{sTB}, s{sT1}, s{sT2}"))
        t = WFB[3]
        A(I(f"v_lshrrev_b32 v{t}, 4, v{L}"))
        A(I(f"v_and_b32 v{t+1}, 15, v{L}"))
        A(I(f"v_lshlrev_b32 v{t+2}, 1, v{t}"))
        A(I(f"v_xor_b32 v{t+2}, v{t+2}, v{t+1}"))
        A(I(f"v_lshlrev_b32 v{t+2}, 4, v{t+2}"))
        A(I(f"v_lshl_add_u32 v{t+2}, v{t}, 10, v{t+2}"))
        A(I(f"s_lshl_b32 s{sT1}, s{sWAVE}, 13"))
        A(I(f"s_lshl_b32 s{sT2}, s{sCB}, 8"))
        A(I(f"s_add_u32 s{sT1}, s{sT1}, s{sT2}"))
        A(I(f"v_add_u32 v{vWo4[0]}, s{sT1}, v{t+2}"))
        A(I(f"v_xor_b32 v{vWo4[1]}, 128, v{vWo4[0]}"))
        A(I(f"v_add_u32 v{vWo4[1]}, {4096-1024}, v{vWo4[1]}"))
        A(I(f"s_lshl_b32 s{sT1}, s{sTB}, 1"))
        A(I(f"s_lshr_b32 s{sT2}, s{sWAVE}, 1"))
        A(I(f"s_add_u32 s{sT1}, s{sT1}, s{sT2}"))
        A(I(f"s_and_b32 s{sT2}, s{sWAVE}, 1"))
        A(I(f"s_lshl_b32 s{sT2}, s{sT2}, 11"))
        A(I(f"s_mul_i32 s{sT3}, s{sT1}, {43*4096}"))
        A(I(f"s_add_u32 s{sT3}, s{sT3}, s{sT2}"))
        A(I(f"s_add_u32 s{sT3}, s{sT3}, {ZH_OFF}"))
        A(Group([I(f"s_add_u32 s{S_ZH}, s{S_WS}, s{sT3}"), I(f"s_addc_u32 s{S_ZH+1}, s{S_WS+1}, 0")]))
        A(I(f"s_sub_u32 s{S_ZH+2}, {43*4096}, s{sT2}"))
        A(I(f"s_lshl_b32 s{sT1}, s{sT1}, 19"))
        A(I(f"s_lshl_b32 s{sT3}, s{sKQ}, 17"))
        A(I(f"s_add_u32 s{sT1}, s{sT1}, s{sT3}"))
        A(I(f"s_add_u32 s{sT1}, s{sT1}, s{sT2}"))
        A(I(f"s_add_u32 s{sT1}, s{sT1}, {ZC_OFF}"))
        A(Group([I(f"s_add_u32 s{S_ZC}, s{S_WS}, s{sT1}"), I(f"s_addc_u32 s{S_ZC+1}, s{S_WS+1}, 0")]))
        A(I(f"s_sub_u32 s{S_ZC+2}, {32*4096}, s{sT2}"))
        A(I(f"s_lshl_b32 s{sT2}, s{sKQ}, 20"))
        A(Group([I(f"s_add_u32 s{S_WO}, s{S_WO}, s{sT2}"), I(f"s_addc_u32 s{S_WO+1}, s{S_WO+1}, 0")]))
        A(I(f"s_mov_b32 s{S_WO+2}, {1 << 20}"))
        A(I(f"s_mul_i32 s{sZo}, s{sKQ}, {11*4096}"))
        A(I(f"s_mul_i32 s{sWo}, s{sKQ}, {11*32768}"))

        return c

    def p4_early(self):
        t = vT[0]
        c = []
        for n in range(4):
            c += [I(f"buffer_load_dwordx4 {vr(128 + (n*2 + tb)*4)}, v{vL16[0]}, {srd(S_ZH)}, s{sZo} offen "
                    f"offset:{tb*1024} {self.o.ldflag}") for tb in range(2)]
            c.append(I(f"s_add_u32 s{sZo}, s{sZo}, 4096"))
        if self.o.xat == 2:
            c.append(I(f"s_mov_b32 s{sT1}, 16384"))
            c += [I(f"buffer_load_dwordx2 {ar(XR + 4*tb + 2*i, 2)}, v{vXo}, {srd(S_X)}, {'s%d' % sT1 if tb else '0'} offen "
                    f"offset:{i*32}") for tb in range(2) for i in range(2)]
        if self.o.prefetch & 64:
            c += [I(f"s_and_b32 s{sT1}, s{sTB}, 7"), I(f"s_lshl_b32 s{sT1}, s{sT1}, 2"),
                  I(f"s_add_u32 s{sT1}, s{sT1}, s{sWAVE}"), I(f"s_lshl_b32 s{sT1}, s{sT1}, 15"),
                  I(f"s_lshl_b32 s{sT2}, s{sCB}, 8"), I(f"s_add_u32 s{sT1}, s{sT1}, s{sT2}"),
                  I(f"v_lshrrev_b32 v{t+1}, 1, v{vLANE}"), I(f"v_and_b32 v{t}, 1, v{vLANE}"),
                  I(f"v_lshlrev_b32 v{t}, 7, v{t}"), I(f"v_lshl_add_u32 v{t}, v{t+1}, 10, v{t}"),
                  self.pf_load(t, S_WO, f"s{sT1}", dst="a200")]
        if self.o.pfcode & 4:
            c += self.prefetch_code("L_p4", "L_exit", "a[204:207]", vL16[0])
        if self.o.prefetch & 2:
            c += [I(f"s_and_b32 s{sT1}, s{sTB}, 7"), I(f"s_mul_i32 s{sT1}, s{sT1}, 44"),
                  I(f"s_mul_i32 s{sT2}, s{sWAVE}, 11"), I(f"s_add_u32 s{sT1}, s{sT1}, s{sT2}"),
                  I(f"s_lshl_b32 s{sT1}, s{sT1}, 10"), I(f"s_add_u32 s{sT1}, s{sT1}, s{sWo}"),
                  I(f"s_lshl_b32 s{sT2}, s{sCB}, 8"), I(f"s_add_u32 s{sT1}, s{sT1}, s{sT2}"),
                  I(f"v_min_u32 v{t}, 21, v{vLANE}"), I(f"v_lshrrev_b32 v{t+1}, 1, v{t}"),
                  I(f"v_and_b32 v{t}, 1, v{t}"), I(f"v_lshlrev_b32 v{t}, 7, v{t}"),
                  I(f"v_lshl_add_u32 v{t}, v{t+1}, 10, v{t}"),
                  self.pf_load(t, S_WD, f"s{sT1}", dst="a200")]
        return c

    def h_offsets(self):
        t = vT[0]
        return [I(f"s_mov_b32 s{sHB}, {FL_H}"), I(f"s_sub_u32 s{sT1}, s{sPOLL}, s{sHB}"),
                I(f"v_add_u32 v{t}, s{sT1}, v{vPO32}"),
                I(f"s_bfe_u32 s{sT1}, s{sB}, 0x10002"), I(f"s_lshl_b32 s{sT1}, s{sT1}, 4"),
                I(f"s_and_b32 s{sT2}, s{sH}, 3"), I(f"s_add_u32 s{sT1}, s{sT1}, s{sT2}"),
                I(f"s_lshl_b32 s{sT2}, s{sW}, 5"), I(f"s_add_u32 s{sT1}, s{sT1}, s{sT2}"),
                I(f"s_lshl_b32 s{sT1}, s{sT1}, 2"),
                I(f"v_and_b32 v{t+1}, 3, v{vLANE}"), I(f"v_lshlrev_b32 v{t+1}, 4, v{t+1}"),
                I(f"v_cmp_gt_u32 vcc, 32, v{vLANE}"), I(f"v_add_u32 v{t+1}, s{sT1}, v{t+1}"),
                I(f"v_cndmask_b32 v{vHO}, v{t+1}, v{t}, vcc")]

    def phase4(self, sb, prev):
        o = self.o
        ACC4, ZR, WR = 0, 64, 192
        vRd4 = list(range(224, 232))
        vP4, vW1 = 234, 235
        sEXs, sEXd, sFE, sOo = sNM2
        L = vLANE
        NH, NS, LEAD = 11, 16, o.lead4
        sR4 = sWR
        c = []
        A = c.append
        sb.vm = sb.vm[-24:]
        A(I("L_p4:"))
        c += self.holdmark("att")
        A(I("s_waitcnt lgkmcnt(0)"))
        A(I("s_barrier"))
        c += self.stamp(232)
        t = WR
        Wd, Zd = {}, {}

        def wload(n):
            ws = S_WD if n < NH else S_WO
            d = [I(f"buffer_load_dwordx4 v{vWo4[e]}, {srd(ws)}, s{sWo} offen offset:{e*1024} {o.wflg} lds") for e in range(2)]
            Wd[n % NS] = d
            pre = [I(f"s_lshl_b32 s{sWo}, s{sR4}, 17")] if n == NH else []
            post = [I(f"s_add_u32 s{sWo}, s{sWo}, 32768")]
            if o.rot4 and n >= NH:
                post.append(I(f"s_and_b32 s{sWo}, s{sWo}, 0xfffff"))
            return pre + [I(f"s_add_u32 m0, s{sW2K}, {(n % NS)*8192}"), d[0], d[1]] + post

        def zload(n):
            zs, so = (S_ZH, sZo) if n < NH else (S_ZC, sSOFF)
            d = [I(f"buffer_load_dwordx4 {vr(ZR + (((n + 8) % NS)*2 + tb)*4)}, v{vL16[0]}, {srd(zs)}, s{so} offen "
                   f"offset:{tb*1024} {o.ldflag}") for tb in range(2)]
            batch(d)
            pre = [I(f"s_lshl_b32 s{so}, s{sR4}, 14")] if n == NH else []
            post = [I(f"s_add_u32 s{so}, s{so}, 4096")]
            if o.rot4 and n >= NH:
                post.append(I(f"s_and_b32 s{so}, s{so}, 0x1ffff"))
            return pre + d + post

        def reads(n, wb):
            slot = (n % NS) * 8192
            return batch([I(f"ds_read_b64_tr_b16 {vr(WR + 4*wb + 2*a, 2)}, v{vRd4[wb]} offset:{(slot & 0xffff) + a*4096}")
                          for a in range(2)])

        def winfix(n):
            a, b = ((n - 1) % NS) >> 3, (n % NS) >> 3
            if a == b:
                return lambda wb: []
            op = "v_add_u32" if b else "v_subrev_u32"
            return lambda wb: [I(f"{op} v{vRd4[wb]}, 0x10000, v{vRd4[wb]}")]

        for n in range(4):
            c += wload(n)
        A(I(f"s_sub_u32 s{sPOLL}, s{sPOLL}, {FL_H}"))
        A(I(f"s_lshl_b32 s{sT1}, s{sKQ}, 5"))
        A(I(f"s_add_u32 s{sPOLL}, s{sPOLL}, s{sT1}"))
        if o.wflag:
            A(I(f"s_lshl_b32 s{sPOLL}, s{sPOLL}, 2"))
        A(I(f"s_add_u32 s{sPOLL}, s{sPOLL}, {FL_CW if o.wflag else FL_C}"))
        g, i16 = t, t + 1
        A(I(f"v_lshrrev_b32 v{g}, 4, v{L}"))
        A(I(f"v_and_b32 v{i16}, 15, v{L}"))
        A(I(f"v_lshrrev_b32 v{t+2}, 2, v{i16}"))
        A(I(f"v_lshl_add_u32 v{t+2}, v{g}, 2, v{t+2}"))
        A(I(f"v_and_b32 v{t+3}, 3, v{i16}"))
        A(I(f"v_lshlrev_b32 v{t+3}, 3, v{t+3}"))
        A(I(f"v_lshl_add_u32 v{t+3}, v{t+2}, 8, v{t+3}"))
        A(I(f"v_and_b32 v{t+2}, 7, v{t+2}"))
        A(I(f"v_lshl_add_u32 v{t+3}, v{t+2}, 5, v{t+3}"))
        for i in range(8):
            A(I(f"s_lshl_b32 s{sT1}, s{sKQ}, 1"))
            A(I(f"s_add_u32 s{sT1}, s{sT1}, {i}"))
            A(I(f"s_and_b32 s{sT1}, s{sT1}, 7"))
            A(I(f"s_lshl_b32 s{sT1}, s{sT1}, 5"))
            A(I(f"v_xor_b32 v{vRd4[i]}, s{sT1}, v{t+3}"))
        A(I(f"s_mov_b32 s{sOo}, 16384"))
        A(I(f"s_lshl_b32 s{sT1}, s{sCB}, 1"))
        A(I(f"s_add_u32 s{sT1}, s{sT1}, s{sTB}"))
        A(I(f"s_and_b32 s{sR4}, s{sT1}, {o.rot4}"))
        A(I(f"s_mul_i32 s{sT1}, s{sTID}, {4*3*8192}"))
        A(I(f"s_lshl_b32 s{sT2}, s{sWAVE}, 11"))
        A(I(f"s_add_u32 s{sT1}, s{sT1}, s{sT2}"))
        A(I(f"s_add_u32 s{sEXs}, s{sT1}, {EX_OFF}"))
        A(I(f"s_mul_i32 s{sT2}, s{sKQ}, {3*8192}"))
        A(I(f"s_add_u32 s{sEXd}, s{sEXs}, s{sT2}"))
        A(I(f"s_lshl_b32 s{sFE}, s{sTID}, 2"))
        A(I(f"s_add_u32 s{sFE}, s{sFE}, s{sWAVE}"))
        A(I(f"s_lshl_b32 s{sFE}, s{sFE}, 4"))
        A(I(f"s_add_u32 s{sFE}, s{sFE}, {FL_E}"))
        A(I(f"v_mov_b32 v{t+2}, {OOB}"))
        A(I(f"v_cmp_eq_u32 vcc, 0, v{L}"))
        A(I(f"s_lshl_b32 s{sT1}, s{sKQ}, 2"))
        A(I(f"v_mov_b32 v{t+3}, s{sT1}"))
        A(I(f"v_cndmask_b32 v{vW1}, v{t+2}, v{t+3}, vcc"))
        first = [Wd[k] for k in range(4)]
        if o.wflag:
            assert o.sentinel
            A(I(f"s_sub_u32 s{sT1}, s{sFC}, {FL_C}"))
            A(I(f"s_lshl_b32 s{sT1}, s{sT1}, 2"))
            A(I(f"s_lshl_b32 s{sT2}, s{sWAVE}, 2"))
            A(I(f"s_add_u32 s{sT1}, s{sT1}, s{sT2}"))
            A(I(f"s_add_u32 s{sT1}, s{sT1}, {FL_CW}"))
            A(I(f"v_cndmask_b32 v{vW1}, v{t+2}, v{vC0}, vcc"))
            A(Need([self.ctx_stores]))
            A(I(f"buffer_store_dword v{vC1}, v{vW1}, {srd(S_WS)}, s{sT1} offen sc1"))
            A(Need(first, lg0=True))
            A(I("s_barrier"))
        else:
            A(Need(first + [self.ctx_stores], lg0=True))
            A(I("s_barrier"))
            A(self.flag_store(sFC))
        for n in range(4, LEAD):
            c += wload(n)
        xl = [I(f"buffer_load_dwordx2 {ar(XR + 4*tb + 2*i, 2)}, v{vXo}, {srd(S_X)}, {'s%d' % sOo if tb else '0'} offen "
                f"offset:{i*32}") for tb in range(2) for i in range(2)]
        rr = [reads(0, wb) for wb in range(8)]
        c += batch(sum(rr[:4], [])) + batch(sum(rr[4:], []))

        def steps(n0, n1, first, zplan, extra):
            mf, tasks = [], []
            wch, zch = [], []
            for n in range(n0, n1):
                b = 16 * (n - n0)
                for wb in range(8):
                    for tb in range(2):
                        d = vr(ACC4 + (wb * 2 + tb) * 4)
                        mf.append(mfma(d, vr(WR + 4 * wb), vr(ZR + (((n + 8) % NS) * 2 + tb) * 4),
                                       "0" if (first and n == n0) else d))
                bar = (n + 1) % 4 == 0
                fx = winfix(n + 1)
                ent = []
                rr = [reads(n + 1, wb) for wb in range(8)]
                batch(sum(rr[:4], []))
                batch(sum(rr[4:], []))
                for wb in range(8):
                    lo = b + 2 * wb + 2
                    if bar:
                        lo = max(lo, b + 5)
                    ent += [(x, lo, min(b + 16, lo + 3)) for x in fx(wb) + rr[wb]]
                tasks.append(Task(f"rd{n}", ent, prio=0, tight=True))
                if bar:
                    need = [Wd[k % NS] for k in range(n + 1, n + 5)]
                    tasks.append(Task(f"bar{n}", [Group([Need(need, lg0=True), I("s_barrier")])], b + 4, b + 4, prio=-1))
                seq = wload(n + LEAD)
                zs = [zload(zn) for zn in zplan(n)]
                if o.p4fix and len(zs) == 1:
                    pos = iter((b + 6, b + 10))
                    for x in seq:
                        g = next(pos) if x.kind == "dma" else None
                        wch.append((x, g, g) if g else (x, b + (5 if (bar and False) else 0), b + 15))
                    pos = iter((b + 2, b + 14))
                    for x in zs[0]:
                        g = next(pos) if x.kind == "vload" else None
                        zch.append((x, g, g) if g else (x, b, b + 16))
                else:
                    lo = b + (5 if bar else 0)
                    wch += [(x, lo, b + 15, 1 if (x.kind == "dma" and k and seq[k-1].kind == "salu") else 0)
                            for k, x in enumerate(seq)]
                    for z in zs:
                        zch += [(x, b + 1, b + 16) for x in z]
                for x in extra.get(n, []):
                    tasks.append(Task("ex", x, b + 1, b + 12, prio=2))
            tasks.append(Task("w", wch, prio=-1))
            if zch:
                tasks.append(Task("z", zch, prio=-1))
            if extra.get("tasks"):
                tasks += extra["tasks"]
            return schedule(mf, tasks, 8, self.reports, reserve=range(0, len(mf), 8), seed=o.seed, iters=40, vmw=o.vmw)

        CH = o.chk4
        pend = list(range(NH, NH + LEAD))

        def zplan_head(n):
            z = [n + 4] if n + 4 < NH else []
            if n > CH:
                k = -(-len(pend) // (NH - n))
                z += pend[:k]
                del pend[:k]
            return z
        vPC = vPO32 if o.wflag else vPO8
        ex = {0: [xl[:2]] if o.xat == 0 else [], 1: [xl[2:]] if o.xat == 0 else [], CH - 2: [[self.poll_load(vP4, S_WS, vPC, f"s{sPOLL}")]],
              CH: [self.poll_check(vP4, S_WS, vPC, f"s{sPOLL}", "1", split=True) + self.stamp(232)]}
        c += steps(0, NH, True, zplan_head, ex)
        assert not pend
        c += [I(f"s_mov_b32 s{sJ}, 0")]
        head = self.seg(c, sb, prev)

        def loop_body(sbx, pv):
            b = steps(NH, NH + NS, False, lambda n: [n + LEAD], {})
            b += [I(f"s_add_u32 s{sJ}, s{sJ}, 1"), I(f"s_cmp_lt_u32 s{sJ}, 2"), I("s_cbranch_scc1 L_p4loop")]
            return add_waits(b, sbx)
        b1 = loop_body(sb, head)
        b2 = loop_body(sb, b1)
        b1 = pad_hazards(merge_waits(b1, b2), head)
        check_hazards(b1, b1)
        b2 = b1
        print("phase 4 head / loop estimate", estimate(head), estimate(b1), file=sys.stderr)
        e = []
        A = e.append
        e += self.stamp(232)
        st = []
        for p in range(1, 4):
            A(I(f"s_add_u32 s{sT1}, s{sKQ}, {p}"))
            A(I(f"s_and_b32 s{sT1}, s{sT1}, 3"))
            A(I(f"s_mul_i32 s{sT1}, s{sT1}, {3*8192}"))
            A(I(f"s_add_u32 s{sT1}, s{sT1}, s{sEXs}"))
            A(I(f"s_add_u32 s{sT1}, s{sT1}, {(p-1)*8192}"))
            for tb in range(2):
                t0, t1 = ACC4 + ((2 * p) * 2 + tb) * 4, ACC4 + ((2 * p + 1) * 2 + tb) * 4
                d = ZR + ((p - 1) * 2 + tb) * 4
                e += self.pk_frag(d, t0, t1)
                x = I(f"buffer_store_dwordx4 {vr(d)}, v{vL16[0]}, {srd(S_WS)}, s{sT1} offen offset:{tb*1024} {o.stflag}")
                A(x)
                st.append(x)
        if o.xat == 1:
            e += xl
        for tb in range(2):
            for i in range(2):
                a = ACC4 + (i * 2 + tb) * 4
                x = XR + 4 * tb + 2 * i
                u = WR
                e += [I(f"v_accvgpr_read_b32 v{u+4}, a{x}"), I(f"v_accvgpr_read_b32 v{u+5}, a{x+1}"),
                      I(f"v_lshlrev_b32 v{u}, 16, v{u+4}"), I(f"v_and_b32 v{u+1}, 0xffff0000, v{u+4}"),
                      I(f"v_lshlrev_b32 v{u+2}, 16, v{u+5}"), I(f"v_and_b32 v{u+3}, 0xffff0000, v{u+5}")]
                e += [I(f"v_pk_add_f32 {vr(a+r,2)}, {vr(a+r,2)}, {vr(u+r,2)}") for r in (0, 2)]
        R = ZR + 32
        sX = [sZo, sWo, sTB]
        exl = []
        for p in range(3):
            A(I(f"s_add_u32 s{sX[p]}, s{sEXd}, {p*8192}"))
            exl += [I(f"buffer_load_dwordx4 {vr(R + (p*2+tb)*4)}, v{vL16[0]}, {srd(S_WS)}, s{sX[p]} offen "
                      f"offset:{tb*1024} {o.ldflag}") for tb in range(2)]
        if not o.sentinel:
            A(Need(st))
            A(I(f"buffer_store_dword v{vC1}, v{vW1}, {srd(S_WS)}, s{sFE} offen sc1"))
            A(I(f"v_and_b32 v{vW1}, 12, v{vPO8}"))
            A(self.poll_load(vP4, S_WS, vW1, f"s{sFE}"))
            A(self.poll_check(vP4, S_WS, vW1, f"s{sFE}", "1"))
            e += self.stamp(232)
            e += exl
        else:
            chk = [I(f"v_max3_u32 v{vP4}, v{R}, v{R+1}, v{R+2}")]
            chk += [I(f"v_max3_u32 v{vP4}, v{vP4}, v{R+k}, v{R+k+1}") for k in range(3, 23, 2)]
            chk += [I(f"v_max_u32 v{vP4}, v{vP4}, v{R+23}"), I(f"v_cmp_eq_u32 vcc, -1, v{vP4}")]
            slow, back = self.lab("exs"), self.lab("exb")
            tm = o.timeit == "spin"
            self.cold.append(f"{slow}:\n" + ("    s_memtime s[0:1]\n" if tm else "") +
                             f"    s_mov_b32 s{sSPIN}, {o.spin}\n{slow}_l:\n" +
                             render([I(x.text) for x in exl] + [I("s_waitcnt vmcnt(0)")] + [I(x.text) for x in chk]) +
                             f"    s_nop 1\n    s_cbranch_vccz {slow}_x\n    s_sub_u32 s{sSPIN}, s{sSPIN}, 1\n"
                             f"    s_cmp_lg_u32 s{sSPIN}, 0\n    s_cbranch_scc1 {slow}_l\n{slow}_x:\n" +
                             (f"    s_memtime s[{sM0}:{sM0+1}]\n    s_waitcnt lgkmcnt(0)\n    s_sub_u32 s0, s{sM0}, s0\n"
                              f"    s_add_u32 s{sACC}, s{sACC}, s0\n" if tm else "") + f"    s_branch {back}\n")
            if o.sentinel == 2:
                A(Need(st))
            e += exl + chk + [I(f"s_cbranch_vccnz {slow}"), I(f"{back}:")]
            e += self.stamp(232)
        for p in range(3):
            for tb in range(2):
                for k in range(4):
                    a = ACC4 + ((k >> 1) * 2 + tb) * 4 + (k & 1) * 2
                    x = R + (p * 2 + tb) * 4 + k
                    u = WR + 2 * (k & 1)
                    e += [I(f"v_lshlrev_b32 v{u}, 16, v{x}"), I(f"v_and_b32 v{u+1}, 0xffff0000, v{x}"),
                          I(f"v_pk_add_f32 {vr(a,2)}, {vr(a,2)}, {vr(u,2)}")]
        for tb in range(2):
            for i in range(2):
                a = ACC4 + (i * 2 + tb) * 4
                d = WR + 4 + 2 * (tb * 2 + i)
                e += [I(f"v_cvt_pk_bf16_f32 v{d}, v{a}, v{a+1}"), I(f"v_cvt_pk_bf16_f32 v{d+1}, v{a+2}, v{a+3}"),
                      I(f"buffer_store_dwordx2 {vr(d,2)}, v{vXo}, {srd(S_OUT)}, {'s%d' % sOo if tb else '0'} offen "
                        f"offset:{i*32}")]
        e += self.stamp(232)
        tail = self.seg(e, sb, b2)
        return head + [I(".p2align 6"), I("L_p4loop:")] + b1 + tail

    def build(self):
        o = self.o
        sb = Scoreboard()
        p12 = self.phase12()
        if o.stop == "p2":
            for q in range(4):
                p12 += self.epi_Q(1, q)
            p12 += [I(f"s_lshl_b32 s{sT1}, s{sB}, 2"), I(f"s_add_u32 s{sT1}, s{sT1}, s{sWAVE}"),
                    I(f"s_lshl_b32 s{sT1}, s{sT1}, 14"), I(f"s_add_u32 s{sT1}, s{sT1}, {ZC_OFF}")]
            for q in range(4):
                for ds in range(4):
                    p12.append(I(f"buffer_store_dwordx4 {ar(gQ(q, ds))}, v{vL16[q]}, {srd(S_WS)}, s{sT1} offen "
                                 f"offset:{ds*1024}"))
        code = add_waits(p12, sb)
        if o.timeit.startswith("vmw"):
            nb, k = [], 0
            for x in code:
                if x.kind == "wait" and "vmcnt" in x.text and k < 48:
                    nb += [I("s_memtime s[0:1]"), I("s_waitcnt lgkmcnt(0)"), x, I(f"s_memtime s[{sM0}:{sM0+1}]"),
                           I("s_waitcnt lgkmcnt(0)"), I(f"s_sub_u32 s0, s{sM0}, s0"), I("s_mov_b64 exec, 1"),
                           I(f"v_mov_b32 v{vPOLL2}, s0"), I(f"s_add_u32 s0, s{sST}, {4*k}"),
                           I(f"ds_write_b32 v{vC0}, v{vPOLL2} offset:{60*1024+4*k}") if False else
                           I(f"v_writelane_b32 v{vPOLL2+1}, s0, 0") if False else I("s_nop 0"),
                           I("s_mov_b64 exec, -1"), I(f"v_readlane_b32 s1, v{vPOLL2}, 0"), I("s_nop 3"),
                           I(f"v_writelane_b32 v{vPOLL2+1}, s1, {k}")]
                    print("vmwait", k, x.text, "at mfma", sum(1 for y in nb if y.kind == "mfma"), file=sys.stderr)
                    k += 1
                else:
                    nb.append(x)
            nb += [I(f"v_lshlrev_b32 v{vPOLL2}, 2, v{vLANE}"), I(f"s_add_u32 s0, s{sST}, {1<<18}"),
                   I(f"buffer_store_dword v{vPOLL2+1}, v{vPOLL2}, {srd(S_WS)}, s0 offen")]
            code = nb
        code = pad_hazards(code)
        print("phase 1/2 estimate", estimate(code), file=sys.stderr)
        if o.stop not in ("p1a", "p2"):
            a, sb3 = self.attention(sb, code)
            code += a
            if o.stop != "p3":
                code += self.phase4(sb3, code)
        if o.hold:
            code += [I("L_hold:"), I("s_memrealtime s[2:3]"), I("s_waitcnt lgkmcnt(0)"),
                     I(f"s_sub_u32 s2, s2, s{sACC}"), I("s_cmp_lt_i32 s2, 0"), I("s_cbranch_scc1 L_hold")]
        if o.stop or o.stamps:
            code.append(I("s_waitcnt vmcnt(0) lgkmcnt(0)"))
        code += [I("L_exit:"), I("s_endpgm")]
        self.code = code
        labels = {x.text for x in code if x.kind == "label"}
        import re
        cold = [c for c in self.cold if re.findall(r"s_branch (\S+)", c)[-1] + ":" in labels]
        txt = HEADER + render(code) + "".join(cold) + FOOTER
        return txt


GK0 = -2.0 * math.sqrt(2.0 / math.pi) * math.log2(math.e)
GK1 = GK0 * 0.044715
QSCALE = math.log2(math.e) / math.sqrt(128.0)
BIAS = 8.0
sQS = sGBD + 0
sQS = 3

HEADER = f"""; Fused LayerNorm + compressed-KV causal attention + GeGLU FFN, one persistent launch.
; @launch grid=(256,1,1) block=(256,1,1) lds=163840
.amdgcn_target "amdgcn-amd-amdhsa--gfx950"
.text
.globl {KNAME}
.p2align 8
.type {KNAME},@function
{KNAME}:
"""
FOOTER = f"""    s_endpgm
.section .rodata,"a"
.p2align 6
.amdhsa_kernel {KNAME}
  .amdhsa_next_free_vgpr 512
  .amdhsa_next_free_sgpr 102
  .amdhsa_accum_offset 256
  .amdhsa_group_segment_fixed_size 0
  .amdhsa_kernarg_size 104
  .amdhsa_user_sgpr_count 2
  .amdhsa_user_sgpr_kernarg_segment_ptr 1
  .amdhsa_system_sgpr_workgroup_id_x 1
  .amdhsa_float_denorm_mode_32 3
.end_amdhsa_kernel
"""


def main():
    o = Opt()
    out = "k.s"
    for a in sys.argv[1:]:
        if "=" in a:
            k, v = a.split("=")
            if k == "out":
                out = v
            else:
                cur = getattr(o, k)
                setattr(o, k, v if (cur is None or isinstance(cur, str)) else type(cur)(int(v)))
    g = Gen(o)
    txt = g.build()
    open(out, "w").write(txt)
    for r in g.reports:
        print("sched overflow/total/gaps:", r, file=sys.stderr)


if __name__ == "__main__":
    main()
```

```python
import math
import struct
import sys

from asmir import (I, Ins, Group, Need, Task, Scoreboard, add_waits, pad_hazards, check_hazards, schedule, render,
                   flatten, batch, estimate, verify_order, merge_waits)

KNAME = "parallel_sum__compressed_kv_cla__geglu_ffn__prompt_kernel"


class Opt:
    stop = None
    stamps = 0
    G = 4
    NS = 10
    LEAD = 6
    spin = 1 << 20
    prefetch = 34
    xnslope = 88
    xn0 = 600
    vmw = 8
    rot = 4
    pfcode = 1
    lead4 = 8
    chk4 = 8
    G12 = 4
    lead12 = 13
    st_lo = 575
    st_hi = 1480
    seed = 1
    budget = 8
    timeit = ""
    kvq = 1700
    kvd = 80
    wmode = 2
    toksh = 20
    pre2 = 0
    p4v = 3
    defer = 7
    chkp = 3
    leadz = 6
    wsoff = 0
    lnpos = 1
    lnstart = 20
    pfpos = 1
    wflg = "sc1"
    pa = 130
    pb = 300
    pc = 343
    p2early = 0
    rot4 = 0
    xat = 2
    hold = 0
    holdat = "start"
    xnchk = 566
    pfxw = 40
    tokmode = 0
    lnlate = 0
    wflag = 1
    vmwa = 4
    tune = 1
    ldw = 4
    ldw12 = 0
    gearly = 0
    ge0 = 460
    gestep = 30
    delay = 0
    sentinel = 2
    p4fix = 1
    unroll = 1
    gfake = 0
    wdist = 2
    wwin = 7
    xnsrc = 0
    stampat = "160,512,1024,1408,1916"
    drop = ""
    stflag = "sc1"
    ldflag = "sc1"


def fbits(x):
    return "0x%08x" % struct.unpack("<I", struct.pack("<f", x))[0]


XN_OFF = 0
KF_OFF = 2 << 20
VF_OFF = 18 << 20
ZC_OFF = 34 << 20
ZH_OFF = 50 << 20
FL_OFF = 56 << 20
FL_XN, FL_KV, FL_H, FL_C = FL_OFF, FL_OFF + 1024, FL_OFF + 5120, FL_OFF + 6144
FL_E = FL_OFF + 7168
FL_CW = FL_OFF + 7168
TS_OFF = 57 << 20
EX_OFF = 64 << 20
WS_SIZE = 72 << 20
OOB = 0x7FFFFF00

S_X, S_CKV, S_WQ, S_WUK, S_WUV, S_WO, S_WG, S_WU, S_WD, S_OUT, S_DBG, S_WS = range(4, 52, 4)
S_KV = S_WU
S_ZH = S_CKV
S_ZC = S_WQ
sWAVE, sH, sW, sB, sT0, sW2K, sTOKB, sKFB, sVFB = range(52, 61)
sXN = [61, 62, 63, 64]
sZH = [65, 66, 67, 68]
sZC = [69, 70, 71, 72]
sT1, sT2, sT3 = 73, 74, 75
sM0, sM1 = 76, 78
sEV = 80
sJ, sSOFF, sWR, sRD = 82, 83, 84, 85
sNM1 = [86, 87, 88, 89]
sNM2 = [90, 91, 92, 93]
sFXN, sFKV, sFH, sFC = 94, 95, 96, 97
sSPIN, sGBD, sPOLL = sT3, 99, 100
sST = 101
sJL = 65
sKQ, sTB, sCB, sTID, sZo, sWo = 58, 59, 60, 64, 94, 95
vWo4 = [243, 244]
vXo, XR = 252, 208
sMASK, sSP = 61, 62
sK2 = [80, 81, 82, 85]
sACC = 98
TS = 2


def srd(b):
    return f"s[{b}:{b+3}]"


def vr(b, n=4):
    return f"v[{b}:{b+n-1}]" if n > 1 else f"v{b}"


def ar(b, n=4):
    return f"a[{b}:{b+n-1}]" if n > 1 else f"a{b}"


MF = "v_mfma_f32_16x16x32_bf16"


def mfma(d, a, b, c):
    return I(f"{MF} {d}, {a}, {b}, {c}")


ACC = [0, 64, 128]
WFB = [192, 200, 208, 220]
PK = [216, 220, 224]
vG0, vG1, vGK = 228, 229, 230
vPOLL = 231
vRD = [232, 233, 234, 235]
vRD64 = [236, 237]
vRD32 = 238
vWO = [239, 240]
vGA = [241, 242]
vGB = [243, 244]
vTRD = [241, 242]
vL16 = [245, 246, 247, 248]
vONE = 249
vPO32 = 250
vPO8 = 251
vGBS = 252
vC0, vC1 = 253, 254
vLANE = 255
vPOLL2 = 229
vX16 = [216, 217, 218, 219]
vTO = list(range(128, 136))
vLN = 136
vPFW = 226
LNBUF = 7 * 8192
TOKB = 65536
HV = dict(K0=(0, 1), K1=(2, 3), V0=(4, 5), V1=(1, 3), GA=(0, 5), GB=(3, 3), Q0=(2, 4), Q1=(1, 0))


def areg(ps, wb, tb):
    if ps == "Q1":
        return (wb >> 1) * 32 + (tb * 2 + (wb & 1)) * 4
    t = 4 * wb + tb
    return 32 * HV[ps][t >> 3] + 4 * (t & 7)


aO = lambda db, q: 64 + (q * 8 + db) * 4
aS = lambda q, kb: (q * 2 + kb) * 4
aC = lambda q, kb: 32 + (q * 2 + kb) * 4
aP = lambda q: 192 + q * 4
aE = [208, 216, 224]
vOR, vOR2 = 232, 233
vARD = 234
vDM = [236, 237]
vT = [238, 239, 240, 233]
vHP = 241
vHO = 242
sHB = 99
gQ = lambda q, ds: ds * 16 + q * 4
gK = lambda kb, ds: 64 + (kb * 4 + ds) * 4
gV = lambda db: 96 + db * 4
gL = lambda q: 128 + q * 4
gONE = 144
TF = lambda tb, ks: (ks * 4 + tb) * 4


class Gen:
    def __init__(self, opt):
        self.o = opt
        self.out = []
        self.cold = []
        self.nlab = 0
        self.reports = []
        self.nstamp = 0

    def lab(self, p):
        self.nlab += 1
        return f"L_{p}_{self.nlab}"

    def stamp(self, vt=None):
        if not self.o.stamps:
            return []
        vt = vPOLL if vt is None else vt
        k = self.nstamp
        self.nstamp += 1
        if self.o.stamps == 2:
            g = [I(f"s_memrealtime s[{sT2}:{sT2+1}]"), I("s_waitcnt lgkmcnt(0)"), I(f"v_mov_b32 v{vt}, s{sT2}"),
                 I(f"buffer_atomic_umax v{vt}, v{vONE}, {srd(S_DBG)}, 0 offen offset:{8+4*k} sc1"), I("s_nop 1")]
            if k == 0:
                g += [I(f"v_not_b32 v{vt}, v{vt}"),
                      I(f"buffer_atomic_umax v{vt}, v{vONE}, {srd(S_DBG)}, 0 offen offset:4 sc1"), I("s_nop 1")]
            return [Group(g)]
        return [Group([I(f"s_memtime s[{TS}:{TS+1}]"), I(f"s_memrealtime s[{sT2}:{sT2+1}]"),
                       I("s_waitcnt lgkmcnt(0)"), I("s_mov_b64 exec, 1"),
                       I(f"v_mov_b32 v{vt}, s{TS}"),
                       I(f"s_add_u32 s{TS}, s{sST}, {k*4}"),
                       I(f"buffer_store_dword v{vt}, v{vC0}, {srd(S_WS)}, s{TS} offen"),
                       I("s_nop 1"),
                       I(f"v_mov_b32 v{vt}, s{sT2}"),
                       I(f"buffer_store_dword v{vt}, v{vC0}, {srd(S_WS)}, s{TS} offen offset:64"),
                       I("s_nop 1"),
                       I(f"v_mov_b32 v{vt}, s{sACC}"),
                       I(f"buffer_store_dword v{vt}, v{vC0}, {srd(S_WS)}, s{TS} offen offset:128"),
                       I("s_nop 1"), I("s_mov_b64 exec, -1")])]

    def holdmark(self, name):
        if not self.o.hold or self.o.holdat != name:
            return []
        return [Group([I(f"s_memrealtime s[{sM0}:{sM0+1}]"), I("s_waitcnt lgkmcnt(0)"),
                       I(f"s_add_u32 s{sACC}, s{sM0}, {self.o.hold}")])]

    def timed(self, seq):
        if self.o.stamps != 1 or (self.o.timeit == "spin"):
            return seq
        return [I("s_memtime s[0:1]")] + seq + [I(f"s_memtime s[{sM0}:{sM0+1}]"), I("s_waitcnt lgkmcnt(0)"),
                                                I(f"s_sub_u32 s0, s{sM0}, s0"), I(f"s_add_u32 s{sACC}, s{sACC}, s0")]

    def poll_check(self, vreg, srdb, voff, soff, val, cmp="ne", split=False):
        slow, back = self.lab("spin"), self.lab("back")
        tm = self.o.timeit == "spin"
        t0 = "    s_memtime s[0:1]\n" if tm else ""
        ret = back
        if tm:
            ret = slow + "_x"
        x = f"""{ret}:
    s_memtime s[{sM0}:{sM0+1}]
    s_waitcnt lgkmcnt(0)
    s_sub_u32 s0, s{sM0}, s0
    s_add_u32 s{sACC}, s{sACC}, s0
    s_branch {back}
""" if tm else ""
        self.cold.append(f"""{slow}:
{t0}    s_mov_b32 s{sSPIN}, {self.o.spin}
{slow}_l:
    buffer_load_dword v{vreg}, v{voff}, {srd(srdb)}, {soff} offen sc1
    s_waitcnt vmcnt(0)
    v_cmp_{cmp}_u32 vcc, {val}, v{vreg}
    s_nop 1
    s_cbranch_vccz {ret}
    s_sub_u32 s{sSPIN}, s{sSPIN}, 1
    s_cmp_lg_u32 s{sSPIN}, 0
    s_cbranch_scc1 {slow}_l
    s_branch {ret}
{x}""")
        a, b = I(f"v_cmp_{cmp}_u32 vcc, {val}, v{vreg}"), Group([I(f"s_cbranch_vccnz {slow}"), I(f"{back}:")])
        return [a, (b, None, None, 2)] if split else Group([a, b])

    def poll_load(self, vreg, srdb, voff, soff):
        return I(f"buffer_load_dword v{vreg}, v{voff}, {srd(srdb)}, {soff} offen sc1")

    def setup(self):
        c = []
        A = c.append
        A(I("s_cmp_ge_u32 s2, 256"))
        A(I("s_cbranch_scc1 L_exit"))
        ptrs = [(S_CKV, 8, 2097152), (S_WUK, 24, 4194304), (S_X, 0, 2097152), (S_WS, 96, WS_SIZE), (S_DBG, 88, 256),
                (S_WUV, 32, 4194304), (S_WQ, 16, 4194304), (S_WO, 40, 4194304), (S_WG, 56, 1409024),
                (S_WU, 64, 1409024), (S_WD, 72, 1409024), (S_OUT, 80, 2097152)]
        for b, off, n in ptrs:
            A(I(f"s_load_dwordx2 s[{b}:{b+1}], s[0:1], {off}"))
        A(I(f"v_and_b32 v{vLANE}, 63, v0"))
        A(I("v_lshrrev_b32 v1, 6, v0"))
        A(I(f"s_mov_b32 s{sB}, s2"))
        if self.o.hold and self.o.holdat == "start":
            A(I("s_memrealtime s[2:3]"))
            A(I("s_waitcnt lgkmcnt(0)"))
            A(I(f"s_add_u32 s{sACC}, s2, {self.o.hold}"))
        if self.o.delay:
            A(I(f"s_mov_b32 s{sT0}, {self.o.delay}"))
            A(I("L_delay:"))
            A(I("s_nop 15")); A(I("s_nop 15")); A(I("s_nop 15")); A(I("s_nop 15"))
            A(I(f"s_sub_u32 s{sT0}, s{sT0}, 1"))
            A(I(f"s_cmp_lg_u32 s{sT0}, 0"))
            A(I("s_cbranch_scc1 L_delay"))
        A(I(f"v_readfirstlane_b32 s{sWAVE}, v1"))
        for b, off, n in ptrs:
            A(I(f"s_mov_b32 s{b+2}, {n}"))
            A(I(f"s_mov_b32 s{b+3}, 0x20000"))
        A(I(f"s_and_b32 s{sT0}, s{sB}, 7"))
        A(I(f"s_lshl_b32 s{sT0}, s{sT0}, 2"))
        A(I(f"s_bfe_u32 s{sT1}, s{sB}, 0x20003"))
        A(I(f"s_add_u32 s{sH}, s{sT0}, s{sT1}"))
        A(I(f"s_lshr_b32 s{sW}, s{sB}, 5"))
        A(I(f"s_lshl_b32 s{sW2K}, s{sWAVE}, 11"))
        A(I(f"s_mul_i32 s{sTOKB}, s{sWAVE}, 24576"))
        A(I(f"s_add_u32 s{sTOKB}, s{sTOKB}, {TOKB}"))
        A(I(f"s_add_u32 s{sT0}, s{sH}, s{sW}"))
        if self.o.rot == 4:
            A(I(f"s_mul_i32 s{sT1}, s{sT0}, 86"))
            A(I(f"s_lshr_b32 s{sT1}, s{sT1}, 8"))
            A(I(f"s_mul_i32 s{sT1}, s{sT1}, 3"))
            A(I(f"s_sub_u32 s{sT0}, s{sT0}, s{sT1}"))
            A(I(f"s_mov_b32 s{sK2[0]}, 0"))
            for i in range(1, 4):
                A(I(f"s_add_u32 s{sT1}, s{sT0}, {i - 1}"))
                A(I(f"s_sub_u32 s{sT2}, s{sT1}, 3"))
                A(I(f"s_min_u32 s{sT1}, s{sT1}, s{sT2}"))
                A(I(f"s_add_u32 s{sT1}, s{sT1}, 1"))
                A(I(f"s_lshl_b32 s{sK2[i]}, s{sT1}, 8"))
        elif self.o.rot == 5:
            A(I(f"s_and_b32 s{sT0}, s{sT0}, 3"))
            A(I(f"s_and_b32 s{sT1}, s{sT0}, 1"))
            A(I(f"s_lshl_b32 s{sK2[0]}, s{sT1}, 8"))
            A(I(f"s_xor_b32 s{sK2[3]}, s{sK2[0]}, 256"))
            A(I(f"s_lshr_b32 s{sT1}, s{sT0}, 1"))
            A(I(f"s_add_u32 s{sT1}, s{sT1}, 2"))
            A(I(f"s_lshl_b32 s{sK2[1]}, s{sT1}, 8"))
            A(I(f"s_xor_b32 s{sK2[2]}, s{sK2[1]}, 256"))
        else:
            if self.o.rot == 2:
                A(I(f"s_lshl_b32 s{sT0}, s{sT0}, 1"))
            A(I(f"s_and_b32 s{sT0}, s{sT0}, {self.o.rot}"))
            for i in range(4):
                A(I(f"s_add_u32 s{sT1}, s{sT0}, {i}"))
                A(I(f"s_and_b32 s{sT1}, s{sT1}, 3"))
                A(I(f"s_lshl_b32 s{sK2[i]}, s{sT1}, 8"))
        L = vLANE
        A(I(f"v_lshrrev_b32 v1, 3, v{L}"))
        A(I(f"v_lshrrev_b32 v2, 4, v{L}"))
        A(I(f"v_and_b32 v3, 7, v{L}"))
        A(I(f"s_lshl_b32 s{sT0}, s{sW}, 2"))
        A(I(f"s_add_u32 s{sT0}, s{sT0}, s{sWAVE}"))
        A(I(f"s_lshl_b32 s{sT0}, s{sT0}, 16"))
        A(I(f"v_xor_b32 v4, v3, v2"))
        A(I(f"v_lshlrev_b32 v5, 10, v1"))
        A(I(f"v_lshl_add_u32 v6, v4, 4, v5"))
        A(I(f"v_add_u32 v{vTO[0]}, s{sT0}, v6"))
        A(I(f"v_xor_b32 v7, 64, v{vTO[0]}"))
        for p in range(1, 8):
            src = 7 if p & 1 else vTO[0]
            A(I(f"v_add_u32 v{vTO[p]}, {p*8192 - (p&3)*1024}, v{src}"))
        A(I(f"v_lshrrev_b32 v8, 5, v{L}"))
        A(I(f"v_and_b32 v9, 3, v1"))
        A(I(f"v_lshl_add_u32 v9, v8, 3, v9"))
        A(I(f"s_lshr_b32 s{sT0}, s{sWAVE}, 1"))
        A(I(f"s_lshl_b32 s{sT0}, s{sT0}, 5"))
        A(I(f"s_and_b32 s{sT1}, s{sWAVE}, 1"))
        A(I(f"s_lshl_b32 s{sT1}, s{sT1}, 2"))
        A(I(f"s_add_u32 s{sT0}, s{sT0}, s{sT1}"))
        A(I(f"v_add_u32 v9, s{sT0}, v9"))
        A(I(f"v_lshlrev_b32 v10, 1, v2"))
        A(I(f"v_xor_b32 v10, v3, v10"))
        A(I(f"v_lshlrev_b32 v10, 4, v10"))
        A(I(f"s_lshl_b32 s{sT0}, s{sH}, 8"))
        A(I(f"v_lshl_add_u32 v11, v9, 13, v10"))
        A(I(f"v_add_u32 v{vWO[0]}, s{sT0}, v11"))
        A(I(f"v_add_u32 v{vWO[1]}, {16*8192-1024}, v{vWO[0]}"))
        A(I(f"v_mov_b32 v{vC0}, 0"))
        A(I(f"v_mov_b32 v{vC1}, 1"))
        if self.o.stamps == 1:
            A(I(f"s_lshl_b32 s{sST}, s{sB}, 2"))
            A(I(f"s_add_u32 s{sST}, s{sST}, s{sWAVE}"))
            A(I(f"s_lshl_b32 s{sST}, s{sST}, 8"))
            A(I(f"s_mov_b32 s{sACC}, 0"))
            A(I(f"s_add_u32 s{sST}, s{sST}, {TS_OFF}"))
        self.n_first = len(c)
        A(I(f"s_lshl_b32 s{sT0}, s{sB}, 2"))
        A(I(f"s_add_u32 s{sT0}, s{sT0}, s{sWAVE}"))
        A(I(f"s_lshl_b32 s{sT0}, s{sT0}, 11"))
        A(I(f"v_and_b32 v12, 31, v{L}"))
        A(I(f"v_lshlrev_b32 v13, 10, v8"))
        A(I(f"v_lshl_add_u32 v13, v12, 4, v13"))
        A(I(f"v_add_u32 v{vLN+32}, s{sT0}, v13"))
        A(I(f"v_mov_b32 v14, {OOB}"))
        A(I("v_cmp_eq_u32 vcc, 0, v0"))
        A(I(f"v_lshlrev_b32 v{vPO32}, 2, v12"))
        A(I(f"v_lshlrev_b32 v{vPO8}, 2, v3"))
        A(I(f"v_cndmask_b32 v{vONE}, v14, v{vC0}, vcc"))
        A(I(f"s_lshr_b32 s{sT0}, s{sB}, 4"))
        A(I(f"s_sub_u32 s{sT1}, 15, s{sT0}"))
        A(I(f"s_min_u32 s{sT1}, s{sT0}, s{sT1}"))
        A(I(f"s_lshl_b32 s{sT1}, s{sT1}, 7"))
        A(I(f"s_lshr_b32 s{sT0}, s{sB}, 7"))
        A(I(f"s_lshl_b32 s{sT0}, s{sT0}, 4"))
        A(I(f"s_and_b32 s{sT2}, s{sB}, 15"))
        A(I(f"s_add_u32 s{sT0}, s{sT0}, s{sT2}"))
        A(I(f"s_lshl_b32 s{sT0}, s{sT0}, 2"))
        A(I(f"s_add_u32 s{sFXN}, s{sT0}, s{sT1}"))
        A(I(f"s_add_u32 s{sFXN}, s{sFXN}, {FL_XN}"))
        A(I(f"s_lshl_b32 s{sT0}, s{sH}, 7"))
        A(I(f"s_lshl_b32 s{sT1}, s{sW}, 2"))
        A(I(f"s_add_u32 s{sFKV}, s{sT0}, s{sT1}"))
        A(I(f"s_add_u32 s{sFKV}, s{sFKV}, {FL_KV}"))
        A(I(f"s_lshl_b32 s{sT0}, s{sW}, 7"))
        A(I(f"s_lshl_b32 s{sT1}, s{sH}, 2"))
        A(I(f"s_add_u32 s{sT0}, s{sT0}, s{sT1}"))
        A(I(f"s_add_u32 s{sFH}, s{sT0}, {FL_H}"))
        A(I(f"s_add_u32 s{sFC}, s{sT0}, {FL_C}"))
        return c

    def setup2(self):
        c = []
        A = c.append
        L = vLANE
        t = vLN + 24
        g, i16 = t, t + 1
        A(I(f"v_lshrrev_b32 v{g}, 4, v{L}"))
        A(I(f"v_and_b32 v{i16}, 15, v{L}"))
        A(I(f"v_lshrrev_b32 v{t+2}, 2, v{i16}"))
        A(I(f"v_lshl_add_u32 v{t+2}, v{g}, 2, v{t+2}"))
        A(I(f"v_and_b32 v{t+3}, 3, v{i16}"))
        A(I(f"v_lshlrev_b32 v{t+3}, 3, v{t+3}"))
        A(I(f"v_bfe_u32 v{t+4}, v{t+2}, 1, 2"))
        A(I(f"v_lshlrev_b32 v{t+4}, 5, v{t+4}"))
        A(I(f"v_lshl_add_u32 v{t+5}, v{t+2}, 7, v{t+3}"))
        A(I(f"v_add_u32 v{vRD[0]}, v{t+5}, v{t+4}"))
        for cb in range(1, 4):
            A(I(f"v_xor_b32 v{vRD[cb]}, {cb*32}, v{vRD[0]}"))
        A(I(f"v_and_b32 v{t+4}, 1, v{g}"))
        A(I(f"v_lshlrev_b32 v{t+4}, 5, v{t+4}"))
        A(I(f"v_lshl_add_u32 v{t+5}, v{t+2}, 6, v{t+3}"))
        A(I(f"v_add_u32 v{vRD64[0]}, v{t+5}, v{t+4}"))
        A(I(f"v_xor_b32 v{vRD64[1]}, 32, v{vRD64[0]}"))
        A(I(f"v_lshl_add_u32 v{vRD32}, v{t+2}, 5, v{t+3}"))
        A(I(f"v_lshrrev_b32 v{t+4}, 1, v{i16}"))
        A(I(f"v_xor_b32 v{t+4}, v{g}, v{t+4}"))
        A(I(f"v_lshlrev_b32 v{t+4}, 4, v{t+4}"))
        A(I(f"v_lshl_add_u32 v{t+4}, v{i16}, 7, v{t+4}"))
        A(I(f"v_add_u32 v{vTRD[0]}, s{sTOKB}, v{t+4}"))
        A(I(f"v_xor_b32 v{vTRD[1]}, 64, v{vTRD[0]}"))
        A(I(f"v_lshlrev_b32 v{vL16[0]}, 4, v{L}"))
        for i in range(1, 4):
            A(I(f"v_add_u32 v{vL16[i]}, {4096*i}, v{vL16[0]}"))
        return c

    def setup3(self):
        c = []
        A = c.append
        L = vLANE
        A(I(f"s_lshl_b32 s{sT1}, s{sH}, 6"))
        A(I(f"s_lshl_b32 s{sT2}, s{sW}, 3"))
        A(I(f"s_add_u32 s{sT1}, s{sT1}, s{sT2}"))
        A(I(f"s_lshl_b32 s{sT2}, s{sWAVE}, 1"))
        A(I(f"s_add_u32 s{sT1}, s{sT1}, s{sT2}"))
        A(I(f"s_lshl_b32 s{sT1}, s{sT1}, 13"))
        A(I(f"s_add_u32 s{sKFB}, s{sT1}, {KF_OFF}"))
        A(I(f"s_add_u32 s{sVFB}, s{sT1}, {VF_OFF}"))
        B = sNM2
        A(I(f"s_sub_u32 s{sT1}, 15, s{sW}"))
        A(I(f"s_lshl_b32 s{sT1}, s{sT1}, 3"))
        A(I(f"s_lshl_b32 s{sT2}, s{sW}, 3"))
        A(I(f"s_sub_u32 s{sT3}, 7, s{sWAVE}"))
        A(I(f"s_add_u32 s{B[0]}, s{sT1}, s{sT3}"))
        A(I(f"s_add_u32 s{B[1]}, s{sT1}, s{sWAVE}"))
        A(I(f"s_add_u32 s{B[2]}, s{sT2}, s{sT3}"))
        A(I(f"s_add_u32 s{B[3]}, s{sT2}, s{sWAVE}"))
        for q in range(4):
            A(I(f"s_lshl_b32 s{sXN[q]}, s{B[q]}, 14"))
            if XN_OFF:
                A(I(f"s_add_u32 s{sXN[q]}, s{sXN[q]}, {XN_OFF}"))
            A(I(f"s_lshr_b32 s{sT1}, s{B[q]}, 2"))
            A(I(f"s_and_b32 s{sT2}, s{B[q]}, 3"))
            A(I(f"s_lshl_b32 s{sT2}, s{sT2}, 10"))
            A(I(f"s_mul_i32 s{sZH[q]}, s{sT1}, {43*4096}"))
            A(I(f"s_add_u32 s{sZH[q]}, s{sZH[q]}, s{sT2}"))
            A(I(f"s_lshl_b32 s{sT3}, s{sH}, 12"))
            A(I(f"s_add_u32 s{sZH[q]}, s{sZH[q]}, s{sT3}"))
            A(I(f"s_add_u32 s{sZH[q]}, s{sZH[q]}, {ZH_OFF}"))
            A(I(f"s_lshl_b32 s{sZC[q]}, s{sT1}, 19"))
            A(I(f"s_add_u32 s{sZC[q]}, s{sZC[q]}, s{sT2}"))
            A(I(f"s_lshl_b32 s{sT3}, s{sH}, 14"))
            A(I(f"s_add_u32 s{sZC[q]}, s{sZC[q]}, s{sT3}"))
            A(I(f"s_add_u32 s{sZC[q]}, s{sZC[q]}, {ZC_OFF}"))
        A(I(f"s_lshr_b32 s{sT1}, s{sH}, 1"))
        A(I(f"s_add_u32 s{sT1}, s{sT1}, 32"))
        A(I(f"s_sub_u32 s{sT1}, s{sT1}, s{sH}"))
        A(I(f"s_lshl_b32 s{sGBD}, s{sT1}, 12"))
        if not self.o.timeit.startswith("vmw"):
            A(I(f"v_mov_b32 v{vGK}, {fbits(GK1)}"))
        for i in range(4):
            A(I(f"s_lshl_b32 s{sT1}, s{sK2[i]}, 4"))
            A(I(f"v_add_u32 v{vX16[i]}, s{sT1}, v{vL16[0]}"))
        return c

    def setup4(self):
        c = []
        A = c.append
        A(Group([I(f"s_cmp_lt_u32 s{sWAVE}, 2"), I(f"s_cselect_b32 s{S_WG}, s{S_WG}, s{S_WU}"),
                 I(f"s_cselect_b32 s{S_WG+1}, s{S_WG+1}, s{S_WU+1}")]))
        L = vLANE
        t = vLN + 24
        A(I(f"v_lshrrev_b32 v{t}, 4, v{L}"))
        A(I(f"v_bfe_u32 v{t+1}, v{L}, 2, 2"))
        A(I(f"v_lshl_add_u32 v{t+1}, v{t}, 3, v{t+1}"))
        A(I(f"s_and_b32 s{sT1}, s{sWAVE}, 1"))
        A(I(f"s_lshl_b32 s{sT2}, s{sT1}, 5"))
        A(I(f"v_add_u32 v{t+1}, s{sT2}, v{t+1}"))
        A(I(f"v_mul_u32_u24 v{t+1}, 2752, v{t+1}"))
        A(I(f"v_and_b32 v{t}, 1, v{t}"))
        A(I(f"v_lshlrev_b32 v{t}, 1, v{t}"))
        A(I(f"v_and_b32 v{t+2}, 3, v{L}"))
        A(I(f"v_xor_b32 v{t}, v{t}, v{t+2}"))
        A(I(f"v_lshl_add_u32 v{t}, v{t}, 4, v{t+1}"))
        A(I(f"s_lshl_b32 s{sT2}, s{sH}, 6"))
        A(I(f"v_add_u32 v{vGA[0]}, s{sT2}, v{t}"))
        A(I(f"v_add_u32 v{vGA[1]}, {4*2752-1024}, v{vGA[0]}"))
        A(I(f"v_bfe_u32 v{t}, v{L}, 3, 2"))
        A(I(f"v_bfe_u32 v{t+1}, v{L}, 1, 2"))
        A(I(f"v_lshl_add_u32 v{t}, v{t}, 3, v{t+1}"))
        A(I(f"v_lshrrev_b32 v{t+1}, 5, v{L}"))
        A(I(f"v_lshl_add_u32 v{t}, v{t+1}, 2, v{t}"))
        A(I(f"s_lshl_b32 s{sT2}, s{sT1}, 6"))
        A(I(f"v_add_u32 v{t}, s{sT2}, v{t}"))
        A(I(f"v_mul_u32_u24 v{t}, 2752, v{t}"))
        A(I(f"v_and_b32 v{t+1}, 1, v{L}"))
        A(I(f"v_lshl_add_u32 v{t}, v{t+1}, 4, v{t}"))
        A(I(f"s_min_u32 s{sT2}, s{sH}, 21"))
        A(I(f"s_lshl_b32 s{sT2}, s{sT2}, 5"))
        A(I(f"s_add_u32 s{sT2}, s{sT2}, 2048"))
        A(Group([I(f"s_cmp_lt_u32 s{sH}, 22"), I(f"s_cselect_b32 s{sT2}, s{sT2}, {OOB}")]))
        A(I(f"v_add_u32 v{vGB[0]}, s{sT2}, v{t}"))
        A(I(f"v_add_u32 v{vGB[1]}, {32*2752-1024}, v{vGB[0]}"))
        A(I(f"s_and_b32 s{sT2}, s{sH}, 1"))
        A(I(f"s_lshl_b32 s{sT2}, s{sT2}, 3"))
        A(Group([I(f"s_cmp_lt_u32 s{sH}, 22"), I(f"s_cselect_b32 s{sT2}, s{sT2}, {OOB}")]))
        A(I(f"v_add_u32 v{vGBS}, s{sT2}, v{vL16[0]}"))
        return c

    def ln_compute(self):
        R = vLN
        X = vLN + 8
        t = vLN + 24
        c = []
        A = c.append
        for i in range(8):
            A(I(f"v_lshlrev_b32 v{X+2*i}, 16, v{R+i}"))
            A(I(f"v_and_b32 v{X+2*i+1}, 0xffff0000, v{R+i}"))

        def reduce32(r):
            for sh in (8, 4, 2, 1):
                A(I(f"v_add_f32_dpp v{r}, v{r}, v{r} row_ror:{sh} row_mask:0xf bank_mask:0xf"))
            A(I(f"v_mov_b32 v{t+7}, v{r}"))
            A(I(f"v_permlane16_swap_b32 v{r}, v{t+7}"))
            A(I(f"v_add_f32 v{r}, v{r}, v{t+7}"))
        A(I(f"v_add_f32 v{t}, v{X}, v{X+1}"))
        A(I(f"v_add_f32 v{t+1}, v{X+2}, v{X+3}"))
        for i in range(4, 16, 2):
            A(I(f"v_add_f32 v{t}, v{t}, v{X+i}"))
            A(I(f"v_add_f32 v{t+1}, v{t+1}, v{X+i+1}"))
        A(I(f"v_add_f32 v{t}, v{t}, v{t+1}"))
        reduce32(t)
        A(I(f"v_mul_f32 v{t}, {fbits(1.0/512)}, v{t}"))
        for i in range(16):
            A(I(f"v_sub_f32 v{X+i}, v{X+i}, v{t}"))
        A(I(f"v_mul_f32 v{t+1}, v{X}, v{X}"))
        A(I(f"v_mul_f32 v{t+2}, v{X+1}, v{X+1}"))
        for i in range(2, 16, 2):
            A(I(f"v_fmac_f32 v{t+1}, v{X+i}, v{X+i}"))
            A(I(f"v_fmac_f32 v{t+2}, v{X+i+1}, v{X+i+1}"))
        A(I(f"v_add_f32 v{t+1}, v{t+1}, v{t+2}"))
        reduce32(t + 1)
        A(I(f"v_mul_f32 v{t+1}, {fbits(1.0/512)}, v{t+1}"))
        A(I(f"v_cvt_pk_bf16_f32 v{t+2}, v{t}, v{t+1}"))
        A(I(f"v_and_b32 v{t+3}, 0xffff0000, v{t+2}"))
        A(I(f"v_lshlrev_b32 v{t+2}, 16, v{t+2}"))
        A(I(f"v_add_f32 v{t+3}, {fbits(1e-5)}, v{t+3}"))
        A(I(f"v_cvt_pk_bf16_f32 v{t+3}, v{t+3}, v{t+3}"))
        A(I(f"v_and_b32 v{t+3}, 0xffff0000, v{t+3}"))
        A(I(f"v_sqrt_f32 v{t+3}, v{t+3}"))
        A(I(f"v_sub_f32 v{t+2}, v{t}, v{t+2}"))
        A(I(f"v_cvt_pk_bf16_f32 v{t+3}, v{t+3}, v{t+3}"))
        A(I(f"v_and_b32 v{t+3}, 0xffff0000, v{t+3}"))
        A(I(f"v_rcp_f32 v{t+3}, v{t+3}"))
        A(I(f"v_and_b32 v{t+4}, 31, v{vLANE}"))
        A(I(f"v_lshrrev_b32 v{t+5}, 5, v{vLANE}"))
        A(I(f"v_mul_f32 v{t+2}, v{t+2}, v{t+3}"))
        A(I(f"v_lshl_add_u32 v{t+4}, v{t+4}, 3, v{t+5}"))
        A(I(f"s_lshl_b32 s{sT1}, s{sWAVE}, 5"))
        A(I(f"s_add_u32 s{sT1}, s{sT1}, {LNBUF}"))
        A(I(f"v_lshl_add_u32 v{t+4}, v{t+4}, 4, s{sT1}"))
        for i in range(16):
            A(I(f"v_fma_f32 v{X+i}, v{X+i}, v{t+3}, v{t+2}"))
        for i in range(8):
            A(I(f"v_cvt_pk_bf16_f32 v{R+i}, v{X+2*i}, v{X+2*i+1}"))
        A(I(f"ds_write_b128 v{t+4}, {vr(R)}"))
        A(I(f"ds_write_b128 v{t+4}, {vr(R+4)} offset:4096"))
        return c

    def ln_store(self):
        R = vLN
        t = vLN + 24
        c = []
        A = c.append
        A(I(f"s_lshl_b32 s{sT1}, s{sWAVE}, 11"))
        A(I(f"s_add_u32 s{sT1}, s{sT1}, {LNBUF}"))
        A(I(f"v_add_u32 v{t}, s{sT1}, v{vL16[0]}"))
        A(I(f"ds_read_b128 {vr(R)}, v{t}"))
        A(I(f"ds_read_b128 {vr(R+4)}, v{t} offset:1024"))
        A(I(f"v_lshrrev_b32 v{t+1}, 3, v{vLANE}"))
        A(I(f"v_and_b32 v{t+2}, 7, v{vLANE}"))
        A(I(f"v_lshlrev_b32 v{t+2}, 4, v{t+2}"))
        A(I(f"v_lshl_add_u32 v{t+1}, v{t+1}, 8, v{t+2}"))
        A(I(f"s_lshr_b32 s{sT1}, s{sB}, 1"))
        A(I(f"s_lshl_b32 s{sT1}, s{sT1}, 14"))
        A(I(f"s_and_b32 s{sT2}, s{sB}, 1"))
        A(I(f"s_lshl_b32 s{sT2}, s{sT2}, 7"))
        A(I(f"s_add_u32 s{sT1}, s{sT1}, s{sT2}"))
        A(I(f"s_lshl_b32 s{sT2}, s{sWAVE}, 12"))
        A(I(f"s_add_u32 s{sT1}, s{sT1}, s{sT2}"))
        if XN_OFF:
            A(I(f"s_add_u32 s{sT1}, s{sT1}, {XN_OFF}"))
        A(I(f"v_add_u32 v{t+1}, s{sT1}, v{t+1}"))
        st = [I(f"buffer_store_dwordx4 {vr(R)}, v{t+1}, {srd(S_WS)}, 0 offen sc1"),
              I(f"buffer_store_dwordx4 {vr(R+4)}, v{t+1}, {srd(S_WS)}, 0 offen offset:2048 sc1")]
        return c + st, st

    def tiles(self):
        T = []
        for c in range(8):
            for half in range(2):
                T.append(dict(typ="R128", srd=S_WUK, kc=c, col=half * 128, vo=vWO, acc=f"K{half}", swap=False,
                              ks0=2 * c, first=(c == 0)))
        for c in range(8):
            for half in range(2):
                T.append(dict(typ="R128", srd=S_WUV, kc=c, col=half * 128, vo=vWO, acc=f"V{half}", swap=True,
                              ks0=2 * c, first=(c == 0)))
        for c in range(4):
            for cc in (2 * c, 2 * c + 1):
                T.append(dict(typ="R64", srd=S_WG, kc=cc, col=0, vo=vGA, acc="GA", swap=False, ks0=2 * cc,
                              first=(cc == 0)))
            T.append(dict(typ="R32", srd=S_WG, kc=2 * c, col=0, vo=vGB, acc="GB", swap=False, ks0=4 * c,
                          first=(c == 0)))
        for half in range(2):
            for c in range(8):
                T.append(dict(typ="R128", srd=S_WQ, kc=c, col=half * 128, vo=vWO, acc=f"Q{half}", swap=False,
                              ks0=2 * c, first=(c == 0)))
        return T

    def tile_dma(self, t):
        fake = self.o.gfake and t["typ"] != "R128" and (self.o.gfake == 1 or t["typ"] == "R32")
        if fake:
            t = t
            vo, sr = vWO, S_WQ
        else:
            vo, sr = t["vo"], t["srd"]
        ops = [I(f"buffer_load_dwordx4 v{vo[p]}, {srd(sr)}, s{sT0} offen offset:{p*1024} {self.o.wflg} lds")
               for p in range(2)]
        t["dma"] = ops
        stride = 8192 if (t["typ"] == "R128" or fake) else 2752
        kc = t["kc"]
        so = [I(f"s_mul_i32 s{sT0}, s{sK2[kc >> 1]}, {stride // 2}")]
        add = (kc & 1) * 64 * stride + t["col"]
        if add:
            so.append(I(f"s_add_u32 s{sT0}, s{sT0}, {add}"))
        return so + [I(f"s_add_u32 m0, s{sW2K}, {t['slot']}"), ops[0], ops[1]]

    def unit_reads(self, t, u, buf):
        base = t["slot"] & 0xffff
        r = []
        for k in range(2):
            for a in range(2):
                d = WFB[buf] + 4 * k + 2 * a
                if t["typ"] == "R128":
                    addr, off = vRD[u], base + k * 4096 + a * 2048
                elif t["typ"] == "R64":
                    addr, off = vRD64[u & 1], base + (u >> 1) * 4096 + k * 2048 + a * 1024
                else:
                    addr, off = vRD32, base + (u & 1) * 4096 + (2 * (u >> 1) + k) * 1024 + a * 512
                r.append(I(f"ds_read_b64_tr_b16 {vr(d,2)}, v{addr} offset:{off}"))
        return batch(r)

    def unit_mfma(self, t, u, buf):
        m = []
        if t["typ"] == "R32":
            wb, ksb, first = u & 1, t["ks0"] + 2 * (u >> 1), t["first"] and u < 2
        else:
            wb, ksb, first = u, t["ks0"], t["first"]
        for tb in range(4):
            d = vr(areg(t["acc"], wb, tb))
            for k in range(2):
                wf, tf = vr(WFB[buf] + 4 * k), ar(TF(tb, ksb + k))
                a, b = (tf, wf) if t["swap"] else (wf, tf)
                m.append(mfma(d, a, b, "0" if (first and k == 0) else d))
        return m

    def tok_dma(self, c):
        ops = [I(f"buffer_load_dwordx4 v{vTO[p]}, {srd(S_CKV)}, s{sT0} offen offset:{(p&3)*1024} {self.o.wflg} lds") for p in range(8)]
        seq = [I(f"s_add_u32 s{sT0}, s{sK2[c >> 1]}, {(c & 1) * 128}")]
        for p in range(8):
            if p & 3 == 0:
                seq.append(I(f"s_add_u32 m0, s{sTOKB}, {(c%3)*8192 + (p>>2)*4096}"))
            seq.append(ops[p])
        return seq, ops

    def tok_reads(self, c):
        return batch([I(f"ds_read_b128 {ar(TF(tb, 2*c+k))}, v{vTRD[k]} offset:{(c%3)*8192 + tb*2048}")
                      for k in range(2) for tb in range(4)])

    def pk_frag(self, d, t0, t1):
        return [I(f"v_cvt_pk_bf16_f32 v{d}, v{t0}, v{t0+1}"), I(f"v_cvt_pk_bf16_f32 v{d+1}, v{t0+2}, v{t0+3}"),
                I(f"v_cvt_pk_bf16_f32 v{d+2}, v{t1}, v{t1+1}"), I(f"v_cvt_pk_bf16_f32 v{d+3}, v{t1+2}, v{t1+3}")]

    def epi_K(self, half):
        c, st = [], []
        ps = f"K{half}"
        for tb in range(4):
            for d2 in range(2):
                p = areg(ps, d2, tb)
                c += self.pk_frag(p, areg(ps, 2 * d2, tb), areg(ps, 2 * d2 + 1, tb))
                st.append(I(f"buffer_store_dwordx4 {vr(p)}, v{vL16[tb]}, {srd(S_WS)}, s{sKFB} offen "
                            f"offset:{(2*half+d2)*1024} {self.o.stflag}"))
        return c, st

    def epi_V(self, half):
        c, st = [], []
        ps = f"V{half}"
        for wb in range(4):
            for sp in range(2):
                p = areg(ps, wb & 1, 2 * sp + (wb >> 1))
                c += self.pk_frag(p, areg(ps, wb, 2 * sp), areg(ps, wb, 2 * sp + 1))
                st.append(I(f"buffer_store_dwordx4 {vr(p)}, v{vL16[2*sp+half]}, {srd(S_WS)}, s{sVFB} offen "
                            f"offset:{wb*1024} {self.o.stflag}"))
        return c, st

    def gelu4(self, g, u):
        c = []
        for i in (0, 2):
            a, b = g + i, g + i + 1
            c += [I(f"v_mul_f32 v{vG0}, v{a}, v{a}"), I(f"v_mul_f32 v{vG1}, v{b}, v{b}"),
                  I(f"v_fmaak_f32 v{vG0}, v{vG0}, v{vGK}, {fbits(GK0)}"),
                  I(f"v_fmaak_f32 v{vG1}, v{vG1}, v{vGK}, {fbits(GK0)}"),
                  I(f"v_mul_f32 v{vG0}, v{vG0}, v{a}"), I(f"v_mul_f32 v{vG1}, v{vG1}, v{b}"),
                  I(f"v_exp_f32 v{vG0}, v{vG0}"), I(f"v_exp_f32 v{vG1}, v{vG1}"),
                  I(f"v_mul_f32 v{a}, v{a}, v{u+i}"), I(f"v_mul_f32 v{b}, v{b}, v{u+i+1}"),
                  I(f"v_add_f32 v{vG0}, 1.0, v{vG0}"), I(f"v_add_f32 v{vG1}, 1.0, v{vG1}"),
                  I(f"v_rcp_f32 v{vG0}, v{vG0}"), I(f"v_rcp_f32 v{vG1}, v{vG1}"),
                  I(f"v_mul_f32 v{a}, v{a}, v{vG0}"), I(f"v_mul_f32 v{b}, v{b}, v{vG1}")]
        return c

    def epi_GA(self):
        c, st = [], []
        for tb in range(4):
            T = lambda wb: areg("GA", wb, tb)
            c += self.gelu4(T(0), T(2)) + self.gelu4(T(1), T(3))
            p = T(0)
            c += self.pk_frag(p, T(0), T(1))
            s = I(f"buffer_store_dwordx4 {vr(p)}, v{vL16[0]}, {srd(S_WS)}, s{sZH[tb]} offen {self.o.stflag}")
            c.append(s)
            st.append(s)
        return c, st

    def epi_GB(self):
        c, st = [], []
        for tb in range(4):
            g, u = areg("GB", 0, tb), areg("GB", 1, tb)
            c += self.gelu4(g, u)
            p = g
            c += [I(f"v_cvt_pk_bf16_f32 v{p}, v{g}, v{g+1}"), I(f"v_cvt_pk_bf16_f32 v{p+1}, v{g+2}, v{g+3}")]
            s = I(f"buffer_store_dwordx2 {vr(p,2)}, v{vGBS}, {srd(S_WS)}, s{sT3} offen {self.o.stflag}")
            c.append(Group([I(f"s_add_u32 s{sT3}, s{sZH[tb]}, s{sGBD}"), s]))
            st.append(s)
        return c, st

    def epi_Q(self, half, q):
        c = []
        for d2 in range(2):
            t0, t1 = areg(f"Q{half}", 2 * d2, q), areg(f"Q{half}", 2 * d2 + 1, q)
            for r in list(range(t0, t0 + 4)) + list(range(t1, t1 + 4)):
                c.append(I(f"v_mul_f32 v{r}, s{sQS}, v{r}"))
            p = t0
            c += self.pk_frag(p, t0, t1)
            for r in range(4):
                c.append(I(f"v_accvgpr_write_b32 a{gQ(q, 2*half+d2)+r}, v{p+r}"))
        return c

    def flag_store(self, s):
        return I(f"buffer_store_dword v{vC1}, v{vONE}, {srd(S_WS)}, s{s} offen sc1")

    def att_setup(self):
        c = []
        A = c.append
        A(I(f"s_lshl_b32 s{sT1}, s{sH}, 19"))
        A(I(f"s_and_b32 s{sT2}, s{sWAVE}, 1"))
        A(I(f"s_lshl_b32 s{sT2}, s{sT2}, 12"))
        A(I(f"s_add_u32 s{sT1}, s{sT1}, s{sT2}"))
        A(I(f"s_lshl_b32 s{sT3}, s{sW}, 2"))
        A(I(f"s_sub_u32 s{sT3}, 64, s{sT3}"))
        A(I(f"s_lshl_b32 s{sT3}, s{sT3}, 13"))
        A(I(f"s_sub_u32 s{sT3}, s{sT3}, s{sT2}"))
        A(Group([I(f"s_cmp_lt_u32 s{sWAVE}, 2"), I(f"s_cselect_b32 s{sT2}, {VF_OFF - KF_OFF - 16384}, 0")]))
        A(I(f"s_add_u32 s{sT1}, s{sT1}, s{sT2}"))
        A(I(f"s_add_u32 s{sT1}, s{sT1}, {KF_OFF + 16384}"))
        A(Group([I(f"s_cmp_lt_u32 s{sWAVE}, 2"), I(f"s_cselect_b32 s{sT2}, 0, 16384")]))
        A(I(f"s_sub_u32 s{S_KV+2}, s{sT3}, s{sT2}"))
        A(Group([I(f"s_add_u32 s{S_KV}, s{S_WS}, s{sT1}"), I(f"s_addc_u32 s{S_KV+1}, s{S_WS+1}, 0")]))
        A(I(f"s_lshr_b32 s{sT1}, s{sWAVE}, 1"))
        A(I(f"s_sub_u32 s{sT2}, 3, s{sT1}"))
        A(I(f"s_lshl_b32 s{sT3}, s{sW}, 2"))
        A(I(f"s_add_u32 s{sNM1[3]}, s{sT3}, s{sT1}"))
        A(I(f"s_add_u32 s{sNM1[2]}, s{sT3}, s{sT2}"))
        A(I(f"s_sub_u32 s{sT3}, 60, s{sT3}"))
        A(I(f"s_add_u32 s{sNM1[1]}, s{sT3}, s{sT1}"))
        A(I(f"s_add_u32 s{sNM1[0]}, s{sT3}, s{sT2}"))
        for q in range(4):
            A(I(f"s_sub_u32 s{sNM2[q]}, s{sNM1[q]}, 1"))
        return c

    def att_events(self):
        c = []
        A = c.append
        m = sum(1 << j for j in range(0, 64, self.o.G))
        A(I(f"s_mov_b32 s{sEV}, {m & 0xffffffff:#x}"))
        A(I(f"s_mov_b32 s{sEV+1}, {m >> 32:#x}"))
        m = (1 << (2 * self.o.G)) | (1 << (3 * self.o.G))
        A(I(f"s_lshl_b32 s{sJL}, s{sW}, 2"))
        A(I(f"s_sub_u32 s{sJL}, 60, s{sJL}"))
        A(I(f"s_mov_b32 s{sSP}, {m:#x}"))
        A(I(f"s_mov_b32 s{sSP+1}, 0"))
        A(I(f"s_mov_b32 s{sMASK}, 0x40004000"))
        for q in range(4):
            A(I(f"s_bitset1_b64 s[{sSP}:{sSP+1}], s{sNM1[q]}"))
            A(I(f"s_bitset1_b64 s[{sSP}:{sSP+1}], s{sNM2[q]}"))
        A(I(f"s_bitset1_b64 s[{sSP}:{sSP+1}], s{sJL}"))
        A(I(f"s_or_b64 s[{sEV}:{sEV+1}], s[{sEV}:{sEV+1}], s[{sSP}:{sSP+1}]"))
        return c

    def att_dma(self, tile=None):
        return [I(f"buffer_load_dwordx4 v{vL16[0]}, {srd(S_KV)}, s{sSOFF} offen offset:{p*1024} {self.o.ldflag} lds")
                for p in range(4)]

    def pf_load(self, voff, sr, soff="0", dst=None):
        x = I(f"buffer_load_dword {dst or 'v%d' % vG0}, v{voff}, {srd(sr)}, {soff} offen")
        x.defs = []
        return x

    def prefetch0(self):
        L = vLANE
        t = 16
        c = [I(f"v_lshrrev_b32 v{t}, 1, v{L}"), I(f"v_and_b32 v{t+1}, 1, v{L}"),
             I(f"s_lshl_b32 s{sT1}, s{sW}, 2"), I(f"s_add_u32 s{sT1}, s{sT1}, s{sWAVE}"),
             I(f"s_lshl_b32 s{sT2}, s{sT1}, 17"), I(f"s_lshl_b32 s{sT3}, s{sH}, 8"),
             I(f"s_add_u32 s{sT2}, s{sT2}, s{sT3}"),
             I(f"v_lshlrev_b32 v{t}, 13, v{t}"), I(f"v_lshl_add_u32 v{t}, v{t+1}, 7, v{t}"),
             I(f"v_add_u32 v{t}, s{sT2}, v{t}"),
             I(f"v_mov_b32 v{t+2}, {OOB}"), I(f"v_cmp_gt_u32 vcc, 32, v{L}"),
             I(f"s_lshl_b32 s{sT1}, s{sT1}, 16"), I(f"s_and_b32 s{sT3}, s{sH}, 3"),
             I(f"v_cndmask_b32 v{vPFW}, v{t+2}, v{t}, vcc"),
             I(f"s_lshl_b32 s{sT3}, s{sT3}, 14"), I(f"s_add_u32 s{sT1}, s{sT1}, s{sT3}"),
             I(f"s_add_u32 s{sT1}, s{sT1}, {3*128}"),
             I(f"v_and_b32 v{t}, 15, v{L}"), I(f"v_lshrrev_b32 v{t+1}, 4, v{L}"),
             I(f"v_lshlrev_b32 v{t}, 10, v{t}"), I(f"v_lshl_add_u32 v{t}, v{t+1}, 7, v{t}"),
             I(f"v_add_u32 v{vPFW+1}, s{sT1}, v{t}")]
        return c, self.pf_load(vPFW + 1, S_CKV), self.pf_load(vPFW, S_WUK)

    def prefetch_code(self, lo=None, hi="L_exit", dst=None, vl=None, st=sT1):
        pc = self.lab("pc")
        c = [Group([I(f"s_getpc_b64 s[{sM0}:{sM0+1}]"), I(f"{pc}:"),
                    I(f"s_sub_u32 s{sM0}, s{sM0}, {pc}-{KNAME}"), I(f"s_subb_u32 s{sM0+1}, s{sM0+1}, 0")]),
             I(f"s_mov_b32 s{sM0+2}, {hi}-{KNAME}"), I(f"s_mov_b32 s{sM0+3}, 0x20000"),
             I(f"s_lshr_b32 s{st}, s{sB}, 3"), I(f"s_lshl_b32 s{st}, s{st}, 2"),
             I(f"s_add_u32 s{st}, s{st}, s{sWAVE}"), I(f"s_lshl_b32 s{st}, s{st}, 10")]
        if lo:
            c.append(I(f"s_add_u32 s{st}, s{st}, {lo}-{KNAME}"))
        if vl is None:
            c.append(I(f"v_lshlrev_b32 v21, 4, v{vLANE}"))
            vl = 21
        x = I(f"buffer_load_dwordx4 {dst or vr(172)}, v{vl}, {srd(sM0)}, s{st} offen")
        if dst and dst.startswith("a"):
            x.defs = []
        return c + [x]

    def ex_prefill(self):
        D = WFB[3]
        c = [I(f"v_mov_b32 v{D+r}, -1") for r in range(4)]
        c += [I(f"s_bfe_u32 s{sT1}, s{sB}, 0x10002"), I(f"s_lshl_b32 s{sT1}, s{sT1}, 5"),
              I(f"s_lshr_b32 s{sT2}, s{sB}, 3"), I(f"s_add_u32 s{sT1}, s{sT1}, s{sT2}"),
              I(f"s_mul_i32 s{sT1}, s{sT1}, {4*3*8192}"), I(f"s_lshl_b32 s{sT2}, s{sWAVE}, 11"),
              I(f"s_add_u32 s{sT1}, s{sT1}, s{sT2}"), I(f"s_add_u32 s{sT1}, s{sT1}, {EX_OFF}")]
        st = []
        for p in range(1, 4):
            c += [I(f"s_add_u32 s{sT2}, s{sB}, {p}"), I(f"s_and_b32 s{sT2}, s{sT2}, 3"),
                  I(f"s_mul_i32 s{sT2}, s{sT2}, {3*8192}"), I(f"s_add_u32 s{sT2}, s{sT2}, s{sT1}"),
                  I(f"s_add_u32 s{sT3}, s{sT2}, {(p-1)*8192}")]
            x = [I(f"buffer_store_dwordx4 {vr(D)}, v{vL16[0]}, {srd(S_WS)}, s{sT3} offen offset:{tb*1024} sc1")
                 for tb in range(2)]
            c += x
            st += x
        return c, st

    def prefetch_xn(self):
        L = vLANE
        t = WFB[3]
        c = [I(f"s_and_b32 s{sT1}, s{sH}, 3"), I(f"s_lshl_b32 s{sT1}, s{sT1}, 12"),
             I(f"v_and_b32 v{t}, 31, v{L}"), I(f"v_lshlrev_b32 v{t}, 7, v{t}"), I(f"v_add_u32 v{t}, s{sT1}, v{t}"),
             I(f"v_cmp_gt_u32 vcc, 32, v{L}")]
        for k in range(2):
            c += [I(f"v_mov_b32 v{t+1}, s{sXN[2*k]}"), I(f"v_mov_b32 v{t+2}, s{sXN[2*k+1]}"),
                  I(f"v_cndmask_b32 v{t+1}, v{t+2}, v{t+1}, vcc"), I(f"v_add_u32 v{t+4+k}, v{t}, v{t+1}"),
                  self.pf_load(t + 4 + k, S_WS)]
        return c

    def prefetch1(self):
        L = vLANE
        t = vLN + 34
        a = [self.pf_load(vPFW, S_WUV)]
        b = [self.pf_load(vPFW, S_WQ)]
        t = WFB[3]
        c = [I(f"s_lshr_b32 s{sNM1[0]}, s{sB}, 3"), I(f"s_lshl_b32 s{sNM1[0]}, s{sNM1[0]}, 2"),
             I(f"s_add_u32 s{sNM1[0]}, s{sNM1[0]}, s{sWAVE}"), I(f"s_lshl_b32 s{sNM1[0]}, s{sNM1[0]}, 2"),
             I(f"v_lshrrev_b32 v{t}, 3, v{L}"), I(f"v_add_u32 v{t}, s{sNM1[0]}, v{t}"),
             I(f"v_mul_u32_u24 v{t}, 2752, v{t}"),
             I(f"s_and_b32 s{sNM1[1]}, s{sB}, 7"), I(f"s_lshl_b32 s{sNM1[2]}, s{sNM1[1]}, 8"),
             I(f"s_lshl_b32 s{sNM1[1]}, s{sNM1[1]}, 7"), I(f"s_add_u32 s{sNM1[1]}, s{sNM1[1]}, {2048 - 3*124}"),
             I(f"v_and_b32 v{t+1}, 7, v{L}"), I(f"v_mul_u32_u24 v{t+2}, 124, v{t+1}"),
             I(f"v_mov_b32 v{t+3}, s{sNM1[2]}"), I(f"v_mov_b32 v{t+4}, s{sNM1[1]}"),
             I(f"v_cmp_gt_u32 vcc, 3, v{t+1}"),
             I(f"v_cndmask_b32 v{t+3}, v{t+4}, v{t+3}, vcc"),
             I(f"v_add3_u32 v{t}, v{t}, v{t+2}, v{t+3}"),
             I(f"v_lshrrev_b32 v{t+2}, 5, v{L}"), I(f"v_lshlrev_b32 v{t+2}, 3, v{t+2}"),
             I(f"v_add_u32 v{t+1}, v{t+1}, v{t+2}"), I(f"v_mov_b32 v{t+2}, {OOB}"),
             I(f"v_cmp_gt_u32 vcc, 5, v{t+1}"),
             I(f"v_cndmask_b32 v{t}, v{t+2}, v{t}, vcc")]
        c += [self.pf_load(t, S_WG), self.pf_load(t, S_WU)]
        return a, b, c

    def prefetch2(self, early=False):
        L = vLANE
        t = WFB[3] + 4 if early else vT[0]
        dst = f"v{vG0+3}" if early else "a200"
        c = [I(f"s_lshl_b32 s{sT1}, s{sB}, 2") if early else I(f"s_and_b32 s{sT1}, s{sB}, 0xfc"),
             I(f"s_add_u32 s{sT1}, s{sT1}, s{sWAVE}"),
             I(f"s_lshl_b32 s{sT2}, s{sT1}, 12"),
             I(f"s_lshl_b32 s{sT1}, s{sB}, 2"), I(f"s_add_u32 s{sT1}, s{sT1}, s{sWAVE}"),
             I(f"v_and_b32 v{t}, 31, v{L}"),
             I(f"v_lshlrev_b32 v{t}, 7, v{t}"), I(f"v_add_u32 v{t}, s{sT2}, v{t}"),
             I(f"s_mul_i32 s{sT2}, s{sT1}, {11*128}"), I(f"v_min_u32 v{t+1}, 10, v{L}"),
             I(f"v_lshlrev_b32 v{t+1}, 7, v{t+1}"), I(f"v_add_u32 v{t+1}, s{sT2}, v{t+1}"),
             self.pf_load(t, S_WO, dst=dst), self.pf_load(t + 1, S_WD, dst=dst)]
        return c

    def phase12(self):
        o = self.o
        T = self.tiles()
        NT = len(T)
        pre = self.setup()
        later = pre[self.n_first:]
        pre = pre[:self.n_first]
        A = pre.append
        A(I("s_waitcnt lgkmcnt(0)"))
        if o.wsoff:
            pre += [I(f"s_add_u32 s{S_WS}, s{S_WS}, {o.wsoff << 20}"), I(f"s_addc_u32 s{S_WS+1}, s{S_WS+1}, 0")]
        pre += self.stamp()
        zpre = [I(f"s_mul_i32 s{sT1}, s{sWAVE}, 3072"), I(f"s_add_u32 s{sT1}, s{sT1}, {FL_OFF}"),
                I(f"s_cmp_eq_u32 s{sB}, 0"), I(f"s_cselect_b32 s{sT1}, s{sT1}, {OOB}"),
                I(f"v_lshlrev_b32 v20, 4, v{vLANE}")] + [I(f"v_mov_b32 v{r}, 0") for r in range(24, 28)]
        zero = [I(f"buffer_store_dwordx4 v[24:27], v20, {srd(S_WS)}, s{sT1} offen offset:{k*1024} sc1") for k in range(3)]
        s0, tok0 = self.tok_dma(0)
        pre += s0
        for n in range(4):
            T[n]["slot"] = n * 8192
        pre += self.tile_dma(T[0]) + self.tile_dma(T[1])
        lnl = [I(f"buffer_load_dwordx4 {vr(vLN)}, v{vLN+32}, {srd(S_X)}, 0 offen"),
               I(f"buffer_load_dwordx4 {vr(vLN+4)}, v{vLN+32}, {srd(S_X)}, 0 offen offset:512")]
        pre += later[:7]
        if o.lnpos == 1:
            pre += lnl
        pre += later[7:]
        c, pfa, pfb = self.prefetch0()
        if o.prefetch & (1 | 4 | 16 | 32):
            pre += c
        if o.prefetch & 16:
            pre += [pfa, pfb]
        if o.prefetch & 256:
            pre += [pfb]
        if o.prefetch & 128:
            pre += [I(f"s_lshl_b32 s{sT1}, s{sB}, 2"), I(f"s_add_u32 s{sT1}, s{sT1}, s{sWAVE}"),
                    I(f"s_lshl_b32 s{sT1}, s{sT1}, 11"), I(f"v_lshlrev_b32 v17, 7, v{vLANE}"),
                    I(f"v_mov_b32 v18, {OOB}"), I(f"v_cmp_gt_u32 vcc, 16, v{vLANE}"),
                    I(f"v_add_u32 v17, s{sT1}, v17"), I("s_nop 0"), I("v_cndmask_b32 v17, v18, v17, vcc"),
                    self.pf_load(17, S_CKV)]
        aux = (self.prefetch_code() if o.pfcode & 1 else []) + zpre + zero
        if o.pfpos == 0:
            pre += aux
        pre += self.setup2()
        s1, tok1 = self.tok_dma(1)
        pre += s1
        pre += self.tile_dma(T[2]) + self.tile_dma(T[3])
        if not o.lnlate and o.lnpos == 0:
            pre += lnl
        if o.pre2:
            s2, tok2 = self.tok_dma(2)
            pre += s2
        if o.pfpos == 1:
            pre += aux
        tokd = {0: tok0, 1: tok1}
        pre.append(Need(tok0))
        rd0 = self.tok_reads(0)
        pre += rd0
        pre.append(Need([T[n]["dma"] for n in range(2)] + (zero if o.pfpos == 0 else []), lg0=True))
        pre.append(I("s_barrier"))
        ready = [I(f"s_cmp_eq_u32 s{sB}, 0"), I(f"s_cselect_b32 s{sPOLL}, 0, {OOB}"),
                 I(f"buffer_store_dword v{vC1}, v{vONE}, {srd(S_DBG)}, s{sPOLL} offen sc1")]
        if o.pfpos == 0:
            pre += ready
        pre += self.stamp() + self.holdmark("bar0")
        NB = o.wdist + 1
        for U in range(o.wdist):
            pre += self.unit_reads(T[0], U, U)

        mf = []
        for n, t in enumerate(T):
            for u in range(4):
                mf += self.unit_mfma(t, u, (4 * n + u) % NB)
        tasks = []
        bstart = list(range(2, 16, 2)) + list(range(16, NT, o.G12))
        bg = lambda n0: 32 * n0 - 8 * o.wdist + 3
        extra_need = {n0: [] for n0 in bstart}
        release = lambda n: bg(min([b for b in bstart if b > n] + [NT + 1]))
        own_bar = lambda n: bg(max(b for b in bstart if b <= n))
        KVF = o.kvq + 12
        free_at = {sl: -1 for sl in range(7)}
        free_at.update({sl: bg(14) + 1 for sl in range(7, 20)})
        for n in range(4):
            free_at[n] = release(n)
        want = {4: 0, 5: 50, 6: 84, 7: 120, 8: 130, 9: 180, 10: 200, 11: 236, 12: 260, 13: 300, 14: 320, 15: 340}
        if o.wmode == 1:
            want.update({5: 40, 6: 56, 7: 82, 8: 120, 9: 132, 10: 180, 11: 192, 12: 206, 13: 258, 14: 272, 15: 322})
        elif o.wmode == 2:
            want.update({5: 50, 6: 80, 7: 100, 8: 122, 9: 146, 10: 182, 11: 206, 12: 244, 13: 270, 14: 310, 15: 330})
        for n in range(16, NT):
            want[n] = max(360 + 14 * (n - 16), 32 * (n - o.lead12))
        if o.gearly:
            early = [34, 32, 37, 33, 40, 35, 43, 36][:o.gearly]
            for n in range(16, 32):
                want[n] = max(360 + 14 * (n - 16), 32 * (n - 7))
            for i, n in enumerate(early):
                want[n] = o.ge0 + o.gestep * i
            for n in range(32, NT):
                if n not in early:
                    want[n] = 32 * (n - (7 if n < 44 else o.lead12))
        events = [(want[n], "W", n) for n in range(4, NT)]
        tokwant = {(2, 0): 8, (2, 1): 24, (3, 0): 40, (3, 1): 64, (4, 0): 92, (4, 1): 106, (5, 0): 154, (5, 1): 168,
                   (6, 0): 218, (6, 1): 242, (7, 0): 282, (7, 1): 308}
        if o.tokmode == 1:
            tokwant = {}
            for c in range(2, 8):
                tokwant[(c, 0)] = 64 * (c - 2) + 10
                tokwant[(c, 1)] = 64 * (c - 2) + 27
            for n in range(4, 16):
                want[n] = 64 * ((n - 4) // 2) + (0 if n % 2 == 0 else 46)
            events = [(want[n], "W", n) for n in range(4, NT)]
        if o.pre2:
            del tokwant[(2, 0)], tokwant[(2, 1)]
            tokwant.update({(3, 0): 8, (3, 1): 24})
        events += [(v, "T", k) for k, v in tokwant.items()]
        events.append((KVF, "KV", None))
        events.sort(key=lambda e: e[0])
        tokrd = {c: self.tok_reads(c) for c in range(1, 8)}
        tokrd[0] = rd0
        tokw = {1: (18 + o.toksh // 2, 36 + o.toksh // 2) if o.tokmode == 0 else (30, 50)}
        for c in range(2, 8):
            sh = o.toksh if c < 7 else min(o.toksh, 18)
            tokw[c] = ((64 * (c - 1) + 2 + sh, 64 * (c - 1) + 22 + sh) if o.tokmode == 0
                       else (64 * (c - 1) + 30, 64 * (c - 1) + 50))
            tasks.append(Task(f"tokrd{c}", [Need([lambda c=c: tokd[c]])] + tokrd[c], *tokw[c], prio=1))
        tasks.append(Task("tokrd1", [Need(tok1)] + tokrd[1], *tokw[1], prio=1))
        tseq = {}
        for c in range(2, 8):
            seq, ops = self.tok_dma(c)
            tokd[c] = ops if not (o.pre2 and c == 2) else tok2
            tseq[(c, 0)] = ([Need(tokrd[c - 3])] if c >= 4 else []) + seq[:6]
            tseq[(c, 1)] = [I(seq[0].text)] + seq[6:]
        k01 = [I(f"buffer_load_dwordx4 v{vL16[0]}, {srd(S_WS)}, s{sT0} offen offset:{p*1024} {self.o.ldflag} lds")
               for p in range(4)]
        kvseq = [I(f"s_lshl_b32 s{sT0}, s{sH}, 19"), I(f"s_lshl_b32 s{sWR}, s{sWAVE}, 12"),
                 I(f"s_add_u32 s{sT0}, s{sT0}, s{sWR}"), I(f"s_add_u32 s{sT0}, s{sT0}, {KF_OFF}"),
                 I(f"s_add_u32 m0, s{sWR}, {6*16384}")] + k01
        self.att_first = list(k01)
        for j in range(3):
            d = self.att_dma()
            kvseq += [I(f"s_add_u32 m0, s{sWR}, {(7+j)*16384}"), I(f"s_mov_b32 s{sSOFF}, {j*8192}")] + d
            self.att_first += d
        m0ent = []
        cur = 0
        for w, kind, k in events:
            lo = max(w, cur)
            if kind == "W":
                ok = [sl for sl in free_at if sl < 12 or release(k) <= KVF]
                sl = min(ok, key=lambda x: (max(free_at[x], lo), x))
                lo = max(lo, free_at[sl] + 1)
                free_at[sl] = release(k)
                T[k]["slot"] = sl * 8192
                seq = self.tile_dma(T[k])
                ln = 10 if lo < 512 else (14 if o.gearly and lo < 760 else 24)
                assert lo + ln < own_bar(k) - 24, (k, lo, own_bar(k))
                T[k]["issue"] = lo
            elif kind == "T":
                seq = tseq[k]
                if k[0] >= 4:
                    lo = max(lo, tokw[k[0] - 3][1] + 1)
                ln = 15
                assert lo + ln < tokw[k[0]][0] - 24, (k, lo)
            else:
                seq = kvseq
                ln = 110
            prev_scalar = False
            for x in seq:
                mind = 1 if (x.kind == "dma" and prev_scalar) else 0
                prev_scalar = x.kind == "salu"
                m0ent.append((x, lo, lo + ln, mind))
            cur = lo + (ln if ln < 100 else 0) - 2
        tasks.append(Task("m0", m0ent, prio=1))
        print("W issue gap / slot:", [(T[n]["issue"], T[n]["slot"] >> 13) for n in range(4, NT)], file=sys.stderr)
        win = {"R128": 0, "R64": 0, "R32": 0}
        aregs = {"R128": vRD, "R64": vRD64, "R32": [vRD32]}
        for U in range(o.wdist, 4 * NT):
            n, u = divmod(U, 4)
            lo = 8 * (U - o.wdist)
            rd = self.unit_reads(T[n], u, U % NB)
            ty, wn = T[n]["typ"], T[n]["slot"] >> 16
            if wn != win[ty]:
                sw = "v_add_u32" if wn > win[ty] else "v_subrev_u32"
                fix = [I(f"{sw} v{r}, {abs(wn - win[ty]) << 16:#x}, v{r}") for r in aregs[ty]]
                win[ty] = wn
                if T[n - 1]["typ"] == ty:
                    rd = [Group(fix + [rd[0]])] + rd[1:]
                else:
                    tasks.append(Task(f"rdfix{U}", fix, lo - 24, lo - 1, prio=1))
            if u == 0 and n in bstart:
                tasks.append(Task(f"rd{U}", rd, lo + 4, lo + 7, prio=0, tight=True))
            elif u == 3 and n + 1 in bstart:
                tasks.append(Task(f"rd{U}", rd, lo, lo + 3, prio=0, tight=True))
            else:
                tasks.append(Task(f"rd{U}", rd, lo, lo + o.wwin, prio=0))
        if o.pfpos == 1:
            extra_need[2] += zero
            tasks.append(Task("ready", [Group(ready[:2]), ready[2]], bg(2) + 2, bg(2) + 8, prio=3))
        k = 2 * o.lnlate
        if o.lnlate and o.lnpos == 0:
            tasks.append(Task("lnld", lnl, 2, 12, prio=2))
        tasks.append(Task("ln", self.ln_compute(), o.lnstart, bg(4 + k) - 2, prio=3))
        c, lnst = self.ln_store()
        tasks.append(Task("lnst", c, bg(4 + k) + 2, 145 + 32 * k, prio=3))
        extra_need[8 + k] += lnst
        tasks.append(Task("flagxn", [self.flag_store(sFXN)], bg(8 + k) + 4, bg(8 + k) + 10, prio=3))
        if o.prefetch & 1:
            tasks.append(Task("pf0a", [pfa], 1, 4, prio=0))
        if o.prefetch & 4:
            tasks.append(Task("pf0b", [pfb], 30, 36, prio=0))
        if o.prefetch & 8:
            tasks.append(Task("pfxn", self.prefetch_xn(), o.xnchk + 14, o.xnchk + 14 + o.pfxw, prio=3))
        if o.prefetch & 2:
            a, b, c = self.prefetch1()
            if o.prefetch & 32:
                if o.pa:
                    tasks.append(Task("pf1a", a, o.pa, o.pa + 8, prio=3))
                if o.pb:
                    tasks.append(Task("pf1b", b, o.pb, o.pb + 8, prio=3))
                if o.pc:
                    tasks.append(Task("pf1c", c, o.pc, o.pc + 30, prio=3))
        tasks.append(Task("setup3", self.setup3(), 153 + 32 * k, 218 + 32 * k, prio=4))
        tasks.append(Task("setup4", self.setup4(), 472, 510, prio=4))
        tasks.append(Task("gate", [self.poll_load(vPOLL, S_DBG, vC0, "0")], 146 + 32 * k, 152 + 32 * k, prio=3))
        tasks.append(Task("gatechk", self.poll_check(vPOLL, S_DBG, vC0, "0", "1", split=True), 220 + 32 * k, 232 + 32 * k, prio=3))
        tasks.append(Task("xnpoll", [I(f"s_lshl_b32 s{sPOLL}, s{sW}, 7"), I(f"s_add_u32 s{sPOLL}, s{sPOLL}, {FL_XN}"),
                                     self.poll_load(vPOLL, S_WS, vPO32, f"s{sPOLL}")], o.xnchk - 90, o.xnchk - 80, prio=3))
        tasks.append(Task("xnchk", self.poll_check(vPOLL, S_WS, vPO32, f"s{sPOLL}", "1", split=True), o.xnchk, o.xnchk + 12, prio=3))
        pk, sts = zip(self.epi_K(0), self.epi_K(1), self.epi_V(0), self.epi_V(1))
        tasks.append(Task("epiK0", pk[0], 490, 540, prio=5))
        tasks.append(Task("epiK1", pk[1], 521, 558, prio=4))
        tasks.append(Task("epiV0", pk[2], 1001, 1038, prio=4))
        tasks.append(Task("epiV1", pk[3], 1039, 1086, prio=5))
        allst = [x for l in sts for x in l]
        ent = []
        for k, x in enumerate(allst):
            if k < 16:
                lo = int(545 + k * (1020 - 545) / 16)
            else:
                lo = max(int(1045 + (k - 16) * (o.st_hi - 1045) / 16), 1088 if k >= 24 else 0)
            ent.append((x, lo, lo + 12))
        tasks.append(Task("epistores", ent, prio=2))
        extra_need[48] += allst
        tasks.append(Task("flagkv", [self.flag_store(sFKV)], bg(48) + 4, bg(48) + 10, prio=3))
        for c in range(8):
            ld = [I(f"buffer_load_dwordx4 {ar(TF(tb, 2*c+k))}, v{vX16[(2*c+k)>>2]}, {srd(S_CKV if o.xnsrc else S_WS)}, s{sXN[tb]} offen "
                    f"offset:{((2*c+k)&3)*1024} {self.o.ldflag}") for k in range(2) for tb in range(4)]
            lo = max(580 + 64 * c, o.xn0 + o.xnslope * c)
            tasks.append(Task(f"xn{c}", batch(ld), lo, lo + o.xnslope - 2, prio=2))
        c, stA = self.epi_GA()
        tasks.append(Task("epiGA", c, 1416, 1660, prio=5))
        c, stB = self.epi_GB()
        tasks.append(Task("epiGB", c, 1661, 1790, prio=5))
        self.h_stores = stA + stB
        if o.sentinel:
            c, stP = self.ex_prefill()
            if o.p2early and o.prefetch & 2:
                c = self.prefetch2(True) + c
            tasks.append(Task("exfill", c, 1425, 1565, prio=3))
            self.h_stores += stP
        c = [I(f"s_mov_b32 s{sQS}, {fbits(QSCALE)}")]
        for q in range(4):
            c += self.epi_Q(0, q)
        tasks.append(Task("epiQ0", c, 1700, 1830, prio=5))
        tasks.append(Task("attsetup", self.att_setup(), 1570, 1655, prio=4))
        tasks.append(Task("attev", self.att_events(), 1840, 1900, prio=4))
        if o.pfcode & 2:
            tasks.append(Task("pfcode2", self.prefetch_code("L_att", "L_p4", vr(WFB[3] + 4), vL16[0], sJL + 1),
                              1800, 1830, prio=3))
        tasks.append(Task("p4setup", self.p4_setup() + self.p4_setup_vec(), 1795, 1915, prio=4))
        kvp = [I(f"s_lshl_b32 s{sPOLL}, s{sH}, 7"), I(f"s_add_u32 s{sPOLL}, s{sPOLL}, {FL_KV}"),
               self.poll_load(vPOLL, S_WS, vPO8, f"s{sPOLL}")]
        tasks.append(Task("kvpoll", kvp, o.kvq - o.kvd, o.kvq - o.kvd + 10, prio=3))
        tasks.append(Task("kvchk", self.poll_check(vPOLL, S_WS, vPO8, f"s{sPOLL}", "1", split=True), o.kvq, o.kvq + 10, prio=3))
        zr = lambda a, b: [I(f"v_mov_b32 v{r}, 0") for r in range(a, b)]
        tasks.append(Task("zeroO5", zr(160, 192), 1662, 1760, prio=6))
        tasks.append(Task("zeroO3", zr(96, 128), 1792, 1870, prio=6))
        tasks.append(Task("zeroO24", zr(64, 96) + zr(128, 160), 1832, 1920, prio=6))
        g = [I(f"v_lshrrev_b32 v{vT[0]}, 4, v{vLANE}"), I(f"v_and_b32 v{vT[1]}, 15, v{vLANE}"),
             I(f"v_lshlrev_b32 v{vT[0]}, 2, v{vT[0]}"), I(f"v_sub_u32 v{vT[1]}, v{vT[1]}, v{vT[0]}"),
             I(f"v_and_b32 v{vT[0]}, 64, v0") if False else I(f"v_mov_b32 v{vT[0]}, s{sWAVE}"),
             I(f"v_and_b32 v{vT[0]}, 1, v{vT[0]}"), I(f"v_lshlrev_b32 v{vT[0]}, 4, v{vT[0]}"),
             I(f"v_add_u32 v{vDM[1]}, v{vT[0]}, v{vT[1]}"), I(f"v_sub_u32 v{vT[0]}, 16, v{vT[0]}"),
             I(f"v_add_u32 v{vDM[0]}, v{vT[0]}, v{vT[1]}"), I(f"v_mov_b32 v{vT[2]}, 0x3f803f80")]
        tasks.append(Task("attvec", g, 1610, 1655, prio=6))
        g = [I(f"v_accvgpr_write_b32 a{gONE+r}, v{vT[2]}") for r in range(4)]
        g += [I(f"v_accvgpr_write_b32 a{r}, 0") for r in range(gL(0), gL(0) + 16)]
        tasks.append(Task("attacc", g, 1828, 1900, prio=6))
        for k, n0 in enumerate(bstart):
            n1 = bstart[k + 1] if k + 1 < len(bstart) else NT
            ops = [T[n]["dma"] for n in range(n0, n1)] + extra_need[n0]
            bar = [Need(ops, lg0=True), I("s_barrier")]
            tasks.append(Task(f"bar{n0}", [Group(bar if o.timeit else self.timed(bar))], bg(n0), bg(n0),
                              prio=-1))
        for nm, gp in (("K", 514), ("V", 1026), ("Q", 1916)):
            if self.holdmark(nm):
                tasks.append(Task("holdmark", self.holdmark(nm), gp, gp, prio=7))
        if o.stamps:
            for gp in [int(x) for x in o.stampat.split(",")]:
                tasks.append(Task("stamp", self.stamp(), gp + 2, gp + 2, prio=7))
        if o.drop:
            dr = o.drop.split(",")
            if "stores" in dr:
                dr = [d for d in dr if d != "stores"] + ["epistores"]
            for t in tasks:
                if "epistores" in dr and t.name.startswith("epiG"):
                    t.instrs = [x for x in t.instrs if not any(y.kind == "vstore" for y in flatten([x]))]
            tasks = [t for t in tasks if not any(t.name.startswith(d) for d in dr)]
        body = schedule(mf, tasks, o.budget, self.reports, reserve=range(0, len(mf), 8), seed=o.seed, vmw=o.vmw, ldw=o.ldw12)
        if o.timeit:
            nb = []
            for x in flatten(body):
                hit = {"st": x.kind == "vstore", "ld": x.kind == "vload", "dma": x.kind == "dma",
                       "need": x.kind == "need"}.get(o.timeit, False)
                nb += self.timed([x]) if hit else [x]
            body = nb
        return pre + body

    def mask(self, q, scores=False):
        c = []
        D = vDM[q & 1]
        if scores:
            c.append(I(f"v_mov_b32 v{vT[2]}, 0xff800000"))
            for i in range(0, 8, 2):
                c.append(I(f"v_cmp_gt_i32 s[{sM0}:{sM0+1}], {16*(i>>2)+(i&3)}, v{D}"))
                c.append(I(f"v_cmp_gt_i32 s[{sM1}:{sM1+1}], {16*(i>>2)+(i&3)+1}, v{D}"))
                c.append(I(f"v_cndmask_b32 v{aS(q,0)+i}, v{aS(q,0)+i}, v{vT[2]}, s[{sM0}:{sM0+1}]"))
                c.append(I(f"v_cndmask_b32 v{aS(q,0)+i+1}, v{aS(q,0)+i+1}, v{vT[2]}, s[{sM1}:{sM1+1}]"))
            return c
        src = aC(q, 0)
        c.append(I(f"v_mov_b32 v{vT[0]}, 0xff800000"))
        order = [(1, r) for r in range(4)] + [(0, 3), (0, 2), (0, 1), (0, 0)]
        for i in range(0, 8, 2):
            (k0, r0), (k1, r1) = order[i], order[i + 1]
            c.append(I(f"v_cmp_gt_i32 s[{sM0}:{sM0+1}], {16*k0+r0}, v{D}"))
            c.append(I(f"v_cmp_gt_i32 s[{sM1}:{sM1+1}], {16*k1+r1}, v{D}"))
            c.append(I("s_nop 0"))
            c.append(I(f"v_cndmask_b32 v{aC(q,k0)+r0}, v{src}, v{vT[0]}, s[{sM0}:{sM0+1}]"))
            c.append(I(f"v_cndmask_b32 v{aC(q,k1)+r1}, v{src}, v{vT[0]}, s[{sM1}:{sM1+1}]"))
        return c

    def rowmax(self, q, t0, t1):
        S = aS(q, 0)
        return [I(f"v_max3_f32 v{t0}, v{S}, v{S+1}, v{S+2}"), I(f"v_max3_f32 v{t1}, v{S+3}, v{S+4}, v{S+5}"),
                I(f"v_max3_f32 v{t0}, v{t0}, v{S+6}, v{S+7}"), I(f"v_max_f32 v{t0}, v{t0}, v{t1}"),
                I(f"v_mov_b32 v{t1}, v{t0}"), I(f"v_permlane32_swap_b32 v{t0}, v{t1}"),
                I(f"v_max_f32 v{t0}, v{t0}, v{t1}"),
                I(f"v_mov_b32 v{t1}, v{t0}"), I(f"v_permlane16_swap_b32 v{t0}, v{t1}"),
                I(f"v_max_f32 v{t0}, v{t0}, v{t1}"),
                I(f"v_add_f32 v{t0}, {fbits(BIAS)}, v{t0}")]

    def exps(self, q, E):
        S = aS(q, 0)
        return [I(f"v_exp_f32 v{E+i}, v{S+i}") for i in range(8)]

    def cvts(self, q, E):
        return [I(f"v_cvt_pk_bf16_f32 v{aP(q)+i}, v{E+2*i}, v{E+2*i+1}") for i in range(4)]

    def fix(self, q):
        t0, t1 = aE[2], aE[2] + 1
        S = aS(q, 0)
        c = [I("s_nop 7"), I("s_nop 1")] + self.rowmax(q, t0, t1)
        c.append(I(f"v_max_f32 v{t0}, 0, v{t0}"))
        c.append(I(f"v_exp_f32 v{t1}, -v{t0}"))
        for i in range(8):
            c.append(I(f"v_sub_f32 v{S+i}, v{S+i}, v{t0}"))
            c.append(I(f"v_sub_f32 v{aC(q,0)+i}, v{aC(q,0)+i}, v{t0}"))
        for r in range(aO(0, q), aO(0, q) + 32):
            c.append(I(f"v_mul_f32 v{r}, v{r}, v{t1}"))
        for r in range(4):
            c.append(I(f"v_accvgpr_read_b32 v{t0+2+r}, a{gL(q)+r}"))
        for r in range(4):
            c.append(I(f"v_mul_f32 v{t0+2+r}, v{t0+2+r}, v{t1}"))
        for r in range(4):
            c.append(I(f"v_accvgpr_write_b32 a{gL(q)+r}, v{t0+2+r}"))
        c += self.exps(q, aE[1]) + self.cvts(q, aE[1])
        return c

    def check(self, qs, mind=2):
        P = [aP(q) + i for q in qs for i in range(4)]
        ors = []
        cur = None
        while P:
            if cur is None:
                ors.append(I(f"v_or3_b32 v{vOR}, v{P[0]}, v{P[1]}, v{P[2]}"))
                P = P[3:]
                cur = vOR
            elif len(P) >= 2:
                ors.append(I(f"v_or3_b32 v{vOR}, v{vOR}, v{P[0]}, v{P[1]}"))
                P = P[2:]
            else:
                ors.append(I(f"v_bitop3_b32 v{vOR}, v{vOR}, v{P[0]}, s{sMASK} bitop3:0xa8"))
                P = []
        slow, back = self.lab("fix"), self.lab("fixb")
        body = []
        for q in qs:
            body += self.fix(q)
        body += [I("s_nop 1"), I(f"s_branch {back}")]
        self.cold.append(f"{slow}:\n" + render(pad_hazards(body)))
        tail = [I(f"v_cmp_ne_u32 vcc, 0, v{vOR}"),
                (Group([I(f"s_cbranch_vccnz {slow}"), I(f"{back}:")]), None, None, mind)]
        return ors, tail

    def k_reads(self, half_off=8192):
        r = [I(f"ds_read_b128 {ar(gK(kb, ds))}, v{vARD} offset:{half_off + (kb*4+ds)*1024}")
             for kb in range(2) for ds in range(4)]
        return batch(r[:4]) + batch(r[4:])

    def qk(self, q, first=False):
        m = []
        for kb in range(2):
            for ds in range(4):
                d = vr(aS(q, kb))
                m.append(mfma(d, ar(gK(kb, ds)), ar(gQ(q, ds)), ("0" if first else vr(aC(q, kb))) if ds == 0 else d))
        return m

    def pv(self, q):
        m = [mfma(vr(aO(db, q)), ar(gV(db)), vr(aP(q)), vr(aO(db, q))) for db in range(8)]
        m.append(mfma(ar(gL(q)), ar(gONE), vr(aP(q)), ar(gL(q))))
        return m

    def iteration(self, nc, nn):
        o = self.o
        X = [m for q in range(nn) for m in self.qk(q)]
        Y = [m for q in range(nc) for m in self.pv(q)]
        y0 = len(X)
        n = y0 + len(Y)
        late = nc - 1
        tasks = []
        hi = 8 * (nn - 1) if nn == nc else y0 + 9 * late
        hi = max(0, min(hi, 8))
        ors, tail = self.check([late], 2 if hi >= 6 else 0)
        tasks.append(Task("late", self.cvts(late, aE[0]) + ors + tail, 0, hi, prio=1, tight=True))
        vrd = [I(f"ds_read_b128 {ar(gV(db))}, v{vARD} offset:{db*1024}") for db in range(8)]
        vrd = batch(vrd[:4]) + batch(vrd[4:])
        tasks.append(Task("vrd", [(r, 0, max(0, y0 - 5 + (4 if k >= 4 else 0))) for k, r in enumerate(vrd)],
                          0, max(0, min(y0 - 3, 12)), prio=2))
        ES = [aE[1], aE[2], aE[1]]
        early = list(range(nn - 1))
        if nn > 0:
            start = 9
            span = (n - start) / nn
            pos = [int(start + span * i) for i in range(nn + 1)]
            last = []
            for q in range(nn):
                rdy = [8 * q + 9] * 4 + [8 * q + 13] * 4
                if q in early:
                    cv_lo = y0 + 9 * (q + 1)
                    cv_hi = min(n - 5, (y0 + 9 * (q + 1) + 9) if q + 1 < len(early) else n - 5)
                    if q == 0 and len(early) == 3:
                        cv_hi = y0 + 9 + 5
                    lo2 = (y0 + 9 + 6) if q == 2 else 0
                    ent = [(e, max(rdy[k], lo2), cv_hi - 2) for k, e in enumerate(self.exps(q, ES[q]))]
                    ent += [(x, cv_lo, cv_hi) for x in self.cvts(q, ES[q])]
                    tasks.append(Task(f"exp{q}", ent, max(pos[q], lo2), max(pos[q + 1] + 3, cv_lo + 4), prio=0))
                    last.append(cv_hi)
                else:
                    ent = [(e, min(n, max(rdy[k], 10)), n) for k, e in enumerate(self.exps(q, aE[0]))]
                    tasks.append(Task(f"exp{q}", ent, min(n, pos[q]), n, prio=0))
            if early:
                ors, tail = self.check(early)
                need = []
                for x in ors:
                    qs = [(int(u[1:]) - aP(0)) // 4 for u in x.uses if aP(0) <= int(u[1:]) < aP(0) + 16]
                    need.append(last[max(qs)] + 1)
                ent = [(x, min(need[k], n - 3), n - 2) for k, x in enumerate(ors)]
                ent += [(tail[0], min(need[-1], n - 2), n - 2), (tail[1][0], 0, n, 2)]
                tasks.append(Task("chk1", ent, prio=3, tight=True))
            krd = self.k_reads()
            adv = I(f"v_add_u32 v{vARD}, s{sRD}, v{vL16[0]}")
            tasks.append(Task("krd", [(r, y0, n - (7 if k < 4 else 4)) for k, r in enumerate(krd)] + [(adv, y0, n)],
                              y0, n - 3, prio=2))
            d = self.att_dma()
            R = o.NS * 16384
            sc = [I(f"s_mov_b32 m0, s{sWR}"), I(f"s_add_u32 s{sSOFF}, s{sSOFF}, 8192"), (d[0], None, None, 1)] + d[1:]
            sc += [I(f"s_add_u32 s{sWR}, s{sWR}, 16384"), I(f"s_sub_u32 s{sT0}, s{sWR}, {R}"),
                   I(f"s_min_u32 s{sWR}, s{sWR}, s{sT0}")]
            rdp = [I(f"s_add_u32 s{sRD}, s{sRD}, 16384"), I(f"s_sub_u32 s{sT1}, s{sRD}, {R}"),
                   I(f"s_min_u32 s{sRD}, s{sRD}, s{sT1}")]
            tasks.append(Task("rdp", rdp, 1, max(3, y0 - 1), prio=4))
            tasks.append(Task("dma", sc, 1, n - 4, prio=1))
        tasks.append(Task("j", [I(f"s_add_u32 s{sJ}, s{sJ}, 1")], max(0, n - 6), max(0, n - 3), prio=5))
        res = {0, 4, y0, y0 + 4}
        seed, ldw = (o.seed, o.ldw) if o.tune == 0 else {4: (11, 12), 3: (2, 12)}.get(max(nc, nn), (1, 0))
        seq = schedule(X + Y, tasks, o.budget, self.reports, reserve=res, seed=seed, vmw=o.vmwa, ldw=ldw)
        by = {t.name: [e[0] if isinstance(e, tuple) else e for e in t.instrs] for t in tasks}
        ref = by["late"] + by["vrd"] + X + Y
        for nm in ("exp0", "exp1", "exp2", "exp3", "chk1", "krd", "dma", "j"):
            if nm == "krd":
                ref += by.get("rdp", [])
            ref += by.get(nm, [])
        verify_order(ref, seq)
        return seq

    def att_state(self):
        sb = Scoreboard()
        for r in self.k_reads():
            sb.after(r)
        for i in range(40):
            sb.after(I("buffer_inv sc1"))
        return sb

    def finalize(self, q):
        t0 = vT[0]
        c = [I(f"v_accvgpr_read_b32 v{t0}, a{gL(q)}"), I(f"v_rcp_f32 v{t0}, v{t0}")]
        st = []
        for k in range(4):
            a, b = aO(2 * k, q), aO(2 * k + 1, q)
            for r in (a, a + 2, b, b + 2):
                c.append(I(f"v_pk_mul_f32 {vr(r,2)}, {vr(r,2)}, {vr(t0,2)} op_sel_hi:[1,0]"))
            p = aE[1] + 4 * k
            c += self.pk_frag(p, a, b)
            s = I(f"buffer_store_dwordx4 {vr(p)}, v{vL16[k]}, {srd(S_WS)}, s{sZC[q]} offen {self.o.stflag}")
            c.append(s)
            st.append(s)
        return c, st

    def seg(self, seq, sb, prev=()):
        s = add_waits(seq, sb)
        return pad_hazards(s, prev)

    def attention(self, sb, prev):
        o = self.o
        out = []
        pro = []
        A = pro.append
        pro += [I("L_att:"), I(f"v_add_u32 v{vARD}, {6*16384}, v{vL16[0]}")]
        pro += [Need(self.att_first + self.h_stores, lg0=True), I("s_barrier")]
        pro += self.k_reads(0)
        pro.append(self.flag_store(sFH))
        dm = []
        for j in range(3, o.LEAD):
            d = self.att_dma()
            dm += [I(f"s_add_u32 m0, s{sWR}, {((7+j) % o.NS)*16384}"), I(f"s_mov_b32 s{sSOFF}, {j*8192}"),
                   (d[0], None, None, 1)] + d[1:]
        dm += [I(f"s_add_u32 s{sWR}, s{sWR}, {((7+o.LEAD-1) % o.NS + 1)*16384}"),
               I(f"s_mov_b32 s{sRD}, {7*16384}"), I(f"s_mov_b32 s{sJ}, 0")]
        assert ((7 + o.LEAD - 1) % o.NS) + 1 < o.NS
        e0 = self.epi_Q(1, 0)
        pro += e0[:16] + dm[:2] + e0[16:24] + [dm[2][0]] + e0[24:]
        dm = dm[3:]

        def init(q):
            t0, t1 = vT[0], vT[1]
            S = aS(q, 0)
            c = self.rowmax(q, t0, t1)
            if q < 2:
                c += [I(f"v_sub_f32 v{S+i}, v{S+i}, v{t0}") for i in range(8)]
                c += [I(f"v_sub_f32 v{aC(q,0)+i}, 0, v{t0}") for i in range(8)]
            else:
                c.append(I(f"v_sub_f32 v{t0}, 0, v{t0}"))
                c += [I(f"v_pk_add_f32 {vr(S+i,2)}, {vr(S+i,2)}, {vr(t0,2)} op_sel_hi:[1,0]") for i in range(0, 8, 2)]
                c += [I(f"v_pk_mov_b32 {vr(aC(q,0)+i,2)}, {vr(t0,2)}, {vr(t0,2)} op_sel:[0,0]") for i in range(0, 8, 2)]
            if q < 3:
                E = [aE[1], aE[2], aE[1]][q]
                return c + self.exps(q, E) + self.cvts(q, E)
            return c + self.exps(q, aE[0])
        X = [m for q in range(4) for m in self.qk(q, True)]
        tasks = [Task("dm", dm, 0, 32, prio=0)]
        for q in range(1, 4):
            tasks.append(Task(f"epiQ1_{q}", self.epi_Q(1, q), 8 * (q - 1), 8 * q - 1, prio=1))
        tasks.append(Task("init01", [(x, 11, 32) for x in init(0)] + [(x, 19, 32) for x in init(1)], 11, 32, prio=2))
        pro += schedule(X, tasks, o.budget, self.reports, vmw=0)
        pro += self.k_reads()
        pro += [I(f"v_add_u32 v{vARD}, s{sRD}, v{vL16[0]}")]
        pro += init(2)
        skip = self.lab("nomask")
        pro += [I(f"s_cmp_lg_u32 s{sNM1[3]}, 0"), I(f"s_cbranch_scc1 {skip}")] + self.mask(3, True) + [I(f"{skip}:")]
        pro += init(3)
        pro += [I("s_waitcnt lgkmcnt(0)")]
        pro += self.stamp(vT[3])
        pro = self.seg(pro, sb, prev)
        out += pro
        out.append(I(f"s_branch L_ev4"))
        wait_n = (o.LEAD - o.G) * 4
        last_st = None
        for n in (4, 3, 2, 1):
            b = []
            for u in range(o.unroll):
                ctl = [I(f"s_bitcmp1_b64 s[{sEV}:{sEV+1}], s{sJ}"),
                       I(f"s_cbranch_scc0 L_body{n}") if u == o.unroll - 1 else I(f"s_cbranch_scc1 L_ev{n}")]
                b += self.seg(self.iteration(n, n) + ctl, self.att_state(), b)
            print("iteration", n, "estimate", estimate(b) // o.unroll, file=sys.stderr)
            check_hazards(b, b)
            out += [I(".p2align 6"), I(f"L_body{n}:")] + b
            bar = self.timed([I(f"s_waitcnt vmcnt({wait_n}) lgkmcnt(0)"), I("s_barrier")])
            nb, nm, nh, nh2, sp = self.lab("nb"), self.lab("nm"), self.lab("nh"), self.lab("nh2"), self.lab("sp")
            ev = [I(f"L_ev{n}:"), I(f"s_bitcmp1_b64 s[{sSP}:{sSP+1}], s{sJ}"), I(f"s_cbranch_scc1 {sp}")]
            ev += bar + [I(f"s_branch L_body{n}"), I(f"{sp}:")]
            ev += [I(f"s_and_b32 s{sT0}, s{sJ}, {o.G-1}"), I(f"s_cbranch_scc1 {nb}")]
            ev += self.timed([I(f"s_waitcnt vmcnt({wait_n}) lgkmcnt(0)"), I("s_barrier")])
            ev += [I(f"s_cmp_eq_u32 s{sJ}, {2*o.G}"), I(f"s_cbranch_scc0 {nh}")]
            ev += (self.prefetch2() if (o.prefetch & 2 and not o.p2early) else []) + self.p4_scalars()
            ev += self.h_offsets() + [self.poll_load(vHP, S_WS, vHO, f"s{sHB}"), I(f"{nh}:")]
            ev += [I(f"s_cmp_eq_u32 s{sJ}, {3*o.G}"), I(f"s_cbranch_scc0 {nh2}"),
                   self.poll_check(vHP, S_WS, vHO, f"s{sHB}", "1"), I(f"{nh2}:")]
            if n == 2:
                ne = self.lab("ne")
                ev += [I(f"s_cmp_eq_u32 s{sJ}, s{sJL}"), I(f"s_cbranch_scc0 {ne}")] + self.p4_early() + [I(f"{ne}:")]
            ev += [I(f"{nb}:"), I(f"s_cmp_eq_u32 s{sJ}, s{sNM2[n-1]}"), I(f"s_cbranch_scc0 {nm}")]
            ev += self.mask(n - 1) + [I(f"{nm}:"), I(f"s_cmp_eq_u32 s{sJ}, s{sNM1[n-1]}"),
                                      I(f"s_cbranch_scc0 L_body{n}")]
            if n >= 2:
                nm2 = self.lab("nm")
                ev += [I(f"s_cmp_eq_u32 s{sJ}, s{sNM2[n-2]}"), I(f"s_cbranch_scc0 {nm2}")]
                ev += self.mask(n - 2) + [I(f"{nm2}:")]
            ev = pad_hazards(flatten(ev), b)
            tr = self.iteration(n, n - 1)
            fin, st = self.finalize(n - 1)
            last_st = st
            tail = []
            if n >= 2:
                tail = [I(f"s_bitcmp1_b64 s[{sEV}:{sEV+1}], s{sJ}"),
                        I(f"s_cbranch_scc1 L_ev{n-1}")]
            sbt = self.att_state()
            t = self.seg(tr + fin + tail, sbt, ev)
            out += ev + t
        self.ctx_stores = last_st
        return out, sbt

    def p4_scalars(self):
        return [I(f"s_bfe_u32 s{sT1}, s{sB}, 0x10002"), I(f"s_lshl_b32 s{sT1}, s{sT1}, 3"),
                I(f"s_bfe_u32 s{sT2}, s{sB}, 0x30003"), I(f"s_add_u32 s{sT2}, s{sT1}, s{sT2}"),
                I(f"s_sub_u32 s{sT3}, 15, s{sT2}"),
                I(f"s_min_u32 s{sT2}, s{sT2}, s{sT3}"), I(f"s_lshl_b32 s{sPOLL}, s{sT2}, 7"),
                I(f"s_add_u32 s{sPOLL}, s{sPOLL}, {FL_H}")]

    def p4_setup_vec(self):
        c = []
        A = c.append
        t = WFB[3]
        g, i16 = t, t + 1
        A(I(f"s_lshl_b32 s{sT1}, s{sTB}, 2"))
        A(I(f"s_add_u32 s{sT1}, s{sT1}, s{sWAVE}"))
        A(I(f"s_lshl_b32 s{sT1}, s{sT1}, 15"))
        A(I(f"s_lshl_b32 s{sT2}, s{sCB}, 8"))
        A(I(f"s_add_u32 s{sT1}, s{sT1}, s{sT2}"))
        A(I(f"s_lshl_b32 s{sT2}, s{sKQ}, 6"))
        A(I(f"s_add_u32 s{sT1}, s{sT1}, s{sT2}"))
        A(I(f"v_lshlrev_b32 v{t+2}, 10, v{i16}"))
        A(I(f"v_lshl_add_u32 v{t+2}, v{g}, 3, v{t+2}"))
        A(I(f"v_add_u32 v{vXo}, s{sT1}, v{t+2}"))
        return c

    def p4_setup(self):
        c = []
        A = c.append
        L = vLANE
        A(I(f"s_and_b32 s{sKQ}, s{sB}, 3"))
        A(I(f"s_bfe_u32 s{sT1}, s{sB}, 0x10002"))
        A(I(f"s_lshr_b32 s{sT2}, s{sB}, 3"))
        A(I(f"s_lshl_b32 s{sTID}, s{sT1}, 5"))
        A(I(f"s_add_u32 s{sTID}, s{sTID}, s{sT2}"))
        A(I(f"s_lshr_b32 s{sCB}, s{sT2}, 3"))
        A(I(f"s_and_b32 s{sT2}, s{sT2}, 7"))
        A(I(f"s_lshl_b32 s{sT1}, s{sT1}, 3"))
        A(I(f"s_add_u32 s{sTB}, s{sT1}, s{sT2}"))
        t = WFB[3]
        A(I(f"v_lshrrev_b32 v{t}, 4, v{L}"))
        A(I(f"v_and_b32 v{t+1}, 15, v{L}"))
        A(I(f"v_lshlrev_b32 v{t+2}, 1, v{t}"))
        A(I(f"v_xor_b32 v{t+2}, v{t+2}, v{t+1}"))
        A(I(f"v_lshlrev_b32 v{t+2}, 4, v{t+2}"))
        A(I(f"v_lshl_add_u32 v{t+2}, v{t}, 10, v{t+2}"))
        A(I(f"s_lshl_b32 s{sT1}, s{sWAVE}, 13"))
        A(I(f"s_lshl_b32 s{sT2}, s{sCB}, 8"))
        A(I(f"s_add_u32 s{sT1}, s{sT1}, s{sT2}"))
        A(I(f"v_add_u32 v{vWo4[0]}, s{sT1}, v{t+2}"))
        A(I(f"v_xor_b32 v{vWo4[1]}, 128, v{vWo4[0]}"))
        A(I(f"v_add_u32 v{vWo4[1]}, {4096-1024}, v{vWo4[1]}"))
        A(I(f"s_lshl_b32 s{sT1}, s{sTB}, 1"))
        A(I(f"s_lshr_b32 s{sT2}, s{sWAVE}, 1"))
        A(I(f"s_add_u32 s{sT1}, s{sT1}, s{sT2}"))
        A(I(f"s_and_b32 s{sT2}, s{sWAVE}, 1"))
        A(I(f"s_lshl_b32 s{sT2}, s{sT2}, 11"))
        A(I(f"s_mul_i32 s{sT3}, s{sT1}, {43*4096}"))
        A(I(f"s_add_u32 s{sT3}, s{sT3}, s{sT2}"))
        A(I(f"s_add_u32 s{sT3}, s{sT3}, {ZH_OFF}"))
        A(Group([I(f"s_add_u32 s{S_ZH}, s{S_WS}, s{sT3}"), I(f"s_addc_u32 s{S_ZH+1}, s{S_WS+1}, 0")]))
        A(I(f"s_sub_u32 s{S_ZH+2}, {43*4096}, s{sT2}"))
        A(I(f"s_lshl_b32 s{sT1}, s{sT1}, 19"))
        A(I(f"s_lshl_b32 s{sT3}, s{sKQ}, 17"))
        A(I(f"s_add_u32 s{sT1}, s{sT1}, s{sT3}"))
        A(I(f"s_add_u32 s{sT1}, s{sT1}, s{sT2}"))
        A(I(f"s_add_u32 s{sT1}, s{sT1}, {ZC_OFF}"))
        A(Group([I(f"s_add_u32 s{S_ZC}, s{S_WS}, s{sT1}"), I(f"s_addc_u32 s{S_ZC+1}, s{S_WS+1}, 0")]))
        A(I(f"s_sub_u32 s{S_ZC+2}, {32*4096}, s{sT2}"))
        A(I(f"s_lshl_b32 s{sT2}, s{sKQ}, 20"))
        A(Group([I(f"s_add_u32 s{S_WO}, s{S_WO}, s{sT2}"), I(f"s_addc_u32 s{S_WO+1}, s{S_WO+1}, 0")]))
        A(I(f"s_mov_b32 s{S_WO+2}, {1 << 20}"))
        A(I(f"s_mul_i32 s{sZo}, s{sKQ}, {11*4096}"))
        A(I(f"s_mul_i32 s{sWo}, s{sKQ}, {11*32768}"))

        return c

    def p4_early(self):
        t = vT[0]
        c = []
        for n in range(4):
            c += [I(f"buffer_load_dwordx4 {vr(128 + (n*2 + tb)*4)}, v{vL16[0]}, {srd(S_ZH)}, s{sZo} offen "
                    f"offset:{tb*1024} {self.o.ldflag}") for tb in range(2)]
            c.append(I(f"s_add_u32 s{sZo}, s{sZo}, 4096"))
        if self.o.xat == 2:
            c.append(I(f"s_mov_b32 s{sT1}, 16384"))
            c += [I(f"buffer_load_dwordx2 {ar(XR + 4*tb + 2*i, 2)}, v{vXo}, {srd(S_X)}, {'s%d' % sT1 if tb else '0'} offen "
                    f"offset:{i*32}") for tb in range(2) for i in range(2)]
        if self.o.prefetch & 64:
            c += [I(f"s_and_b32 s{sT1}, s{sTB}, 7"), I(f"s_lshl_b32 s{sT1}, s{sT1}, 2"),
                  I(f"s_add_u32 s{sT1}, s{sT1}, s{sWAVE}"), I(f"s_lshl_b32 s{sT1}, s{sT1}, 15"),
                  I(f"s_lshl_b32 s{sT2}, s{sCB}, 8"), I(f"s_add_u32 s{sT1}, s{sT1}, s{sT2}"),
                  I(f"v_lshrrev_b32 v{t+1}, 1, v{vLANE}"), I(f"v_and_b32 v{t}, 1, v{vLANE}"),
                  I(f"v_lshlrev_b32 v{t}, 7, v{t}"), I(f"v_lshl_add_u32 v{t}, v{t+1}, 10, v{t}"),
                  self.pf_load(t, S_WO, f"s{sT1}", dst="a200")]
        if self.o.pfcode & 4:
            c += self.prefetch_code("L_p4", "L_exit", "a[204:207]", vL16[0])
        if self.o.prefetch & 2:
            c += [I(f"s_and_b32 s{sT1}, s{sTB}, 7"), I(f"s_mul_i32 s{sT1}, s{sT1}, 44"),
                  I(f"s_mul_i32 s{sT2}, s{sWAVE}, 11"), I(f"s_add_u32 s{sT1}, s{sT1}, s{sT2}"),
                  I(f"s_lshl_b32 s{sT1}, s{sT1}, 10"), I(f"s_add_u32 s{sT1}, s{sT1}, s{sWo}"),
                  I(f"s_lshl_b32 s{sT2}, s{sCB}, 8"), I(f"s_add_u32 s{sT1}, s{sT1}, s{sT2}"),
                  I(f"v_min_u32 v{t}, 21, v{vLANE}"), I(f"v_lshrrev_b32 v{t+1}, 1, v{t}"),
                  I(f"v_and_b32 v{t}, 1, v{t}"), I(f"v_lshlrev_b32 v{t}, 7, v{t}"),
                  I(f"v_lshl_add_u32 v{t}, v{t+1}, 10, v{t}"),
                  self.pf_load(t, S_WD, f"s{sT1}", dst="a200")]
        return c

    def h_offsets(self):
        t = vT[0]
        return [I(f"s_mov_b32 s{sHB}, {FL_H}"), I(f"s_sub_u32 s{sT1}, s{sPOLL}, s{sHB}"),
                I(f"v_add_u32 v{t}, s{sT1}, v{vPO32}"),
                I(f"s_bfe_u32 s{sT1}, s{sB}, 0x10002"), I(f"s_lshl_b32 s{sT1}, s{sT1}, 4"),
                I(f"s_and_b32 s{sT2}, s{sH}, 3"), I(f"s_add_u32 s{sT1}, s{sT1}, s{sT2}"),
                I(f"s_lshl_b32 s{sT2}, s{sW}, 5"), I(f"s_add_u32 s{sT1}, s{sT1}, s{sT2}"),
                I(f"s_lshl_b32 s{sT1}, s{sT1}, 2"),
                I(f"v_and_b32 v{t+1}, 3, v{vLANE}"), I(f"v_lshlrev_b32 v{t+1}, 4, v{t+1}"),
                I(f"v_cmp_gt_u32 vcc, 32, v{vLANE}"), I(f"v_add_u32 v{t+1}, s{sT1}, v{t+1}"),
                I(f"v_cndmask_b32 v{vHO}, v{t+1}, v{t}, vcc")]

    def phase4(self, sb, prev):
        o = self.o
        ACC4, ZR, WR = 0, 64, 192
        vRd4 = list(range(224, 232))
        vP4, vW1 = 234, 235
        sEXs, sEXd, sFE, sOo = sNM2
        L = vLANE
        NH, NS, LEAD = 11, 16, o.lead4
        sR4 = sWR
        c = []
        A = c.append
        sb.vm = sb.vm[-24:]
        A(I("L_p4:"))
        c += self.holdmark("att")
        A(I("s_waitcnt lgkmcnt(0)"))
        A(I("s_barrier"))
        c += self.stamp(232)
        t = WR
        Wd, Zd = {}, {}

        def wload(n):
            ws = S_WD if n < NH else S_WO
            d = [I(f"buffer_load_dwordx4 v{vWo4[e]}, {srd(ws)}, s{sWo} offen offset:{e*1024} {o.wflg} lds") for e in range(2)]
            Wd[n % NS] = d
            pre = [I(f"s_lshl_b32 s{sWo}, s{sR4}, 17")] if n == NH else []
            post = [I(f"s_add_u32 s{sWo}, s{sWo}, 32768")]
            if o.rot4 and n >= NH:
                post.append(I(f"s_and_b32 s{sWo}, s{sWo}, 0xfffff"))
            return pre + [I(f"s_add_u32 m0, s{sW2K}, {(n % NS)*8192}"), d[0], d[1]] + post

        def zload(n):
            zs, so = (S_ZH, sZo) if n < NH else (S_ZC, sSOFF)
            d = [I(f"buffer_load_dwordx4 {vr(ZR + (((n + 8) % NS)*2 + tb)*4)}, v{vL16[0]}, {srd(zs)}, s{so} offen "
                   f"offset:{tb*1024} {o.ldflag}") for tb in range(2)]
            batch(d)
            pre = [I(f"s_lshl_b32 s{so}, s{sR4}, 14")] if n == NH else []
            post = [I(f"s_add_u32 s{so}, s{so}, 4096")]
            if o.rot4 and n >= NH:
                post.append(I(f"s_and_b32 s{so}, s{so}, 0x1ffff"))
            return pre + d + post

        NST = 43
        DEF0 = NST - o.defer if o.p4v == 3 else NST

        def wreg(n, wb, k=0, cnt=4):
            if n >= DEF0 and wb < 2:
                return ar(32 + ((n - DEF0) * 2 + wb) * 4 + k, cnt)
            if o.p4v == 3 and n & 1:
                return ar(4 * wb + k, cnt)
            return vr(WR + 4 * wb + k, cnt)

        def reads(n, wb):
            slot = (n % NS) * 8192
            return batch([I(f"ds_read_b64_tr_b16 {wreg(n, wb, 2*a, 2)}, v{vRd4[wb]} offset:{(slot & 0xffff) + a*4096}")
                          for a in range(2)])

        def winfix(n):
            a, b = ((n - 1) % NS) >> 3, (n % NS) >> 3
            if a == b:
                return lambda wb: []
            op = "v_add_u32" if b else "v_subrev_u32"
            return lambda wb: [I(f"{op} v{vRd4[wb]}, 0x10000, v{vRd4[wb]}")]

        for n in range(4):
            c += wload(n)
        A(I(f"s_sub_u32 s{sPOLL}, s{sPOLL}, {FL_H}"))
        A(I(f"s_lshl_b32 s{sT1}, s{sKQ}, 5"))
        A(I(f"s_add_u32 s{sPOLL}, s{sPOLL}, s{sT1}"))
        if o.wflag:
            A(I(f"s_lshl_b32 s{sPOLL}, s{sPOLL}, 2"))
        A(I(f"s_add_u32 s{sPOLL}, s{sPOLL}, {FL_CW if o.wflag else FL_C}"))
        g, i16 = t, t + 1
        A(I(f"v_lshrrev_b32 v{g}, 4, v{L}"))
        A(I(f"v_and_b32 v{i16}, 15, v{L}"))
        A(I(f"v_lshrrev_b32 v{t+2}, 2, v{i16}"))
        A(I(f"v_lshl_add_u32 v{t+2}, v{g}, 2, v{t+2}"))
        A(I(f"v_and_b32 v{t+3}, 3, v{i16}"))
        A(I(f"v_lshlrev_b32 v{t+3}, 3, v{t+3}"))
        A(I(f"v_lshl_add_u32 v{t+3}, v{t+2}, 8, v{t+3}"))
        A(I(f"v_and_b32 v{t+2}, 7, v{t+2}"))
        A(I(f"v_lshl_add_u32 v{t+3}, v{t+2}, 5, v{t+3}"))
        for i in range(8):
            A(I(f"s_lshl_b32 s{sT1}, s{sKQ}, 1"))
            A(I(f"s_add_u32 s{sT1}, s{sT1}, {i}"))
            A(I(f"s_and_b32 s{sT1}, s{sT1}, 7"))
            A(I(f"s_lshl_b32 s{sT1}, s{sT1}, 5"))
            A(I(f"v_xor_b32 v{vRd4[i]}, s{sT1}, v{t+3}"))
        A(I(f"s_mov_b32 s{sOo}, 16384"))
        A(I(f"s_lshl_b32 s{sT1}, s{sCB}, 1"))
        A(I(f"s_add_u32 s{sT1}, s{sT1}, s{sTB}"))
        A(I(f"s_and_b32 s{sR4}, s{sT1}, {o.rot4}"))
        A(I(f"s_mul_i32 s{sT1}, s{sTID}, {4*3*8192}"))
        A(I(f"s_lshl_b32 s{sT2}, s{sWAVE}, 11"))
        A(I(f"s_add_u32 s{sT1}, s{sT1}, s{sT2}"))
        A(I(f"s_add_u32 s{sEXs}, s{sT1}, {EX_OFF}"))
        A(I(f"s_mul_i32 s{sT2}, s{sKQ}, {3*8192}"))
        A(I(f"s_add_u32 s{sEXd}, s{sEXs}, s{sT2}"))
        A(I(f"s_lshl_b32 s{sFE}, s{sTID}, 2"))
        A(I(f"s_add_u32 s{sFE}, s{sFE}, s{sWAVE}"))
        A(I(f"s_lshl_b32 s{sFE}, s{sFE}, 4"))
        A(I(f"s_add_u32 s{sFE}, s{sFE}, {FL_E}"))
        A(I(f"v_mov_b32 v{t+2}, {OOB}"))
        A(I(f"v_cmp_eq_u32 vcc, 0, v{L}"))
        A(I(f"s_lshl_b32 s{sT1}, s{sKQ}, 2"))
        A(I(f"v_mov_b32 v{t+3}, s{sT1}"))
        A(I(f"v_cndmask_b32 v{vW1}, v{t+2}, v{t+3}, vcc"))
        first = [Wd[k] for k in range(4)]
        if o.wflag:
            assert o.sentinel
            A(I(f"s_sub_u32 s{sT1}, s{sFC}, {FL_C}"))
            A(I(f"s_lshl_b32 s{sT1}, s{sT1}, 2"))
            A(I(f"s_lshl_b32 s{sT2}, s{sWAVE}, 2"))
            A(I(f"s_add_u32 s{sT1}, s{sT1}, s{sT2}"))
            A(I(f"s_add_u32 s{sT1}, s{sT1}, {FL_CW}"))
            A(I(f"v_cndmask_b32 v{vW1}, v{t+2}, v{vC0}, vcc"))
            A(Need([self.ctx_stores]))
            A(I(f"buffer_store_dword v{vC1}, v{vW1}, {srd(S_WS)}, s{sT1} offen sc1"))
            A(Need(first, lg0=True))
            A(I("s_barrier"))
        else:
            A(Need(first + [self.ctx_stores], lg0=True))
            A(I("s_barrier"))
            A(self.flag_store(sFC))
        for n in range(4, LEAD):
            c += wload(n)
        xl = [I(f"buffer_load_dwordx2 {ar(XR + 4*tb + 2*i, 2)}, v{vXo}, {srd(S_X)}, {'s%d' % sOo if tb else '0'} offen "
                f"offset:{i*32}") for tb in range(2) for i in range(2)]
        if o.p4v == 3:
            return self.phase4_pairs(locals())
        rr = [reads(0, wb) for wb in range(8)]
        c += batch(sum(rr[:4], [])) + batch(sum(rr[4:], []))

        def steps(n0, n1, first, zplan, extra):
            mf, tasks = [], []
            wch, zch = [], []
            for n in range(n0, n1):
                b = 16 * (n - n0)
                for wb in range(8):
                    for tb in range(2):
                        d = vr(ACC4 + (wb * 2 + tb) * 4)
                        mf.append(mfma(d, vr(WR + 4 * wb), vr(ZR + (((n + 8) % NS) * 2 + tb) * 4),
                                       "0" if (first and n == n0) else d))
                bar = (n + 1) % 4 == 0
                fx = winfix(n + 1)
                ent = []
                rr = [reads(n + 1, wb) for wb in range(8)]
                batch(sum(rr[:4], []))
                batch(sum(rr[4:], []))
                for wb in range(8):
                    lo = b + 2 * wb + 2
                    if bar:
                        lo = max(lo, b + 5)
                    ent += [(x, lo, min(b + 16, lo + 3)) for x in fx(wb) + rr[wb]]
                tasks.append(Task(f"rd{n}", ent, prio=0, tight=True))
                if bar:
                    need = [Wd[k % NS] for k in range(n + 1, n + 5)]
                    tasks.append(Task(f"bar{n}", [Group([Need(need, lg0=True), I("s_barrier")])], b + 4, b + 4, prio=-1))
                seq = wload(n + LEAD)
                zs = [zload(zn) for zn in zplan(n)]
                if o.p4fix and len(zs) == 1:
                    pos = iter((b + 6, b + 10))
                    for x in seq:
                        g = next(pos) if x.kind == "dma" else None
                        wch.append((x, g, g) if g else (x, b + (5 if (bar and False) else 0), b + 15))
                    pos = iter((b + 2, b + 14))
                    for x in zs[0]:
                        g = next(pos) if x.kind == "vload" else None
                        zch.append((x, g, g) if g else (x, b, b + 16))
                else:
                    lo = b + (5 if bar else 0)
                    wch += [(x, lo, b + 15, 1 if (x.kind == "dma" and k and seq[k-1].kind == "salu") else 0)
                            for k, x in enumerate(seq)]
                    for z in zs:
                        zch += [(x, b + 1, b + 16) for x in z]
                for x in extra.get(n, []):
                    tasks.append(Task("ex", x, b + 1, b + 12, prio=2))
            tasks.append(Task("w", wch, prio=-1))
            if zch:
                tasks.append(Task("z", zch, prio=-1))
            if extra.get("tasks"):
                tasks += extra["tasks"]
            return schedule(mf, tasks, 8, self.reports, reserve=range(0, len(mf), 8), seed=o.seed, iters=40, vmw=o.vmw)

        CH = o.chk4
        pend = list(range(NH, NH + LEAD))

        def zplan_head(n):
            z = [n + 4] if n + 4 < NH else []
            if n > CH:
                k = -(-len(pend) // (NH - n))
                z += pend[:k]
                del pend[:k]
            return z
        vPC = vPO32 if o.wflag else vPO8
        ex = {0: [xl[:2]] if o.xat == 0 else [], 1: [xl[2:]] if o.xat == 0 else [], CH - 2: [[self.poll_load(vP4, S_WS, vPC, f"s{sPOLL}")]],
              CH: [self.poll_check(vP4, S_WS, vPC, f"s{sPOLL}", "1", split=True) + self.stamp(232)]}
        c += steps(0, NH, True, zplan_head, ex)
        assert not pend
        c += [I(f"s_mov_b32 s{sJ}, 0")]
        head = self.seg(c, sb, prev)

        def loop_body(sbx, pv):
            b = steps(NH, NH + NS, False, lambda n: [n + LEAD], {})
            b += [I(f"s_add_u32 s{sJ}, s{sJ}, 1"), I(f"s_cmp_lt_u32 s{sJ}, 2"), I("s_cbranch_scc1 L_p4loop")]
            return add_waits(b, sbx)
        b1 = loop_body(sb, head)
        b2 = loop_body(sb, b1)
        b1 = pad_hazards(merge_waits(b1, b2), head)
        check_hazards(b1, b1)
        b2 = b1
        print("phase 4 head / loop estimate", estimate(head), estimate(b1), file=sys.stderr)
        e = self.p4_exchange(locals(), [])
        tail = self.seg(e, sb, b2)
        return head + [I(".p2align 6"), I("L_p4loop:")] + b1 + tail

    def p4_exchange(self, L_, deferred):
        o = self.o
        ACC4, ZR, WR, vP4, vW1 = (L_[k] for k in ("ACC4", "ZR", "WR", "vP4", "vW1"))
        sEXs, sEXd, sFE, sOo = sNM2
        e = []
        A = e.append
        e += self.stamp(232)
        st = []
        for p in range(1, 4):
            A(I(f"s_add_u32 s{sT1}, s{sKQ}, {p}"))
            A(I(f"s_and_b32 s{sT1}, s{sT1}, 3"))
            A(I(f"s_mul_i32 s{sT1}, s{sT1}, {3*8192}"))
            A(I(f"s_add_u32 s{sT1}, s{sT1}, s{sEXs}"))
            A(I(f"s_add_u32 s{sT1}, s{sT1}, {(p-1)*8192}"))
            for tb in range(2):
                t0, t1 = ACC4 + ((2 * p) * 2 + tb) * 4, ACC4 + ((2 * p + 1) * 2 + tb) * 4
                d = ZR + 24 + ((p - 1) * 2 + tb) * 4
                e += self.pk_frag(d, t0, t1)
                x = I(f"buffer_store_dwordx4 {vr(d)}, v{vL16[0]}, {srd(S_WS)}, s{sT1} offen offset:{tb*1024} {o.stflag}")
                A(x)
                st.append(x)
        e += deferred
        for tb in range(2):
            for i in range(2):
                a = ACC4 + (i * 2 + tb) * 4
                x = XR + 4 * tb + 2 * i
                u = WR
                e += [I(f"v_accvgpr_read_b32 v{u+4}, a{x}"), I(f"v_accvgpr_read_b32 v{u+5}, a{x+1}"),
                      I(f"v_lshlrev_b32 v{u}, 16, v{u+4}"), I(f"v_and_b32 v{u+1}, 0xffff0000, v{u+4}"),
                      I(f"v_lshlrev_b32 v{u+2}, 16, v{u+5}"), I(f"v_and_b32 v{u+3}, 0xffff0000, v{u+5}")]
                e += [I(f"v_pk_add_f32 {vr(a+r,2)}, {vr(a+r,2)}, {vr(u+r,2)}") for r in (0, 2)]
        R = ZR + 48
        sX = [sZo, sWo, sTB]
        exl = []
        for p in range(3):
            A(I(f"s_add_u32 s{sX[p]}, s{sEXd}, {p*8192}"))
            exl += [I(f"buffer_load_dwordx4 {vr(R + (p*2+tb)*4)}, v{vL16[0]}, {srd(S_WS)}, s{sX[p]} offen "
                      f"offset:{tb*1024} {o.ldflag}") for tb in range(2)]
        if not o.sentinel:
            A(Need(st))
            A(I(f"buffer_store_dword v{vC1}, v{vW1}, {srd(S_WS)}, s{sFE} offen sc1"))
            A(I(f"v_and_b32 v{vW1}, 12, v{vPO8}"))
            A(self.poll_load(vP4, S_WS, vW1, f"s{sFE}"))
            A(self.poll_check(vP4, S_WS, vW1, f"s{sFE}", "1"))
            e += self.stamp(232)
            e += exl
        else:
            chk = [I(f"v_max3_u32 v{vP4}, v{R}, v{R+1}, v{R+2}")]
            chk += [I(f"v_max3_u32 v{vP4}, v{vP4}, v{R+k}, v{R+k+1}") for k in range(3, 23, 2)]
            chk += [I(f"v_max_u32 v{vP4}, v{vP4}, v{R+23}"), I(f"v_cmp_eq_u32 vcc, -1, v{vP4}")]
            slow, back = self.lab("exs"), self.lab("exb")
            tm = o.timeit == "spin"
            self.cold.append(f"{slow}:\n" + ("    s_memtime s[0:1]\n" if tm else "") +
                             f"    s_mov_b32 s{sSPIN}, {o.spin}\n{slow}_l:\n" +
                             render([I(x.text) for x in exl] + [I("s_waitcnt vmcnt(0)")] + [I(x.text) for x in chk]) +
                             f"    s_nop 1\n    s_cbranch_vccz {slow}_x\n    s_sub_u32 s{sSPIN}, s{sSPIN}, 1\n"
                             f"    s_cmp_lg_u32 s{sSPIN}, 0\n    s_cbranch_scc1 {slow}_l\n{slow}_x:\n" +
                             (f"    s_memtime s[{sM0}:{sM0+1}]\n    s_waitcnt lgkmcnt(0)\n    s_sub_u32 s0, s{sM0}, s0\n"
                              f"    s_add_u32 s{sACC}, s{sACC}, s0\n" if tm else "") + f"    s_branch {back}\n")
            if o.sentinel == 2:
                A(Need(st))
            e += exl + chk + [I(f"s_cbranch_vccnz {slow}"), I(f"{back}:")]
            e += self.stamp(232)
        for p in range(3):
            for tb in range(2):
                for k in range(4):
                    a = ACC4 + ((k >> 1) * 2 + tb) * 4 + (k & 1) * 2
                    x = R + (p * 2 + tb) * 4 + k
                    u = WR + 2 * (k & 1)
                    e += [I(f"v_lshlrev_b32 v{u}, 16, v{x}"), I(f"v_and_b32 v{u+1}, 0xffff0000, v{x}"),
                          I(f"v_pk_add_f32 {vr(a,2)}, {vr(a,2)}, {vr(u,2)}")]
        for tb in range(2):
            for i in range(2):
                a = ACC4 + (i * 2 + tb) * 4
                d = WR + 4 + 2 * (tb * 2 + i)
                e += [I(f"v_cvt_pk_bf16_f32 v{d}, v{a}, v{a+1}"), I(f"v_cvt_pk_bf16_f32 v{d+1}, v{a+2}, v{a+3}"),
                      I(f"buffer_store_dwordx2 {vr(d,2)}, v{vXo}, {srd(S_OUT)}, {'s%d' % sOo if tb else '0'} offen "
                        f"offset:{i*32}")]
        e += self.stamp(232)
        return e

    def phase4_pairs(self, L_):
        o = self.o
        (c, sb, prev, ACC4, ZR, NH, NS, LEAD, NST, DEF0, Wd, wload, zload, reads, winfix, wreg, vP4) = (
            L_[k] for k in ("c", "sb", "prev", "ACC4", "ZR", "NH", "NS", "LEAD", "NST", "DEF0", "Wd", "wload",
                            "zload", "reads", "winfix", "wreg", "vP4"))
        zreg = lambda n, tb: vr(ZR + (((n + 8) % NS) * 2 + tb) * 4)
        NP = (NST + 1) // 2
        st = lambda p: [n for n in (2 * p, 2 * p + 1) if n < NST]

        def pair_reads(p):
            rr = [sum((reads(n, wb) for n in st(p)), []) for wb in range(8)]
            batch(sum(rr[:4], []))
            batch(sum(rr[4:], []))
            return rr
        c += sum(pair_reads(0), [])
        mf, start, wbend = [], [], []
        started = set()
        deferred = []
        for p in range(NP):
            start.append(len(mf))
            ends = {}
            for wb in range(8):
                for tb in range(2):
                    d = vr(ACC4 + (wb * 2 + tb) * 4)
                    for n in st(p):
                        m = mfma(d, wreg(n, wb), zreg(n, tb), d if (wb, tb) in started else "0")
                        started.add((wb, tb))
                        (deferred if (n >= DEF0 and wb < 2) else mf).append(m)
                ends[wb] = len(mf)
            wbend.append(ends)
        start.append(len(mf))
        tasks, wch, zch, res = [], [], [], []
        CH, LZ = o.chkp, o.leadz
        pend = list(range(NH, 2 * (CH + 3) + LZ))
        vPC = vPO32 if o.wflag else vPO8
        for p in range(NP):
            b, e = start[p], start[p + 1]
            res += [b, wbend[p][3]]
            bar = p % 2 == 1 and p + 1 < NP
            if p + 1 < NP:
                rr = pair_reads(p + 1)
                fx = winfix(2 * p + 2)
                ent = []
                for wb in range(8):
                    lo = max(wbend[p][wb], b + (5 if bar else 1))
                    ent += [(x, lo, min(e, lo + 5)) for x in fx(wb) + rr[wb]]
                tasks.append(Task(f"rd{p}", ent, prio=0, tight=True))
            if bar:
                need = [Wd[k % NS] for k in range(2 * p + 2, min(2 * p + 6, NST))]
                tasks.append(Task(f"bar{p}", [Group([Need(need, lg0=True), I("s_barrier")])], b + 4, b + 4, prio=-1))
            lo = b + (5 if bar else 0)
            for n in (2 * p + LEAD, 2 * p + LEAD + 1):
                if n < NST:
                    seq = wload(n)
                    wch += [(x, lo, e - 1, 1 if (x.kind == "dma" and k and seq[k-1].kind == "salu") else 0)
                            for k, x in enumerate(seq)]
            z = [n for n in (2 * p + 4, 2 * p + 5) if n < NH]
            if CH < p < CH + 3:
                k = -(-len(pend) // (CH + 3 - p))
                z += pend[:k]
                del pend[:k]
            elif p >= CH + 3:
                z += [n for n in (2 * p + LZ, 2 * p + LZ + 1) if n < NST]
            for n in z:
                zch += [(x, b + 1, e) for x in zload(n)]
            if p == CH - 1:
                tasks.append(Task("poll", [self.poll_load(vP4, S_WS, vPC, f"s{sPOLL}")], b + 8, b + 20, prio=2))
            if p == CH:
                tasks.append(Task("chk", self.poll_check(vP4, S_WS, vPC, f"s{sPOLL}", "1", split=True) + self.stamp(232),
                                  e - 12, e - 1, prio=2))
        assert not pend
        tasks += [Task("w", wch, prio=-1), Task("z", zch, prio=-1)]
        c += schedule(mf, tasks, 8, self.reports, reserve=res, seed=o.seed, iters=12, vmw=o.vmw)
        c += self.p4_exchange(L_, deferred)
        out = self.seg(c, sb, prev)
        print("phase 4 estimate", estimate(out), file=sys.stderr)
        return out

    def build(self):
        o = self.o
        sb = Scoreboard()
        p12 = self.phase12()
        if o.stop == "p2":
            for q in range(4):
                p12 += self.epi_Q(1, q)
            p12 += [I(f"s_lshl_b32 s{sT1}, s{sB}, 2"), I(f"s_add_u32 s{sT1}, s{sT1}, s{sWAVE}"),
                    I(f"s_lshl_b32 s{sT1}, s{sT1}, 14"), I(f"s_add_u32 s{sT1}, s{sT1}, {ZC_OFF}")]
            for q in range(4):
                for ds in range(4):
                    p12.append(I(f"buffer_store_dwordx4 {ar(gQ(q, ds))}, v{vL16[q]}, {srd(S_WS)}, s{sT1} offen "
                                 f"offset:{ds*1024}"))
        code = add_waits(p12, sb)
        if o.timeit.startswith("vmw"):
            nb, k = [], 0
            for x in code:
                if x.kind == "wait" and "vmcnt" in x.text and k < 48:
                    nb += [I("s_memtime s[0:1]"), I("s_waitcnt lgkmcnt(0)"), x, I(f"s_memtime s[{sM0}:{sM0+1}]"),
                           I("s_waitcnt lgkmcnt(0)"), I(f"s_sub_u32 s0, s{sM0}, s0"), I("s_mov_b64 exec, 1"),
                           I(f"v_mov_b32 v{vPOLL2}, s0"), I(f"s_add_u32 s0, s{sST}, {4*k}"),
                           I(f"ds_write_b32 v{vC0}, v{vPOLL2} offset:{60*1024+4*k}") if False else
                           I(f"v_writelane_b32 v{vPOLL2+1}, s0, 0") if False else I("s_nop 0"),
                           I("s_mov_b64 exec, -1"), I(f"v_readlane_b32 s1, v{vPOLL2}, 0"), I("s_nop 3"),
                           I(f"v_writelane_b32 v{vPOLL2+1}, s1, {k}")]
                    print("vmwait", k, x.text, "at mfma", sum(1 for y in nb if y.kind == "mfma"), file=sys.stderr)
                    k += 1
                else:
                    nb.append(x)
            nb += [I(f"v_lshlrev_b32 v{vPOLL2}, 2, v{vLANE}"), I(f"s_add_u32 s0, s{sST}, {1<<18}"),
                   I(f"buffer_store_dword v{vPOLL2+1}, v{vPOLL2}, {srd(S_WS)}, s0 offen")]
            code = nb
        code = pad_hazards(code)
        print("phase 1/2 estimate", estimate(code), file=sys.stderr)
        if o.stop not in ("p1a", "p2"):
            a, sb3 = self.attention(sb, code)
            code += a
            if o.stop != "p3":
                code += self.phase4(sb3, code)
        if o.hold:
            code += [I("L_hold:"), I("s_memrealtime s[2:3]"), I("s_waitcnt lgkmcnt(0)"),
                     I(f"s_sub_u32 s2, s2, s{sACC}"), I("s_cmp_lt_i32 s2, 0"), I("s_cbranch_scc1 L_hold")]
        if o.stop or o.stamps:
            code.append(I("s_waitcnt vmcnt(0) lgkmcnt(0)"))
        code += [I("L_exit:"), I("s_endpgm")]
        self.code = code
        labels = {x.text for x in code if x.kind == "label"}
        import re
        cold = [c for c in self.cold if re.findall(r"s_branch (\S+)", c)[-1] + ":" in labels]
        txt = HEADER + render(code) + "".join(cold) + FOOTER
        return txt


GK0 = -2.0 * math.sqrt(2.0 / math.pi) * math.log2(math.e)
GK1 = GK0 * 0.044715
QSCALE = math.log2(math.e) / math.sqrt(128.0)
BIAS = 8.0
sQS = sGBD + 0
sQS = 3

HEADER = f"""; Fused LayerNorm + compressed-KV causal attention + GeGLU FFN, one persistent launch.
; @launch grid=(256,1,1) block=(256,1,1) lds=163840
.amdgcn_target "amdgcn-amd-amdhsa--gfx950"
.text
.globl {KNAME}
.p2align 8
.type {KNAME},@function
{KNAME}:
"""
FOOTER = f"""    s_endpgm
.section .rodata,"a"
.p2align 6
.amdhsa_kernel {KNAME}
  .amdhsa_next_free_vgpr 512
  .amdhsa_next_free_sgpr 102
  .amdhsa_accum_offset 256
  .amdhsa_group_segment_fixed_size 0
  .amdhsa_kernarg_size 104
  .amdhsa_user_sgpr_count 2
  .amdhsa_user_sgpr_kernarg_segment_ptr 1
  .amdhsa_system_sgpr_workgroup_id_x 1
  .amdhsa_float_denorm_mode_32 3
.end_amdhsa_kernel
"""


def main():
    o = Opt()
    out = "k.s"
    for a in sys.argv[1:]:
        if "=" in a:
            k, v = a.split("=")
            if k == "out":
                out = v
            else:
                cur = getattr(o, k)
                setattr(o, k, v if (cur is None or isinstance(cur, str)) else type(cur)(int(v)))
    g = Gen(o)
    txt = g.build()
    open(out, "w").write(txt)
    for r in g.reports:
        print("sched overflow/total/gaps:", r, file=sys.stderr)


if __name__ == "__main__":
    main()
```

```python
import re

TRANS = ("v_exp_f32", "v_log_f32", "v_rcp_f32", "v_rsq_f32", "v_sqrt_f32", "v_sin_f32", "v_cos_f32")
_REG = re.compile(r"^(-?)(abs\()?([vas])(\d+)\)?$")
_RNG = re.compile(r"^(-?)([vas])\[(\d+):(\d+)\]$")


def regs_of(op):
    op = op.strip()
    m = _REG.match(op)
    if m:
        return [m.group(3) + m.group(4)]
    m = _RNG.match(op)
    if m:
        return [m.group(2) + str(i) for i in range(int(m.group(3)), int(m.group(4)) + 1)]
    if op == "vcc":
        return ["vcc"]
    if op in ("m0", "exec"):
        return [op]
    return []


class Ins:
    __slots__ = ("text", "mn", "kind", "defs", "uses", "srcc", "srcab", "wide_store", "tag", "cost", "nwait", "dpp",
                 "sgpr_uses_vmem", "target")

    def __init__(self, text, tag=None):
        self.text = text
        self.tag = tag
        t = text.split(";")[0].strip()
        self.defs, self.uses, self.srcc, self.srcab = [], [], [], []
        self.wide_store = False
        self.nwait = 1
        self.dpp = False
        self.target = None
        if t.endswith(":"):
            self.mn, self.kind, self.cost, self.nwait = t, "label", 0, 0
            return
        if t.startswith(".") or not t:
            self.mn, self.kind, self.cost, self.nwait = t, "dir", 0, 0
            return
        parts = t.split(None, 1)
        mn = parts[0]
        self.mn = mn
        rest = parts[1] if len(parts) > 1 else ""
        ops = [o.strip() for o in re.split(r",(?![^\[]*\])", rest)] if rest else []
        mods = ""
        if ops:
            sp = ops[-1].split(None, 1)
            ops[-1] = sp[0]
            mods = sp[1] if len(sp) > 1 else ""
        R = lambda i: regs_of(ops[i]) if i < len(ops) else []
        self.cost = 4
        if mn.startswith("v_mfma"):
            self.kind = "mfma"
            self.defs = R(0)
            self.srcab = R(1) + R(2)
            self.srcc = R(3)
            self.uses = self.srcab + self.srcc
            self.cost = 8
        elif mn.startswith("v_"):
            self.kind = "trans" if mn.startswith(TRANS) else "valu"
            if self.kind == "trans":
                self.cost = 8
            self.dpp = mn.endswith("_dpp")
            if mn.startswith("v_permlane"):
                self.defs = R(0) + R(1)
                self.uses = R(0) + R(1)
            elif mn.startswith(("v_add_co", "v_addc_co", "v_sub_co")):
                self.defs = R(0) + R(1)
                self.uses = sum((R(i) for i in range(2, len(ops))), [])
            else:
                self.defs = R(0)
                self.uses = sum((R(i) for i in range(1, len(ops))), [])
                if mn.startswith(("v_fmac", "v_writelane", "v_dot2c")) or self.dpp:
                    self.uses += R(0)
        elif mn.startswith("ds_read"):
            self.kind = "dsread"
            self.defs = R(0)
            self.uses = R(1)
        elif mn.startswith("ds_write"):
            self.kind = "dswrite"
            self.uses = sum((R(i) for i in range(len(ops))), [])
        elif mn.startswith("buffer_load"):
            if " lds" in " " + mods:
                self.kind = "dma"
                self.uses = sum((R(i) for i in range(len(ops))), []) + ["m0"]
            else:
                self.kind = "vload"
                self.defs = R(0)
                self.uses = sum((R(i) for i in range(1, len(ops))), [])
            self.cost = 8
        elif mn.startswith("global_load"):
            self.kind = "vload"
            self.defs = R(0)
            self.uses = sum((R(i) for i in range(1, len(ops))), [])
            self.cost = 8
        elif mn.startswith(("buffer_store", "buffer_atomic")):
            self.kind = "vstore"
            self.uses = sum((R(i) for i in range(len(ops))), [])
            self.wide_store = mn.endswith(("x3", "x4"))
            self.srcab = R(0)
            self.cost = 8
        elif mn in ("buffer_inv", "buffer_wbl2"):
            self.kind = "vstore"
        elif mn.startswith("s_load"):
            self.kind = "smem"
            self.defs = R(0)
            self.uses = R(1)
        elif mn in ("s_memtime", "s_memrealtime"):
            self.kind = "smem"
            self.defs = R(0)
        elif mn == "s_waitcnt":
            self.kind = "wait"
        elif mn == "s_nop":
            self.kind = "nop"
            self.nwait = int(ops[0]) + 1
            self.cost = 4 * self.nwait
        elif mn == "s_barrier":
            self.kind = "barrier"
        elif mn in ("s_branch",) or mn.startswith("s_cbranch"):
            self.kind = "branch"
            self.target = ops[0]
            if "vcc" in mn:
                self.uses = ["vcc"]
        elif mn == "s_endpgm":
            self.kind = "end"
        elif mn.startswith("s_"):
            self.kind = "salu"
            if mn.startswith(("s_cmp", "s_bitcmp", "s_setprio", "s_sleep")):
                self.uses = sum((R(i) for i in range(len(ops))), [])
            else:
                self.defs = R(0)
                self.uses = sum((R(i) for i in range(1, len(ops))), [])
                if mn.startswith(("s_bitset", "s_addk", "s_mulk")):
                    self.uses += R(0)
                if "saveexec" in mn:
                    self.defs = self.defs + ["exec"]
        else:
            raise ValueError("unknown instruction: " + text)

    def __repr__(self):
        return self.text


def I(text, tag=None):
    return Ins(text, tag)


VM_KINDS = ("vload", "vstore", "dma")
LG_KINDS = ("dsread", "dswrite")


class Scoreboard:
    def __init__(self):
        self.vm = []
        self.lg = []
        self.smem = False
        self.pend = {}

    def copy(self):
        s = Scoreboard()
        s.vm, s.lg, s.smem, s.pend = list(self.vm), list(self.lg), self.smem, dict(self.pend)
        return s

    def _need(self, op):
        if op.kind in VM_KINDS:
            if op in self.vm:
                return (len(self.vm) - 1 - self.vm.index(op), None)
        elif op.kind in LG_KINDS:
            if op in self.lg:
                return (None, len(self.lg) - 1 - self.lg.index(op))
        elif op.kind == "smem":
            if self.smem:
                return (None, 0)
        return (None, None)

    def wait(self, vmN, lgN):
        parts = []
        if vmN is not None and vmN < len(self.vm):
            vmN = min(vmN, 63)
            parts.append(f"vmcnt({vmN})")
            self.vm = self.vm[len(self.vm) - vmN:] if vmN else []
        if lgN is not None and (lgN < len(self.lg) or (lgN == 0 and self.smem)):
            if self.smem:
                lgN = 0
            lgN = min(lgN, 15)
            parts.append(f"lgkmcnt({lgN})")
            self.lg = self.lg[len(self.lg) - lgN:] if lgN else []
            if lgN == 0:
                self.smem = False
        if not parts:
            return None
        live = set(map(id, self.vm)) | set(map(id, self.lg))
        self.pend = {r: o for r, o in self.pend.items() if id(o) in live or (o.kind == "smem" and self.smem)}
        return I("s_waitcnt " + " ".join(parts))

    def wait_ops(self, ops, lg0=False):
        vmN = None
        lgN = 0 if lg0 else None
        ops = [y for x in ops for y in (x.tag if isinstance(x.tag, list) else [x])]
        for op in ops:
            a, b = self._need(op)
            if a is not None:
                vmN = a if vmN is None else min(vmN, a)
            if b is not None:
                lgN = b if lgN is None else min(lgN, b)
        return self.wait(vmN, lgN)

    def before(self, ins):
        ops = [self.pend[r] for r in ins.uses + ins.defs if r in self.pend]
        return self.wait_ops(ops) if ops else None

    def after(self, ins):
        if ins.kind in VM_KINDS:
            self.vm.append(ins)
        elif ins.kind in LG_KINDS:
            self.lg.append(ins)
        elif ins.kind == "smem":
            self.smem = True
        if ins.kind in ("vload", "dsread", "smem"):
            for r in ins.defs:
                self.pend[r] = ins
        if ins.kind == "wait":
            m = re.search(r"vmcnt\((\d+)\)", ins.text)
            n = re.search(r"lgkmcnt\((\d+)\)", ins.text)
            self.wait(int(m.group(1)) if m else None, int(n.group(1)) if n else None)


class Group:
    kind = "group"

    def __init__(self, instrs):
        self.instrs = instrs
        self.cost = sum(i.cost for i in instrs)


def flatten(seq):
    out = []
    for x in seq:
        if x.kind == "group":
            out += flatten(x.instrs)
        else:
            out.append(x)
    return out


class Need:
    kind = "need"
    cost = 4
    nwait = 0
    defs = uses = ()

    def __init__(self, ops, lg0=False):
        self.ops = ops
        self.lg0 = lg0

    def resolve(self):
        out = []
        for o in self.ops:
            o = o() if callable(o) else o
            out += o if isinstance(o, (list, tuple)) else [o]
        return out


def add_waits(seq, sb):
    out = []
    seq = flatten(seq)
    n = len(seq)
    i = 0
    start = True
    while i < n:
        ins = seq[i]
        if start:
            ops = []
            j = i
            while j < n:
                x = seq[j]
                if x.kind in ("label", "branch", "barrier", "need", "wait", "dir", "smem"):
                    break
                ops += [sb.pend[r] for r in list(x.uses) + list(x.defs) if r in sb.pend]
                if x.kind == "mfma" or j - i > 6:
                    break
                j += 1
            if ops:
                w = sb.wait_ops(ops)
                if w:
                    out.append(w)
            start = False
        i += 1
        if ins.kind == "need":
            w = sb.wait_ops(ins.resolve(), ins.lg0)
            if w:
                out.append(w)
            continue
        if ins.kind in ("label", "dir"):
            out.append(ins)
            start = True
            continue
        w = sb.before(ins)
        if w:
            out.append(w)
        if ins.kind in VM_KINDS and len(sb.vm) >= 62:
            out.append(sb.wait(46, None))
        out.append(ins)
        sb.after(ins)
        if ins.kind == "mfma":
            start = True
        if len(sb.vm) > 63:
            raise RuntimeError("more than 63 vm ops outstanding at " + ins.text)
    return out


def batch(ops):
    for o in ops:
        o.tag = ops
    return ops


def _isv(r):
    return r[0] in "va" and r != "vcc"


def _iss(r):
    return (r[0] == "s") or r == "vcc"


def hazard_dist(p, c):
    need = 0
    pk, ck = p.kind, c.kind
    pv = pk in ("valu", "trans")
    cv = ck in ("valu", "trans")
    D = set(p.defs)
    if pv:
        dv = {r for r in D if _isv(r)}
        ds = {r for r in D if _iss(r)}
        if dv:
            if ck == "mfma" and dv & set(c.uses):
                need = max(need, 2)
            if cv and dv & set(c.uses):
                if c.mn.startswith("v_permlane") or c.dpp:
                    need = max(need, 2)
                if c.mn.startswith(("v_readfirstlane", "v_readlane")):
                    need = max(need, 1)
                if pk == "trans" and ck != "trans":
                    need = max(need, 1)
                if pk == "trans" and ck == "trans":
                    need = max(need, 1)
        if ds:
            if cv and ds & set(c.uses):
                need = max(need, 4 if c.mn.startswith(("v_readlane", "v_writelane")) else 2)
            if ck in ("vload", "vstore", "dma") and ds & set(c.uses):
                need = max(need, 5)
            if ck in ("salu", "branch") and ds & set(c.uses):
                need = max(need, 1)
    if pk == "mfma":
        if ck == "mfma":
            if D & set(c.srcab):
                need = max(need, 8)
            ov = D & set(c.srcc)
            if ov and list(c.srcc) != list(p.defs):
                need = max(need, 6)
        elif cv or ck in ("vload", "vstore", "dma", "dsread", "dswrite"):
            if D & (set(c.uses) | set(c.defs)):
                need = max(need, 8)
        if cv and set(p.srcc) & set(c.defs):
            need = max(need, 3)
    if pk == "salu" and "m0" in D and (ck == "dma" or (cv and "m0" in c.uses)):
        need = max(need, 4 if cv else 1)
    if pk == "vstore" and p.wide_store and set(p.srcab) & set(c.defs):
        need = max(need, 2)
    return need


WINDOW = 10


def pad_hazards(seq, prev=()):
    hist = [x for x in prev if x.nwait]
    out = []
    for ins in seq:
        if ins.kind in ("label", "dir"):
            out.append(ins)
            continue
        dist = 0
        short = 0
        for p in reversed(hist[-WINDOW:]):
            n = hazard_dist(p, ins)
            if n > dist:
                short = max(short, n - dist)
            dist += p.nwait
            if dist >= WINDOW:
                break
        if short:
            nop = I(f"s_nop {short - 1}")
            out.append(nop)
            hist.append(nop)
        out.append(ins)
        hist.append(ins)
    return out


def check_hazards(prev, seq):
    a = [x for x in seq if x.kind not in ("label", "dir")][:WINDOW + 2]
    p = pad_hazards(a, prev)
    if len(p) != len(a):
        raise RuntimeError("hazard on edge into: " + " | ".join(x.text for x in p))


class Task:
    def __init__(self, name, instrs, lo=None, hi=None, prio=1, tight=False):
        self.name, self.instrs, self.lo, self.hi, self.prio, self.tight = name, instrs, lo, hi, prio, tight


SCALAR = ("salu", "wait", "nop", "branch", "barrier", "need", "smem")


class Item:
    __slots__ = ("ins", "lo", "hi", "mind", "tgt", "task", "idx", "gap", "n", "rank", "flat", "lds")

    def __init__(self, ins, lo, hi, mind, tgt, task, idx):
        self.ins, self.lo, self.hi, self.mind, self.tgt, self.task, self.idx = ins, lo, hi, mind, tgt, task, idx
        self.gap = None
        flat = [x for x in flatten([ins]) if x.kind not in ("label", "dir")]
        self.flat = flat
        n = {"s": 0, "d": 0, "v": 0, "t": 0, "m": 0}
        for x in flat:
            k = x.kind
            if k in SCALAR:
                n["s"] += 1
            elif k in LG_KINDS:
                n["d"] += 1
            elif k == "trans":
                n["t"] += 1
            elif k in VM_KINDS:
                n["m"] += 1
            else:
                n["v"] += 1
        self.n = n
        self.lds = sum((2 if "b128" in x.mn else 1) for x in flat if x.kind in LG_KINDS)
        if ins.kind == "group" or ins.kind == "need":
            self.rank = 0 if not (n["d"] or n["v"] or n["t"] or n["m"]) else (1 if not n["t"] else 4)
        elif n["s"]:
            self.rank = 0
        elif n["d"]:
            self.rank = 1
        elif n["m"]:
            self.rank = 2
        elif n["v"]:
            self.rank = 3
        else:
            self.rank = 4


def _dep(a, b):
    if a.ins.kind in ("group", "need", "barrier", "branch") or b.ins.kind in ("group", "need", "barrier", "branch"):
        return True
    if a.n["s"] and b.n["s"]:
        return True
    if (a.n["d"] or a.n["m"]) and (b.n["d"] or b.n["m"]):
        return True
    for x in a.flat:
        for y in b.flat:
            if set(x.defs) & (set(y.uses) | set(y.defs)) or set(x.uses) & set(y.defs):
                return True
    return False


def order_gap(items):
    out = []
    rest = sorted(items, key=lambda it: (it.rank, it.task.prio, getattr(it.task, 'num', 0), it.idx))
    while rest:
        for k, it in enumerate(rest):
            if not any(o is not it and o.task is it.task and o.idx < it.idx and _dep(o, it) for o in rest):
                out.append(rest.pop(k))
                break
    return out


def gap_cost(items, reserved=False):
    if not items:
        return 0
    seq = [x for it in order_gap(items) for x in it.flat]
    t = 4 if reserved else 0
    free_scalar = not reserved
    v = 0
    seen_valu = seen_trans = False
    nval = 0
    for x in seq:
        k = x.kind
        if k in SCALAR:
            if k == "need":
                pass
            if free_scalar and v == 0:
                free_scalar = False
            else:
                v += 1
        elif k in LG_KINDS:
            v += 1 + (2 if seen_valu else 0) + (2 if seen_trans else 0)
        elif k == "trans":
            v += 2
            seen_trans = True
        elif k in VM_KINDS:
            v += 2 + (0 if free_scalar else 1) + (1 if seen_valu else 0)
            free_scalar = False
        else:
            v += 1
            nval += 1
            seen_valu = True
    c = max(0, v - 2) * 4
    if nval == 2 and v == 2:
        c += 1
    return c


def schedule(mf, tasks, budget=8, overflow_report=None, reserve=(), iters=4000, seed=1, vmsp=4, vmw=8, ldw=0):
    import random
    rnd = random.Random(seed)
    n = len(mf)
    reserve = set(reserve)
    slots = [[] for _ in range(n + 1)]
    cost = [0] * (n + 1)
    vm = [0] * (n + 1 + 2 * vmsp)
    chains = []

    def vmpen(g, k):
        if not k:
            return 0
        p = 0
        for d in range(1, vmsp):
            p += (vm[vmsp + g - d] + vm[vmsp + g + d]) * (vmsp - d)
        return vmw * k * (p + vm[vmsp + g] * vmsp)

    ld = [0] * (n + 5)

    def ldpen(g, k):
        if not k or not ldw:
            return 0
        f = lambda a, b, c: max(0, a + b + c - 5) + max(0, b + c - 3) * 0.5 + max(0, c - 2) * 0.5
        i = g + 2
        tot = 0
        for d in range(3):
            x = [ld[i + d - 2], ld[i + d - 1], ld[i + d]]
            before = f(*x)
            x[2 - d] += k
            tot += f(*x) - before
        return ldw * tot

    for num, t in enumerate(tasks):
        t.num = num
    for t in sorted(tasks, key=lambda t: t.prio):
        k = len(t.instrs)
        items = []
        for i, e in enumerate(t.instrs):
            if isinstance(e, tuple):
                ins, lo, hi = e[:3]
                mind = e[3] if len(e) > 3 else 0
                lo = t.lo if lo is None else lo
                hi = t.hi if hi is None else hi
                tgt = lo if (t.tight or t.lo is None) else max(lo, min(hi, t.lo + int(i * (t.hi - t.lo + 1) / k)))
            else:
                ins, lo, hi, mind = e, t.lo, t.hi, 0
                tgt = lo if t.tight else lo + int(i * (hi - lo + 1) / k)
            items.append(Item(ins, max(0, lo), min(n, hi), mind, tgt, t, i))
        for i in range(k - 2, -1, -1):
            items[i].hi = min(items[i].hi, items[i + 1].hi - items[i + 1].mind)
        cur = -1
        for i, it in enumerate(items):
            lo = max(it.lo, (cur + it.mind) if i else it.lo)
            if lo > it.hi:
                raise RuntimeError(f"empty window for task {t.name}[{i}]: {lo}..{it.hi}")
            tgt = min(max(it.tgt, lo), it.hi)
            span = 6 if not t.tight else 3
            best = None
            for g in range(max(lo, tgt - (0 if t.tight else 2)), min(it.hi, tgt + span) + 1):
                d = gap_cost(slots[g] + [it], g in reserve) - cost[g] + vmpen(g, it.n["m"]) + ldpen(g, it.lds)
                key = (d, abs(g - tgt))
                if best is None or key < best[0]:
                    best = (key, g)
            g = best[1]
            it.gap = g
            slots[g].append(it)
            vm[vmsp + g] += it.n["m"]
            ld[g + 2] += it.lds
            cost[g] = gap_cost(slots[g], g in reserve)
            cur = g
        chains.append(items)
    allit = [(c, i) for c in chains for i in range(len(c))]

    def rng(c, i):
        it = c[i]
        lo = max(it.lo, c[i - 1].gap + it.mind) if i else it.lo
        hi = min(it.hi, c[i + 1].gap - c[i + 1].mind) if i + 1 < len(c) else it.hi
        return lo, hi

    def move(it, g):
        slots[it.gap].remove(it)
        vm[vmsp + it.gap] -= it.n["m"]
        ld[it.gap + 2] -= it.lds
        ld[g + 2] += it.lds
        cost[it.gap] = gap_cost(slots[it.gap], it.gap in reserve)
        it.gap = g
        slots[g].append(it)
        vm[vmsp + g] += it.n["m"]
        cost[g] = gap_cost(slots[g], g in reserve)

    def delta(it, g):
        g0 = it.gap
        m = it.n["m"]
        rest = [x for x in slots[g0] if x is not it]
        vm[vmsp + g0] -= m
        ld[g0 + 2] -= it.lds
        d = (gap_cost(slots[g] + [it], g in reserve) - cost[g] + vmpen(g, m) + ldpen(g, it.lds)
             - (cost[g0] - gap_cost(rest, g0 in reserve)) - vmpen(g0, m) - ldpen(g0, it.lds))
        vm[vmsp + g0] += m
        ld[g0 + 2] += it.lds
        return d

    def is_hot(it):
        if cost[it.gap] > 0:
            return True
        if it.lds and ldw:
            ld[it.gap + 2] -= it.lds
            p = ldpen(it.gap, it.lds)
            ld[it.gap + 2] += it.lds
            if p > 0:
                return True
        m = it.n["m"]
        if not m:
            return False
        vm[vmsp + it.gap] -= m
        p = vmpen(it.gap, m)
        vm[vmsp + it.gap] += m
        return p > 0

    for rounds in range(iters):
        hot = [(c, i) for (c, i) in allit if is_hot(c[i])]
        if not hot:
            break
        improved = False
        rnd.shuffle(hot)
        for c, i in hot:
            it = c[i]
            if not is_hot(it):
                continue
            lo, hi = rng(c, i)
            g0 = it.gap
            best = None
            for g in range(max(lo, g0 - 24), min(hi, g0 + 24) + 1):
                if g == g0:
                    continue
                key = (delta(it, g), abs(g - it.tgt))
                if best is None or key < best[0]:
                    best = (key, g)
            if best and best[0][0] < 0:
                move(it, best[1])
                improved = True
        if not improved:
            for _ in range(min(200 if n < 200 else 1500, 4 * len(allit))):
                c, i = rnd.choice(allit)
                it = c[i]
                lo, hi = rng(c, i)
                if hi <= lo:
                    continue
                g = rnd.randint(max(lo, it.gap - 3), min(hi, it.gap + 3))
                if g != it.gap and delta(it, g) <= 0:
                    move(it, g)
            if rounds > 4 and n > 200:
                break
            if rounds > 300:
                break
    out = []
    for g in range(n + 1):
        out += [it.ins for it in order_gap(slots[g])]
        if g < n:
            out.append(mf[g])
    if overflow_report is not None:
        pen = 0
        for g in range(n + 1):
            m = vm[vmsp + g]
            vm[vmsp + g] = 0
            pen += vmpen(g, m) + vmw * vmsp * m * (m - 1) // 2
        overflow_report.append((sum(cost), pen, n))
    return out


def estimate(seq):
    tot = 0
    cur = []

    class T:
        prio = 0
    for x in seq:
        if x.kind in ("label", "dir"):
            continue
        if x.kind == "mfma":
            tot += 16 + gap_cost([Item(Group(cur), 0, 0, 0, 0, T, 0)] if cur else [])
            cur = []
        else:
            cur.append(x)
    return tot + 4 * len(cur)


def render(seq):
    lines = []
    for ins in seq:
        if ins.kind == "label":
            lines.append(ins.text)
        elif ins.kind == "dir":
            lines.append(ins.text)
        else:
            lines.append("    " + ins.text)
    return "\n".join(lines) + "\n"


def verify_order(ref, got):
    def scan(seq):
        last, seen = {}, {}
        for x in flatten(seq):
            if x.kind in ("label", "dir", "need", "wait", "nop"):
                continue
            seen[id(x)] = (x, tuple((r, last.get(r)) for r in x.uses if r != "vcc" or True))
            for r in x.defs:
                last[r] = id(x)
        return seen, last
    a, la = scan(ref)
    b, lb = scan(got)
    assert set(a) == set(b), "instruction sets differ: " + str([a[k][0].text for k in set(a) - set(b)] +
                                                                [b[k][0].text for k in set(b) - set(a)])
    for k in a:
        if a[k][1] != b[k][1]:
            bad = [(r, a.get(p, [None])[0], b.get(q, [None])[0]) for (r, p), (_, q) in zip(a[k][1], b[k][1]) if p != q]
            raise RuntimeError(f"order violated for {a[k][0].text}: {bad}")
    for r in la:
        if la[r] != lb[r]:
            raise RuntimeError(f"last writer of {r} differs")


def merge_waits(x, y):
    def split(seq):
        out, w = [], {}
        for i in seq:
            if i.kind == "wait":
                for nm, v in re.findall(r"(vmcnt|lgkmcnt)\((\d+)\)", i.text):
                    w[nm] = min(w.get(nm, 99), int(v))
            else:
                out.append((w, i))
                w = {}
        return out
    a, b = split(x), split(y)
    assert [i.text for _, i in a] == [i.text for _, i in b], "loop bodies differ in more than waits"
    out = []
    for (wa, i), (wb, _) in zip(a, b):
        w = {k: min(wa.get(k, 99), wb.get(k, 99)) for k in set(wa) | set(wb)}
        if w:
            out.append(I("s_waitcnt " + " ".join(f"{k}({w[k]})" for k in ("vmcnt", "lgkmcnt") if k in w)))
        out.append(i)
    return out
```

```python
import math
import struct
import sys

from asmir import (I, Ins, Group, Need, Task, Scoreboard, add_waits, pad_hazards, check_hazards, schedule, render,
                   flatten, batch, estimate, verify_order, merge_waits)

KNAME = "parallel_sum__compressed_kv_cla__geglu_ffn__prompt_kernel"


class Opt:
    stop = None
    stamps = 0
    G = 4
    NS = 10
    LEAD = 6
    spin = 1 << 20
    prefetch = 34
    xnslope = 88
    xn0 = 600
    vmw = 8
    rot = 4
    pfcode = 1
    lead4 = 8
    chk4 = 8
    G12 = 4
    lead12 = 13
    st_lo = 575
    st_hi = 1480
    seed = 1
    budget = 8
    timeit = ""
    p2hi = 0
    kvq = 1700
    kvd = 80
    wmode = 2
    toksh = 20
    pre2 = 0
    p4v = 3
    defer = 11
    chkp = 3
    leadz = 6
    wsoff = 0
    lnpos = 1
    lnstart = 20
    pfpos = 1
    wflg = "sc1"
    pa = 130
    pb = 300
    pc = 343
    p2early = 0
    rot4 = 0
    xat = 2
    hold = 0
    holdat = "start"
    xnchk = 566
    pfxw = 40
    tokmode = 0
    lnlate = 0
    wflag = 1
    vmwa = 4
    tune = 1
    ldw = 4
    ldw12 = 0
    gearly = 0
    ge0 = 460
    gestep = 30
    delay = 0
    sentinel = 2
    p4fix = 1
    unroll = 1
    gfake = 0
    wdist = 2
    wwin = 7
    xnsrc = 0
    stampat = "160,512,1024,1408,1916"
    drop = ""
    stflag = "sc1"
    ldflag = "sc1"


def fbits(x):
    return "0x%08x" % struct.unpack("<I", struct.pack("<f", x))[0]


XN_OFF = 0
KF_OFF = 2 << 20
VF_OFF = 18 << 20
ZC_OFF = 34 << 20
ZH_OFF = 50 << 20
FL_OFF = 56 << 20
FL_XN, FL_KV, FL_H, FL_C = FL_OFF, FL_OFF + 1024, FL_OFF + 5120, FL_OFF + 6144
FL_E = FL_OFF + 7168
FL_CW = FL_OFF + 7168
TS_OFF = 57 << 20
EX_OFF = 64 << 20
WS_SIZE = 72 << 20
OOB = 0x7FFFFF00

S_X, S_CKV, S_WQ, S_WUK, S_WUV, S_WO, S_WG, S_WU, S_WD, S_OUT, S_DBG, S_WS = range(4, 52, 4)
S_KV = S_WU
S_ZH = S_CKV
S_ZC = S_WQ
sWAVE, sH, sW, sB, sT0, sW2K, sTOKB, sKFB, sVFB = range(52, 61)
sXN = [61, 62, 63, 64]
sZH = [65, 66, 67, 68]
sZC = [69, 70, 71, 72]
sT1, sT2, sT3 = 73, 74, 75
sM0, sM1 = 76, 78
sEV = 80
sJ, sSOFF, sWR, sRD = 82, 83, 84, 85
sNM1 = [86, 87, 88, 89]
sNM2 = [90, 91, 92, 93]
sFXN, sFKV, sFH, sFC = 94, 95, 96, 97
sSPIN, sGBD, sPOLL = sT3, 99, 100
sST = 101
sJL = 65
sKQ, sTB, sCB, sTID, sZo, sWo = 58, 59, 60, 64, 94, 95
vWo4 = [243, 244]
vXo, XR = 252, 208
sMASK, sSP = 61, 62
sK2 = [80, 81, 82, 85]
sACC = 98
TS = 2


def srd(b):
    return f"s[{b}:{b+3}]"


def vr(b, n=4):
    return f"v[{b}:{b+n-1}]" if n > 1 else f"v{b}"


def ar(b, n=4):
    return f"a[{b}:{b+n-1}]" if n > 1 else f"a{b}"


MF = "v_mfma_f32_16x16x32_bf16"


def mfma(d, a, b, c):
    return I(f"{MF} {d}, {a}, {b}, {c}")


ACC = [0, 64, 128]
WFB = [192, 200, 208, 220]
PK = [216, 220, 224]
vG0, vG1, vGK = 228, 229, 230
vPOLL = 231
vRD = [232, 233, 234, 235]
vRD64 = [236, 237]
vRD32 = 238
vWO = [239, 240]
vGA = [241, 242]
vGB = [243, 244]
vTRD = [241, 242]
vL16 = [245, 246, 247, 248]
vONE = 249
vPO32 = 250
vPO8 = 251
vGBS = 252
vC0, vC1 = 253, 254
vLANE = 255
vPOLL2 = 229
vX16 = [216, 217, 218, 219]
vTO = list(range(128, 136))
vLN = 136
vPFW = 226
LNBUF = 7 * 8192
TOKB = 65536
HV = dict(K0=(0, 1), K1=(2, 3), V0=(4, 5), V1=(1, 3), GA=(0, 5), GB=(3, 3), Q0=(2, 4), Q1=(1, 0))


def areg(ps, wb, tb):
    if ps == "Q1":
        return (wb >> 1) * 32 + (tb * 2 + (wb & 1)) * 4
    t = 4 * wb + tb
    return 32 * HV[ps][t >> 3] + 4 * (t & 7)


aO = lambda db, q: 64 + (q * 8 + db) * 4
aS = lambda q, kb: (q * 2 + kb) * 4
aC = lambda q, kb: 32 + (q * 2 + kb) * 4
aP = lambda q: 192 + q * 4
aE = [208, 216, 224]
vOR, vOR2 = 232, 233
vARD = 234
vDM = [236, 237]
vT = [238, 239, 240, 233]
vHP = 241
vHO = 242
sHB = 99
gQ = lambda q, ds: ds * 16 + q * 4
gK = lambda kb, ds: 64 + (kb * 4 + ds) * 4
gV = lambda db: 96 + db * 4
gL = lambda q: 128 + q * 4
gONE = 144
TF = lambda tb, ks: (ks * 4 + tb) * 4


class Gen:
    def __init__(self, opt):
        self.o = opt
        self.out = []
        self.cold = []
        self.nlab = 0
        self.reports = []
        self.nstamp = 0

    def lab(self, p):
        self.nlab += 1
        return f"L_{p}_{self.nlab}"

    def stamp(self, vt=None):
        if not self.o.stamps:
            return []
        vt = vPOLL if vt is None else vt
        k = self.nstamp
        self.nstamp += 1
        if self.o.stamps == 2:
            g = [I(f"s_memrealtime s[{sT2}:{sT2+1}]"), I("s_waitcnt lgkmcnt(0)"), I(f"v_mov_b32 v{vt}, s{sT2}"),
                 I(f"buffer_atomic_umax v{vt}, v{vONE}, {srd(S_DBG)}, 0 offen offset:{8+4*k} sc1"), I("s_nop 1")]
            if k == 0:
                g += [I(f"v_not_b32 v{vt}, v{vt}"),
                      I(f"buffer_atomic_umax v{vt}, v{vONE}, {srd(S_DBG)}, 0 offen offset:4 sc1"), I("s_nop 1")]
            return [Group(g)]
        return [Group([I(f"s_memtime s[{TS}:{TS+1}]"), I(f"s_memrealtime s[{sT2}:{sT2+1}]"),
                       I("s_waitcnt lgkmcnt(0)"), I("s_mov_b64 exec, 1"),
                       I(f"v_mov_b32 v{vt}, s{TS}"),
                       I(f"s_add_u32 s{TS}, s{sST}, {k*4}"),
                       I(f"buffer_store_dword v{vt}, v{vC0}, {srd(S_WS)}, s{TS} offen"),
                       I("s_nop 1"),
                       I(f"v_mov_b32 v{vt}, s{sT2}"),
                       I(f"buffer_store_dword v{vt}, v{vC0}, {srd(S_WS)}, s{TS} offen offset:64"),
                       I("s_nop 1"),
                       I(f"v_mov_b32 v{vt}, s{sACC}"),
                       I(f"buffer_store_dword v{vt}, v{vC0}, {srd(S_WS)}, s{TS} offen offset:128"),
                       I("s_nop 1"), I("s_mov_b64 exec, -1")])]

    def holdmark(self, name):
        if not self.o.hold or self.o.holdat != name:
            return []
        return [Group([I(f"s_memrealtime s[{sM0}:{sM0+1}]"), I("s_waitcnt lgkmcnt(0)"),
                       I(f"s_add_u32 s{sACC}, s{sM0}, {self.o.hold}")])]

    def timed(self, seq):
        if self.o.stamps != 1 or (self.o.timeit == "spin"):
            return seq
        return [I("s_memtime s[0:1]")] + seq + [I(f"s_memtime s[{sM0}:{sM0+1}]"), I("s_waitcnt lgkmcnt(0)"),
                                                I(f"s_sub_u32 s0, s{sM0}, s0"), I(f"s_add_u32 s{sACC}, s{sACC}, s0")]

    def poll_check(self, vreg, srdb, voff, soff, val, cmp="ne", split=False):
        slow, back = self.lab("spin"), self.lab("back")
        tm = self.o.timeit == "spin"
        t0 = "    s_memtime s[0:1]\n" if tm else ""
        ret = back
        if tm:
            ret = slow + "_x"
        x = f"""{ret}:
    s_memtime s[{sM0}:{sM0+1}]
    s_waitcnt lgkmcnt(0)
    s_sub_u32 s0, s{sM0}, s0
    s_add_u32 s{sACC}, s{sACC}, s0
    s_branch {back}
""" if tm else ""
        self.cold.append(f"""{slow}:
{t0}    s_mov_b32 s{sSPIN}, {self.o.spin}
{slow}_l:
    buffer_load_dword v{vreg}, v{voff}, {srd(srdb)}, {soff} offen sc1
    s_waitcnt vmcnt(0)
    v_cmp_{cmp}_u32 vcc, {val}, v{vreg}
    s_nop 1
    s_cbranch_vccz {ret}
    s_sub_u32 s{sSPIN}, s{sSPIN}, 1
    s_cmp_lg_u32 s{sSPIN}, 0
    s_cbranch_scc1 {slow}_l
    s_branch {ret}
{x}""")
        a, b = I(f"v_cmp_{cmp}_u32 vcc, {val}, v{vreg}"), Group([I(f"s_cbranch_vccnz {slow}"), I(f"{back}:")])
        return [a, (b, None, None, 2)] if split else Group([a, b])

    def poll_load(self, vreg, srdb, voff, soff):
        return I(f"buffer_load_dword v{vreg}, v{voff}, {srd(srdb)}, {soff} offen sc1")

    def setup(self):
        c = []
        A = c.append
        A(I("s_cmp_ge_u32 s2, 256"))
        A(I("s_cbranch_scc1 L_exit"))
        ptrs = [(S_CKV, 8, 2097152), (S_WUK, 24, 4194304), (S_X, 0, 2097152), (S_WS, 96, WS_SIZE), (S_DBG, 88, 256),
                (S_WUV, 32, 4194304), (S_WQ, 16, 4194304), (S_WO, 40, 4194304), (S_WG, 56, 1409024),
                (S_WU, 64, 1409024), (S_WD, 72, 1409024), (S_OUT, 80, 2097152)]
        for b, off, n in ptrs:
            A(I(f"s_load_dwordx2 s[{b}:{b+1}], s[0:1], {off}"))
        A(I(f"v_and_b32 v{vLANE}, 63, v0"))
        A(I("v_lshrrev_b32 v1, 6, v0"))
        A(I(f"s_mov_b32 s{sB}, s2"))
        if self.o.hold and self.o.holdat == "start":
            A(I("s_memrealtime s[2:3]"))
            A(I("s_waitcnt lgkmcnt(0)"))
            A(I(f"s_add_u32 s{sACC}, s2, {self.o.hold}"))
        if self.o.delay:
            A(I(f"s_mov_b32 s{sT0}, {self.o.delay}"))
            A(I("L_delay:"))
            A(I("s_nop 15")); A(I("s_nop 15")); A(I("s_nop 15")); A(I("s_nop 15"))
            A(I(f"s_sub_u32 s{sT0}, s{sT0}, 1"))
            A(I(f"s_cmp_lg_u32 s{sT0}, 0"))
            A(I("s_cbranch_scc1 L_delay"))
        A(I(f"v_readfirstlane_b32 s{sWAVE}, v1"))
        for b, off, n in ptrs:
            A(I(f"s_mov_b32 s{b+2}, {n}"))
            A(I(f"s_mov_b32 s{b+3}, 0x20000"))
        A(I(f"s_and_b32 s{sT0}, s{sB}, 7"))
        A(I(f"s_lshl_b32 s{sT0}, s{sT0}, 2"))
        A(I(f"s_bfe_u32 s{sT1}, s{sB}, 0x20003"))
        A(I(f"s_add_u32 s{sH}, s{sT0}, s{sT1}"))
        A(I(f"s_lshr_b32 s{sW}, s{sB}, 5"))
        A(I(f"s_lshl_b32 s{sW2K}, s{sWAVE}, 11"))
        A(I(f"s_mul_i32 s{sTOKB}, s{sWAVE}, 24576"))
        A(I(f"s_add_u32 s{sTOKB}, s{sTOKB}, {TOKB}"))
        A(I(f"s_add_u32 s{sT0}, s{sH}, s{sW}"))
        if self.o.rot == 4:
            A(I(f"s_mul_i32 s{sT1}, s{sT0}, 86"))
            A(I(f"s_lshr_b32 s{sT1}, s{sT1}, 8"))
            A(I(f"s_mul_i32 s{sT1}, s{sT1}, 3"))
            A(I(f"s_sub_u32 s{sT0}, s{sT0}, s{sT1}"))
            A(I(f"s_mov_b32 s{sK2[0]}, 0"))
            for i in range(1, 4):
                A(I(f"s_add_u32 s{sT1}, s{sT0}, {i - 1}"))
                A(I(f"s_sub_u32 s{sT2}, s{sT1}, 3"))
                A(I(f"s_min_u32 s{sT1}, s{sT1}, s{sT2}"))
                A(I(f"s_add_u32 s{sT1}, s{sT1}, 1"))
                A(I(f"s_lshl_b32 s{sK2[i]}, s{sT1}, 8"))
        elif self.o.rot == 5:
            A(I(f"s_and_b32 s{sT0}, s{sT0}, 3"))
            A(I(f"s_and_b32 s{sT1}, s{sT0}, 1"))
            A(I(f"s_lshl_b32 s{sK2[0]}, s{sT1}, 8"))
            A(I(f"s_xor_b32 s{sK2[3]}, s{sK2[0]}, 256"))
            A(I(f"s_lshr_b32 s{sT1}, s{sT0}, 1"))
            A(I(f"s_add_u32 s{sT1}, s{sT1}, 2"))
            A(I(f"s_lshl_b32 s{sK2[1]}, s{sT1}, 8"))
            A(I(f"s_xor_b32 s{sK2[2]}, s{sK2[1]}, 256"))
        else:
            if self.o.rot == 2:
                A(I(f"s_lshl_b32 s{sT0}, s{sT0}, 1"))
            A(I(f"s_and_b32 s{sT0}, s{sT0}, {self.o.rot}"))
            for i in range(4):
                A(I(f"s_add_u32 s{sT1}, s{sT0}, {i}"))
                A(I(f"s_and_b32 s{sT1}, s{sT1}, 3"))
                A(I(f"s_lshl_b32 s{sK2[i]}, s{sT1}, 8"))
        L = vLANE
        A(I(f"v_lshrrev_b32 v1, 3, v{L}"))
        A(I(f"v_lshrrev_b32 v2, 4, v{L}"))
        A(I(f"v_and_b32 v3, 7, v{L}"))
        A(I(f"s_lshl_b32 s{sT0}, s{sW}, 2"))
        A(I(f"s_add_u32 s{sT0}, s{sT0}, s{sWAVE}"))
        A(I(f"s_lshl_b32 s{sT0}, s{sT0}, 16"))
        A(I(f"v_xor_b32 v4, v3, v2"))
        A(I(f"v_lshlrev_b32 v5, 10, v1"))
        A(I(f"v_lshl_add_u32 v6, v4, 4, v5"))
        A(I(f"v_add_u32 v{vTO[0]}, s{sT0}, v6"))
        A(I(f"v_xor_b32 v7, 64, v{vTO[0]}"))
        for p in range(1, 8):
            src = 7 if p & 1 else vTO[0]
            A(I(f"v_add_u32 v{vTO[p]}, {p*8192 - (p&3)*1024}, v{src}"))
        A(I(f"v_lshrrev_b32 v8, 5, v{L}"))
        A(I(f"v_and_b32 v9, 3, v1"))
        A(I(f"v_lshl_add_u32 v9, v8, 3, v9"))
        A(I(f"s_lshr_b32 s{sT0}, s{sWAVE}, 1"))
        A(I(f"s_lshl_b32 s{sT0}, s{sT0}, 5"))
        A(I(f"s_and_b32 s{sT1}, s{sWAVE}, 1"))
        A(I(f"s_lshl_b32 s{sT1}, s{sT1}, 2"))
        A(I(f"s_add_u32 s{sT0}, s{sT0}, s{sT1}"))
        A(I(f"v_add_u32 v9, s{sT0}, v9"))
        A(I(f"v_lshlrev_b32 v10, 1, v2"))
        A(I(f"v_xor_b32 v10, v3, v10"))
        A(I(f"v_lshlrev_b32 v10, 4, v10"))
        A(I(f"s_lshl_b32 s{sT0}, s{sH}, 8"))
        A(I(f"v_lshl_add_u32 v11, v9, 13, v10"))
        A(I(f"v_add_u32 v{vWO[0]}, s{sT0}, v11"))
        A(I(f"v_add_u32 v{vWO[1]}, {16*8192-1024}, v{vWO[0]}"))
        A(I(f"v_mov_b32 v{vC0}, 0"))
        A(I(f"v_mov_b32 v{vC1}, 1"))
        if self.o.stamps == 1:
            A(I(f"s_lshl_b32 s{sST}, s{sB}, 2"))
            A(I(f"s_add_u32 s{sST}, s{sST}, s{sWAVE}"))
            A(I(f"s_lshl_b32 s{sST}, s{sST}, 8"))
            A(I(f"s_mov_b32 s{sACC}, 0"))
            A(I(f"s_add_u32 s{sST}, s{sST}, {TS_OFF}"))
        self.n_first = len(c)
        A(I(f"s_lshl_b32 s{sT0}, s{sB}, 2"))
        A(I(f"s_add_u32 s{sT0}, s{sT0}, s{sWAVE}"))
        A(I(f"s_lshl_b32 s{sT0}, s{sT0}, 11"))
        A(I(f"v_and_b32 v12, 31, v{L}"))
        A(I(f"v_lshlrev_b32 v13, 10, v8"))
        A(I(f"v_lshl_add_u32 v13, v12, 4, v13"))
        A(I(f"v_add_u32 v{vLN+32}, s{sT0}, v13"))
        A(I(f"v_mov_b32 v14, {OOB}"))
        A(I("v_cmp_eq_u32 vcc, 0, v0"))
        A(I(f"v_lshlrev_b32 v{vPO32}, 2, v12"))
        A(I(f"v_lshlrev_b32 v{vPO8}, 2, v3"))
        A(I(f"v_cndmask_b32 v{vONE}, v14, v{vC0}, vcc"))
        A(I(f"s_lshr_b32 s{sT0}, s{sB}, 4"))
        A(I(f"s_sub_u32 s{sT1}, 15, s{sT0}"))
        A(I(f"s_min_u32 s{sT1}, s{sT0}, s{sT1}"))
        A(I(f"s_lshl_b32 s{sT1}, s{sT1}, 7"))
        A(I(f"s_lshr_b32 s{sT0}, s{sB}, 7"))
        A(I(f"s_lshl_b32 s{sT0}, s{sT0}, 4"))
        A(I(f"s_and_b32 s{sT2}, s{sB}, 15"))
        A(I(f"s_add_u32 s{sT0}, s{sT0}, s{sT2}"))
        A(I(f"s_lshl_b32 s{sT0}, s{sT0}, 2"))
        A(I(f"s_add_u32 s{sFXN}, s{sT0}, s{sT1}"))
        A(I(f"s_add_u32 s{sFXN}, s{sFXN}, {FL_XN}"))
        A(I(f"s_lshl_b32 s{sT0}, s{sH}, 7"))
        A(I(f"s_lshl_b32 s{sT1}, s{sW}, 2"))
        A(I(f"s_add_u32 s{sFKV}, s{sT0}, s{sT1}"))
        A(I(f"s_add_u32 s{sFKV}, s{sFKV}, {FL_KV}"))
        A(I(f"s_lshl_b32 s{sT0}, s{sW}, 7"))
        A(I(f"s_lshl_b32 s{sT1}, s{sH}, 2"))
        A(I(f"s_add_u32 s{sT0}, s{sT0}, s{sT1}"))
        A(I(f"s_add_u32 s{sFH}, s{sT0}, {FL_H}"))
        A(I(f"s_add_u32 s{sFC}, s{sT0}, {FL_C}"))
        return c

    def setup2(self):
        c = []
        A = c.append
        L = vLANE
        t = vLN + 24
        g, i16 = t, t + 1
        A(I(f"v_lshrrev_b32 v{g}, 4, v{L}"))
        A(I(f"v_and_b32 v{i16}, 15, v{L}"))
        A(I(f"v_lshrrev_b32 v{t+2}, 2, v{i16}"))
        A(I(f"v_lshl_add_u32 v{t+2}, v{g}, 2, v{t+2}"))
        A(I(f"v_and_b32 v{t+3}, 3, v{i16}"))
        A(I(f"v_lshlrev_b32 v{t+3}, 3, v{t+3}"))
        A(I(f"v_bfe_u32 v{t+4}, v{t+2}, 1, 2"))
        A(I(f"v_lshlrev_b32 v{t+4}, 5, v{t+4}"))
        A(I(f"v_lshl_add_u32 v{t+5}, v{t+2}, 7, v{t+3}"))
        A(I(f"v_add_u32 v{vRD[0]}, v{t+5}, v{t+4}"))
        for cb in range(1, 4):
            A(I(f"v_xor_b32 v{vRD[cb]}, {cb*32}, v{vRD[0]}"))
        A(I(f"v_and_b32 v{t+4}, 1, v{g}"))
        A(I(f"v_lshlrev_b32 v{t+4}, 5, v{t+4}"))
        A(I(f"v_lshl_add_u32 v{t+5}, v{t+2}, 6, v{t+3}"))
        A(I(f"v_add_u32 v{vRD64[0]}, v{t+5}, v{t+4}"))
        A(I(f"v_xor_b32 v{vRD64[1]}, 32, v{vRD64[0]}"))
        A(I(f"v_lshl_add_u32 v{vRD32}, v{t+2}, 5, v{t+3}"))
        A(I(f"v_lshrrev_b32 v{t+4}, 1, v{i16}"))
        A(I(f"v_xor_b32 v{t+4}, v{g}, v{t+4}"))
        A(I(f"v_lshlrev_b32 v{t+4}, 4, v{t+4}"))
        A(I(f"v_lshl_add_u32 v{t+4}, v{i16}, 7, v{t+4}"))
        A(I(f"v_add_u32 v{vTRD[0]}, s{sTOKB}, v{t+4}"))
        A(I(f"v_xor_b32 v{vTRD[1]}, 64, v{vTRD[0]}"))
        A(I(f"v_lshlrev_b32 v{vL16[0]}, 4, v{L}"))
        for i in range(1, 4):
            A(I(f"v_add_u32 v{vL16[i]}, {4096*i}, v{vL16[0]}"))
        return c

    def setup3(self):
        c = []
        A = c.append
        L = vLANE
        A(I(f"s_lshl_b32 s{sT1}, s{sH}, 6"))
        A(I(f"s_lshl_b32 s{sT2}, s{sW}, 3"))
        A(I(f"s_add_u32 s{sT1}, s{sT1}, s{sT2}"))
        A(I(f"s_lshl_b32 s{sT2}, s{sWAVE}, 1"))
        A(I(f"s_add_u32 s{sT1}, s{sT1}, s{sT2}"))
        A(I(f"s_lshl_b32 s{sT1}, s{sT1}, 13"))
        A(I(f"s_add_u32 s{sKFB}, s{sT1}, {KF_OFF}"))
        A(I(f"s_add_u32 s{sVFB}, s{sT1}, {VF_OFF}"))
        B = sNM2
        A(I(f"s_sub_u32 s{sT1}, 15, s{sW}"))
        A(I(f"s_lshl_b32 s{sT1}, s{sT1}, 3"))
        A(I(f"s_lshl_b32 s{sT2}, s{sW}, 3"))
        A(I(f"s_sub_u32 s{sT3}, 7, s{sWAVE}"))
        A(I(f"s_add_u32 s{B[0]}, s{sT1}, s{sT3}"))
        A(I(f"s_add_u32 s{B[1]}, s{sT1}, s{sWAVE}"))
        A(I(f"s_add_u32 s{B[2]}, s{sT2}, s{sT3}"))
        A(I(f"s_add_u32 s{B[3]}, s{sT2}, s{sWAVE}"))
        for q in range(4):
            A(I(f"s_lshl_b32 s{sXN[q]}, s{B[q]}, 14"))
            if XN_OFF:
                A(I(f"s_add_u32 s{sXN[q]}, s{sXN[q]}, {XN_OFF}"))
            A(I(f"s_lshr_b32 s{sT1}, s{B[q]}, 2"))
            A(I(f"s_and_b32 s{sT2}, s{B[q]}, 3"))
            A(I(f"s_lshl_b32 s{sT2}, s{sT2}, 10"))
            A(I(f"s_mul_i32 s{sZH[q]}, s{sT1}, {43*4096}"))
            A(I(f"s_add_u32 s{sZH[q]}, s{sZH[q]}, s{sT2}"))
            A(I(f"s_lshl_b32 s{sT3}, s{sH}, 12"))
            A(I(f"s_add_u32 s{sZH[q]}, s{sZH[q]}, s{sT3}"))
            A(I(f"s_add_u32 s{sZH[q]}, s{sZH[q]}, {ZH_OFF}"))
            A(I(f"s_lshl_b32 s{sZC[q]}, s{sT1}, 19"))
            A(I(f"s_add_u32 s{sZC[q]}, s{sZC[q]}, s{sT2}"))
            A(I(f"s_lshl_b32 s{sT3}, s{sH}, 14"))
            A(I(f"s_add_u32 s{sZC[q]}, s{sZC[q]}, s{sT3}"))
            A(I(f"s_add_u32 s{sZC[q]}, s{sZC[q]}, {ZC_OFF}"))
        A(I(f"s_lshr_b32 s{sT1}, s{sH}, 1"))
        A(I(f"s_add_u32 s{sT1}, s{sT1}, 32"))
        A(I(f"s_sub_u32 s{sT1}, s{sT1}, s{sH}"))
        A(I(f"s_lshl_b32 s{sGBD}, s{sT1}, 12"))
        if not self.o.timeit.startswith("vmw"):
            A(I(f"v_mov_b32 v{vGK}, {fbits(GK1)}"))
        for i in range(4):
            A(I(f"s_lshl_b32 s{sT1}, s{sK2[i]}, 4"))
            A(I(f"v_add_u32 v{vX16[i]}, s{sT1}, v{vL16[0]}"))
        return c

    def setup4(self):
        c = []
        A = c.append
        A(Group([I(f"s_cmp_lt_u32 s{sWAVE}, 2"), I(f"s_cselect_b32 s{S_WG}, s{S_WG}, s{S_WU}"),
                 I(f"s_cselect_b32 s{S_WG+1}, s{S_WG+1}, s{S_WU+1}")]))
        L = vLANE
        t = vLN + 24
        A(I(f"v_lshrrev_b32 v{t}, 4, v{L}"))
        A(I(f"v_bfe_u32 v{t+1}, v{L}, 2, 2"))
        A(I(f"v_lshl_add_u32 v{t+1}, v{t}, 3, v{t+1}"))
        A(I(f"s_and_b32 s{sT1}, s{sWAVE}, 1"))
        A(I(f"s_lshl_b32 s{sT2}, s{sT1}, 5"))
        A(I(f"v_add_u32 v{t+1}, s{sT2}, v{t+1}"))
        A(I(f"v_mul_u32_u24 v{t+1}, 2752, v{t+1}"))
        A(I(f"v_and_b32 v{t}, 1, v{t}"))
        A(I(f"v_lshlrev_b32 v{t}, 1, v{t}"))
        A(I(f"v_and_b32 v{t+2}, 3, v{L}"))
        A(I(f"v_xor_b32 v{t}, v{t}, v{t+2}"))
        A(I(f"v_lshl_add_u32 v{t}, v{t}, 4, v{t+1}"))
        A(I(f"s_lshl_b32 s{sT2}, s{sH}, 6"))
        A(I(f"v_add_u32 v{vGA[0]}, s{sT2}, v{t}"))
        A(I(f"v_add_u32 v{vGA[1]}, {4*2752-1024}, v{vGA[0]}"))
        A(I(f"v_bfe_u32 v{t}, v{L}, 3, 2"))
        A(I(f"v_bfe_u32 v{t+1}, v{L}, 1, 2"))
        A(I(f"v_lshl_add_u32 v{t}, v{t}, 3, v{t+1}"))
        A(I(f"v_lshrrev_b32 v{t+1}, 5, v{L}"))
        A(I(f"v_lshl_add_u32 v{t}, v{t+1}, 2, v{t}"))
        A(I(f"s_lshl_b32 s{sT2}, s{sT1}, 6"))
        A(I(f"v_add_u32 v{t}, s{sT2}, v{t}"))
        A(I(f"v_mul_u32_u24 v{t}, 2752, v{t}"))
        A(I(f"v_and_b32 v{t+1}, 1, v{L}"))
        A(I(f"v_lshl_add_u32 v{t}, v{t+1}, 4, v{t}"))
        A(I(f"s_min_u32 s{sT2}, s{sH}, 21"))
        A(I(f"s_lshl_b32 s{sT2}, s{sT2}, 5"))
        A(I(f"s_add_u32 s{sT2}, s{sT2}, 2048"))
        A(Group([I(f"s_cmp_lt_u32 s{sH}, 22"), I(f"s_cselect_b32 s{sT2}, s{sT2}, {OOB}")]))
        A(I(f"v_add_u32 v{vGB[0]}, s{sT2}, v{t}"))
        A(I(f"v_add_u32 v{vGB[1]}, {32*2752-1024}, v{vGB[0]}"))
        A(I(f"s_and_b32 s{sT2}, s{sH}, 1"))
        A(I(f"s_lshl_b32 s{sT2}, s{sT2}, 3"))
        A(Group([I(f"s_cmp_lt_u32 s{sH}, 22"), I(f"s_cselect_b32 s{sT2}, s{sT2}, {OOB}")]))
        A(I(f"v_add_u32 v{vGBS}, s{sT2}, v{vL16[0]}"))
        return c

    def ln_compute(self):
        R = vLN
        X = vLN + 8
        t = vLN + 24
        c = []
        A = c.append
        for i in range(8):
            A(I(f"v_lshlrev_b32 v{X+2*i}, 16, v{R+i}"))
            A(I(f"v_and_b32 v{X+2*i+1}, 0xffff0000, v{R+i}"))

        def reduce32(r):
            for sh in (8, 4, 2, 1):
                A(I(f"v_add_f32_dpp v{r}, v{r}, v{r} row_ror:{sh} row_mask:0xf bank_mask:0xf"))
            A(I(f"v_mov_b32 v{t+7}, v{r}"))
            A(I(f"v_permlane16_swap_b32 v{r}, v{t+7}"))
            A(I(f"v_add_f32 v{r}, v{r}, v{t+7}"))
        A(I(f"v_add_f32 v{t}, v{X}, v{X+1}"))
        A(I(f"v_add_f32 v{t+1}, v{X+2}, v{X+3}"))
        for i in range(4, 16, 2):
            A(I(f"v_add_f32 v{t}, v{t}, v{X+i}"))
            A(I(f"v_add_f32 v{t+1}, v{t+1}, v{X+i+1}"))
        A(I(f"v_add_f32 v{t}, v{t}, v{t+1}"))
        reduce32(t)
        A(I(f"v_mul_f32 v{t}, {fbits(1.0/512)}, v{t}"))
        for i in range(16):
            A(I(f"v_sub_f32 v{X+i}, v{X+i}, v{t}"))
        A(I(f"v_mul_f32 v{t+1}, v{X}, v{X}"))
        A(I(f"v_mul_f32 v{t+2}, v{X+1}, v{X+1}"))
        for i in range(2, 16, 2):
            A(I(f"v_fmac_f32 v{t+1}, v{X+i}, v{X+i}"))
            A(I(f"v_fmac_f32 v{t+2}, v{X+i+1}, v{X+i+1}"))
        A(I(f"v_add_f32 v{t+1}, v{t+1}, v{t+2}"))
        reduce32(t + 1)
        A(I(f"v_mul_f32 v{t+1}, {fbits(1.0/512)}, v{t+1}"))
        A(I(f"v_cvt_pk_bf16_f32 v{t+2}, v{t}, v{t+1}"))
        A(I(f"v_and_b32 v{t+3}, 0xffff0000, v{t+2}"))
        A(I(f"v_lshlrev_b32 v{t+2}, 16, v{t+2}"))
        A(I(f"v_add_f32 v{t+3}, {fbits(1e-5)}, v{t+3}"))
        A(I(f"v_cvt_pk_bf16_f32 v{t+3}, v{t+3}, v{t+3}"))
        A(I(f"v_and_b32 v{t+3}, 0xffff0000, v{t+3}"))
        A(I(f"v_sqrt_f32 v{t+3}, v{t+3}"))
        A(I(f"v_sub_f32 v{t+2}, v{t}, v{t+2}"))
        A(I(f"v_cvt_pk_bf16_f32 v{t+3}, v{t+3}, v{t+3}"))
        A(I(f"v_and_b32 v{t+3}, 0xffff0000, v{t+3}"))
        A(I(f"v_rcp_f32 v{t+3}, v{t+3}"))
        A(I(f"v_and_b32 v{t+4}, 31, v{vLANE}"))
        A(I(f"v_lshrrev_b32 v{t+5}, 5, v{vLANE}"))
        A(I(f"v_mul_f32 v{t+2}, v{t+2}, v{t+3}"))
        A(I(f"v_lshl_add_u32 v{t+4}, v{t+4}, 3, v{t+5}"))
        A(I(f"s_lshl_b32 s{sT1}, s{sWAVE}, 5"))
        A(I(f"s_add_u32 s{sT1}, s{sT1}, {LNBUF}"))
        A(I(f"v_lshl_add_u32 v{t+4}, v{t+4}, 4, s{sT1}"))
        for i in range(16):
            A(I(f"v_fma_f32 v{X+i}, v{X+i}, v{t+3}, v{t+2}"))
        for i in range(8):
            A(I(f"v_cvt_pk_bf16_f32 v{R+i}, v{X+2*i}, v{X+2*i+1}"))
        A(I(f"ds_write_b128 v{t+4}, {vr(R)}"))
        A(I(f"ds_write_b128 v{t+4}, {vr(R+4)} offset:4096"))
        return c

    def ln_store(self):
        R = vLN
        t = vLN + 24
        c = []
        A = c.append
        A(I(f"s_lshl_b32 s{sT1}, s{sWAVE}, 11"))
        A(I(f"s_add_u32 s{sT1}, s{sT1}, {LNBUF}"))
        A(I(f"v_add_u32 v{t}, s{sT1}, v{vL16[0]}"))
        A(I(f"ds_read_b128 {vr(R)}, v{t}"))
        A(I(f"ds_read_b128 {vr(R+4)}, v{t} offset:1024"))
        A(I(f"v_lshrrev_b32 v{t+1}, 3, v{vLANE}"))
        A(I(f"v_and_b32 v{t+2}, 7, v{vLANE}"))
        A(I(f"v_lshlrev_b32 v{t+2}, 4, v{t+2}"))
        A(I(f"v_lshl_add_u32 v{t+1}, v{t+1}, 8, v{t+2}"))
        A(I(f"s_lshr_b32 s{sT1}, s{sB}, 1"))
        A(I(f"s_lshl_b32 s{sT1}, s{sT1}, 14"))
        A(I(f"s_and_b32 s{sT2}, s{sB}, 1"))
        A(I(f"s_lshl_b32 s{sT2}, s{sT2}, 7"))
        A(I(f"s_add_u32 s{sT1}, s{sT1}, s{sT2}"))
        A(I(f"s_lshl_b32 s{sT2}, s{sWAVE}, 12"))
        A(I(f"s_add_u32 s{sT1}, s{sT1}, s{sT2}"))
        if XN_OFF:
            A(I(f"s_add_u32 s{sT1}, s{sT1}, {XN_OFF}"))
        A(I(f"v_add_u32 v{t+1}, s{sT1}, v{t+1}"))
        st = [I(f"buffer_store_dwordx4 {vr(R)}, v{t+1}, {srd(S_WS)}, 0 offen sc1"),
              I(f"buffer_store_dwordx4 {vr(R+4)}, v{t+1}, {srd(S_WS)}, 0 offen offset:2048 sc1")]
        return c + st, st

    def tiles(self):
        T = []
        for c in range(8):
            for half in range(2):
                T.append(dict(typ="R128", srd=S_WUK, kc=c, col=half * 128, vo=vWO, acc=f"K{half}", swap=False,
                              ks0=2 * c, first=(c == 0)))
        for c in range(8):
            for half in range(2):
                T.append(dict(typ="R128", srd=S_WUV, kc=c, col=half * 128, vo=vWO, acc=f"V{half}", swap=True,
                              ks0=2 * c, first=(c == 0)))
        for c in range(4):
            for cc in (2 * c, 2 * c + 1):
                T.append(dict(typ="R64", srd=S_WG, kc=cc, col=0, vo=vGA, acc="GA", swap=False, ks0=2 * cc,
                              first=(cc == 0)))
            T.append(dict(typ="R32", srd=S_WG, kc=2 * c, col=0, vo=vGB, acc="GB", swap=False, ks0=4 * c,
                          first=(c == 0)))
        for half in range(2):
            for c in range(8):
                T.append(dict(typ="R128", srd=S_WQ, kc=c, col=half * 128, vo=vWO, acc=f"Q{half}", swap=False,
                              ks0=2 * c, first=(c == 0)))
        return T

    def tile_dma(self, t):
        fake = self.o.gfake and t["typ"] != "R128" and (self.o.gfake == 1 or t["typ"] == "R32")
        if fake:
            t = t
            vo, sr = vWO, S_WQ
        else:
            vo, sr = t["vo"], t["srd"]
        ops = [I(f"buffer_load_dwordx4 v{vo[p]}, {srd(sr)}, s{sT0} offen offset:{p*1024} {self.o.wflg} lds")
               for p in range(2)]
        t["dma"] = ops
        stride = 8192 if (t["typ"] == "R128" or fake) else 2752
        kc = t["kc"]
        so = [I(f"s_mul_i32 s{sT0}, s{sK2[kc >> 1]}, {stride // 2}")]
        add = (kc & 1) * 64 * stride + t["col"]
        if add:
            so.append(I(f"s_add_u32 s{sT0}, s{sT0}, {add}"))
        return so + [I(f"s_add_u32 m0, s{sW2K}, {t['slot']}"), ops[0], ops[1]]

    def unit_reads(self, t, u, buf):
        base = t["slot"] & 0xffff
        r = []
        for k in range(2):
            for a in range(2):
                d = WFB[buf] + 4 * k + 2 * a
                if t["typ"] == "R128":
                    addr, off = vRD[u], base + k * 4096 + a * 2048
                elif t["typ"] == "R64":
                    addr, off = vRD64[u & 1], base + (u >> 1) * 4096 + k * 2048 + a * 1024
                else:
                    addr, off = vRD32, base + (u & 1) * 4096 + (2 * (u >> 1) + k) * 1024 + a * 512
                r.append(I(f"ds_read_b64_tr_b16 {vr(d,2)}, v{addr} offset:{off}"))
        return batch(r)

    def unit_mfma(self, t, u, buf):
        m = []
        if t["typ"] == "R32":
            wb, ksb, first = u & 1, t["ks0"] + 2 * (u >> 1), t["first"] and u < 2
        else:
            wb, ksb, first = u, t["ks0"], t["first"]
        for tb in range(4):
            d = vr(areg(t["acc"], wb, tb))
            for k in range(2):
                wf, tf = vr(WFB[buf] + 4 * k), ar(TF(tb, ksb + k))
                a, b = (tf, wf) if t["swap"] else (wf, tf)
                m.append(mfma(d, a, b, "0" if (first and k == 0) else d))
        return m

    def tok_dma(self, c):
        ops = [I(f"buffer_load_dwordx4 v{vTO[p]}, {srd(S_CKV)}, s{sT0} offen offset:{(p&3)*1024} {self.o.wflg} lds") for p in range(8)]
        seq = [I(f"s_add_u32 s{sT0}, s{sK2[c >> 1]}, {(c & 1) * 128}")]
        for p in range(8):
            if p & 3 == 0:
                seq.append(I(f"s_add_u32 m0, s{sTOKB}, {(c%3)*8192 + (p>>2)*4096}"))
            seq.append(ops[p])
        return seq, ops

    def tok_reads(self, c):
        return batch([I(f"ds_read_b128 {ar(TF(tb, 2*c+k))}, v{vTRD[k]} offset:{(c%3)*8192 + tb*2048}")
                      for k in range(2) for tb in range(4)])

    def pk_frag(self, d, t0, t1):
        return [I(f"v_cvt_pk_bf16_f32 v{d}, v{t0}, v{t0+1}"), I(f"v_cvt_pk_bf16_f32 v{d+1}, v{t0+2}, v{t0+3}"),
                I(f"v_cvt_pk_bf16_f32 v{d+2}, v{t1}, v{t1+1}"), I(f"v_cvt_pk_bf16_f32 v{d+3}, v{t1+2}, v{t1+3}")]

    def epi_K(self, half):
        c, st = [], []
        ps = f"K{half}"
        for tb in range(4):
            for d2 in range(2):
                p = areg(ps, d2, tb)
                c += self.pk_frag(p, areg(ps, 2 * d2, tb), areg(ps, 2 * d2 + 1, tb))
                st.append(I(f"buffer_store_dwordx4 {vr(p)}, v{vL16[tb]}, {srd(S_WS)}, s{sKFB} offen "
                            f"offset:{(2*half+d2)*1024} {self.o.stflag}"))
        return c, st

    def epi_V(self, half):
        c, st = [], []
        ps = f"V{half}"
        for wb in range(4):
            for sp in range(2):
                p = areg(ps, wb & 1, 2 * sp + (wb >> 1))
                c += self.pk_frag(p, areg(ps, wb, 2 * sp), areg(ps, wb, 2 * sp + 1))
                st.append(I(f"buffer_store_dwordx4 {vr(p)}, v{vL16[2*sp+half]}, {srd(S_WS)}, s{sVFB} offen "
                            f"offset:{wb*1024} {self.o.stflag}"))
        return c, st

    def gelu4(self, g, u):
        c = []
        for i in (0, 2):
            a, b = g + i, g + i + 1
            c += [I(f"v_mul_f32 v{vG0}, v{a}, v{a}"), I(f"v_mul_f32 v{vG1}, v{b}, v{b}"),
                  I(f"v_fmaak_f32 v{vG0}, v{vG0}, v{vGK}, {fbits(GK0)}"),
                  I(f"v_fmaak_f32 v{vG1}, v{vG1}, v{vGK}, {fbits(GK0)}"),
                  I(f"v_mul_f32 v{vG0}, v{vG0}, v{a}"), I(f"v_mul_f32 v{vG1}, v{vG1}, v{b}"),
                  I(f"v_exp_f32 v{vG0}, v{vG0}"), I(f"v_exp_f32 v{vG1}, v{vG1}"),
                  I(f"v_mul_f32 v{a}, v{a}, v{u+i}"), I(f"v_mul_f32 v{b}, v{b}, v{u+i+1}"),
                  I(f"v_add_f32 v{vG0}, 1.0, v{vG0}"), I(f"v_add_f32 v{vG1}, 1.0, v{vG1}"),
                  I(f"v_rcp_f32 v{vG0}, v{vG0}"), I(f"v_rcp_f32 v{vG1}, v{vG1}"),
                  I(f"v_mul_f32 v{a}, v{a}, v{vG0}"), I(f"v_mul_f32 v{b}, v{b}, v{vG1}")]
        return c

    def epi_GA(self):
        c, st = [], []
        for tb in range(4):
            T = lambda wb: areg("GA", wb, tb)
            c += self.gelu4(T(0), T(2)) + self.gelu4(T(1), T(3))
            p = T(0)
            c += self.pk_frag(p, T(0), T(1))
            s = I(f"buffer_store_dwordx4 {vr(p)}, v{vL16[0]}, {srd(S_WS)}, s{sZH[tb]} offen {self.o.stflag}")
            c.append(s)
            st.append(s)
        return c, st

    def epi_GB(self):
        c, st = [], []
        for tb in range(4):
            g, u = areg("GB", 0, tb), areg("GB", 1, tb)
            c += self.gelu4(g, u)
            p = g
            c += [I(f"v_cvt_pk_bf16_f32 v{p}, v{g}, v{g+1}"), I(f"v_cvt_pk_bf16_f32 v{p+1}, v{g+2}, v{g+3}")]
            s = I(f"buffer_store_dwordx2 {vr(p,2)}, v{vGBS}, {srd(S_WS)}, s{sT3} offen {self.o.stflag}")
            c.append(Group([I(f"s_add_u32 s{sT3}, s{sZH[tb]}, s{sGBD}"), s]))
            st.append(s)
        return c, st

    def epi_Q(self, half, q):
        c = []
        for d2 in range(2):
            t0, t1 = areg(f"Q{half}", 2 * d2, q), areg(f"Q{half}", 2 * d2 + 1, q)
            for r in list(range(t0, t0 + 4)) + list(range(t1, t1 + 4)):
                c.append(I(f"v_mul_f32 v{r}, s{sQS}, v{r}"))
            p = t0
            c += self.pk_frag(p, t0, t1)
            for r in range(4):
                c.append(I(f"v_accvgpr_write_b32 a{gQ(q, 2*half+d2)+r}, v{p+r}"))
        return c

    def flag_store(self, s):
        return I(f"buffer_store_dword v{vC1}, v{vONE}, {srd(S_WS)}, s{s} offen sc1")

    def att_setup(self):
        c = []
        A = c.append
        A(I(f"s_lshl_b32 s{sT1}, s{sH}, 19"))
        A(I(f"s_and_b32 s{sT2}, s{sWAVE}, 1"))
        A(I(f"s_lshl_b32 s{sT2}, s{sT2}, 12"))
        A(I(f"s_add_u32 s{sT1}, s{sT1}, s{sT2}"))
        A(I(f"s_lshl_b32 s{sT3}, s{sW}, 2"))
        A(I(f"s_sub_u32 s{sT3}, 64, s{sT3}"))
        A(I(f"s_lshl_b32 s{sT3}, s{sT3}, 13"))
        A(I(f"s_sub_u32 s{sT3}, s{sT3}, s{sT2}"))
        A(Group([I(f"s_cmp_lt_u32 s{sWAVE}, 2"), I(f"s_cselect_b32 s{sT2}, {VF_OFF - KF_OFF - 16384}, 0")]))
        A(I(f"s_add_u32 s{sT1}, s{sT1}, s{sT2}"))
        A(I(f"s_add_u32 s{sT1}, s{sT1}, {KF_OFF + 16384}"))
        A(Group([I(f"s_cmp_lt_u32 s{sWAVE}, 2"), I(f"s_cselect_b32 s{sT2}, 0, 16384")]))
        A(I(f"s_sub_u32 s{S_KV+2}, s{sT3}, s{sT2}"))
        A(Group([I(f"s_add_u32 s{S_KV}, s{S_WS}, s{sT1}"), I(f"s_addc_u32 s{S_KV+1}, s{S_WS+1}, 0")]))
        A(I(f"s_lshr_b32 s{sT1}, s{sWAVE}, 1"))
        A(I(f"s_sub_u32 s{sT2}, 3, s{sT1}"))
        A(I(f"s_lshl_b32 s{sT3}, s{sW}, 2"))
        A(I(f"s_add_u32 s{sNM1[3]}, s{sT3}, s{sT1}"))
        A(I(f"s_add_u32 s{sNM1[2]}, s{sT3}, s{sT2}"))
        A(I(f"s_sub_u32 s{sT3}, 60, s{sT3}"))
        A(I(f"s_add_u32 s{sNM1[1]}, s{sT3}, s{sT1}"))
        A(I(f"s_add_u32 s{sNM1[0]}, s{sT3}, s{sT2}"))
        for q in range(4):
            A(I(f"s_sub_u32 s{sNM2[q]}, s{sNM1[q]}, 1"))
        return c

    def att_events(self):
        c = []
        A = c.append
        m = sum(1 << j for j in range(0, 64, self.o.G))
        A(I(f"s_mov_b32 s{sEV}, {m & 0xffffffff:#x}"))
        A(I(f"s_mov_b32 s{sEV+1}, {m >> 32:#x}"))
        m = (1 << (2 * self.o.G)) | (1 << (3 * self.o.G))
        A(I(f"s_lshl_b32 s{sJL}, s{sW}, 2"))
        A(I(f"s_sub_u32 s{sJL}, 60, s{sJL}"))
        A(I(f"s_mov_b32 s{sSP}, {m:#x}"))
        A(I(f"s_mov_b32 s{sSP+1}, 0"))
        A(I(f"s_mov_b32 s{sMASK}, 0x40004000"))
        for q in range(4):
            A(I(f"s_bitset1_b64 s[{sSP}:{sSP+1}], s{sNM1[q]}"))
            A(I(f"s_bitset1_b64 s[{sSP}:{sSP+1}], s{sNM2[q]}"))
        A(I(f"s_bitset1_b64 s[{sSP}:{sSP+1}], s{sJL}"))
        A(I(f"s_or_b64 s[{sEV}:{sEV+1}], s[{sEV}:{sEV+1}], s[{sSP}:{sSP+1}]"))
        return c

    def att_dma(self, tile=None):
        return [I(f"buffer_load_dwordx4 v{vL16[0]}, {srd(S_KV)}, s{sSOFF} offen offset:{p*1024} {self.o.ldflag} lds")
                for p in range(4)]

    def pf_load(self, voff, sr, soff="0", dst=None):
        x = I(f"buffer_load_dword {dst or 'v%d' % vG0}, v{voff}, {srd(sr)}, {soff} offen")
        x.defs = []
        return x

    def prefetch0(self):
        L = vLANE
        t = 16
        c = [I(f"v_lshrrev_b32 v{t}, 1, v{L}"), I(f"v_and_b32 v{t+1}, 1, v{L}"),
             I(f"s_lshl_b32 s{sT1}, s{sW}, 2"), I(f"s_add_u32 s{sT1}, s{sT1}, s{sWAVE}"),
             I(f"s_lshl_b32 s{sT2}, s{sT1}, 17"), I(f"s_lshl_b32 s{sT3}, s{sH}, 8"),
             I(f"s_add_u32 s{sT2}, s{sT2}, s{sT3}"),
             I(f"v_lshlrev_b32 v{t}, 13, v{t}"), I(f"v_lshl_add_u32 v{t}, v{t+1}, 7, v{t}"),
             I(f"v_add_u32 v{t}, s{sT2}, v{t}"),
             I(f"v_mov_b32 v{t+2}, {OOB}"), I(f"v_cmp_gt_u32 vcc, 32, v{L}"),
             I(f"s_lshl_b32 s{sT1}, s{sT1}, 16"), I(f"s_and_b32 s{sT3}, s{sH}, 3"),
             I(f"v_cndmask_b32 v{vPFW}, v{t+2}, v{t}, vcc"),
             I(f"s_lshl_b32 s{sT3}, s{sT3}, 14"), I(f"s_add_u32 s{sT1}, s{sT1}, s{sT3}"),
             I(f"s_add_u32 s{sT1}, s{sT1}, {3*128}"),
             I(f"v_and_b32 v{t}, 15, v{L}"), I(f"v_lshrrev_b32 v{t+1}, 4, v{L}"),
             I(f"v_lshlrev_b32 v{t}, 10, v{t}"), I(f"v_lshl_add_u32 v{t}, v{t+1}, 7, v{t}"),
             I(f"v_add_u32 v{vPFW+1}, s{sT1}, v{t}")]
        return c, self.pf_load(vPFW + 1, S_CKV), self.pf_load(vPFW, S_WUK)

    def prefetch_code(self, lo=None, hi="L_exit", dst=None, va=20, st=sT1):
        pc = self.lab("pc")
        lo = lo or KNAME
        if lo == KNAME:
            adj = [I(f"s_sub_u32 s{sM0}, s{sM0}, {pc}-{lo}"), I(f"s_subb_u32 s{sM0+1}, s{sM0+1}, 0")]
        else:
            adj = [I(f"s_add_u32 s{sM0}, s{sM0}, {lo}-{pc}"), I(f"s_addc_u32 s{sM0+1}, s{sM0+1}, 0")]
        c = [Group([I(f"s_getpc_b64 s[{sM0}:{sM0+1}]"), I(f"{pc}:")] + adj),
             I(f"s_lshr_b32 s{st}, s{sB}, 3"), I(f"s_lshl_b32 s{st}, s{st}, 2"),
             I(f"s_add_u32 s{st}, s{st}, s{sWAVE}"), I(f"s_lshl_b32 s{st}, s{st}, 10"),
             I(f"v_lshlrev_b32 v{va}, 4, v{vLANE}"), I(f"v_add_u32 v{va}, s{st}, v{va}"),
             I(f"v_min_u32 v{va}, {hi}-{lo}-16, v{va}"), I(f"v_mov_b32 v{va+1}, s{sM0+1}"),
             Group([I(f"v_add_co_u32 v{va}, vcc, s{sM0}, v{va}"), I(f"v_addc_co_u32 v{va+1}, vcc, 0, v{va+1}, vcc")])]
        x = I(f"global_load_dwordx4 {dst or vr(172)}, v[{va}:{va+1}], off")
        if dst and dst.startswith("a"):
            x.defs = []
        return c + [x]

    def ex_prefill(self):
        D = WFB[3]
        c = [I(f"v_mov_b32 v{D+r}, -1") for r in range(4)]
        c += [I(f"s_bfe_u32 s{sT1}, s{sB}, 0x10002"), I(f"s_lshl_b32 s{sT1}, s{sT1}, 5"),
              I(f"s_lshr_b32 s{sT2}, s{sB}, 3"), I(f"s_add_u32 s{sT1}, s{sT1}, s{sT2}"),
              I(f"s_mul_i32 s{sT1}, s{sT1}, {4*3*8192}"), I(f"s_lshl_b32 s{sT2}, s{sWAVE}, 11"),
              I(f"s_add_u32 s{sT1}, s{sT1}, s{sT2}"), I(f"s_add_u32 s{sT1}, s{sT1}, {EX_OFF}")]
        st = []
        for p in range(1, 4):
            c += [I(f"s_add_u32 s{sT2}, s{sB}, {p}"), I(f"s_and_b32 s{sT2}, s{sT2}, 3"),
                  I(f"s_mul_i32 s{sT2}, s{sT2}, {3*8192}"), I(f"s_add_u32 s{sT2}, s{sT2}, s{sT1}"),
                  I(f"s_add_u32 s{sT3}, s{sT2}, {(p-1)*8192}")]
            x = [I(f"buffer_store_dwordx4 {vr(D)}, v{vL16[0]}, {srd(S_WS)}, s{sT3} offen offset:{tb*1024} sc1")
                 for tb in range(2)]
            c += x
            st += x
        return c, st

    def prefetch_xn(self):
        L = vLANE
        t = WFB[3]
        c = [I(f"s_and_b32 s{sT1}, s{sH}, 3"), I(f"s_lshl_b32 s{sT1}, s{sT1}, 12"),
             I(f"v_and_b32 v{t}, 31, v{L}"), I(f"v_lshlrev_b32 v{t}, 7, v{t}"), I(f"v_add_u32 v{t}, s{sT1}, v{t}"),
             I(f"v_cmp_gt_u32 vcc, 32, v{L}")]
        for k in range(2):
            c += [I(f"v_mov_b32 v{t+1}, s{sXN[2*k]}"), I(f"v_mov_b32 v{t+2}, s{sXN[2*k+1]}"),
                  I(f"v_cndmask_b32 v{t+1}, v{t+2}, v{t+1}, vcc"), I(f"v_add_u32 v{t+4+k}, v{t}, v{t+1}"),
                  self.pf_load(t + 4 + k, S_WS)]
        return c

    def prefetch1(self):
        L = vLANE
        t = vLN + 34
        a = [self.pf_load(vPFW, S_WUV)]
        b = [self.pf_load(vPFW, S_WQ)]
        t = WFB[3]
        c = [I(f"s_lshr_b32 s{sNM1[0]}, s{sB}, 3"), I(f"s_lshl_b32 s{sNM1[0]}, s{sNM1[0]}, 2"),
             I(f"s_add_u32 s{sNM1[0]}, s{sNM1[0]}, s{sWAVE}"), I(f"s_lshl_b32 s{sNM1[0]}, s{sNM1[0]}, 2"),
             I(f"v_lshrrev_b32 v{t}, 3, v{L}"), I(f"v_add_u32 v{t}, s{sNM1[0]}, v{t}"),
             I(f"v_mul_u32_u24 v{t}, 2752, v{t}"),
             I(f"s_and_b32 s{sNM1[1]}, s{sB}, 7"), I(f"s_lshl_b32 s{sNM1[2]}, s{sNM1[1]}, 8"),
             I(f"s_lshl_b32 s{sNM1[1]}, s{sNM1[1]}, 7"), I(f"s_add_u32 s{sNM1[1]}, s{sNM1[1]}, {2048 - 3*124}"),
             I(f"v_and_b32 v{t+1}, 7, v{L}"), I(f"v_mul_u32_u24 v{t+2}, 124, v{t+1}"),
             I(f"v_mov_b32 v{t+3}, s{sNM1[2]}"), I(f"v_mov_b32 v{t+4}, s{sNM1[1]}"),
             I(f"v_cmp_gt_u32 vcc, 3, v{t+1}"),
             I(f"v_cndmask_b32 v{t+3}, v{t+4}, v{t+3}, vcc"),
             I(f"v_add3_u32 v{t}, v{t}, v{t+2}, v{t+3}"),
             I(f"v_lshrrev_b32 v{t+2}, 5, v{L}"), I(f"v_lshlrev_b32 v{t+2}, 3, v{t+2}"),
             I(f"v_add_u32 v{t+1}, v{t+1}, v{t+2}"), I(f"v_mov_b32 v{t+2}, {OOB}"),
             I(f"v_cmp_gt_u32 vcc, 5, v{t+1}"),
             I(f"v_cndmask_b32 v{t}, v{t+2}, v{t}, vcc")]
        c += [self.pf_load(t, S_WG), self.pf_load(t, S_WU)]
        return a, b, c

    def prefetch2(self, early=False):
        L = vLANE
        if self.o.p2hi and not early:
            t = vT[0]
            return [I(f"s_sub_u32 s{sT3}, s{sB}, 128"), I(f"s_and_b32 s{sT1}, s{sT3}, 0xfc"),
                    I(f"s_add_u32 s{sT1}, s{sT1}, s{sWAVE}"), I(f"s_lshl_b32 s{sT1}, s{sT1}, 13"),
                    I(f"s_lshl_b32 s{sT2}, s{sT3}, 2"), I(f"s_add_u32 s{sT2}, s{sT2}, s{sWAVE}"),
                    I(f"s_mul_i32 s{sT2}, s{sT2}, {22*128}"),
                    I(f"s_cmp_ge_u32 s{sB}, 128"), I(f"s_cselect_b32 s{sT1}, s{sT1}, {OOB}"),
                    I(f"s_cselect_b32 s{sT2}, s{sT2}, {OOB}"),
                    I(f"v_lshlrev_b32 v{t}, 7, v{L}"), I(f"v_min_u32 v{t+1}, 21, v{L}"),
                    I(f"v_lshlrev_b32 v{t+1}, 7, v{t+1}"),
                    self.pf_load(t, S_WO, f"s{sT1}", dst="a200"), self.pf_load(t + 1, S_WD, f"s{sT2}", dst="a200")]
        t = WFB[3] + 4 if early else vT[0]
        dst = f"v{vG0+3}" if early else "a200"
        c = [I(f"s_lshl_b32 s{sT1}, s{sB}, 2") if early else I(f"s_and_b32 s{sT1}, s{sB}, 0xfc"),
             I(f"s_add_u32 s{sT1}, s{sT1}, s{sWAVE}"),
             I(f"s_lshl_b32 s{sT2}, s{sT1}, 12"),
             I(f"s_lshl_b32 s{sT1}, s{sB}, 2"), I(f"s_add_u32 s{sT1}, s{sT1}, s{sWAVE}"),
             I(f"v_and_b32 v{t}, 31, v{L}"),
             I(f"v_lshlrev_b32 v{t}, 7, v{t}"), I(f"v_add_u32 v{t}, s{sT2}, v{t}"),
             I(f"s_mul_i32 s{sT2}, s{sT1}, {11*128}"), I(f"v_min_u32 v{t+1}, 10, v{L}"),
             I(f"v_lshlrev_b32 v{t+1}, 7, v{t+1}"), I(f"v_add_u32 v{t+1}, s{sT2}, v{t+1}"),
             self.pf_load(t, S_WO, dst=dst), self.pf_load(t + 1, S_WD, dst=dst)]
        return c

    def phase12(self):
        o = self.o
        T = self.tiles()
        NT = len(T)
        pre = self.setup()
        later = pre[self.n_first:]
        pre = pre[:self.n_first]
        A = pre.append
        A(I("s_waitcnt lgkmcnt(0)"))
        if o.wsoff:
            pre += [I(f"s_add_u32 s{S_WS}, s{S_WS}, {o.wsoff << 20}"), I(f"s_addc_u32 s{S_WS+1}, s{S_WS+1}, 0")]
        pre += self.stamp()
        zpre = [I(f"s_mul_i32 s{sT1}, s{sWAVE}, 3072"), I(f"s_add_u32 s{sT1}, s{sT1}, {FL_OFF}"),
                I(f"s_cmp_eq_u32 s{sB}, 0"), I(f"s_cselect_b32 s{sT1}, s{sT1}, {OOB}"),
                I(f"v_lshlrev_b32 v20, 4, v{vLANE}")] + [I(f"v_mov_b32 v{r}, 0") for r in range(24, 28)]
        zero = [I(f"buffer_store_dwordx4 v[24:27], v20, {srd(S_WS)}, s{sT1} offen offset:{k*1024} sc1") for k in range(3)]
        s0, tok0 = self.tok_dma(0)
        pre += s0
        for n in range(4):
            T[n]["slot"] = n * 8192
        pre += self.tile_dma(T[0]) + self.tile_dma(T[1])
        lnl = [I(f"buffer_load_dwordx4 {vr(vLN)}, v{vLN+32}, {srd(S_X)}, 0 offen"),
               I(f"buffer_load_dwordx4 {vr(vLN+4)}, v{vLN+32}, {srd(S_X)}, 0 offen offset:512")]
        pre += later[:7]
        if o.lnpos == 1:
            pre += lnl
        pre += later[7:]
        c, pfa, pfb = self.prefetch0()
        if o.prefetch & (1 | 4 | 16 | 32):
            pre += c
        if o.prefetch & 16:
            pre += [pfa, pfb]
        if o.prefetch & 256:
            pre += [pfb]
        if o.prefetch & 128:
            pre += [I(f"s_lshl_b32 s{sT1}, s{sB}, 2"), I(f"s_add_u32 s{sT1}, s{sT1}, s{sWAVE}"),
                    I(f"s_lshl_b32 s{sT1}, s{sT1}, 11"), I(f"v_lshlrev_b32 v17, 7, v{vLANE}"),
                    I(f"v_mov_b32 v18, {OOB}"), I(f"v_cmp_gt_u32 vcc, 16, v{vLANE}"),
                    I(f"v_add_u32 v17, s{sT1}, v17"), I("s_nop 0"), I("v_cndmask_b32 v17, v18, v17, vcc"),
                    self.pf_load(17, S_CKV)]
        aux = (self.prefetch_code(va=22) if o.pfcode & 1 else []) + zpre + zero
        if o.pfpos == 0:
            pre += aux
        pre += self.setup2()
        s1, tok1 = self.tok_dma(1)
        pre += s1
        pre += self.tile_dma(T[2]) + self.tile_dma(T[3])
        if not o.lnlate and o.lnpos == 0:
            pre += lnl
        if o.pre2:
            s2, tok2 = self.tok_dma(2)
            pre += s2
        if o.pfpos == 1:
            pre += aux
        tokd = {0: tok0, 1: tok1}
        pre.append(Need(tok0))
        rd0 = self.tok_reads(0)
        pre += rd0
        pre.append(Need([T[n]["dma"] for n in range(2)] + (zero if o.pfpos == 0 else []), lg0=True))
        pre.append(I("s_barrier"))
        ready = [I(f"s_cmp_eq_u32 s{sB}, 0"), I(f"s_cselect_b32 s{sPOLL}, 0, {OOB}"),
                 I(f"buffer_store_dword v{vC1}, v{vONE}, {srd(S_DBG)}, s{sPOLL} offen sc1")]
        if o.pfpos == 0:
            pre += ready
        pre += self.stamp() + self.holdmark("bar0")
        NB = o.wdist + 1
        for U in range(o.wdist):
            pre += self.unit_reads(T[0], U, U)

        mf = []
        for n, t in enumerate(T):
            for u in range(4):
                mf += self.unit_mfma(t, u, (4 * n + u) % NB)
        tasks = []
        bstart = list(range(2, 16, 2)) + list(range(16, NT, o.G12))
        bg = lambda n0: 32 * n0 - 8 * o.wdist + 3
        extra_need = {n0: [] for n0 in bstart}
        release = lambda n: bg(min([b for b in bstart if b > n] + [NT + 1]))
        own_bar = lambda n: bg(max(b for b in bstart if b <= n))
        KVF = o.kvq + 12
        free_at = {sl: -1 for sl in range(7)}
        free_at.update({sl: bg(14) + 1 for sl in range(7, 20)})
        for n in range(4):
            free_at[n] = release(n)
        want = {4: 0, 5: 50, 6: 84, 7: 120, 8: 130, 9: 180, 10: 200, 11: 236, 12: 260, 13: 300, 14: 320, 15: 340}
        if o.wmode == 1:
            want.update({5: 40, 6: 56, 7: 82, 8: 120, 9: 132, 10: 180, 11: 192, 12: 206, 13: 258, 14: 272, 15: 322})
        elif o.wmode == 2:
            want.update({5: 50, 6: 80, 7: 100, 8: 122, 9: 146, 10: 182, 11: 206, 12: 244, 13: 270, 14: 310, 15: 330})
        for n in range(16, NT):
            want[n] = max(360 + 14 * (n - 16), 32 * (n - o.lead12))
        if o.gearly:
            early = [34, 32, 37, 33, 40, 35, 43, 36][:o.gearly]
            for n in range(16, 32):
                want[n] = max(360 + 14 * (n - 16), 32 * (n - 7))
            for i, n in enumerate(early):
                want[n] = o.ge0 + o.gestep * i
            for n in range(32, NT):
                if n not in early:
                    want[n] = 32 * (n - (7 if n < 44 else o.lead12))
        events = [(want[n], "W", n) for n in range(4, NT)]
        tokwant = {(2, 0): 8, (2, 1): 24, (3, 0): 40, (3, 1): 64, (4, 0): 92, (4, 1): 106, (5, 0): 154, (5, 1): 168,
                   (6, 0): 218, (6, 1): 242, (7, 0): 282, (7, 1): 308}
        if o.tokmode == 1:
            tokwant = {}
            for c in range(2, 8):
                tokwant[(c, 0)] = 64 * (c - 2) + 10
                tokwant[(c, 1)] = 64 * (c - 2) + 27
            for n in range(4, 16):
                want[n] = 64 * ((n - 4) // 2) + (0 if n % 2 == 0 else 46)
            events = [(want[n], "W", n) for n in range(4, NT)]
        if o.pre2:
            del tokwant[(2, 0)], tokwant[(2, 1)]
            tokwant.update({(3, 0): 8, (3, 1): 24})
        events += [(v, "T", k) for k, v in tokwant.items()]
        events.append((KVF, "KV", None))
        events.sort(key=lambda e: e[0])
        tokrd = {c: self.tok_reads(c) for c in range(1, 8)}
        tokrd[0] = rd0
        tokw = {1: (18 + o.toksh // 2, 36 + o.toksh // 2) if o.tokmode == 0 else (30, 50)}
        for c in range(2, 8):
            sh = o.toksh if c < 7 else min(o.toksh, 18)
            tokw[c] = ((64 * (c - 1) + 2 + sh, 64 * (c - 1) + 22 + sh) if o.tokmode == 0
                       else (64 * (c - 1) + 30, 64 * (c - 1) + 50))
            tasks.append(Task(f"tokrd{c}", [Need([lambda c=c: tokd[c]])] + tokrd[c], *tokw[c], prio=1))
        tasks.append(Task("tokrd1", [Need(tok1)] + tokrd[1], *tokw[1], prio=1))
        tseq = {}
        for c in range(2, 8):
            seq, ops = self.tok_dma(c)
            tokd[c] = ops if not (o.pre2 and c == 2) else tok2
            tseq[(c, 0)] = ([Need(tokrd[c - 3])] if c >= 4 else []) + seq[:6]
            tseq[(c, 1)] = [I(seq[0].text)] + seq[6:]
        k01 = [I(f"buffer_load_dwordx4 v{vL16[0]}, {srd(S_WS)}, s{sT0} offen offset:{p*1024} {self.o.ldflag} lds")
               for p in range(4)]
        kvseq = [I(f"s_lshl_b32 s{sT0}, s{sH}, 19"), I(f"s_lshl_b32 s{sWR}, s{sWAVE}, 12"),
                 I(f"s_add_u32 s{sT0}, s{sT0}, s{sWR}"), I(f"s_add_u32 s{sT0}, s{sT0}, {KF_OFF}"),
                 I(f"s_add_u32 m0, s{sWR}, {6*16384}")] + k01
        self.att_first = list(k01)
        for j in range(3):
            d = self.att_dma()
            kvseq += [I(f"s_add_u32 m0, s{sWR}, {(7+j)*16384}"), I(f"s_mov_b32 s{sSOFF}, {j*8192}")] + d
            self.att_first += d
        m0ent = []
        cur = 0
        for w, kind, k in events:
            lo = max(w, cur)
            if kind == "W":
                ok = [sl for sl in free_at if sl < 12 or release(k) <= KVF]
                sl = min(ok, key=lambda x: (max(free_at[x], lo), x))
                lo = max(lo, free_at[sl] + 1)
                free_at[sl] = release(k)
                T[k]["slot"] = sl * 8192
                seq = self.tile_dma(T[k])
                ln = 10 if lo < 512 else (14 if o.gearly and lo < 760 else 24)
                assert lo + ln < own_bar(k) - 24, (k, lo, own_bar(k))
                T[k]["issue"] = lo
            elif kind == "T":
                seq = tseq[k]
                if k[0] >= 4:
                    lo = max(lo, tokw[k[0] - 3][1] + 1)
                ln = 15
                assert lo + ln < tokw[k[0]][0] - 24, (k, lo)
            else:
                seq = kvseq
                ln = 110
            prev_scalar = False
            for x in seq:
                mind = 1 if (x.kind == "dma" and prev_scalar) else 0
                prev_scalar = x.kind == "salu"
                m0ent.append((x, lo, lo + ln, mind))
            cur = lo + (ln if ln < 100 else 0) - 2
        tasks.append(Task("m0", m0ent, prio=1))
        print("W issue gap / slot:", [(T[n]["issue"], T[n]["slot"] >> 13) for n in range(4, NT)], file=sys.stderr)
        win = {"R128": 0, "R64": 0, "R32": 0}
        aregs = {"R128": vRD, "R64": vRD64, "R32": [vRD32]}
        for U in range(o.wdist, 4 * NT):
            n, u = divmod(U, 4)
            lo = 8 * (U - o.wdist)
            rd = self.unit_reads(T[n], u, U % NB)
            ty, wn = T[n]["typ"], T[n]["slot"] >> 16
            if wn != win[ty]:
                sw = "v_add_u32" if wn > win[ty] else "v_subrev_u32"
                fix = [I(f"{sw} v{r}, {abs(wn - win[ty]) << 16:#x}, v{r}") for r in aregs[ty]]
                win[ty] = wn
                if T[n - 1]["typ"] == ty:
                    rd = [Group(fix + [rd[0]])] + rd[1:]
                else:
                    tasks.append(Task(f"rdfix{U}", fix, lo - 24, lo - 1, prio=1))
            if u == 0 and n in bstart:
                tasks.append(Task(f"rd{U}", rd, lo + 4, lo + 7, prio=0, tight=True))
            elif u == 3 and n + 1 in bstart:
                tasks.append(Task(f"rd{U}", rd, lo, lo + 3, prio=0, tight=True))
            else:
                tasks.append(Task(f"rd{U}", rd, lo, lo + o.wwin, prio=0))
        if o.pfpos == 1:
            extra_need[2] += zero
            tasks.append(Task("ready", [Group(ready[:2]), ready[2]], bg(2) + 2, bg(2) + 8, prio=3))
        k = 2 * o.lnlate
        if o.lnlate and o.lnpos == 0:
            tasks.append(Task("lnld", lnl, 2, 12, prio=2))
        tasks.append(Task("ln", self.ln_compute(), o.lnstart, bg(4 + k) - 2, prio=3))
        c, lnst = self.ln_store()
        tasks.append(Task("lnst", c, bg(4 + k) + 2, 145 + 32 * k, prio=3))
        extra_need[8 + k] += lnst
        tasks.append(Task("flagxn", [self.flag_store(sFXN)], bg(8 + k) + 4, bg(8 + k) + 10, prio=3))
        if o.prefetch & 1:
            tasks.append(Task("pf0a", [pfa], 1, 4, prio=0))
        if o.prefetch & 4:
            tasks.append(Task("pf0b", [pfb], 30, 36, prio=0))
        if o.prefetch & 8:
            tasks.append(Task("pfxn", self.prefetch_xn(), o.xnchk + 14, o.xnchk + 14 + o.pfxw, prio=3))
        if o.prefetch & 2:
            a, b, c = self.prefetch1()
            if o.prefetch & 32:
                if o.pa:
                    tasks.append(Task("pf1a", a, o.pa, o.pa + 8, prio=3))
                if o.pb:
                    tasks.append(Task("pf1b", b, o.pb, o.pb + 8, prio=3))
                if o.pc:
                    tasks.append(Task("pf1c", c, o.pc, o.pc + 30, prio=3))
        tasks.append(Task("setup3", self.setup3(), 153 + 32 * k, 218 + 32 * k, prio=4))
        tasks.append(Task("setup4", self.setup4(), 472, 510, prio=4))
        tasks.append(Task("gate", [self.poll_load(vPOLL, S_DBG, vC0, "0")], 146 + 32 * k, 152 + 32 * k, prio=3))
        tasks.append(Task("gatechk", self.poll_check(vPOLL, S_DBG, vC0, "0", "1", split=True), 220 + 32 * k, 232 + 32 * k, prio=3))
        tasks.append(Task("xnpoll", [I(f"s_lshl_b32 s{sPOLL}, s{sW}, 7"), I(f"s_add_u32 s{sPOLL}, s{sPOLL}, {FL_XN}"),
                                     self.poll_load(vPOLL, S_WS, vPO32, f"s{sPOLL}")], o.xnchk - 90, o.xnchk - 80, prio=3))
        tasks.append(Task("xnchk", self.poll_check(vPOLL, S_WS, vPO32, f"s{sPOLL}", "1", split=True), o.xnchk, o.xnchk + 12, prio=3))
        pk, sts = zip(self.epi_K(0), self.epi_K(1), self.epi_V(0), self.epi_V(1))
        tasks.append(Task("epiK0", pk[0], 490, 540, prio=5))
        tasks.append(Task("epiK1", pk[1], 521, 558, prio=4))
        tasks.append(Task("epiV0", pk[2], 1001, 1038, prio=4))
        tasks.append(Task("epiV1", pk[3], 1039, 1086, prio=5))
        allst = [x for l in sts for x in l]
        ent = []
        for k, x in enumerate(allst):
            if k < 16:
                lo = int(545 + k * (1020 - 545) / 16)
            else:
                lo = max(int(1045 + (k - 16) * (o.st_hi - 1045) / 16), 1088 if k >= 24 else 0)
            ent.append((x, lo, lo + 12))
        tasks.append(Task("epistores", ent, prio=2))
        extra_need[48] += allst
        tasks.append(Task("flagkv", [self.flag_store(sFKV)], bg(48) + 4, bg(48) + 10, prio=3))
        for c in range(8):
            ld = [I(f"buffer_load_dwordx4 {ar(TF(tb, 2*c+k))}, v{vX16[(2*c+k)>>2]}, {srd(S_CKV if o.xnsrc else S_WS)}, s{sXN[tb]} offen "
                    f"offset:{((2*c+k)&3)*1024} {self.o.ldflag}") for k in range(2) for tb in range(4)]
            lo = max(580 + 64 * c, o.xn0 + o.xnslope * c)
            tasks.append(Task(f"xn{c}", batch(ld), lo, lo + o.xnslope - 2, prio=2))
        c, stA = self.epi_GA()
        tasks.append(Task("epiGA", c, 1416, 1660, prio=5))
        c, stB = self.epi_GB()
        tasks.append(Task("epiGB", c, 1661, 1790, prio=5))
        self.h_stores = stA + stB
        if o.sentinel:
            c, stP = self.ex_prefill()
            if o.p2early and o.prefetch & 2:
                c = self.prefetch2(True) + c
            tasks.append(Task("exfill", c, 1425, 1565, prio=3))
            self.h_stores += stP
        c = [I(f"s_mov_b32 s{sQS}, {fbits(QSCALE)}")]
        for q in range(4):
            c += self.epi_Q(0, q)
        tasks.append(Task("epiQ0", c, 1700, 1830, prio=5))
        tasks.append(Task("attsetup", self.att_setup(), 1570, 1655, prio=4))
        tasks.append(Task("attev", self.att_events(), 1840, 1900, prio=4))
        if o.pfcode & 2:
            tasks.append(Task("pfcode2", self.prefetch_code("L_att", "L_p4", vr(WFB[3] + 4), WFB[3] + 4, sJL + 1),
                              1800, 1830, prio=3))
        tasks.append(Task("p4setup", self.p4_setup() + self.p4_setup_vec(), 1795, 1915, prio=4))
        kvp = [I(f"s_lshl_b32 s{sPOLL}, s{sH}, 7"), I(f"s_add_u32 s{sPOLL}, s{sPOLL}, {FL_KV}"),
               self.poll_load(vPOLL, S_WS, vPO8, f"s{sPOLL}")]
        tasks.append(Task("kvpoll", kvp, o.kvq - o.kvd, o.kvq - o.kvd + 10, prio=3))
        tasks.append(Task("kvchk", self.poll_check(vPOLL, S_WS, vPO8, f"s{sPOLL}", "1", split=True), o.kvq, o.kvq + 10, prio=3))
        zr = lambda a, b: [I(f"v_mov_b32 v{r}, 0") for r in range(a, b)]
        tasks.append(Task("zeroO5", zr(160, 192), 1662, 1760, prio=6))
        tasks.append(Task("zeroO3", zr(96, 128), 1792, 1870, prio=6))
        tasks.append(Task("zeroO24", zr(64, 96) + zr(128, 160), 1832, 1920, prio=6))
        g = [I(f"v_lshrrev_b32 v{vT[0]}, 4, v{vLANE}"), I(f"v_and_b32 v{vT[1]}, 15, v{vLANE}"),
             I(f"v_lshlrev_b32 v{vT[0]}, 2, v{vT[0]}"), I(f"v_sub_u32 v{vT[1]}, v{vT[1]}, v{vT[0]}"),
             I(f"v_and_b32 v{vT[0]}, 64, v0") if False else I(f"v_mov_b32 v{vT[0]}, s{sWAVE}"),
             I(f"v_and_b32 v{vT[0]}, 1, v{vT[0]}"), I(f"v_lshlrev_b32 v{vT[0]}, 4, v{vT[0]}"),
             I(f"v_add_u32 v{vDM[1]}, v{vT[0]}, v{vT[1]}"), I(f"v_sub_u32 v{vT[0]}, 16, v{vT[0]}"),
             I(f"v_add_u32 v{vDM[0]}, v{vT[0]}, v{vT[1]}"), I(f"v_mov_b32 v{vT[2]}, 0x3f803f80")]
        tasks.append(Task("attvec", g, 1610, 1655, prio=6))
        g = [I(f"v_accvgpr_write_b32 a{gONE+r}, v{vT[2]}") for r in range(4)]
        g += [I(f"v_accvgpr_write_b32 a{r}, 0") for r in range(gL(0), gL(0) + 16)]
        tasks.append(Task("attacc", g, 1828, 1900, prio=6))
        for k, n0 in enumerate(bstart):
            n1 = bstart[k + 1] if k + 1 < len(bstart) else NT
            ops = [T[n]["dma"] for n in range(n0, n1)] + extra_need[n0]
            bar = [Need(ops, lg0=True), I("s_barrier")]
            tasks.append(Task(f"bar{n0}", [Group(bar if o.timeit else self.timed(bar))], bg(n0), bg(n0),
                              prio=-1))
        for nm, gp in (("K", 514), ("V", 1026), ("Q", 1916)):
            if self.holdmark(nm):
                tasks.append(Task("holdmark", self.holdmark(nm), gp, gp, prio=7))
        if o.stamps:
            for gp in [int(x) for x in o.stampat.split(",")]:
                tasks.append(Task("stamp", self.stamp(), gp + 2, gp + 2, prio=7))
        if o.drop:
            dr = o.drop.split(",")
            if "stores" in dr:
                dr = [d for d in dr if d != "stores"] + ["epistores"]
            for t in tasks:
                if "epistores" in dr and t.name.startswith("epiG"):
                    t.instrs = [x for x in t.instrs if not any(y.kind == "vstore" for y in flatten([x]))]
            tasks = [t for t in tasks if not any(t.name.startswith(d) for d in dr)]
        body = schedule(mf, tasks, o.budget, self.reports, reserve=range(0, len(mf), 8), seed=o.seed, vmw=o.vmw, ldw=o.ldw12)
        if o.timeit:
            nb = []
            for x in flatten(body):
                hit = {"st": x.kind == "vstore", "ld": x.kind == "vload", "dma": x.kind == "dma",
                       "need": x.kind == "need"}.get(o.timeit, False)
                nb += self.timed([x]) if hit else [x]
            body = nb
        return pre + body

    def mask(self, q, scores=False):
        c = []
        D = vDM[q & 1]
        if scores:
            c.append(I(f"v_mov_b32 v{vT[2]}, 0xff800000"))
            for i in range(0, 8, 2):
                c.append(I(f"v_cmp_gt_i32 s[{sM0}:{sM0+1}], {16*(i>>2)+(i&3)}, v{D}"))
                c.append(I(f"v_cmp_gt_i32 s[{sM1}:{sM1+1}], {16*(i>>2)+(i&3)+1}, v{D}"))
                c.append(I(f"v_cndmask_b32 v{aS(q,0)+i}, v{aS(q,0)+i}, v{vT[2]}, s[{sM0}:{sM0+1}]"))
                c.append(I(f"v_cndmask_b32 v{aS(q,0)+i+1}, v{aS(q,0)+i+1}, v{vT[2]}, s[{sM1}:{sM1+1}]"))
            return c
        src = aC(q, 0)
        c.append(I(f"v_mov_b32 v{vT[0]}, 0xff800000"))
        order = [(1, r) for r in range(4)] + [(0, 3), (0, 2), (0, 1), (0, 0)]
        for i in range(0, 8, 2):
            (k0, r0), (k1, r1) = order[i], order[i + 1]
            c.append(I(f"v_cmp_gt_i32 s[{sM0}:{sM0+1}], {16*k0+r0}, v{D}"))
            c.append(I(f"v_cmp_gt_i32 s[{sM1}:{sM1+1}], {16*k1+r1}, v{D}"))
            c.append(I("s_nop 0"))
            c.append(I(f"v_cndmask_b32 v{aC(q,k0)+r0}, v{src}, v{vT[0]}, s[{sM0}:{sM0+1}]"))
            c.append(I(f"v_cndmask_b32 v{aC(q,k1)+r1}, v{src}, v{vT[0]}, s[{sM1}:{sM1+1}]"))
        return c

    def rowmax(self, q, t0, t1):
        S = aS(q, 0)
        return [I(f"v_max3_f32 v{t0}, v{S}, v{S+1}, v{S+2}"), I(f"v_max3_f32 v{t1}, v{S+3}, v{S+4}, v{S+5}"),
                I(f"v_max3_f32 v{t0}, v{t0}, v{S+6}, v{S+7}"), I(f"v_max_f32 v{t0}, v{t0}, v{t1}"),
                I(f"v_mov_b32 v{t1}, v{t0}"), I(f"v_permlane32_swap_b32 v{t0}, v{t1}"),
                I(f"v_max_f32 v{t0}, v{t0}, v{t1}"),
                I(f"v_mov_b32 v{t1}, v{t0}"), I(f"v_permlane16_swap_b32 v{t0}, v{t1}"),
                I(f"v_max_f32 v{t0}, v{t0}, v{t1}"),
                I(f"v_add_f32 v{t0}, {fbits(BIAS)}, v{t0}")]

    def exps(self, q, E):
        S = aS(q, 0)
        return [I(f"v_exp_f32 v{E+i}, v{S+i}") for i in range(8)]

    def cvts(self, q, E):
        return [I(f"v_cvt_pk_bf16_f32 v{aP(q)+i}, v{E+2*i}, v{E+2*i+1}") for i in range(4)]

    def fix(self, q):
        t0, t1 = aE[2], aE[2] + 1
        S = aS(q, 0)
        c = [I("s_nop 7"), I("s_nop 1")] + self.rowmax(q, t0, t1)
        c.append(I(f"v_max_f32 v{t0}, 0, v{t0}"))
        c.append(I(f"v_exp_f32 v{t1}, -v{t0}"))
        for i in range(8):
            c.append(I(f"v_sub_f32 v{S+i}, v{S+i}, v{t0}"))
            c.append(I(f"v_sub_f32 v{aC(q,0)+i}, v{aC(q,0)+i}, v{t0}"))
        for r in range(aO(0, q), aO(0, q) + 32):
            c.append(I(f"v_mul_f32 v{r}, v{r}, v{t1}"))
        for r in range(4):
            c.append(I(f"v_accvgpr_read_b32 v{t0+2+r}, a{gL(q)+r}"))
        for r in range(4):
            c.append(I(f"v_mul_f32 v{t0+2+r}, v{t0+2+r}, v{t1}"))
        for r in range(4):
            c.append(I(f"v_accvgpr_write_b32 a{gL(q)+r}, v{t0+2+r}"))
        c += self.exps(q, aE[1]) + self.cvts(q, aE[1])
        return c

    def check(self, qs, mind=2):
        P = [aP(q) + i for q in qs for i in range(4)]
        ors = []
        cur = None
        while P:
            if cur is None:
                ors.append(I(f"v_or3_b32 v{vOR}, v{P[0]}, v{P[1]}, v{P[2]}"))
                P = P[3:]
                cur = vOR
            elif len(P) >= 2:
                ors.append(I(f"v_or3_b32 v{vOR}, v{vOR}, v{P[0]}, v{P[1]}"))
                P = P[2:]
            else:
                ors.append(I(f"v_bitop3_b32 v{vOR}, v{vOR}, v{P[0]}, s{sMASK} bitop3:0xa8"))
                P = []
        slow, back = self.lab("fix"), self.lab("fixb")
        body = []
        for q in qs:
            body += self.fix(q)
        body += [I("s_nop 1"), I(f"s_branch {back}")]
        self.cold.append(f"{slow}:\n" + render(pad_hazards(body)))
        tail = [I(f"v_cmp_ne_u32 vcc, 0, v{vOR}"),
                (Group([I(f"s_cbranch_vccnz {slow}"), I(f"{back}:")]), None, None, mind)]
        return ors, tail

    def k_reads(self, half_off=8192):
        r = [I(f"ds_read_b128 {ar(gK(kb, ds))}, v{vARD} offset:{half_off + (kb*4+ds)*1024}")
             for kb in range(2) for ds in range(4)]
        return batch(r[:4]) + batch(r[4:])

    def qk(self, q, first=False):
        m = []
        for kb in range(2):
            for ds in range(4):
                d = vr(aS(q, kb))
                m.append(mfma(d, ar(gK(kb, ds)), ar(gQ(q, ds)), ("0" if first else vr(aC(q, kb))) if ds == 0 else d))
        return m

    def pv(self, q):
        m = [mfma(vr(aO(db, q)), ar(gV(db)), vr(aP(q)), vr(aO(db, q))) for db in range(8)]
        m.append(mfma(ar(gL(q)), ar(gONE), vr(aP(q)), ar(gL(q))))
        return m

    def iteration(self, nc, nn):
        o = self.o
        X = [m for q in range(nn) for m in self.qk(q)]
        Y = [m for q in range(nc) for m in self.pv(q)]
        y0 = len(X)
        n = y0 + len(Y)
        late = nc - 1
        tasks = []
        hi = 8 * (nn - 1) if nn == nc else y0 + 9 * late
        hi = max(0, min(hi, 8))
        ors, tail = self.check([late], 2 if hi >= 6 else 0)
        tasks.append(Task("late", self.cvts(late, aE[0]) + ors + tail, 0, hi, prio=1, tight=True))
        vrd = [I(f"ds_read_b128 {ar(gV(db))}, v{vARD} offset:{db*1024}") for db in range(8)]
        vrd = batch(vrd[:4]) + batch(vrd[4:])
        tasks.append(Task("vrd", [(r, 0, max(0, y0 - 5 + (4 if k >= 4 else 0))) for k, r in enumerate(vrd)],
                          0, max(0, min(y0 - 3, 12)), prio=2))
        ES = [aE[1], aE[2], aE[1]]
        early = list(range(nn - 1))
        if nn > 0:
            start = 9
            span = (n - start) / nn
            pos = [int(start + span * i) for i in range(nn + 1)]
            last = []
            for q in range(nn):
                rdy = [8 * q + 9] * 4 + [8 * q + 13] * 4
                if q in early:
                    cv_lo = y0 + 9 * (q + 1)
                    cv_hi = min(n - 5, (y0 + 9 * (q + 1) + 9) if q + 1 < len(early) else n - 5)
                    if q == 0 and len(early) == 3:
                        cv_hi = y0 + 9 + 5
                    lo2 = (y0 + 9 + 6) if q == 2 else 0
                    ent = [(e, max(rdy[k], lo2), cv_hi - 2) for k, e in enumerate(self.exps(q, ES[q]))]
                    ent += [(x, cv_lo, cv_hi) for x in self.cvts(q, ES[q])]
                    tasks.append(Task(f"exp{q}", ent, max(pos[q], lo2), max(pos[q + 1] + 3, cv_lo + 4), prio=0))
                    last.append(cv_hi)
                else:
                    ent = [(e, min(n, max(rdy[k], 10)), n) for k, e in enumerate(self.exps(q, aE[0]))]
                    tasks.append(Task(f"exp{q}", ent, min(n, pos[q]), n, prio=0))
            if early:
                ors, tail = self.check(early)
                need = []
                for x in ors:
                    qs = [(int(u[1:]) - aP(0)) // 4 for u in x.uses if aP(0) <= int(u[1:]) < aP(0) + 16]
                    need.append(last[max(qs)] + 1)
                ent = [(x, min(need[k], n - 3), n - 2) for k, x in enumerate(ors)]
                ent += [(tail[0], min(need[-1], n - 2), n - 2), (tail[1][0], 0, n, 2)]
                tasks.append(Task("chk1", ent, prio=3, tight=True))
            krd = self.k_reads()
            adv = I(f"v_add_u32 v{vARD}, s{sRD}, v{vL16[0]}")
            tasks.append(Task("krd", [(r, y0, n - (7 if k < 4 else 4)) for k, r in enumerate(krd)] + [(adv, y0, n)],
                              y0, n - 3, prio=2))
            d = self.att_dma()
            R = o.NS * 16384
            sc = [I(f"s_mov_b32 m0, s{sWR}"), I(f"s_add_u32 s{sSOFF}, s{sSOFF}, 8192"), (d[0], None, None, 1)] + d[1:]
            sc += [I(f"s_add_u32 s{sWR}, s{sWR}, 16384"), I(f"s_sub_u32 s{sT0}, s{sWR}, {R}"),
                   I(f"s_min_u32 s{sWR}, s{sWR}, s{sT0}")]
            rdp = [I(f"s_add_u32 s{sRD}, s{sRD}, 16384"), I(f"s_sub_u32 s{sT1}, s{sRD}, {R}"),
                   I(f"s_min_u32 s{sRD}, s{sRD}, s{sT1}")]
            tasks.append(Task("rdp", rdp, 1, max(3, y0 - 1), prio=4))
            tasks.append(Task("dma", sc, 1, n - 4, prio=1))
        tasks.append(Task("j", [I(f"s_add_u32 s{sJ}, s{sJ}, 1")], max(0, n - 6), max(0, n - 3), prio=5))
        res = {0, 4, y0, y0 + 4}
        seed, ldw = (o.seed, o.ldw) if o.tune == 0 else {4: (11, 12), 3: (2, 12)}.get(max(nc, nn), (1, 0))
        seq = schedule(X + Y, tasks, o.budget, self.reports, reserve=res, seed=seed, vmw=o.vmwa, ldw=ldw)
        by = {t.name: [e[0] if isinstance(e, tuple) else e for e in t.instrs] for t in tasks}
        ref = by["late"] + by["vrd"] + X + Y
        for nm in ("exp0", "exp1", "exp2", "exp3", "chk1", "krd", "dma", "j"):
            if nm == "krd":
                ref += by.get("rdp", [])
            ref += by.get(nm, [])
        verify_order(ref, seq)
        return seq

    def att_state(self):
        sb = Scoreboard()
        for r in self.k_reads():
            sb.after(r)
        for i in range(40):
            sb.after(I("buffer_inv sc1"))
        return sb

    def finalize(self, q):
        t0 = vT[0]
        c = [I(f"v_accvgpr_read_b32 v{t0}, a{gL(q)}"), I(f"v_rcp_f32 v{t0}, v{t0}")]
        st = []
        for k in range(4):
            a, b = aO(2 * k, q), aO(2 * k + 1, q)
            for r in (a, a + 2, b, b + 2):
                c.append(I(f"v_pk_mul_f32 {vr(r,2)}, {vr(r,2)}, {vr(t0,2)} op_sel_hi:[1,0]"))
            p = aE[1] + 4 * k
            c += self.pk_frag(p, a, b)
            s = I(f"buffer_store_dwordx4 {vr(p)}, v{vL16[k]}, {srd(S_WS)}, s{sZC[q]} offen {self.o.stflag}")
            c.append(s)
            st.append(s)
        return c, st

    def seg(self, seq, sb, prev=()):
        s = add_waits(seq, sb)
        return pad_hazards(s, prev)

    def attention(self, sb, prev):
        o = self.o
        out = []
        pro = []
        A = pro.append
        pro += [I("L_att:"), I(f"v_add_u32 v{vARD}, {6*16384}, v{vL16[0]}")]
        pro += [Need(self.att_first + self.h_stores, lg0=True), I("s_barrier")]
        pro += self.k_reads(0)
        pro.append(self.flag_store(sFH))
        dm = []
        for j in range(3, o.LEAD):
            d = self.att_dma()
            dm += [I(f"s_add_u32 m0, s{sWR}, {((7+j) % o.NS)*16384}"), I(f"s_mov_b32 s{sSOFF}, {j*8192}"),
                   (d[0], None, None, 1)] + d[1:]
        dm += [I(f"s_add_u32 s{sWR}, s{sWR}, {((7+o.LEAD-1) % o.NS + 1)*16384}"),
               I(f"s_mov_b32 s{sRD}, {7*16384}"), I(f"s_mov_b32 s{sJ}, 0")]
        assert ((7 + o.LEAD - 1) % o.NS) + 1 < o.NS
        e0 = self.epi_Q(1, 0)
        pro += e0[:16] + dm[:2] + e0[16:24] + [dm[2][0]] + e0[24:]
        dm = dm[3:]

        def init(q):
            t0, t1 = vT[0], vT[1]
            S = aS(q, 0)
            c = self.rowmax(q, t0, t1)
            if q < 2:
                c += [I(f"v_sub_f32 v{S+i}, v{S+i}, v{t0}") for i in range(8)]
                c += [I(f"v_sub_f32 v{aC(q,0)+i}, 0, v{t0}") for i in range(8)]
            else:
                c.append(I(f"v_sub_f32 v{t0}, 0, v{t0}"))
                c += [I(f"v_pk_add_f32 {vr(S+i,2)}, {vr(S+i,2)}, {vr(t0,2)} op_sel_hi:[1,0]") for i in range(0, 8, 2)]
                c += [I(f"v_pk_mov_b32 {vr(aC(q,0)+i,2)}, {vr(t0,2)}, {vr(t0,2)} op_sel:[0,0]") for i in range(0, 8, 2)]
            if q < 3:
                E = [aE[1], aE[2], aE[1]][q]
                return c + self.exps(q, E) + self.cvts(q, E)
            return c + self.exps(q, aE[0])
        X = [m for q in range(4) for m in self.qk(q, True)]
        tasks = [Task("dm", dm, 0, 32, prio=0)]
        for q in range(1, 4):
            tasks.append(Task(f"epiQ1_{q}", self.epi_Q(1, q), 8 * (q - 1), 8 * q - 1, prio=1))
        tasks.append(Task("init01", [(x, 11, 32) for x in init(0)] + [(x, 19, 32) for x in init(1)], 11, 32, prio=2))
        pro += schedule(X, tasks, o.budget, self.reports, vmw=0)
        pro += self.k_reads()
        pro += [I(f"v_add_u32 v{vARD}, s{sRD}, v{vL16[0]}")]
        pro += init(2)
        skip = self.lab("nomask")
        pro += [I(f"s_cmp_lg_u32 s{sNM1[3]}, 0"), I(f"s_cbranch_scc1 {skip}")] + self.mask(3, True) + [I(f"{skip}:")]
        pro += init(3)
        pro += [I("s_waitcnt lgkmcnt(0)")]
        pro += self.stamp(vT[3])
        pro = self.seg(pro, sb, prev)
        out += pro
        out.append(I(f"s_branch L_ev4"))
        wait_n = (o.LEAD - o.G) * 4
        last_st = None
        for n in (4, 3, 2, 1):
            b = []
            for u in range(o.unroll):
                ctl = [I(f"s_bitcmp1_b64 s[{sEV}:{sEV+1}], s{sJ}"),
                       I(f"s_cbranch_scc0 L_body{n}") if u == o.unroll - 1 else I(f"s_cbranch_scc1 L_ev{n}")]
                b += self.seg(self.iteration(n, n) + ctl, self.att_state(), b)
            print("iteration", n, "estimate", estimate(b) // o.unroll, file=sys.stderr)
            check_hazards(b, b)
            out += [I(".p2align 6"), I(f"L_body{n}:")] + b
            bar = self.timed([I(f"s_waitcnt vmcnt({wait_n}) lgkmcnt(0)"), I("s_barrier")])
            nb, nm, nh, nh2, sp = self.lab("nb"), self.lab("nm"), self.lab("nh"), self.lab("nh2"), self.lab("sp")
            ev = [I(f"L_ev{n}:"), I(f"s_bitcmp1_b64 s[{sSP}:{sSP+1}], s{sJ}"), I(f"s_cbranch_scc1 {sp}")]
            ev += bar + [I(f"s_branch L_body{n}"), I(f"{sp}:")]
            ev += [I(f"s_and_b32 s{sT0}, s{sJ}, {o.G-1}"), I(f"s_cbranch_scc1 {nb}")]
            ev += self.timed([I(f"s_waitcnt vmcnt({wait_n}) lgkmcnt(0)"), I("s_barrier")])
            ev += [I(f"s_cmp_eq_u32 s{sJ}, {2*o.G}"), I(f"s_cbranch_scc0 {nh}")]
            ev += (self.prefetch2() if (o.prefetch & 2 and not o.p2early) else []) + self.p4_scalars()
            ev += self.h_offsets() + [self.poll_load(vHP, S_WS, vHO, f"s{sHB}"), I(f"{nh}:")]
            ev += [I(f"s_cmp_eq_u32 s{sJ}, {3*o.G}"), I(f"s_cbranch_scc0 {nh2}"),
                   self.poll_check(vHP, S_WS, vHO, f"s{sHB}", "1"), I(f"{nh2}:")]
            if n == 2:
                ne = self.lab("ne")
                ev += [I(f"s_cmp_eq_u32 s{sJ}, s{sJL}"), I(f"s_cbranch_scc0 {ne}")] + self.p4_early() + [I(f"{ne}:")]
            ev += [I(f"{nb}:"), I(f"s_cmp_eq_u32 s{sJ}, s{sNM2[n-1]}"), I(f"s_cbranch_scc0 {nm}")]
            ev += self.mask(n - 1) + [I(f"{nm}:"), I(f"s_cmp_eq_u32 s{sJ}, s{sNM1[n-1]}"),
                                      I(f"s_cbranch_scc0 L_body{n}")]
            if n >= 2:
                nm2 = self.lab("nm")
                ev += [I(f"s_cmp_eq_u32 s{sJ}, s{sNM2[n-2]}"), I(f"s_cbranch_scc0 {nm2}")]
                ev += self.mask(n - 2) + [I(f"{nm2}:")]
            ev = pad_hazards(flatten(ev), b)
            tr = self.iteration(n, n - 1)
            fin, st = self.finalize(n - 1)
            last_st = st
            tail = []
            if n >= 2:
                tail = [I(f"s_bitcmp1_b64 s[{sEV}:{sEV+1}], s{sJ}"),
                        I(f"s_cbranch_scc1 L_ev{n-1}")]
            sbt = self.att_state()
            t = self.seg(tr + fin + tail, sbt, ev)
            out += ev + t
        self.ctx_stores = last_st
        return out, sbt

    def p4_scalars(self):
        return [I(f"s_bfe_u32 s{sT1}, s{sB}, 0x10002"), I(f"s_lshl_b32 s{sT1}, s{sT1}, 3"),
                I(f"s_bfe_u32 s{sT2}, s{sB}, 0x30003"), I(f"s_add_u32 s{sT2}, s{sT1}, s{sT2}"),
                I(f"s_sub_u32 s{sT3}, 15, s{sT2}"),
                I(f"s_min_u32 s{sT2}, s{sT2}, s{sT3}"), I(f"s_lshl_b32 s{sPOLL}, s{sT2}, 7"),
                I(f"s_add_u32 s{sPOLL}, s{sPOLL}, {FL_H}")]

    def p4_setup_vec(self):
        c = []
        A = c.append
        t = WFB[3]
        g, i16 = t, t + 1
        A(I(f"s_lshl_b32 s{sT1}, s{sTB}, 2"))
        A(I(f"s_add_u32 s{sT1}, s{sT1}, s{sWAVE}"))
        A(I(f"s_lshl_b32 s{sT1}, s{sT1}, 15"))
        A(I(f"s_lshl_b32 s{sT2}, s{sCB}, 8"))
        A(I(f"s_add_u32 s{sT1}, s{sT1}, s{sT2}"))
        A(I(f"s_lshl_b32 s{sT2}, s{sKQ}, 6"))
        A(I(f"s_add_u32 s{sT1}, s{sT1}, s{sT2}"))
        A(I(f"v_lshlrev_b32 v{t+2}, 10, v{i16}"))
        A(I(f"v_lshl_add_u32 v{t+2}, v{g}, 3, v{t+2}"))
        A(I(f"v_add_u32 v{vXo}, s{sT1}, v{t+2}"))
        return c

    def p4_setup(self):
        c = []
        A = c.append
        L = vLANE
        A(I(f"s_and_b32 s{sKQ}, s{sB}, 3"))
        A(I(f"s_bfe_u32 s{sT1}, s{sB}, 0x10002"))
        A(I(f"s_lshr_b32 s{sT2}, s{sB}, 3"))
        A(I(f"s_lshl_b32 s{sTID}, s{sT1}, 5"))
        A(I(f"s_add_u32 s{sTID}, s{sTID}, s{sT2}"))
        A(I(f"s_lshr_b32 s{sCB}, s{sT2}, 3"))
        A(I(f"s_and_b32 s{sT2}, s{sT2}, 7"))
        A(I(f"s_lshl_b32 s{sT1}, s{sT1}, 3"))
        A(I(f"s_add_u32 s{sTB}, s{sT1}, s{sT2}"))
        t = WFB[3]
        A(I(f"v_lshrrev_b32 v{t}, 4, v{L}"))
        A(I(f"v_and_b32 v{t+1}, 15, v{L}"))
        A(I(f"v_lshlrev_b32 v{t+2}, 1, v{t}"))
        A(I(f"v_xor_b32 v{t+2}, v{t+2}, v{t+1}"))
        A(I(f"v_lshlrev_b32 v{t+2}, 4, v{t+2}"))
        A(I(f"v_lshl_add_u32 v{t+2}, v{t}, 10, v{t+2}"))
        A(I(f"s_lshl_b32 s{sT1}, s{sWAVE}, 13"))
        A(I(f"s_lshl_b32 s{sT2}, s{sCB}, 8"))
        A(I(f"s_add_u32 s{sT1}, s{sT1}, s{sT2}"))
        A(I(f"v_add_u32 v{vWo4[0]}, s{sT1}, v{t+2}"))
        A(I(f"v_xor_b32 v{vWo4[1]}, 128, v{vWo4[0]}"))
        A(I(f"v_add_u32 v{vWo4[1]}, {4096-1024}, v{vWo4[1]}"))
        A(I(f"s_lshl_b32 s{sT1}, s{sTB}, 1"))
        A(I(f"s_lshr_b32 s{sT2}, s{sWAVE}, 1"))
        A(I(f"s_add_u32 s{sT1}, s{sT1}, s{sT2}"))
        A(I(f"s_and_b32 s{sT2}, s{sWAVE}, 1"))
        A(I(f"s_lshl_b32 s{sT2}, s{sT2}, 11"))
        A(I(f"s_mul_i32 s{sT3}, s{sT1}, {43*4096}"))
        A(I(f"s_add_u32 s{sT3}, s{sT3}, s{sT2}"))
        A(I(f"s_add_u32 s{sT3}, s{sT3}, {ZH_OFF}"))
        A(Group([I(f"s_add_u32 s{S_ZH}, s{S_WS}, s{sT3}"), I(f"s_addc_u32 s{S_ZH+1}, s{S_WS+1}, 0")]))
        A(I(f"s_sub_u32 s{S_ZH+2}, {43*4096}, s{sT2}"))
        A(I(f"s_lshl_b32 s{sT1}, s{sT1}, 19"))
        A(I(f"s_lshl_b32 s{sT3}, s{sKQ}, 17"))
        A(I(f"s_add_u32 s{sT1}, s{sT1}, s{sT3}"))
        A(I(f"s_add_u32 s{sT1}, s{sT1}, s{sT2}"))
        A(I(f"s_add_u32 s{sT1}, s{sT1}, {ZC_OFF}"))
        A(Group([I(f"s_add_u32 s{S_ZC}, s{S_WS}, s{sT1}"), I(f"s_addc_u32 s{S_ZC+1}, s{S_WS+1}, 0")]))
        A(I(f"s_sub_u32 s{S_ZC+2}, {32*4096}, s{sT2}"))
        A(I(f"s_lshl_b32 s{sT2}, s{sKQ}, 20"))
        A(Group([I(f"s_add_u32 s{S_WO}, s{S_WO}, s{sT2}"), I(f"s_addc_u32 s{S_WO+1}, s{S_WO+1}, 0")]))
        A(I(f"s_mov_b32 s{S_WO+2}, {1 << 20}"))
        A(I(f"s_mul_i32 s{sZo}, s{sKQ}, {11*4096}"))
        A(I(f"s_mul_i32 s{sWo}, s{sKQ}, {11*32768}"))

        return c

    def p4_early(self):
        t = vT[0]
        c = []
        for n in range(4):
            c += [I(f"buffer_load_dwordx4 {vr(128 + (n*2 + tb)*4)}, v{vL16[0]}, {srd(S_ZH)}, s{sZo} offen "
                    f"offset:{tb*1024} {self.o.ldflag}") for tb in range(2)]
            c.append(I(f"s_add_u32 s{sZo}, s{sZo}, 4096"))
        if self.o.xat == 2:
            c.append(I(f"s_mov_b32 s{sT1}, 16384"))
            c += [I(f"buffer_load_dwordx2 {ar(XR + 4*tb + 2*i, 2)}, v{vXo}, {srd(S_X)}, {'s%d' % sT1 if tb else '0'} offen "
                    f"offset:{i*32}") for tb in range(2) for i in range(2)]
        if self.o.prefetch & 64:
            c += [I(f"s_and_b32 s{sT1}, s{sTB}, 7"), I(f"s_lshl_b32 s{sT1}, s{sT1}, 2"),
                  I(f"s_add_u32 s{sT1}, s{sT1}, s{sWAVE}"), I(f"s_lshl_b32 s{sT1}, s{sT1}, 15"),
                  I(f"s_lshl_b32 s{sT2}, s{sCB}, 8"), I(f"s_add_u32 s{sT1}, s{sT1}, s{sT2}"),
                  I(f"v_lshrrev_b32 v{t+1}, 1, v{vLANE}"), I(f"v_and_b32 v{t}, 1, v{vLANE}"),
                  I(f"v_lshlrev_b32 v{t}, 7, v{t}"), I(f"v_lshl_add_u32 v{t}, v{t+1}, 10, v{t}"),
                  self.pf_load(t, S_WO, f"s{sT1}", dst="a200")]
        if self.o.pfcode & 4:
            c += self.prefetch_code("L_p4", "L_exit", "a[204:207]", vT[0])
        if self.o.prefetch & 2:
            c += [I(f"s_and_b32 s{sT1}, s{sTB}, 7"), I(f"s_mul_i32 s{sT1}, s{sT1}, 44"),
                  I(f"s_mul_i32 s{sT2}, s{sWAVE}, 11"), I(f"s_add_u32 s{sT1}, s{sT1}, s{sT2}"),
                  I(f"s_lshl_b32 s{sT1}, s{sT1}, 10"), I(f"s_add_u32 s{sT1}, s{sT1}, s{sWo}"),
                  I(f"s_lshl_b32 s{sT2}, s{sCB}, 8"), I(f"s_add_u32 s{sT1}, s{sT1}, s{sT2}"),
                  I(f"v_min_u32 v{t}, 21, v{vLANE}"), I(f"v_lshrrev_b32 v{t+1}, 1, v{t}"),
                  I(f"v_and_b32 v{t}, 1, v{t}"), I(f"v_lshlrev_b32 v{t}, 7, v{t}"),
                  I(f"v_lshl_add_u32 v{t}, v{t+1}, 10, v{t}"),
                  self.pf_load(t, S_WD, f"s{sT1}", dst="a200")]
        return c

    def h_offsets(self):
        t = vT[0]
        return [I(f"s_mov_b32 s{sHB}, {FL_H}"), I(f"s_sub_u32 s{sT1}, s{sPOLL}, s{sHB}"),
                I(f"v_add_u32 v{t}, s{sT1}, v{vPO32}"),
                I(f"s_bfe_u32 s{sT1}, s{sB}, 0x10002"), I(f"s_lshl_b32 s{sT1}, s{sT1}, 4"),
                I(f"s_and_b32 s{sT2}, s{sH}, 3"), I(f"s_add_u32 s{sT1}, s{sT1}, s{sT2}"),
                I(f"s_lshl_b32 s{sT2}, s{sW}, 5"), I(f"s_add_u32 s{sT1}, s{sT1}, s{sT2}"),
                I(f"s_lshl_b32 s{sT1}, s{sT1}, 2"),
                I(f"v_and_b32 v{t+1}, 3, v{vLANE}"), I(f"v_lshlrev_b32 v{t+1}, 4, v{t+1}"),
                I(f"v_cmp_gt_u32 vcc, 32, v{vLANE}"), I(f"v_add_u32 v{t+1}, s{sT1}, v{t+1}"),
                I(f"v_cndmask_b32 v{vHO}, v{t+1}, v{t}, vcc")]

    def phase4(self, sb, prev):
        o = self.o
        ACC4, ZR, WR = 0, 64, 192
        vRd4 = list(range(224, 232))
        vP4, vW1 = 234, 235
        sEXs, sEXd, sFE, sOo = sNM2
        L = vLANE
        NH, NS, LEAD = 11, 16, o.lead4
        sR4 = sWR
        c = []
        A = c.append
        sb.vm = sb.vm[-24:]
        A(I("L_p4:"))
        c += self.holdmark("att")
        A(I("s_waitcnt lgkmcnt(0)"))
        A(I("s_barrier"))
        c += self.stamp(232)
        t = WR
        Wd, Zd = {}, {}

        def wload(n):
            ws = S_WD if n < NH else S_WO
            d = [I(f"buffer_load_dwordx4 v{vWo4[e]}, {srd(ws)}, s{sWo} offen offset:{e*1024} {o.wflg} lds") for e in range(2)]
            Wd[n % NS] = d
            pre = [I(f"s_lshl_b32 s{sWo}, s{sR4}, 17")] if n == NH else []
            post = [I(f"s_add_u32 s{sWo}, s{sWo}, 32768")]
            if o.rot4 and n >= NH:
                post.append(I(f"s_and_b32 s{sWo}, s{sWo}, 0xfffff"))
            return pre + [I(f"s_add_u32 m0, s{sW2K}, {(n % NS)*8192}"), d[0], d[1]] + post

        def zload(n):
            zs, so = (S_ZH, sZo) if n < NH else (S_ZC, sSOFF)
            d = [I(f"buffer_load_dwordx4 {vr(ZR + (((n + 8) % NS)*2 + tb)*4)}, v{vL16[0]}, {srd(zs)}, s{so} offen "
                   f"offset:{tb*1024} {o.ldflag}") for tb in range(2)]
            batch(d)
            pre = [I(f"s_lshl_b32 s{so}, s{sR4}, 14")] if n == NH else []
            post = [I(f"s_add_u32 s{so}, s{so}, 4096")]
            if o.rot4 and n >= NH:
                post.append(I(f"s_and_b32 s{so}, s{so}, 0x1ffff"))
            return pre + d + post

        NST = 43
        DEF0 = NST - o.defer if o.p4v == 3 else NST

        def wreg(n, wb, k=0, cnt=4):
            if n >= DEF0 and wb < 2:
                return ar(32 + ((n - DEF0) * 2 + wb) * 4 + k, cnt)
            if o.p4v == 3 and n & 1:
                return ar(4 * wb + k, cnt)
            return vr(WR + 4 * wb + k, cnt)

        def reads(n, wb):
            slot = (n % NS) * 8192
            return batch([I(f"ds_read_b64_tr_b16 {wreg(n, wb, 2*a, 2)}, v{vRd4[wb]} offset:{(slot & 0xffff) + a*4096}")
                          for a in range(2)])

        def winfix(n):
            a, b = ((n - 1) % NS) >> 3, (n % NS) >> 3
            if a == b:
                return lambda wb: []
            op = "v_add_u32" if b else "v_subrev_u32"
            return lambda wb: [I(f"{op} v{vRd4[wb]}, 0x10000, v{vRd4[wb]}")]

        for n in range(4):
            c += wload(n)
        A(I(f"s_sub_u32 s{sPOLL}, s{sPOLL}, {FL_H}"))
        A(I(f"s_lshl_b32 s{sT1}, s{sKQ}, 5"))
        A(I(f"s_add_u32 s{sPOLL}, s{sPOLL}, s{sT1}"))
        if o.wflag:
            A(I(f"s_lshl_b32 s{sPOLL}, s{sPOLL}, 2"))
        A(I(f"s_add_u32 s{sPOLL}, s{sPOLL}, {FL_CW if o.wflag else FL_C}"))
        g, i16 = t, t + 1
        A(I(f"v_lshrrev_b32 v{g}, 4, v{L}"))
        A(I(f"v_and_b32 v{i16}, 15, v{L}"))
        A(I(f"v_lshrrev_b32 v{t+2}, 2, v{i16}"))
        A(I(f"v_lshl_add_u32 v{t+2}, v{g}, 2, v{t+2}"))
        A(I(f"v_and_b32 v{t+3}, 3, v{i16}"))
        A(I(f"v_lshlrev_b32 v{t+3}, 3, v{t+3}"))
        A(I(f"v_lshl_add_u32 v{t+3}, v{t+2}, 8, v{t+3}"))
        A(I(f"v_and_b32 v{t+2}, 7, v{t+2}"))
        A(I(f"v_lshl_add_u32 v{t+3}, v{t+2}, 5, v{t+3}"))
        for i in range(8):
            A(I(f"s_lshl_b32 s{sT1}, s{sKQ}, 1"))
            A(I(f"s_add_u32 s{sT1}, s{sT1}, {i}"))
            A(I(f"s_and_b32 s{sT1}, s{sT1}, 7"))
            A(I(f"s_lshl_b32 s{sT1}, s{sT1}, 5"))
            A(I(f"v_xor_b32 v{vRd4[i]}, s{sT1}, v{t+3}"))
        A(I(f"s_mov_b32 s{sOo}, 16384"))
        A(I(f"s_lshl_b32 s{sT1}, s{sCB}, 1"))
        A(I(f"s_add_u32 s{sT1}, s{sT1}, s{sTB}"))
        A(I(f"s_and_b32 s{sR4}, s{sT1}, {o.rot4}"))
        A(I(f"s_mul_i32 s{sT1}, s{sTID}, {4*3*8192}"))
        A(I(f"s_lshl_b32 s{sT2}, s{sWAVE}, 11"))
        A(I(f"s_add_u32 s{sT1}, s{sT1}, s{sT2}"))
        A(I(f"s_add_u32 s{sEXs}, s{sT1}, {EX_OFF}"))
        A(I(f"s_mul_i32 s{sT2}, s{sKQ}, {3*8192}"))
        A(I(f"s_add_u32 s{sEXd}, s{sEXs}, s{sT2}"))
        A(I(f"s_lshl_b32 s{sFE}, s{sTID}, 2"))
        A(I(f"s_add_u32 s{sFE}, s{sFE}, s{sWAVE}"))
        A(I(f"s_lshl_b32 s{sFE}, s{sFE}, 4"))
        A(I(f"s_add_u32 s{sFE}, s{sFE}, {FL_E}"))
        A(I(f"v_mov_b32 v{t+2}, {OOB}"))
        A(I(f"v_cmp_eq_u32 vcc, 0, v{L}"))
        A(I(f"s_lshl_b32 s{sT1}, s{sKQ}, 2"))
        A(I(f"v_mov_b32 v{t+3}, s{sT1}"))
        A(I(f"v_cndmask_b32 v{vW1}, v{t+2}, v{t+3}, vcc"))
        first = [Wd[k] for k in range(4)]
        if o.wflag:
            assert o.sentinel
            A(I(f"s_sub_u32 s{sT1}, s{sFC}, {FL_C}"))
            A(I(f"s_lshl_b32 s{sT1}, s{sT1}, 2"))
            A(I(f"s_lshl_b32 s{sT2}, s{sWAVE}, 2"))
            A(I(f"s_add_u32 s{sT1}, s{sT1}, s{sT2}"))
            A(I(f"s_add_u32 s{sT1}, s{sT1}, {FL_CW}"))
            A(I(f"v_cndmask_b32 v{vW1}, v{t+2}, v{vC0}, vcc"))
            A(Need([self.ctx_stores]))
            A(I(f"buffer_store_dword v{vC1}, v{vW1}, {srd(S_WS)}, s{sT1} offen sc1"))
            A(Need(first, lg0=True))
            A(I("s_barrier"))
        else:
            A(Need(first + [self.ctx_stores], lg0=True))
            A(I("s_barrier"))
            A(self.flag_store(sFC))
        for n in range(4, LEAD):
            c += wload(n)
        xl = [I(f"buffer_load_dwordx2 {ar(XR + 4*tb + 2*i, 2)}, v{vXo}, {srd(S_X)}, {'s%d' % sOo if tb else '0'} offen "
                f"offset:{i*32}") for tb in range(2) for i in range(2)]
        if o.p4v == 3:
            return self.phase4_pairs(locals())
        rr = [reads(0, wb) for wb in range(8)]
        c += batch(sum(rr[:4], [])) + batch(sum(rr[4:], []))

        def steps(n0, n1, first, zplan, extra):
            mf, tasks = [], []
            wch, zch = [], []
            for n in range(n0, n1):
                b = 16 * (n - n0)
                for wb in range(8):
                    for tb in range(2):
                        d = vr(ACC4 + (wb * 2 + tb) * 4)
                        mf.append(mfma(d, vr(WR + 4 * wb), vr(ZR + (((n + 8) % NS) * 2 + tb) * 4),
                                       "0" if (first and n == n0) else d))
                bar = (n + 1) % 4 == 0
                fx = winfix(n + 1)
                ent = []
                rr = [reads(n + 1, wb) for wb in range(8)]
                batch(sum(rr[:4], []))
                batch(sum(rr[4:], []))
                for wb in range(8):
                    lo = b + 2 * wb + 2
                    if bar:
                        lo = max(lo, b + 5)
                    ent += [(x, lo, min(b + 16, lo + 3)) for x in fx(wb) + rr[wb]]
                tasks.append(Task(f"rd{n}", ent, prio=0, tight=True))
                if bar:
                    need = [Wd[k % NS] for k in range(n + 1, n + 5)]
                    tasks.append(Task(f"bar{n}", [Group([Need(need, lg0=True), I("s_barrier")])], b + 4, b + 4, prio=-1))
                seq = wload(n + LEAD)
                zs = [zload(zn) for zn in zplan(n)]
                if o.p4fix and len(zs) == 1:
                    pos = iter((b + 6, b + 10))
                    for x in seq:
                        g = next(pos) if x.kind == "dma" else None
                        wch.append((x, g, g) if g else (x, b + (5 if (bar and False) else 0), b + 15))
                    pos = iter((b + 2, b + 14))
                    for x in zs[0]:
                        g = next(pos) if x.kind == "vload" else None
                        zch.append((x, g, g) if g else (x, b, b + 16))
                else:
                    lo = b + (5 if bar else 0)
                    wch += [(x, lo, b + 15, 1 if (x.kind == "dma" and k and seq[k-1].kind == "salu") else 0)
                            for k, x in enumerate(seq)]
                    for z in zs:
                        zch += [(x, b + 1, b + 16) for x in z]
                for x in extra.get(n, []):
                    tasks.append(Task("ex", x, b + 1, b + 12, prio=2))
            tasks.append(Task("w", wch, prio=-1))
            if zch:
                tasks.append(Task("z", zch, prio=-1))
            if extra.get("tasks"):
                tasks += extra["tasks"]
            return schedule(mf, tasks, 8, self.reports, reserve=range(0, len(mf), 8), seed=o.seed, iters=40, vmw=o.vmw)

        CH = o.chk4
        pend = list(range(NH, NH + LEAD))

        def zplan_head(n):
            z = [n + 4] if n + 4 < NH else []
            if n > CH:
                k = -(-len(pend) // (NH - n))
                z += pend[:k]
                del pend[:k]
            return z
        vPC = vPO32 if o.wflag else vPO8
        ex = {0: [xl[:2]] if o.xat == 0 else [], 1: [xl[2:]] if o.xat == 0 else [], CH - 2: [[self.poll_load(vP4, S_WS, vPC, f"s{sPOLL}")]],
              CH: [self.poll_check(vP4, S_WS, vPC, f"s{sPOLL}", "1", split=True) + self.stamp(232)]}
        c += steps(0, NH, True, zplan_head, ex)
        assert not pend
        c += [I(f"s_mov_b32 s{sJ}, 0")]
        head = self.seg(c, sb, prev)

        def loop_body(sbx, pv):
            b = steps(NH, NH + NS, False, lambda n: [n + LEAD], {})
            b += [I(f"s_add_u32 s{sJ}, s{sJ}, 1"), I(f"s_cmp_lt_u32 s{sJ}, 2"), I("s_cbranch_scc1 L_p4loop")]
            return add_waits(b, sbx)
        b1 = loop_body(sb, head)
        b2 = loop_body(sb, b1)
        b1 = pad_hazards(merge_waits(b1, b2), head)
        check_hazards(b1, b1)
        b2 = b1
        print("phase 4 head / loop estimate", estimate(head), estimate(b1), file=sys.stderr)
        e = self.p4_exchange(locals(), [])
        tail = self.seg(e, sb, b2)
        return head + [I(".p2align 6"), I("L_p4loop:")] + b1 + tail

    def p4_exchange(self, L_, deferred):
        o = self.o
        ACC4, ZR, WR, vP4, vW1 = (L_[k] for k in ("ACC4", "ZR", "WR", "vP4", "vW1"))
        sEXs, sEXd, sFE, sOo = sNM2
        e = []
        A = e.append
        e += self.stamp(232)
        st = []
        for p in range(1, 4):
            A(I(f"s_add_u32 s{sT1}, s{sKQ}, {p}"))
            A(I(f"s_and_b32 s{sT1}, s{sT1}, 3"))
            A(I(f"s_mul_i32 s{sT1}, s{sT1}, {3*8192}"))
            A(I(f"s_add_u32 s{sT1}, s{sT1}, s{sEXs}"))
            A(I(f"s_add_u32 s{sT1}, s{sT1}, {(p-1)*8192}"))
            for tb in range(2):
                t0, t1 = ACC4 + ((2 * p) * 2 + tb) * 4, ACC4 + ((2 * p + 1) * 2 + tb) * 4
                d = ZR + 24 + ((p - 1) * 2 + tb) * 4
                e += self.pk_frag(d, t0, t1)
                x = I(f"buffer_store_dwordx4 {vr(d)}, v{vL16[0]}, {srd(S_WS)}, s{sT1} offen offset:{tb*1024} {o.stflag}")
                A(x)
                st.append(x)
        e += deferred
        if o.xat == 1:
            e += L_["xl"]
        for tb in range(2):
            for i in range(2):
                a = ACC4 + (i * 2 + tb) * 4
                x = XR + 4 * tb + 2 * i
                u = WR
                e += [I(f"v_accvgpr_read_b32 v{u+4}, a{x}"), I(f"v_accvgpr_read_b32 v{u+5}, a{x+1}"),
                      I(f"v_lshlrev_b32 v{u}, 16, v{u+4}"), I(f"v_and_b32 v{u+1}, 0xffff0000, v{u+4}"),
                      I(f"v_lshlrev_b32 v{u+2}, 16, v{u+5}"), I(f"v_and_b32 v{u+3}, 0xffff0000, v{u+5}")]
                e += [I(f"v_pk_add_f32 {vr(a+r,2)}, {vr(a+r,2)}, {vr(u+r,2)}") for r in (0, 2)]
        R = ZR + 48
        sX = [sZo, sWo, sTB]
        exl = []
        for p in range(3):
            A(I(f"s_add_u32 s{sX[p]}, s{sEXd}, {p*8192}"))
            exl += [I(f"buffer_load_dwordx4 {vr(R + (p*2+tb)*4)}, v{vL16[0]}, {srd(S_WS)}, s{sX[p]} offen "
                      f"offset:{tb*1024} {o.ldflag}") for tb in range(2)]
        if not o.sentinel:
            A(Need(st))
            A(I(f"buffer_store_dword v{vC1}, v{vW1}, {srd(S_WS)}, s{sFE} offen sc1"))
            A(I(f"v_and_b32 v{vW1}, 12, v{vPO8}"))
            A(self.poll_load(vP4, S_WS, vW1, f"s{sFE}"))
            A(self.poll_check(vP4, S_WS, vW1, f"s{sFE}", "1"))
            e += self.stamp(232)
            e += exl
        else:
            chk = [I(f"v_max3_u32 v{vP4}, v{R}, v{R+1}, v{R+2}")]
            chk += [I(f"v_max3_u32 v{vP4}, v{vP4}, v{R+k}, v{R+k+1}") for k in range(3, 23, 2)]
            chk += [I(f"v_max_u32 v{vP4}, v{vP4}, v{R+23}"), I(f"v_cmp_eq_u32 vcc, -1, v{vP4}")]
            slow, back = self.lab("exs"), self.lab("exb")
            tm = o.timeit == "spin"
            self.cold.append(f"{slow}:\n" + ("    s_memtime s[0:1]\n" if tm else "") +
                             f"    s_mov_b32 s{sSPIN}, {o.spin}\n{slow}_l:\n" +
                             render([I(x.text) for x in exl] + [I("s_waitcnt vmcnt(0)")] + [I(x.text) for x in chk]) +
                             f"    s_nop 1\n    s_cbranch_vccz {slow}_x\n    s_sub_u32 s{sSPIN}, s{sSPIN}, 1\n"
                             f"    s_cmp_lg_u32 s{sSPIN}, 0\n    s_cbranch_scc1 {slow}_l\n{slow}_x:\n" +
                             (f"    s_memtime s[{sM0}:{sM0+1}]\n    s_waitcnt lgkmcnt(0)\n    s_sub_u32 s0, s{sM0}, s0\n"
                              f"    s_add_u32 s{sACC}, s{sACC}, s0\n" if tm else "") + f"    s_branch {back}\n")
            if o.sentinel == 2:
                A(Need(st))
            e += exl + chk + [I(f"s_cbranch_vccnz {slow}"), I(f"{back}:")]
            e += self.stamp(232)
        for p in range(3):
            for tb in range(2):
                for k in range(4):
                    a = ACC4 + ((k >> 1) * 2 + tb) * 4 + (k & 1) * 2
                    x = R + (p * 2 + tb) * 4 + k
                    u = WR + 2 * (k & 1)
                    e += [I(f"v_lshlrev_b32 v{u}, 16, v{x}"), I(f"v_and_b32 v{u+1}, 0xffff0000, v{x}"),
                          I(f"v_pk_add_f32 {vr(a,2)}, {vr(a,2)}, {vr(u,2)}")]
        for tb in range(2):
            for i in range(2):
                a = ACC4 + (i * 2 + tb) * 4
                d = WR + 4 + 2 * (tb * 2 + i)
                e += [I(f"v_cvt_pk_bf16_f32 v{d}, v{a}, v{a+1}"), I(f"v_cvt_pk_bf16_f32 v{d+1}, v{a+2}, v{a+3}"),
                      I(f"buffer_store_dwordx2 {vr(d,2)}, v{vXo}, {srd(S_OUT)}, {'s%d' % sOo if tb else '0'} offen "
                        f"offset:{i*32}")]
        e += self.stamp(232)
        return e

    def phase4_pairs(self, L_):
        o = self.o
        (c, sb, prev, ACC4, ZR, NH, NS, LEAD, NST, DEF0, Wd, wload, zload, reads, winfix, wreg, vP4) = (
            L_[k] for k in ("c", "sb", "prev", "ACC4", "ZR", "NH", "NS", "LEAD", "NST", "DEF0", "Wd", "wload",
                            "zload", "reads", "winfix", "wreg", "vP4"))
        zreg = lambda n, tb: vr(ZR + (((n + 8) % NS) * 2 + tb) * 4)
        NP = (NST + 1) // 2
        st = lambda p: [n for n in (2 * p, 2 * p + 1) if n < NST]

        def pair_reads(p):
            rr = [sum((reads(n, wb) for n in st(p)), []) for wb in range(8)]
            batch(sum(rr[:4], []))
            batch(sum(rr[4:], []))
            return rr
        c += sum(pair_reads(0), [])
        mf, start, wbend = [], [], []
        started = set()
        deferred = []
        for p in range(NP):
            start.append(len(mf))
            ends = {}
            for wb in range(8):
                for tb in range(2):
                    d = vr(ACC4 + (wb * 2 + tb) * 4)
                    for n in st(p):
                        m = mfma(d, wreg(n, wb), zreg(n, tb), d if (wb, tb) in started else "0")
                        started.add((wb, tb))
                        (deferred if (n >= DEF0 and wb < 2) else mf).append(m)
                ends[wb] = len(mf)
            wbend.append(ends)
        start.append(len(mf))
        tasks, wch, zch, res = [], [], [], []
        CH, LZ = o.chkp, o.leadz
        pend = list(range(NH, 2 * (CH + 3) + LZ))
        vPC = vPO32 if o.wflag else vPO8
        for p in range(NP):
            b, e = start[p], start[p + 1]
            res += [b, wbend[p][3]]
            bar = p % 2 == 1 and p + 1 < NP
            if p + 1 < NP:
                rr = pair_reads(p + 1)
                fx = winfix(2 * p + 2)
                ent = []
                for wb in range(8):
                    lo = max(wbend[p][wb], b + (5 if bar else 1))
                    ent += [(x, lo, min(e, lo + 5)) for x in fx(wb) + rr[wb]]
                tasks.append(Task(f"rd{p}", ent, prio=0, tight=True))
            if bar:
                need = [Wd[k % NS] for k in range(2 * p + 2, min(2 * p + 6, NST))]
                tasks.append(Task(f"bar{p}", [Group([Need(need, lg0=True), I("s_barrier")])], b + 4, b + 4, prio=-1))
            lo = b + (5 if bar else 0)
            for n in (2 * p + LEAD, 2 * p + LEAD + 1):
                if n < NST:
                    seq = wload(n)
                    wch += [(x, lo, e - 1, 1 if (x.kind == "dma" and k and seq[k-1].kind == "salu") else 0)
                            for k, x in enumerate(seq)]
            z = [n for n in (2 * p + 4, 2 * p + 5) if n < NH]
            if CH < p < CH + 3:
                k = -(-len(pend) // (CH + 3 - p))
                z += pend[:k]
                del pend[:k]
            elif p >= CH + 3:
                z += [n for n in (2 * p + LZ, 2 * p + LZ + 1) if n < NST]
            for n in z:
                zch += [(x, b + 1, e) for x in zload(n)]
            if p == CH - 1:
                tasks.append(Task("poll", [self.poll_load(vP4, S_WS, vPC, f"s{sPOLL}")], b + 8, b + 20, prio=2))
            if p == CH:
                tasks.append(Task("chk", self.poll_check(vP4, S_WS, vPC, f"s{sPOLL}", "1", split=True) + self.stamp(232),
                                  e - 12, e - 1, prio=2))
        assert not pend
        tasks += [Task("w", wch, prio=-1), Task("z", zch, prio=-1)]
        c += schedule(mf, tasks, 8, self.reports, reserve=res, seed=o.seed, iters=12, vmw=o.vmw)
        c += self.p4_exchange(L_, deferred)
        out = self.seg(c, sb, prev)
        print("phase 4 estimate", estimate(out), file=sys.stderr)
        return out

    def build(self):
        o = self.o
        sb = Scoreboard()
        p12 = self.phase12()
        if o.stop == "p2":
            for q in range(4):
                p12 += self.epi_Q(1, q)
            p12 += [I(f"s_lshl_b32 s{sT1}, s{sB}, 2"), I(f"s_add_u32 s{sT1}, s{sT1}, s{sWAVE}"),
                    I(f"s_lshl_b32 s{sT1}, s{sT1}, 14"), I(f"s_add_u32 s{sT1}, s{sT1}, {ZC_OFF}")]
            for q in range(4):
                for ds in range(4):
                    p12.append(I(f"buffer_store_dwordx4 {ar(gQ(q, ds))}, v{vL16[q]}, {srd(S_WS)}, s{sT1} offen "
                                 f"offset:{ds*1024}"))
        code = add_waits(p12, sb)
        if o.timeit.startswith("vmw"):
            nb, k = [], 0
            for x in code:
                if x.kind == "wait" and "vmcnt" in x.text and k < 48:
                    nb += [I("s_memtime s[0:1]"), I("s_waitcnt lgkmcnt(0)"), x, I(f"s_memtime s[{sM0}:{sM0+1}]"),
                           I("s_waitcnt lgkmcnt(0)"), I(f"s_sub_u32 s0, s{sM0}, s0"), I("s_mov_b64 exec, 1"),
                           I(f"v_mov_b32 v{vPOLL2}, s0"), I(f"s_add_u32 s0, s{sST}, {4*k}"),
                           I(f"ds_write_b32 v{vC0}, v{vPOLL2} offset:{60*1024+4*k}") if False else
                           I(f"v_writelane_b32 v{vPOLL2+1}, s0, 0") if False else I("s_nop 0"),
                           I("s_mov_b64 exec, -1"), I(f"v_readlane_b32 s1, v{vPOLL2}, 0"), I("s_nop 3"),
                           I(f"v_writelane_b32 v{vPOLL2+1}, s1, {k}")]
                    print("vmwait", k, x.text, "at mfma", sum(1 for y in nb if y.kind == "mfma"), file=sys.stderr)
                    k += 1
                else:
                    nb.append(x)
            nb += [I(f"v_lshlrev_b32 v{vPOLL2}, 2, v{vLANE}"), I(f"s_add_u32 s0, s{sST}, {1<<18}"),
                   I(f"buffer_store_dword v{vPOLL2+1}, v{vPOLL2}, {srd(S_WS)}, s0 offen")]
            code = nb
        code = pad_hazards(code)
        print("phase 1/2 estimate", estimate(code), file=sys.stderr)
        if o.stop not in ("p1a", "p2"):
            a, sb3 = self.attention(sb, code)
            code += a
            if o.stop != "p3":
                code += self.phase4(sb3, code)
        if o.hold:
            code += [I("L_hold:"), I("s_memrealtime s[2:3]"), I("s_waitcnt lgkmcnt(0)"),
                     I(f"s_sub_u32 s2, s2, s{sACC}"), I("s_cmp_lt_i32 s2, 0"), I("s_cbranch_scc1 L_hold")]
        if o.stop or o.stamps:
            code.append(I("s_waitcnt vmcnt(0) lgkmcnt(0)"))
        code += [I("L_exit:"), I("s_endpgm")]
        self.code = code
        labels = {x.text for x in code if x.kind == "label"}
        import re
        cold = [c for c in self.cold if re.findall(r"s_branch (\S+)", c)[-1] + ":" in labels]
        txt = HEADER + render(code) + "".join(cold) + FOOTER
        return txt


GK0 = -2.0 * math.sqrt(2.0 / math.pi) * math.log2(math.e)
GK1 = GK0 * 0.044715
QSCALE = math.log2(math.e) / math.sqrt(128.0)
BIAS = 8.0
sQS = sGBD + 0
sQS = 3

HEADER = f"""; out = x + Attn(LN(x), c_kv) + GeGLU_FFN(LN(x)): one persistent launch, 256 workgroups (one per CU) x 4 waves.
; Hand-designed kernel; the instruction stream is laid out by the author's own list-scheduler script.
;
; Workgroup b: head h = 4*(b&7) + ((b>>3)&3), w = b>>5.  All matrix products use v_mfma_f32_16x16x32_bf16.
;     (out-of-line paths L_fix_*).  Row sums come from a ones-row MFMA on the same bf16 probabilities.
;  4. out tile 128 x 128, K = [H | ctx] split over four workgroups, partial sums exchanged through d_ws.
; Hand-offs: sc1 stores, vmcnt, then an sc1 flag word; consumers poll (bounded) and load with sc1, so any
; @launch grid=(256,1,1) block=(256,1,1) lds=163840
.amdgcn_target "amdgcn-amd-amdhsa--gfx950"
.text
.globl {KNAME}
.p2align 8
.type {KNAME},@function
{KNAME}:
"""
FOOTER = f"""    s_endpgm
.section .rodata,"a"
.p2align 6
.amdhsa_kernel {KNAME}
  .amdhsa_next_free_vgpr 512
  .amdhsa_next_free_sgpr 102
  .amdhsa_accum_offset 256
  .amdhsa_group_segment_fixed_size 0
  .amdhsa_kernarg_size 104
  .amdhsa_user_sgpr_count 2
  .amdhsa_user_sgpr_kernarg_segment_ptr 1
  .amdhsa_system_sgpr_workgroup_id_x 1
  .amdhsa_float_denorm_mode_32 3
.end_amdhsa_kernel
"""


def main():
    o = Opt()
    out = "k.s"
    for a in sys.argv[1:]:
        if "=" in a:
            k, v = a.split("=")
            if k == "out":
                out = v
            else:
                cur = getattr(o, k)
                setattr(o, k, v if (cur is None or isinstance(cur, str)) else type(cur)(int(v)))
    g = Gen(o)
    txt = g.build()
    open(out, "w").write(txt)
    for r in g.reports:
        print("sched overflow/total/gaps:", r, file=sys.stderr)


if __name__ == "__main__":
    main()
```

```python
import re

TRANS = ("v_exp_f32", "v_log_f32", "v_rcp_f32", "v_rsq_f32", "v_sqrt_f32", "v_sin_f32", "v_cos_f32")
_REG = re.compile(r"^(-?)(abs\()?([vas])(\d+)\)?$")
_RNG = re.compile(r"^(-?)([vas])\[(\d+):(\d+)\]$")


def regs_of(op):
    op = op.strip()
    m = _REG.match(op)
    if m:
        return [m.group(3) + m.group(4)]
    m = _RNG.match(op)
    if m:
        return [m.group(2) + str(i) for i in range(int(m.group(3)), int(m.group(4)) + 1)]
    if op == "vcc":
        return ["vcc"]
    if op in ("m0", "exec"):
        return [op]
    return []


class Ins:
    __slots__ = ("text", "mn", "kind", "defs", "uses", "srcc", "srcab", "wide_store", "tag", "cost", "nwait", "dpp",
                 "sgpr_uses_vmem", "target")

    def __init__(self, text, tag=None):
        self.text = text
        self.tag = tag
        t = text.split(";")[0].strip()
        self.defs, self.uses, self.srcc, self.srcab = [], [], [], []
        self.wide_store = False
        self.nwait = 1
        self.dpp = False
        self.target = None
        if t.endswith(":"):
            self.mn, self.kind, self.cost, self.nwait = t, "label", 0, 0
            return
        if t.startswith(".") or not t:
            self.mn, self.kind, self.cost, self.nwait = t, "dir", 0, 0
            return
        parts = t.split(None, 1)
        mn = parts[0]
        self.mn = mn
        rest = parts[1] if len(parts) > 1 else ""
        ops = [o.strip() for o in re.split(r",(?![^\[]*\])", rest)] if rest else []
        mods = ""
        if ops:
            sp = ops[-1].split(None, 1)
            ops[-1] = sp[0]
            mods = sp[1] if len(sp) > 1 else ""
        R = lambda i: regs_of(ops[i]) if i < len(ops) else []
        self.cost = 4
        if mn.startswith("v_mfma"):
            self.kind = "mfma"
            self.defs = R(0)
            self.srcab = R(1) + R(2)
            self.srcc = R(3)
            self.uses = self.srcab + self.srcc
            self.cost = 8
        elif mn.startswith("v_"):
            self.kind = "trans" if mn.startswith(TRANS) else "valu"
            if self.kind == "trans":
                self.cost = 8
            self.dpp = mn.endswith("_dpp")
            if mn.startswith("v_permlane"):
                self.defs = R(0) + R(1)
                self.uses = R(0) + R(1)
            elif mn.startswith(("v_add_co", "v_addc_co", "v_sub_co")):
                self.defs = R(0) + R(1)
                self.uses = sum((R(i) for i in range(2, len(ops))), [])
            else:
                self.defs = R(0)
                self.uses = sum((R(i) for i in range(1, len(ops))), [])
                if mn.startswith(("v_fmac", "v_writelane", "v_dot2c")) or self.dpp:
                    self.uses += R(0)
        elif mn.startswith("ds_read"):
            self.kind = "dsread"
            self.defs = R(0)
            self.uses = R(1)
        elif mn.startswith("ds_write"):
            self.kind = "dswrite"
            self.uses = sum((R(i) for i in range(len(ops))), [])
        elif mn.startswith("buffer_load"):
            if " lds" in " " + mods:
                self.kind = "dma"
                self.uses = sum((R(i) for i in range(len(ops))), []) + ["m0"]
            else:
                self.kind = "vload"
                self.defs = R(0)
                self.uses = sum((R(i) for i in range(1, len(ops))), [])
            self.cost = 8
        elif mn.startswith("global_load"):
            self.kind = "vload"
            self.defs = R(0)
            self.uses = sum((R(i) for i in range(1, len(ops))), [])
            self.cost = 8
        elif mn.startswith(("buffer_store", "buffer_atomic")):
            self.kind = "vstore"
            self.uses = sum((R(i) for i in range(len(ops))), [])
            self.wide_store = mn.endswith(("x3", "x4"))
            self.srcab = R(0)
            self.cost = 8
        elif mn in ("buffer_inv", "buffer_wbl2"):
            self.kind = "vstore"
        elif mn.startswith("s_load"):
            self.kind = "smem"
            self.defs = R(0)
            self.uses = R(1)
        elif mn in ("s_memtime", "s_memrealtime"):
            self.kind = "smem"
            self.defs = R(0)
        elif mn == "s_waitcnt":
            self.kind = "wait"
        elif mn == "s_nop":
            self.kind = "nop"
            self.nwait = int(ops[0]) + 1
            self.cost = 4 * self.nwait
        elif mn == "s_barrier":
            self.kind = "barrier"
        elif mn in ("s_branch",) or mn.startswith("s_cbranch"):
            self.kind = "branch"
            self.target = ops[0]
            if "vcc" in mn:
                self.uses = ["vcc"]
        elif mn == "s_endpgm":
            self.kind = "end"
        elif mn.startswith("s_"):
            self.kind = "salu"
            if mn.startswith(("s_cmp", "s_bitcmp", "s_setprio", "s_sleep")):
                self.uses = sum((R(i) for i in range(len(ops))), [])
            else:
                self.defs = R(0)
                self.uses = sum((R(i) for i in range(1, len(ops))), [])
                if mn.startswith(("s_bitset", "s_addk", "s_mulk")):
                    self.uses += R(0)
                if "saveexec" in mn:
                    self.defs = self.defs + ["exec"]
        else:
            raise ValueError("unknown instruction: " + text)

    def __repr__(self):
        return self.text


def I(text, tag=None):
    return Ins(text, tag)


VM_KINDS = ("vload", "vstore", "dma")
LG_KINDS = ("dsread", "dswrite")


class Scoreboard:
    def __init__(self):
        self.vm = []
        self.lg = []
        self.smem = False
        self.pend = {}

    def copy(self):
        s = Scoreboard()
        s.vm, s.lg, s.smem, s.pend = list(self.vm), list(self.lg), self.smem, dict(self.pend)
        return s

    def _need(self, op):
        if op.kind in VM_KINDS:
            if op in self.vm:
                return (len(self.vm) - 1 - self.vm.index(op), None)
        elif op.kind in LG_KINDS:
            if op in self.lg:
                return (None, len(self.lg) - 1 - self.lg.index(op))
        elif op.kind == "smem":
            if self.smem:
                return (None, 0)
        return (None, None)

    def wait(self, vmN, lgN):
        parts = []
        if vmN is not None and vmN < len(self.vm):
            vmN = min(vmN, 63)
            parts.append(f"vmcnt({vmN})")
            self.vm = self.vm[len(self.vm) - vmN:] if vmN else []
        if lgN is not None and (lgN < len(self.lg) or (lgN == 0 and self.smem)):
            if self.smem:
                lgN = 0
            lgN = min(lgN, 15)
            parts.append(f"lgkmcnt({lgN})")
            self.lg = self.lg[len(self.lg) - lgN:] if lgN else []
            if lgN == 0:
                self.smem = False
        if not parts:
            return None
        live = set(map(id, self.vm)) | set(map(id, self.lg))
        self.pend = {r: o for r, o in self.pend.items() if id(o) in live or (o.kind == "smem" and self.smem)}
        return I("s_waitcnt " + " ".join(parts))

    def wait_ops(self, ops, lg0=False):
        vmN = None
        lgN = 0 if lg0 else None
        ops = [y for x in ops for y in (x.tag if isinstance(x.tag, list) else [x])]
        for op in ops:
            a, b = self._need(op)
            if a is not None:
                vmN = a if vmN is None else min(vmN, a)
            if b is not None:
                lgN = b if lgN is None else min(lgN, b)
        return self.wait(vmN, lgN)

    def before(self, ins):
        ops = [self.pend[r] for r in ins.uses + ins.defs if r in self.pend]
        return self.wait_ops(ops) if ops else None

    def after(self, ins):
        if ins.kind in VM_KINDS:
            self.vm.append(ins)
        elif ins.kind in LG_KINDS:
            self.lg.append(ins)
        elif ins.kind == "smem":
            self.smem = True
        if ins.kind in ("vload", "dsread", "smem"):
            for r in ins.defs:
                self.pend[r] = ins
        if ins.kind == "wait":
            m = re.search(r"vmcnt\((\d+)\)", ins.text)
            n = re.search(r"lgkmcnt\((\d+)\)", ins.text)
            self.wait(int(m.group(1)) if m else None, int(n.group(1)) if n else None)


class Group:
    kind = "group"

    def __init__(self, instrs):
        self.instrs = instrs
        self.cost = sum(i.cost for i in instrs)


def flatten(seq):
    out = []
    for x in seq:
        if x.kind == "group":
            out += flatten(x.instrs)
        else:
            out.append(x)
    return out


class Need:
    kind = "need"
    cost = 4
    nwait = 0
    defs = uses = ()

    def __init__(self, ops, lg0=False):
        self.ops = ops
        self.lg0 = lg0

    def resolve(self):
        out = []
        for o in self.ops:
            o = o() if callable(o) else o
            out += o if isinstance(o, (list, tuple)) else [o]
        return out


def add_waits(seq, sb):
    out = []
    seq = flatten(seq)
    n = len(seq)
    i = 0
    start = True
    while i < n:
        ins = seq[i]
        if start:
            ops = []
            j = i
            while j < n:
                x = seq[j]
                if x.kind in ("label", "branch", "barrier", "need", "wait", "dir", "smem"):
                    break
                ops += [sb.pend[r] for r in list(x.uses) + list(x.defs) if r in sb.pend]
                if x.kind == "mfma" or j - i > 6:
                    break
                j += 1
            if ops:
                w = sb.wait_ops(ops)
                if w:
                    out.append(w)
            start = False
        i += 1
        if ins.kind == "need":
            w = sb.wait_ops(ins.resolve(), ins.lg0)
            if w:
                out.append(w)
            continue
        if ins.kind in ("label", "dir"):
            out.append(ins)
            start = True
            continue
        w = sb.before(ins)
        if w:
            out.append(w)
        if ins.kind in VM_KINDS and len(sb.vm) >= 62:
            out.append(sb.wait(46, None))
        out.append(ins)
        sb.after(ins)
        if ins.kind == "mfma":
            start = True
        if len(sb.vm) > 63:
            raise RuntimeError("more than 63 vm ops outstanding at " + ins.text)
    return out


def batch(ops):
    for o in ops:
        o.tag = ops
    return ops


def _isv(r):
    return r[0] in "va" and r != "vcc"


def _iss(r):
    return (r[0] == "s") or r == "vcc"


def hazard_dist(p, c):
    need = 0
    pk, ck = p.kind, c.kind
    pv = pk in ("valu", "trans")
    cv = ck in ("valu", "trans")
    D = set(p.defs)
    if pv:
        dv = {r for r in D if _isv(r)}
        ds = {r for r in D if _iss(r)}
        if dv:
            if ck == "mfma" and dv & set(c.uses):
                need = max(need, 2)
            if cv and dv & set(c.uses):
                if c.mn.startswith("v_permlane") or c.dpp:
                    need = max(need, 2)
                if c.mn.startswith(("v_readfirstlane", "v_readlane")):
                    need = max(need, 1)
                if pk == "trans" and ck != "trans":
                    need = max(need, 1)
                if pk == "trans" and ck == "trans":
                    need = max(need, 1)
        if ds:
            if cv and ds & set(c.uses):
                need = max(need, 4 if c.mn.startswith(("v_readlane", "v_writelane")) else 2)
            if ck in ("vload", "vstore", "dma") and ds & set(c.uses):
                need = max(need, 5)
            if ck in ("salu", "branch") and ds & set(c.uses):
                need = max(need, 1)
    if pk == "mfma":
        if ck == "mfma":
            if D & set(c.srcab):
                need = max(need, 8)
            ov = D & set(c.srcc)
            if ov and list(c.srcc) != list(p.defs):
                need = max(need, 6)
        elif cv or ck in ("vload", "vstore", "dma", "dsread", "dswrite"):
            if D & (set(c.uses) | set(c.defs)):
                need = max(need, 8)
        if cv and set(p.srcc) & set(c.defs):
            need = max(need, 3)
    if pk == "salu" and "m0" in D and (ck == "dma" or (cv and "m0" in c.uses)):
        need = max(need, 4 if cv else 1)
    if pk == "vstore" and p.wide_store and set(p.srcab) & set(c.defs):
        need = max(need, 2)
    return need


WINDOW = 10
import os as _os
ROUNDS = int(_os.environ.get("ROUNDS", "4"))


def pad_hazards(seq, prev=()):
    hist = [x for x in prev if x.nwait]
    out = []
    for ins in seq:
        if ins.kind in ("label", "dir"):
            out.append(ins)
            continue
        dist = 0
        short = 0
        for p in reversed(hist[-WINDOW:]):
            n = hazard_dist(p, ins)
            if n > dist:
                short = max(short, n - dist)
            dist += p.nwait
            if dist >= WINDOW:
                break
        if short:
            nop = I(f"s_nop {short - 1}")
            out.append(nop)
            hist.append(nop)
        out.append(ins)
        hist.append(ins)
    return out


def check_hazards(prev, seq):
    a = [x for x in seq if x.kind not in ("label", "dir")][:WINDOW + 2]
    p = pad_hazards(a, prev)
    if len(p) != len(a):
        raise RuntimeError("hazard on edge into: " + " | ".join(x.text for x in p))


class Task:
    def __init__(self, name, instrs, lo=None, hi=None, prio=1, tight=False, thi=None):
        self.name, self.instrs, self.lo, self.hi, self.prio, self.tight = name, instrs, lo, hi, prio, tight
        self.thi = thi


SCALAR = ("salu", "wait", "nop", "branch", "barrier", "need", "smem")


class Item:
    __slots__ = ("ins", "lo", "hi", "mind", "tgt", "task", "idx", "gap", "n", "rank", "flat", "lds")

    def __init__(self, ins, lo, hi, mind, tgt, task, idx):
        self.ins, self.lo, self.hi, self.mind, self.tgt, self.task, self.idx = ins, lo, hi, mind, tgt, task, idx
        self.gap = None
        flat = [x for x in flatten([ins]) if x.kind not in ("label", "dir")]
        self.flat = flat
        n = {"s": 0, "d": 0, "v": 0, "t": 0, "m": 0}
        for x in flat:
            k = x.kind
            if k in SCALAR:
                n["s"] += 1
            elif k in LG_KINDS:
                n["d"] += 1
            elif k == "trans":
                n["t"] += 1
            elif k in VM_KINDS:
                n["m"] += 1
            else:
                n["v"] += 1
        self.n = n
        self.lds = sum((2 if "b128" in x.mn else 1) for x in flat if x.kind in LG_KINDS)
        if ins.kind == "group" or ins.kind == "need":
            self.rank = 0 if not (n["d"] or n["v"] or n["t"] or n["m"]) else (1 if not n["t"] else 4)
        elif n["s"]:
            self.rank = 0
        elif n["d"]:
            self.rank = 1
        elif n["m"]:
            self.rank = 2
        elif n["v"]:
            self.rank = 3
        else:
            self.rank = 4


def _dep(a, b):
    if a.ins.kind in ("group", "need", "barrier", "branch") or b.ins.kind in ("group", "need", "barrier", "branch"):
        return True
    if a.n["s"] and b.n["s"]:
        return True
    if (a.n["d"] or a.n["m"]) and (b.n["d"] or b.n["m"]):
        return True
    for x in a.flat:
        for y in b.flat:
            if set(x.defs) & (set(y.uses) | set(y.defs)) or set(x.uses) & set(y.defs):
                return True
    return False


def order_gap(items):
    out = []
    rest = sorted(items, key=lambda it: (it.rank, it.task.prio, getattr(it.task, 'num', 0), it.idx))
    while rest:
        for k, it in enumerate(rest):
            if not any(o is not it and o.task is it.task and o.idx < it.idx and _dep(o, it) for o in rest):
                out.append(rest.pop(k))
                break
    return out


def gap_cost(items, reserved=False):
    if not items:
        return 0
    seq = [x for it in order_gap(items) for x in it.flat]
    t = 4 if reserved else 0
    free_scalar = not reserved
    v = 0
    seen_valu = seen_trans = False
    nval = 0
    for x in seq:
        k = x.kind
        if k in SCALAR:
            if k == "need":
                pass
            if free_scalar and v == 0:
                free_scalar = False
            else:
                v += 1
        elif k in LG_KINDS:
            v += 1 + (2 if seen_valu else 0) + (2 if seen_trans else 0)
        elif k == "trans":
            v += 2
            seen_trans = True
        elif k in VM_KINDS:
            v += 2 + (0 if free_scalar else 1) + (1 if seen_valu else 0)
            free_scalar = False
        else:
            v += 1
            nval += 1
            seen_valu = True
    c = max(0, v - 2) * 4
    if nval == 2 and v == 2:
        c += 1
    return c


def schedule(mf, tasks, budget=8, overflow_report=None, reserve=(), iters=4000, seed=1, vmsp=4, vmw=8, ldw=0):
    import random
    rnd = random.Random(seed)
    n = len(mf)
    reserve = set(reserve)
    slots = [[] for _ in range(n + 1)]
    cost = [0] * (n + 1)
    vm = [0] * (n + 1 + 2 * vmsp)
    chains = []

    def vmpen(g, k):
        if not k:
            return 0
        p = 0
        for d in range(1, vmsp):
            p += (vm[vmsp + g - d] + vm[vmsp + g + d]) * (vmsp - d)
        return vmw * k * (p + vm[vmsp + g] * vmsp)

    ld = [0] * (n + 5)

    def ldpen(g, k):
        if not k or not ldw:
            return 0
        f = lambda a, b, c: max(0, a + b + c - 5) + max(0, b + c - 3) * 0.5 + max(0, c - 2) * 0.5
        i = g + 2
        tot = 0
        for d in range(3):
            x = [ld[i + d - 2], ld[i + d - 1], ld[i + d]]
            before = f(*x)
            x[2 - d] += k
            tot += f(*x) - before
        return ldw * tot

    for num, t in enumerate(tasks):
        t.num = num
    for t in sorted(tasks, key=lambda t: t.prio):
        k = len(t.instrs)
        items = []
        for i, e in enumerate(t.instrs):
            if isinstance(e, tuple):
                ins, lo, hi = e[:3]
                mind = e[3] if len(e) > 3 else 0
                lo = t.lo if lo is None else lo
                hi = t.hi if hi is None else hi
                tgt = lo if (t.tight or t.lo is None) else max(lo, min(hi, t.lo + int(i * (t.hi - t.lo + 1) / k)))
            else:
                ins, lo, hi, mind = e, t.lo, t.hi, 0
                tgt = lo if t.tight else lo + int(i * ((t.thi or hi) - lo + 1) / k)
            items.append(Item(ins, max(0, lo), min(n, hi), mind, tgt, t, i))
        for i in range(k - 2, -1, -1):
            items[i].hi = min(items[i].hi, items[i + 1].hi - items[i + 1].mind)
        cur = -1
        for i, it in enumerate(items):
            lo = max(it.lo, (cur + it.mind) if i else it.lo)
            if lo > it.hi:
                raise RuntimeError(f"empty window for task {t.name}[{i}]: {lo}..{it.hi}")
            tgt = min(max(it.tgt, lo), it.hi)
            span = 6 if not t.tight else 3
            best = None
            for g in range(max(lo, tgt - (0 if t.tight else 2)), min(it.hi, tgt + span) + 1):
                d = gap_cost(slots[g] + [it], g in reserve) - cost[g] + vmpen(g, it.n["m"]) + ldpen(g, it.lds)
                key = (d, abs(g - tgt))
                if best is None or key < best[0]:
                    best = (key, g)
            g = best[1]
            it.gap = g
            slots[g].append(it)
            vm[vmsp + g] += it.n["m"]
            ld[g + 2] += it.lds
            cost[g] = gap_cost(slots[g], g in reserve)
            cur = g
        chains.append(items)
    allit = [(c, i) for c in chains for i in range(len(c))]

    def rng(c, i):
        it = c[i]
        lo = max(it.lo, c[i - 1].gap + it.mind) if i else it.lo
        hi = min(it.hi, c[i + 1].gap - c[i + 1].mind) if i + 1 < len(c) else it.hi
        return lo, hi

    def move(it, g):
        slots[it.gap].remove(it)
        vm[vmsp + it.gap] -= it.n["m"]
        ld[it.gap + 2] -= it.lds
        ld[g + 2] += it.lds
        cost[it.gap] = gap_cost(slots[it.gap], it.gap in reserve)
        it.gap = g
        slots[g].append(it)
        vm[vmsp + g] += it.n["m"]
        cost[g] = gap_cost(slots[g], g in reserve)

    def delta(it, g):
        g0 = it.gap
        m = it.n["m"]
        rest = [x for x in slots[g0] if x is not it]
        vm[vmsp + g0] -= m
        ld[g0 + 2] -= it.lds
        d = (gap_cost(slots[g] + [it], g in reserve) - cost[g] + vmpen(g, m) + ldpen(g, it.lds)
             - (cost[g0] - gap_cost(rest, g0 in reserve)) - vmpen(g0, m) - ldpen(g0, it.lds))
        vm[vmsp + g0] += m
        ld[g0 + 2] += it.lds
        return d

    def is_hot(it):
        if cost[it.gap] > 0:
            return True
        if it.lds and ldw:
            ld[it.gap + 2] -= it.lds
            p = ldpen(it.gap, it.lds)
            ld[it.gap + 2] += it.lds
            if p > 0:
                return True
        m = it.n["m"]
        if not m:
            return False
        vm[vmsp + it.gap] -= m
        p = vmpen(it.gap, m)
        vm[vmsp + it.gap] += m
        return p > 0

    for rounds in range(iters):
        hot = [(c, i) for (c, i) in allit if is_hot(c[i])]
        if not hot:
            break
        improved = False
        rnd.shuffle(hot)
        for c, i in hot:
            it = c[i]
            if not is_hot(it):
                continue
            lo, hi = rng(c, i)
            g0 = it.gap
            best = None
            for g in range(max(lo, g0 - 24), min(hi, g0 + 24) + 1):
                if g == g0:
                    continue
                key = (delta(it, g), abs(g - it.tgt))
                if best is None or key < best[0]:
                    best = (key, g)
            if best and best[0][0] < 0:
                move(it, best[1])
                improved = True
        if not improved:
            for _ in range(min(200 if n < 200 else 1500, 4 * len(allit))):
                c, i = rnd.choice(allit)
                it = c[i]
                lo, hi = rng(c, i)
                if hi <= lo:
                    continue
                g = rnd.randint(max(lo, it.gap - 3), min(hi, it.gap + 3))
                if g != it.gap and delta(it, g) <= 0:
                    move(it, g)
            if rounds > ROUNDS and n > 200:
                break
            if rounds > 300:
                break
    out = []
    for g in range(n + 1):
        out += [it.ins for it in order_gap(slots[g])]
        if g < n:
            out.append(mf[g])
    if overflow_report is not None:
        pen = 0
        for g in range(n + 1):
            m = vm[vmsp + g]
            vm[vmsp + g] = 0
            pen += vmpen(g, m) + vmw * vmsp * m * (m - 1) // 2
        overflow_report.append((sum(cost), pen, n))
    return out


def estimate(seq):
    tot = 0
    cur = []

    class T:
        prio = 0
    for x in seq:
        if x.kind in ("label", "dir"):
            continue
        if x.kind == "mfma":
            tot += 16 + gap_cost([Item(Group(cur), 0, 0, 0, 0, T, 0)] if cur else [])
            cur = []
        else:
            cur.append(x)
    return tot + 4 * len(cur)


def render(seq):
    lines = []
    for ins in seq:
        if ins.kind == "label":
            lines.append(ins.text)
        elif ins.kind == "dir":
            lines.append(ins.text)
        else:
            lines.append("    " + ins.text)
    return "\n".join(lines) + "\n"


def verify_order(ref, got):
    def scan(seq):
        last, seen = {}, {}
        for x in flatten(seq):
            if x.kind in ("label", "dir", "need", "wait", "nop"):
                continue
            seen[id(x)] = (x, tuple((r, last.get(r)) for r in x.uses if r != "vcc" or True))
            for r in x.defs:
                last[r] = id(x)
        return seen, last
    a, la = scan(ref)
    b, lb = scan(got)
    assert set(a) == set(b), "instruction sets differ: " + str([a[k][0].text for k in set(a) - set(b)] +
                                                                [b[k][0].text for k in set(b) - set(a)])
    for k in a:
        if a[k][1] != b[k][1]:
            bad = [(r, a.get(p, [None])[0], b.get(q, [None])[0]) for (r, p), (_, q) in zip(a[k][1], b[k][1]) if p != q]
            raise RuntimeError(f"order violated for {a[k][0].text}: {bad}")
    for r in la:
        if la[r] != lb[r]:
            raise RuntimeError(f"last writer of {r} differs")


def merge_waits(x, y):
    def split(seq):
        out, w = [], {}
        for i in seq:
            if i.kind == "wait":
                for nm, v in re.findall(r"(vmcnt|lgkmcnt)\((\d+)\)", i.text):
                    w[nm] = min(w.get(nm, 99), int(v))
            else:
                out.append((w, i))
                w = {}
        return out
    a, b = split(x), split(y)
    assert [i.text for _, i in a] == [i.text for _, i in b], "loop bodies differ in more than waits"
    out = []
    for (wa, i), (wb, _) in zip(a, b):
        w = {k: min(wa.get(k, 99), wb.get(k, 99)) for k in set(wa) | set(wb)}
        if w:
            out.append(I("s_waitcnt " + " ".join(f"{k}({w[k]})" for k in ("vmcnt", "lgkmcnt") if k in w)))
        out.append(i)
    return out
```

```python
import math
import struct
import sys

from asmir import (I, Ins, Group, Need, Task, Scoreboard, add_waits, pad_hazards, check_hazards, schedule, render,
                   flatten, batch, estimate, verify_order, merge_waits)

KNAME = "parallel_sum__compressed_kv_cla__geglu_ffn__prompt_kernel"


class Opt:
    stop = None
    stamps = 0
    G = 4
    NS = 10
    LEAD = 6
    spin = 1 << 20
    prefetch = 34
    xnslope = 88
    xn0 = 600
    vmw = 8
    rot = 4
    pfcode = 8
    lead4 = 8
    chk4 = 8
    G12 = 4
    lead12 = 13
    st_lo = 575
    st_hi = 1480
    seed = 1
    budget = 8
    timeit = ""
    pro2 = 1
    gbhi = 1810
    q0hi = 1860
    g2 = 1
    ga0 = 1386
    ga1 = 1645
    gb1 = 1790
    gaprio = 3
    lnth = 2
    own = 1
    outflag = ""
    p2hi = 0
    kvq = 1750
    kvd = 80
    wmode = 2
    toksh = 20
    pre2 = 0
    p4v = 3
    defer = 9
    chkp = 3
    leadz = 6
    wsoff = 0
    lnpos = 1
    lnstart = 20
    pfpos = 1
    wflg = "sc1"
    pa = 130
    pb = 300
    pc = 343
    p2early = 0
    rot4 = 0
    xat = 2
    hold = 0
    holdat = "start"
    xnchk = 566
    pfxw = 40
    tokmode = 0
    lnlate = 0
    wflag = 1
    vmwa = 4
    tune = 1
    ldw = 4
    ldw12 = 0
    gearly = 0
    ge0 = 460
    gestep = 30
    delay = 0
    sentinel = 2
    p4fix = 1
    unroll = 1
    gfake = 0
    wdist = 2
    wwin = 7
    xnsrc = 0
    stampat = "160,512,1024,1408,1916"
    drop = ""
    stflag = "sc1"
    ldflag = "sc1"


def fbits(x):
    return "0x%08x" % struct.unpack("<I", struct.pack("<f", x))[0]


XN_OFF = 0
KF_OFF = 2 << 20
VF_OFF = 18 << 20
ZC_OFF = 34 << 20
ZH_OFF = 50 << 20
FL_OFF = 56 << 20
FL_XN, FL_KV, FL_H, FL_C = FL_OFF, FL_OFF + 1024, FL_OFF + 5120, FL_OFF + 6144
FL_E = FL_OFF + 7168
FL_CW = FL_OFF + 7168
TS_OFF = 57 << 20
EX_OFF = 64 << 20
WS_SIZE = 72 << 20
OOB = 0x7FFFFF00

S_X, S_CKV, S_WQ, S_WUK, S_WUV, S_WO, S_WG, S_WU, S_WD, S_OUT, S_DBG, S_WS = range(4, 52, 4)
S_KV = S_WU
S_ZH = S_CKV
S_ZC = S_WQ
sWAVE, sH, sW, sB, sT0, sW2K, sTOKB, sKFB, sVFB = range(52, 61)
sXN = [61, 62, 63, 64]
sZH = [65, 66, 67, 68]
sZC = [69, 70, 71, 72]
sT1, sT2, sT3 = 73, 74, 75
sM0, sM1 = 76, 78
sEV = 80
sJ, sSOFF, sWR, sRD = 82, 83, 84, 85
sNM1 = [86, 87, 88, 89]
sNM2 = [90, 91, 92, 93]
sFXN, sFKV, sFH, sFC = 94, 95, 96, 97
sSPIN, sGBD, sPOLL = sT3, 99, 100
sST = 101
sJL = 65
sKQ, sTB, sCB, sTID, sZo, sWo = 58, 59, 60, 64, 94, 95
vWo4 = [243, 244]
vZ4 = [241, 242]
vXo, XR = 252, 208
sMASK, sSP = 61, 62
sK2 = [80, 81, 82, 85]
sACC = 98
TS = 2


def srd(b):
    return f"s[{b}:{b+3}]"


def vr(b, n=4):
    return f"v[{b}:{b+n-1}]" if n > 1 else f"v{b}"


def ar(b, n=4):
    return f"a[{b}:{b+n-1}]" if n > 1 else f"a{b}"


MF = "v_mfma_f32_16x16x32_bf16"


def mfma(d, a, b, c):
    return I(f"{MF} {d}, {a}, {b}, {c}")


ACC = [0, 64, 128]
WFB = [192, 200, 208, 220]
PK = [216, 220, 224]
vG0, vG1, vGK = 228, 229, 230
vPOLL = 231
vRD = [232, 233, 234, 235]
vRD64 = [236, 237]
vRD32 = 238
vWO = [239, 240]
vGA = [241, 242]
vGB = [243, 244]
vTRD = [241, 242]
vL16 = [245, 246, 247, 248]
vONE = 249
vPO32 = 250
vPO8 = 251
vGBS = 252
vC0, vC1 = 253, 254
vLANE = 255
vPOLL2 = 229
vX16 = [216, 217, 218, 219]
vTO = list(range(128, 136))
vLN = 136
vPFW = 226
LNBUF = 7 * 8192
TOKB = 65536
HV = dict(K0=(0, 1), K1=(2, 3), V0=(4, 5), V1=(1, 3), GA=(0, 5), GB=(3, 3), Q0=(2, 4), Q1=(1, 0))


def areg(ps, wb, tb):
    if ps == "Q1":
        return (wb >> 1) * 32 + (tb * 2 + (wb & 1)) * 4
    t = 4 * wb + tb
    return 32 * HV[ps][t >> 3] + 4 * (t & 7)


aO = lambda db, q: 64 + (q * 8 + db) * 4
aS = lambda q, kb: (q * 2 + kb) * 4
aC = lambda q, kb: 32 + (q * 2 + kb) * 4
aP = lambda q: 192 + q * 4
aE = [208, 216, 224]
vOR, vOR2 = 232, 233
vARD = 234
vDM = [236, 237]
vT = [238, 239, 240, 233]
vHP = 241
vHO = 242
sHB = 99
gQ = lambda q, ds: ds * 16 + q * 4
gK = lambda kb, ds: 64 + (kb * 4 + ds) * 4
gV = lambda db: 96 + db * 4
gL = lambda q: 128 + q * 4
gONE = 144
TF = lambda tb, ks: (ks * 4 + tb) * 4


class Gen:
    def __init__(self, opt):
        self.o = opt
        self.out = []
        self.cold = []
        self.nlab = 0
        self.reports = []
        self.nstamp = 0

    def lab(self, p):
        self.nlab += 1
        return f"L_{p}_{self.nlab}"

    def stamp(self, vt=None):
        if not self.o.stamps:
            return []
        vt = vPOLL if vt is None else vt
        k = self.nstamp
        self.nstamp += 1
        if self.o.stamps == 2:
            g = [I(f"s_memrealtime s[{sT2}:{sT2+1}]"), I("s_waitcnt lgkmcnt(0)"), I(f"v_mov_b32 v{vt}, s{sT2}"),
                 I(f"buffer_atomic_umax v{vt}, v{vONE}, {srd(S_DBG)}, 0 offen offset:{8+4*k} sc1"), I("s_nop 1")]
            if k == 0:
                g += [I(f"v_not_b32 v{vt}, v{vt}"),
                      I(f"buffer_atomic_umax v{vt}, v{vONE}, {srd(S_DBG)}, 0 offen offset:4 sc1"), I("s_nop 1")]
            return [Group(g)]
        return [Group([I(f"s_memtime s[{TS}:{TS+1}]"), I(f"s_memrealtime s[{sT2}:{sT2+1}]"),
                       I("s_waitcnt lgkmcnt(0)"), I("s_mov_b64 exec, 1"),
                       I(f"v_mov_b32 v{vt}, s{TS}"),
                       I(f"s_add_u32 s{TS}, s{sST}, {k*4}"),
                       I(f"buffer_store_dword v{vt}, v{vC0}, {srd(S_WS)}, s{TS} offen"),
                       I("s_nop 1"),
                       I(f"v_mov_b32 v{vt}, s{sT2}"),
                       I(f"buffer_store_dword v{vt}, v{vC0}, {srd(S_WS)}, s{TS} offen offset:64"),
                       I("s_nop 1"),
                       I(f"v_mov_b32 v{vt}, s{sACC}"),
                       I(f"buffer_store_dword v{vt}, v{vC0}, {srd(S_WS)}, s{TS} offen offset:128"),
                       I("s_nop 1"), I("s_mov_b64 exec, -1")])]

    def holdmark(self, name):
        if not self.o.hold or self.o.holdat != name:
            return []
        return [Group([I(f"s_memrealtime s[{sM0}:{sM0+1}]"), I("s_waitcnt lgkmcnt(0)"),
                       I(f"s_add_u32 s{sACC}, s{sM0}, {self.o.hold}")])]

    def timed(self, seq):
        if self.o.stamps != 1 or (self.o.timeit == "spin"):
            return seq
        return [I("s_memtime s[0:1]")] + seq + [I(f"s_memtime s[{sM0}:{sM0+1}]"), I("s_waitcnt lgkmcnt(0)"),
                                                I(f"s_sub_u32 s0, s{sM0}, s0"), I(f"s_add_u32 s{sACC}, s{sACC}, s0")]

    def poll_check(self, vreg, srdb, voff, soff, val, cmp="ne", split=False):
        slow, back = self.lab("spin"), self.lab("back")
        tm = self.o.timeit == "spin"
        t0 = "    s_memtime s[0:1]\n" if tm else ""
        ret = back
        if tm:
            ret = slow + "_x"
        x = f"""{ret}:
    s_memtime s[{sM0}:{sM0+1}]
    s_waitcnt lgkmcnt(0)
    s_sub_u32 s0, s{sM0}, s0
    s_add_u32 s{sACC}, s{sACC}, s0
    s_branch {back}
""" if tm else ""
        self.cold.append(f"""{slow}:
{t0}    s_mov_b32 s{sSPIN}, {self.o.spin}
{slow}_l:
    buffer_load_dword v{vreg}, v{voff}, {srd(srdb)}, {soff} offen sc1
    s_waitcnt vmcnt(0)
    v_cmp_{cmp}_u32 vcc, {val}, v{vreg}
    s_nop 1
    s_cbranch_vccz {ret}
    s_sub_u32 s{sSPIN}, s{sSPIN}, 1
    s_cmp_lg_u32 s{sSPIN}, 0
    s_cbranch_scc1 {slow}_l
    s_branch {ret}
{x}""")
        a, b = I(f"v_cmp_{cmp}_u32 vcc, {val}, v{vreg}"), Group([I(f"s_cbranch_vccnz {slow}"), I(f"{back}:")])
        return [a, (b, None, None, 2)] if split else Group([a, b])

    def poll_load(self, vreg, srdb, voff, soff):
        return I(f"buffer_load_dword v{vreg}, v{voff}, {srd(srdb)}, {soff} offen sc1")

    def setup(self):
        c = []
        A = c.append
        A(I("s_cmp_ge_u32 s2, 256"))
        A(I("s_cbranch_scc1 L_exit"))
        ptrs = [(S_CKV, 8, 2097152), (S_WUK, 24, 4194304), (S_X, 0, 2097152), (S_WS, 96, WS_SIZE), (S_DBG, 88, 256),
                (S_WUV, 32, 4194304), (S_WQ, 16, 4194304), (S_WO, 40, 4194304), (S_WG, 56, 1409024),
                (S_WU, 64, 1409024), (S_WD, 72, 1409024), (S_OUT, 80, 2097152)]
        for b, off, n in ptrs:
            A(I(f"s_load_dwordx2 s[{b}:{b+1}], s[0:1], {off}"))
        A(I(f"v_and_b32 v{vLANE}, 63, v0"))
        A(I("v_lshrrev_b32 v1, 6, v0"))
        A(I(f"s_mov_b32 s{sB}, s2"))
        if self.o.hold and self.o.holdat == "start":
            A(I("s_memrealtime s[2:3]"))
            A(I("s_waitcnt lgkmcnt(0)"))
            A(I(f"s_add_u32 s{sACC}, s2, {self.o.hold}"))
        if self.o.delay:
            A(I(f"s_mov_b32 s{sT0}, {self.o.delay}"))
            A(I("L_delay:"))
            A(I("s_nop 15")); A(I("s_nop 15")); A(I("s_nop 15")); A(I("s_nop 15"))
            A(I(f"s_sub_u32 s{sT0}, s{sT0}, 1"))
            A(I(f"s_cmp_lg_u32 s{sT0}, 0"))
            A(I("s_cbranch_scc1 L_delay"))
        A(I(f"v_readfirstlane_b32 s{sWAVE}, v1"))
        if self.o.pfcode & 8:
            c += self.prefetch_code(va=22)
        for b, off, n in ptrs:
            A(I(f"s_mov_b32 s{b+2}, {n}"))
            A(I(f"s_mov_b32 s{b+3}, 0x20000"))
        A(I(f"s_and_b32 s{sT0}, s{sB}, 7"))
        A(I(f"s_lshl_b32 s{sT0}, s{sT0}, 2"))
        A(I(f"s_bfe_u32 s{sT1}, s{sB}, 0x20003"))
        A(I(f"s_add_u32 s{sH}, s{sT0}, s{sT1}"))
        A(I(f"s_lshr_b32 s{sW}, s{sB}, 5"))
        A(I(f"s_lshl_b32 s{sW2K}, s{sWAVE}, 11"))
        A(I(f"s_mul_i32 s{sTOKB}, s{sWAVE}, 24576"))
        A(I(f"s_add_u32 s{sTOKB}, s{sTOKB}, {TOKB}"))
        A(I(f"s_add_u32 s{sT0}, s{sH}, s{sW}"))
        if self.o.rot == 4:
            A(I(f"s_mul_i32 s{sT1}, s{sT0}, 86"))
            A(I(f"s_lshr_b32 s{sT1}, s{sT1}, 8"))
            A(I(f"s_mul_i32 s{sT1}, s{sT1}, 3"))
            A(I(f"s_sub_u32 s{sT0}, s{sT0}, s{sT1}"))
            A(I(f"s_mov_b32 s{sK2[0]}, 0"))
            for i in range(1, 4):
                A(I(f"s_add_u32 s{sT1}, s{sT0}, {i - 1}"))
                A(I(f"s_sub_u32 s{sT2}, s{sT1}, 3"))
                A(I(f"s_min_u32 s{sT1}, s{sT1}, s{sT2}"))
                A(I(f"s_add_u32 s{sT1}, s{sT1}, 1"))
                A(I(f"s_lshl_b32 s{sK2[i]}, s{sT1}, 8"))
        elif self.o.rot == 5:
            A(I(f"s_and_b32 s{sT0}, s{sT0}, 3"))
            A(I(f"s_and_b32 s{sT1}, s{sT0}, 1"))
            A(I(f"s_lshl_b32 s{sK2[0]}, s{sT1}, 8"))
            A(I(f"s_xor_b32 s{sK2[3]}, s{sK2[0]}, 256"))
            A(I(f"s_lshr_b32 s{sT1}, s{sT0}, 1"))
            A(I(f"s_add_u32 s{sT1}, s{sT1}, 2"))
            A(I(f"s_lshl_b32 s{sK2[1]}, s{sT1}, 8"))
            A(I(f"s_xor_b32 s{sK2[2]}, s{sK2[1]}, 256"))
        else:
            if self.o.rot == 2:
                A(I(f"s_lshl_b32 s{sT0}, s{sT0}, 1"))
            A(I(f"s_and_b32 s{sT0}, s{sT0}, {self.o.rot}"))
            for i in range(4):
                A(I(f"s_add_u32 s{sT1}, s{sT0}, {i}"))
                A(I(f"s_and_b32 s{sT1}, s{sT1}, 3"))
                A(I(f"s_lshl_b32 s{sK2[i]}, s{sT1}, 8"))
        L = vLANE
        A(I(f"v_lshrrev_b32 v1, 3, v{L}"))
        A(I(f"v_lshrrev_b32 v2, 4, v{L}"))
        A(I(f"v_and_b32 v3, 7, v{L}"))
        A(I(f"s_lshl_b32 s{sT0}, s{sW}, 2"))
        A(I(f"s_add_u32 s{sT0}, s{sT0}, s{sWAVE}"))
        A(I(f"s_lshl_b32 s{sT0}, s{sT0}, 16"))
        A(I(f"v_xor_b32 v4, v3, v2"))
        A(I(f"v_lshlrev_b32 v5, 10, v1"))
        A(I(f"v_lshl_add_u32 v6, v4, 4, v5"))
        A(I(f"v_add_u32 v{vTO[0]}, s{sT0}, v6"))
        A(I(f"v_xor_b32 v7, 64, v{vTO[0]}"))
        for p in range(1, 8):
            src = 7 if p & 1 else vTO[0]
            A(I(f"v_add_u32 v{vTO[p]}, {p*8192 - (p&3)*1024}, v{src}"))
        A(I(f"v_lshrrev_b32 v8, 5, v{L}"))
        A(I(f"v_and_b32 v9, 3, v1"))
        A(I(f"v_lshl_add_u32 v9, v8, 3, v9"))
        A(I(f"s_lshr_b32 s{sT0}, s{sWAVE}, 1"))
        A(I(f"s_lshl_b32 s{sT0}, s{sT0}, 5"))
        A(I(f"s_and_b32 s{sT1}, s{sWAVE}, 1"))
        A(I(f"s_lshl_b32 s{sT1}, s{sT1}, 2"))
        A(I(f"s_add_u32 s{sT0}, s{sT0}, s{sT1}"))
        A(I(f"v_add_u32 v9, s{sT0}, v9"))
        A(I(f"v_lshlrev_b32 v10, 1, v2"))
        A(I(f"v_xor_b32 v10, v3, v10"))
        A(I(f"v_lshlrev_b32 v10, 4, v10"))
        A(I(f"s_lshl_b32 s{sT0}, s{sH}, 8"))
        A(I(f"v_lshl_add_u32 v11, v9, 13, v10"))
        A(I(f"v_add_u32 v{vWO[0]}, s{sT0}, v11"))
        A(I(f"v_add_u32 v{vWO[1]}, {16*8192-1024}, v{vWO[0]}"))
        A(I(f"v_mov_b32 v{vC0}, 0"))
        A(I(f"v_mov_b32 v{vC1}, 1"))
        if self.o.stamps == 1:
            A(I(f"s_lshl_b32 s{sST}, s{sB}, 2"))
            A(I(f"s_add_u32 s{sST}, s{sST}, s{sWAVE}"))
            A(I(f"s_lshl_b32 s{sST}, s{sST}, 8"))
            A(I(f"s_mov_b32 s{sACC}, 0"))
            A(I(f"s_add_u32 s{sST}, s{sST}, {TS_OFF}"))
        self.n_first = len(c)
        A(I(f"s_lshl_b32 s{sT0}, s{sB}, 2"))
        A(I(f"s_add_u32 s{sT0}, s{sT0}, s{sWAVE}"))
        A(I(f"s_lshl_b32 s{sT0}, s{sT0}, 11"))
        A(I(f"v_and_b32 v12, 31, v{L}"))
        A(I(f"v_lshlrev_b32 v13, 10, v8"))
        A(I(f"v_lshl_add_u32 v13, v12, 4, v13"))
        A(I(f"v_add_u32 v{vLN+32}, s{sT0}, v13"))
        A(I(f"v_mov_b32 v14, {OOB}"))
        A(I("v_cmp_eq_u32 vcc, 0, v0"))
        A(I(f"v_lshlrev_b32 v{vPO32}, 2, v12"))
        A(I(f"v_lshlrev_b32 v{vPO8}, 2, v3"))
        A(I(f"v_cndmask_b32 v{vONE}, v14, v{vC0}, vcc"))
        A(I(f"s_lshr_b32 s{sT0}, s{sB}, 4"))
        A(I(f"s_sub_u32 s{sT1}, 15, s{sT0}"))
        A(I(f"s_min_u32 s{sT1}, s{sT0}, s{sT1}"))
        A(I(f"s_lshl_b32 s{sT1}, s{sT1}, 7"))
        A(I(f"s_lshr_b32 s{sT0}, s{sB}, 7"))
        A(I(f"s_lshl_b32 s{sT0}, s{sT0}, 4"))
        A(I(f"s_and_b32 s{sT2}, s{sB}, 15"))
        A(I(f"s_add_u32 s{sT0}, s{sT0}, s{sT2}"))
        A(I(f"s_lshl_b32 s{sT0}, s{sT0}, 2"))
        A(I(f"s_add_u32 s{sFXN}, s{sT0}, s{sT1}"))
        A(I(f"s_add_u32 s{sFXN}, s{sFXN}, {FL_XN}"))
        A(I(f"s_lshl_b32 s{sT0}, s{sH}, 7"))
        A(I(f"s_lshl_b32 s{sT1}, s{sW}, 2"))
        A(I(f"s_add_u32 s{sFKV}, s{sT0}, s{sT1}"))
        A(I(f"s_add_u32 s{sFKV}, s{sFKV}, {FL_KV}"))
        A(I(f"s_lshl_b32 s{sT0}, s{sW}, 7"))
        A(I(f"s_lshl_b32 s{sT1}, s{sH}, 2"))
        A(I(f"s_add_u32 s{sT0}, s{sT0}, s{sT1}"))
        A(I(f"s_add_u32 s{sFH}, s{sT0}, {FL_H}"))
        A(I(f"s_add_u32 s{sFC}, s{sT0}, {FL_C}"))
        return c

    def setup2(self):
        c = []
        A = c.append
        L = vLANE
        t = vLN + 24
        g, i16 = t, t + 1
        A(I(f"v_lshrrev_b32 v{g}, 4, v{L}"))
        A(I(f"v_and_b32 v{i16}, 15, v{L}"))
        A(I(f"v_lshrrev_b32 v{t+2}, 2, v{i16}"))
        A(I(f"v_lshl_add_u32 v{t+2}, v{g}, 2, v{t+2}"))
        A(I(f"v_and_b32 v{t+3}, 3, v{i16}"))
        A(I(f"v_lshlrev_b32 v{t+3}, 3, v{t+3}"))
        A(I(f"v_bfe_u32 v{t+4}, v{t+2}, 1, 2"))
        A(I(f"v_lshlrev_b32 v{t+4}, 5, v{t+4}"))
        A(I(f"v_lshl_add_u32 v{t+5}, v{t+2}, 7, v{t+3}"))
        A(I(f"v_add_u32 v{vRD[0]}, v{t+5}, v{t+4}"))
        for cb in range(1, 4):
            A(I(f"v_xor_b32 v{vRD[cb]}, {cb*32}, v{vRD[0]}"))
        A(I(f"v_and_b32 v{t+4}, 1, v{g}"))
        A(I(f"v_lshlrev_b32 v{t+4}, 5, v{t+4}"))
        A(I(f"v_lshl_add_u32 v{t+5}, v{t+2}, 6, v{t+3}"))
        A(I(f"v_add_u32 v{vRD64[0]}, v{t+5}, v{t+4}"))
        A(I(f"v_xor_b32 v{vRD64[1]}, 32, v{vRD64[0]}"))
        A(I(f"v_lshl_add_u32 v{vRD32}, v{t+2}, 5, v{t+3}"))
        A(I(f"v_lshrrev_b32 v{t+4}, 1, v{i16}"))
        A(I(f"v_xor_b32 v{t+4}, v{g}, v{t+4}"))
        A(I(f"v_lshlrev_b32 v{t+4}, 4, v{t+4}"))
        A(I(f"v_lshl_add_u32 v{t+4}, v{i16}, 7, v{t+4}"))
        A(I(f"v_add_u32 v{vTRD[0]}, s{sTOKB}, v{t+4}"))
        A(I(f"v_xor_b32 v{vTRD[1]}, 64, v{vTRD[0]}"))
        A(I(f"v_lshlrev_b32 v{vL16[0]}, 4, v{L}"))
        for i in range(1, 4):
            A(I(f"v_add_u32 v{vL16[i]}, {4096*i}, v{vL16[0]}"))
        return c

    def setup3(self):
        c = []
        A = c.append
        L = vLANE
        A(I(f"s_lshl_b32 s{sT1}, s{sH}, 6"))
        A(I(f"s_lshl_b32 s{sT2}, s{sW}, 3"))
        A(I(f"s_add_u32 s{sT1}, s{sT1}, s{sT2}"))
        A(I(f"s_lshl_b32 s{sT2}, s{sWAVE}, 1"))
        A(I(f"s_add_u32 s{sT1}, s{sT1}, s{sT2}"))
        A(I(f"s_lshl_b32 s{sT1}, s{sT1}, 13"))
        A(I(f"s_add_u32 s{sKFB}, s{sT1}, {KF_OFF}"))
        A(I(f"s_add_u32 s{sVFB}, s{sT1}, {VF_OFF}"))
        B = sNM2
        A(I(f"s_sub_u32 s{sT1}, 15, s{sW}"))
        A(I(f"s_lshl_b32 s{sT1}, s{sT1}, 3"))
        A(I(f"s_lshl_b32 s{sT2}, s{sW}, 3"))
        A(I(f"s_sub_u32 s{sT3}, 7, s{sWAVE}"))
        A(I(f"s_add_u32 s{B[0]}, s{sT1}, s{sT3}"))
        A(I(f"s_add_u32 s{B[1]}, s{sT1}, s{sWAVE}"))
        A(I(f"s_add_u32 s{B[2]}, s{sT2}, s{sT3}"))
        A(I(f"s_add_u32 s{B[3]}, s{sT2}, s{sWAVE}"))
        for q in range(4):
            A(I(f"s_lshl_b32 s{sXN[q]}, s{B[q]}, 14"))
            if XN_OFF:
                A(I(f"s_add_u32 s{sXN[q]}, s{sXN[q]}, {XN_OFF}"))
            A(I(f"s_lshr_b32 s{sT1}, s{B[q]}, 2"))
            A(I(f"s_and_b32 s{sT2}, s{B[q]}, 3"))
            A(I(f"s_lshl_b32 s{sT2}, s{sT2}, 10"))
            A(I(f"s_mul_i32 s{sZH[q]}, s{sT1}, {43*4096}"))
            A(I(f"s_add_u32 s{sZH[q]}, s{sZH[q]}, s{sT2}"))
            A(I(f"s_lshl_b32 s{sT3}, s{sH}, 12"))
            A(I(f"s_add_u32 s{sZH[q]}, s{sZH[q]}, s{sT3}"))
            A(I(f"s_add_u32 s{sZH[q]}, s{sZH[q]}, {ZH_OFF}"))
            A(I(f"s_lshl_b32 s{sZC[q]}, s{sT1}, 19"))
            A(I(f"s_add_u32 s{sZC[q]}, s{sZC[q]}, s{sT2}"))
            A(I(f"s_lshl_b32 s{sT3}, s{sH}, 14"))
            A(I(f"s_add_u32 s{sZC[q]}, s{sZC[q]}, s{sT3}"))
            A(I(f"s_add_u32 s{sZC[q]}, s{sZC[q]}, {ZC_OFF}"))
        A(I(f"s_lshr_b32 s{sT1}, s{sH}, 1"))
        A(I(f"s_add_u32 s{sT1}, s{sT1}, 32"))
        A(I(f"s_sub_u32 s{sT1}, s{sT1}, s{sH}"))
        A(I(f"s_lshl_b32 s{sGBD}, s{sT1}, 12"))
        if not self.o.timeit.startswith("vmw"):
            A(I(f"v_mov_b32 v{vGK}, {fbits(GK1)}"))
        for i in range(4):
            A(I(f"s_lshl_b32 s{sT1}, s{sK2[i]}, 4"))
            A(I(f"v_add_u32 v{vX16[i]}, s{sT1}, v{vL16[0]}"))
        return c

    def setup4(self):
        c = []
        A = c.append
        A(Group([I(f"s_cmp_lt_u32 s{sWAVE}, 2"), I(f"s_cselect_b32 s{S_WG}, s{S_WG}, s{S_WU}"),
                 I(f"s_cselect_b32 s{S_WG+1}, s{S_WG+1}, s{S_WU+1}")]))
        L = vLANE
        t = vLN + 24
        A(I(f"v_lshrrev_b32 v{t}, 4, v{L}"))
        A(I(f"v_bfe_u32 v{t+1}, v{L}, 2, 2"))
        A(I(f"v_lshl_add_u32 v{t+1}, v{t}, 3, v{t+1}"))
        A(I(f"s_and_b32 s{sT1}, s{sWAVE}, 1"))
        A(I(f"s_lshl_b32 s{sT2}, s{sT1}, 5"))
        A(I(f"v_add_u32 v{t+1}, s{sT2}, v{t+1}"))
        A(I(f"v_mul_u32_u24 v{t+1}, 2752, v{t+1}"))
        A(I(f"v_and_b32 v{t}, 1, v{t}"))
        A(I(f"v_lshlrev_b32 v{t}, 1, v{t}"))
        A(I(f"v_and_b32 v{t+2}, 3, v{L}"))
        A(I(f"v_xor_b32 v{t}, v{t}, v{t+2}"))
        A(I(f"v_lshl_add_u32 v{t}, v{t}, 4, v{t+1}"))
        A(I(f"s_lshl_b32 s{sT2}, s{sH}, 6"))
        A(I(f"v_add_u32 v{vGA[0]}, s{sT2}, v{t}"))
        A(I(f"v_add_u32 v{vGA[1]}, {4*2752-1024}, v{vGA[0]}"))
        A(I(f"v_bfe_u32 v{t}, v{L}, 3, 2"))
        A(I(f"v_bfe_u32 v{t+1}, v{L}, 1, 2"))
        A(I(f"v_lshl_add_u32 v{t}, v{t}, 3, v{t+1}"))
        A(I(f"v_lshrrev_b32 v{t+1}, 5, v{L}"))
        A(I(f"v_lshl_add_u32 v{t}, v{t+1}, 2, v{t}"))
        A(I(f"s_lshl_b32 s{sT2}, s{sT1}, 6"))
        A(I(f"v_add_u32 v{t}, s{sT2}, v{t}"))
        A(I(f"v_mul_u32_u24 v{t}, 2752, v{t}"))
        A(I(f"v_and_b32 v{t+1}, 1, v{L}"))
        A(I(f"v_lshl_add_u32 v{t}, v{t+1}, 4, v{t}"))
        A(I(f"s_min_u32 s{sT2}, s{sH}, 21"))
        A(I(f"s_lshl_b32 s{sT2}, s{sT2}, 5"))
        A(I(f"s_add_u32 s{sT2}, s{sT2}, 2048"))
        A(Group([I(f"s_cmp_lt_u32 s{sH}, 22"), I(f"s_cselect_b32 s{sT2}, s{sT2}, {OOB}")]))
        A(I(f"v_add_u32 v{vGB[0]}, s{sT2}, v{t}"))
        A(I(f"v_add_u32 v{vGB[1]}, {32*2752-1024}, v{vGB[0]}"))
        A(I(f"s_and_b32 s{sT2}, s{sH}, 1"))
        A(I(f"s_lshl_b32 s{sT2}, s{sT2}, 3"))
        A(Group([I(f"s_cmp_lt_u32 s{sH}, 22"), I(f"s_cselect_b32 s{sT2}, s{sT2}, {OOB}")]))
        A(I(f"v_add_u32 v{vGBS}, s{sT2}, v{vL16[0]}"))
        return c

    def ln_compute(self):
        R = vLN
        X = vLN + 8
        t = vLN + 24
        c = []
        A = c.append
        for i in range(8):
            A(I(f"v_lshlrev_b32 v{X+2*i}, 16, v{R+i}"))
            A(I(f"v_and_b32 v{X+2*i+1}, 0xffff0000, v{R+i}"))

        def reduce32(r):
            for sh in (8, 4, 2, 1):
                A(I(f"v_add_f32_dpp v{r}, v{r}, v{r} row_ror:{sh} row_mask:0xf bank_mask:0xf"))
            A(I(f"v_mov_b32 v{t+7}, v{r}"))
            A(I(f"v_permlane16_swap_b32 v{r}, v{t+7}"))
            A(I(f"v_add_f32 v{r}, v{r}, v{t+7}"))
        A(I(f"v_add_f32 v{t}, v{X}, v{X+1}"))
        A(I(f"v_add_f32 v{t+1}, v{X+2}, v{X+3}"))
        for i in range(4, 16, 2):
            A(I(f"v_add_f32 v{t}, v{t}, v{X+i}"))
            A(I(f"v_add_f32 v{t+1}, v{t+1}, v{X+i+1}"))
        A(I(f"v_add_f32 v{t}, v{t}, v{t+1}"))
        reduce32(t)
        A(I(f"v_mul_f32 v{t}, {fbits(1.0/512)}, v{t}"))
        for i in range(16):
            A(I(f"v_sub_f32 v{X+i}, v{X+i}, v{t}"))
        A(I(f"v_mul_f32 v{t+1}, v{X}, v{X}"))
        A(I(f"v_mul_f32 v{t+2}, v{X+1}, v{X+1}"))
        for i in range(2, 16, 2):
            A(I(f"v_fmac_f32 v{t+1}, v{X+i}, v{X+i}"))
            A(I(f"v_fmac_f32 v{t+2}, v{X+i+1}, v{X+i+1}"))
        A(I(f"v_add_f32 v{t+1}, v{t+1}, v{t+2}"))
        reduce32(t + 1)
        A(I(f"v_mul_f32 v{t+1}, {fbits(1.0/512)}, v{t+1}"))
        A(I(f"v_cvt_pk_bf16_f32 v{t+2}, v{t}, v{t+1}"))
        A(I(f"v_and_b32 v{t+3}, 0xffff0000, v{t+2}"))
        A(I(f"v_lshlrev_b32 v{t+2}, 16, v{t+2}"))
        A(I(f"v_add_f32 v{t+3}, {fbits(1e-5)}, v{t+3}"))
        A(I(f"v_cvt_pk_bf16_f32 v{t+3}, v{t+3}, v{t+3}"))
        A(I(f"v_and_b32 v{t+3}, 0xffff0000, v{t+3}"))
        A(I(f"v_sqrt_f32 v{t+3}, v{t+3}"))
        A(I(f"v_sub_f32 v{t+2}, v{t}, v{t+2}"))
        A(I(f"v_cvt_pk_bf16_f32 v{t+3}, v{t+3}, v{t+3}"))
        A(I(f"v_and_b32 v{t+3}, 0xffff0000, v{t+3}"))
        A(I(f"v_rcp_f32 v{t+3}, v{t+3}"))
        A(I(f"v_and_b32 v{t+4}, 31, v{vLANE}"))
        A(I(f"v_lshrrev_b32 v{t+5}, 5, v{vLANE}"))
        A(I(f"v_mul_f32 v{t+2}, v{t+2}, v{t+3}"))
        A(I(f"v_lshl_add_u32 v{t+4}, v{t+4}, 3, v{t+5}"))
        A(I(f"s_lshl_b32 s{sT1}, s{sWAVE}, 5"))
        A(I(f"s_add_u32 s{sT1}, s{sT1}, {LNBUF}"))
        A(I(f"v_lshl_add_u32 v{t+4}, v{t+4}, 4, s{sT1}"))
        for i in range(16):
            A(I(f"v_fma_f32 v{X+i}, v{X+i}, v{t+3}, v{t+2}"))
        for i in range(8):
            A(I(f"v_cvt_pk_bf16_f32 v{R+i}, v{X+2*i}, v{X+2*i+1}"))
        A(I(f"ds_write_b128 v{t+4}, {vr(R)}"))
        A(I(f"ds_write_b128 v{t+4}, {vr(R+4)} offset:4096"))
        return c

    def ln_store(self):
        R = vLN
        t = vLN + 24
        c = []
        A = c.append
        A(I(f"s_lshl_b32 s{sT1}, s{sWAVE}, 11"))
        A(I(f"s_add_u32 s{sT1}, s{sT1}, {LNBUF}"))
        A(I(f"v_add_u32 v{t}, s{sT1}, v{vL16[0]}"))
        A(I(f"ds_read_b128 {vr(R)}, v{t}"))
        A(I(f"ds_read_b128 {vr(R+4)}, v{t} offset:1024"))
        A(I(f"v_lshrrev_b32 v{t+1}, 3, v{vLANE}"))
        A(I(f"v_and_b32 v{t+2}, 7, v{vLANE}"))
        A(I(f"v_lshlrev_b32 v{t+2}, 4, v{t+2}"))
        A(I(f"v_lshl_add_u32 v{t+1}, v{t+1}, 8, v{t+2}"))
        A(I(f"s_lshr_b32 s{sT1}, s{sB}, 1"))
        A(I(f"s_lshl_b32 s{sT1}, s{sT1}, 14"))
        A(I(f"s_and_b32 s{sT2}, s{sB}, 1"))
        A(I(f"s_lshl_b32 s{sT2}, s{sT2}, 7"))
        A(I(f"s_add_u32 s{sT1}, s{sT1}, s{sT2}"))
        A(I(f"s_lshl_b32 s{sT2}, s{sWAVE}, 12"))
        A(I(f"s_add_u32 s{sT1}, s{sT1}, s{sT2}"))
        if XN_OFF:
            A(I(f"s_add_u32 s{sT1}, s{sT1}, {XN_OFF}"))
        A(I(f"v_add_u32 v{t+1}, s{sT1}, v{t+1}"))
        st = [I(f"buffer_store_dwordx4 {vr(R)}, v{t+1}, {srd(S_WS)}, 0 offen sc1"),
              I(f"buffer_store_dwordx4 {vr(R+4)}, v{t+1}, {srd(S_WS)}, 0 offen offset:2048 sc1")]
        return c + st, st

    def tiles(self):
        T = []
        for c in range(8):
            for half in range(2):
                T.append(dict(typ="R128", srd=S_WUK, kc=c, col=half * 128, vo=vWO, acc=f"K{half}", swap=False,
                              ks0=2 * c, first=(c == 0)))
        for c in range(8):
            for half in range(2):
                T.append(dict(typ="R128", srd=S_WUV, kc=c, col=half * 128, vo=vWO, acc=f"V{half}", swap=True,
                              ks0=2 * c, first=(c == 0)))
        for c in range(4):
            for cc in (2 * c, 2 * c + 1):
                T.append(dict(typ="R64", srd=S_WG, kc=cc, col=0, vo=vGA, acc="GA", swap=False, ks0=2 * cc,
                              first=(cc == 0)))
            T.append(dict(typ="R32", srd=S_WG, kc=2 * c, col=0, vo=vGB, acc="GB", swap=False, ks0=4 * c,
                          first=(c == 0)))
        for half in range(2):
            for c in range(8):
                T.append(dict(typ="R128", srd=S_WQ, kc=c, col=half * 128, vo=vWO, acc=f"Q{half}", swap=False,
                              ks0=2 * c, first=(c == 0)))
        return T

    def tile_dma(self, t):
        fake = self.o.gfake and t["typ"] != "R128" and (self.o.gfake == 1 or t["typ"] == "R32")
        if fake:
            t = t
            vo, sr = vWO, S_WQ
        else:
            vo, sr = t["vo"], t["srd"]
        ops = [I(f"buffer_load_dwordx4 v{vo[p]}, {srd(sr)}, s{sT0} offen offset:{p*1024} {self.o.wflg} lds")
               for p in range(2)]
        t["dma"] = ops
        stride = 8192 if (t["typ"] == "R128" or fake) else 2752
        kc = t["kc"]
        so = [I(f"s_mul_i32 s{sT0}, s{sK2[kc >> 1]}, {stride // 2}")]
        add = (kc & 1) * 64 * stride + t["col"]
        if add:
            so.append(I(f"s_add_u32 s{sT0}, s{sT0}, {add}"))
        return so + [I(f"s_add_u32 m0, s{sW2K}, {t['slot']}"), ops[0], ops[1]]

    def unit_reads(self, t, u, buf):
        base = t["slot"] & 0xffff
        r = []
        for k in range(2):
            for a in range(2):
                d = WFB[buf] + 4 * k + 2 * a
                if t["typ"] == "R128":
                    addr, off = vRD[u], base + k * 4096 + a * 2048
                elif t["typ"] == "R64":
                    addr, off = vRD64[u & 1], base + (u >> 1) * 4096 + k * 2048 + a * 1024
                else:
                    addr, off = vRD32, base + (u & 1) * 4096 + (2 * (u >> 1) + k) * 1024 + a * 512
                r.append(I(f"ds_read_b64_tr_b16 {vr(d,2)}, v{addr} offset:{off}"))
        return batch(r)

    def unit_mfma(self, t, u, buf):
        m = []
        if t["typ"] == "R32":
            wb, ksb, first = u & 1, t["ks0"] + 2 * (u >> 1), t["first"] and u < 2
        else:
            wb, ksb, first = u, t["ks0"], t["first"]
        for tb in range(4):
            d = vr(areg(t["acc"], wb, tb))
            for k in range(2):
                wf, tf = vr(WFB[buf] + 4 * k), ar(TF(tb, ksb + k))
                a, b = (tf, wf) if t["swap"] else (wf, tf)
                m.append(mfma(d, a, b, "0" if (first and k == 0) else d))
        return m

    def tok_dma(self, c):
        ops = [I(f"buffer_load_dwordx4 v{vTO[p]}, {srd(S_CKV)}, s{sT0} offen offset:{(p&3)*1024} {self.o.wflg} lds") for p in range(8)]
        seq = [I(f"s_add_u32 s{sT0}, s{sK2[c >> 1]}, {(c & 1) * 128}")]
        for p in range(8):
            if p & 3 == 0:
                seq.append(I(f"s_add_u32 m0, s{sTOKB}, {(c%3)*8192 + (p>>2)*4096}"))
            seq.append(ops[p])
        return seq, ops

    def tok_reads(self, c):
        return batch([I(f"ds_read_b128 {ar(TF(tb, 2*c+k))}, v{vTRD[k]} offset:{(c%3)*8192 + tb*2048}")
                      for k in range(2) for tb in range(4)])

    def pk_frag(self, d, t0, t1):
        return [I(f"v_cvt_pk_bf16_f32 v{d}, v{t0}, v{t0+1}"), I(f"v_cvt_pk_bf16_f32 v{d+1}, v{t0+2}, v{t0+3}"),
                I(f"v_cvt_pk_bf16_f32 v{d+2}, v{t1}, v{t1+1}"), I(f"v_cvt_pk_bf16_f32 v{d+3}, v{t1+2}, v{t1+3}")]

    def epi_K(self, half):
        c, st = [], []
        ps = f"K{half}"
        for tb in range(4):
            for d2 in range(2):
                p = areg(ps, d2, tb)
                c += self.pk_frag(p, areg(ps, 2 * d2, tb), areg(ps, 2 * d2 + 1, tb))
                st.append(I(f"buffer_store_dwordx4 {vr(p)}, v{vL16[tb]}, {srd(S_WS)}, s{sKFB} offen "
                            f"offset:{(2*half+d2)*1024} {self.o.stflag}"))
        return c, st

    def epi_V(self, half):
        c, st = [], []
        ps = f"V{half}"
        for wb in range(4):
            for sp in range(2):
                p = areg(ps, wb & 1, 2 * sp + (wb >> 1))
                c += self.pk_frag(p, areg(ps, wb, 2 * sp), areg(ps, wb, 2 * sp + 1))
                st.append(I(f"buffer_store_dwordx4 {vr(p)}, v{vL16[2*sp+half]}, {srd(S_WS)}, s{sVFB} offen "
                            f"offset:{wb*1024} {self.o.stflag}"))
        return c, st

    def gelu4(self, g, u, vG0=vG0, vG1=vG1):
        c = []
        for i in (0, 2):
            a, b = g + i, g + i + 1
            c += [I(f"v_mul_f32 v{vG0}, v{a}, v{a}"), I(f"v_mul_f32 v{vG1}, v{b}, v{b}"),
                  I(f"v_fmaak_f32 v{vG0}, v{vG0}, v{vGK}, {fbits(GK0)}"),
                  I(f"v_fmaak_f32 v{vG1}, v{vG1}, v{vGK}, {fbits(GK0)}"),
                  I(f"v_mul_f32 v{vG0}, v{vG0}, v{a}"), I(f"v_mul_f32 v{vG1}, v{vG1}, v{b}"),
                  I(f"v_exp_f32 v{vG0}, v{vG0}"), I(f"v_exp_f32 v{vG1}, v{vG1}"),
                  I(f"v_mul_f32 v{a}, v{a}, v{u+i}"), I(f"v_mul_f32 v{b}, v{b}, v{u+i+1}"),
                  I(f"v_add_f32 v{vG0}, 1.0, v{vG0}"), I(f"v_add_f32 v{vG1}, 1.0, v{vG1}"),
                  I(f"v_rcp_f32 v{vG0}, v{vG0}"), I(f"v_rcp_f32 v{vG1}, v{vG1}"),
                  I(f"v_mul_f32 v{a}, v{a}, v{vG0}"), I(f"v_mul_f32 v{b}, v{b}, v{vG1}")]
        return c

    def epi_GA(self):
        c, st = [], []
        for tb in range(4):
            T = lambda wb: areg("GA", wb, tb)
            c += self.gelu4(T(0), T(2)) + self.gelu4(T(1), T(3))
            p = T(0)
            c += self.pk_frag(p, T(0), T(1))
            s = I(f"buffer_store_dwordx4 {vr(p)}, v{vL16[0]}, {srd(S_WS)}, s{sZH[tb]} offen {self.o.stflag}")
            c.append(s)
            st.append(s)
        return c, st

    def epi_GB(self):
        c, st = [], []
        for tb in range(4):
            g, u = areg("GB", 0, tb), areg("GB", 1, tb)
            c += self.gelu4(g, u)
            p = g
            c += [I(f"v_cvt_pk_bf16_f32 v{p}, v{g}, v{g+1}"), I(f"v_cvt_pk_bf16_f32 v{p+1}, v{g+2}, v{g+3}")]
            s = I(f"buffer_store_dwordx2 {vr(p,2)}, v{vGBS}, {srd(S_WS)}, s{sT3} offen {self.o.stflag}")
            c.append(Group([I(f"s_add_u32 s{sT3}, s{sZH[tb]}, s{sGBD}"), s]))
            st.append(s)
        return c, st

    def epi_Q(self, half, q):
        c = []
        for d2 in range(2):
            t0, t1 = areg(f"Q{half}", 2 * d2, q), areg(f"Q{half}", 2 * d2 + 1, q)
            for r in list(range(t0, t0 + 4)) + list(range(t1, t1 + 4)):
                c.append(I(f"v_mul_f32 v{r}, s{sQS}, v{r}"))
            p = t0
            c += self.pk_frag(p, t0, t1)
            for r in range(4):
                c.append(I(f"v_accvgpr_write_b32 a{gQ(q, 2*half+d2)+r}, v{p+r}"))
        return c

    def flag_store(self, s):
        return I(f"buffer_store_dword v{vC1}, v{vONE}, {srd(S_WS)}, s{s} offen sc1")

    def att_setup(self):
        c = []
        A = c.append
        A(I(f"s_lshl_b32 s{sT1}, s{sH}, 19"))
        A(I(f"s_and_b32 s{sT2}, s{sWAVE}, 1"))
        A(I(f"s_lshl_b32 s{sT2}, s{sT2}, 12"))
        A(I(f"s_add_u32 s{sT1}, s{sT1}, s{sT2}"))
        A(I(f"s_lshl_b32 s{sT3}, s{sW}, 2"))
        A(I(f"s_sub_u32 s{sT3}, 64, s{sT3}"))
        A(I(f"s_lshl_b32 s{sT3}, s{sT3}, 13"))
        A(I(f"s_sub_u32 s{sT3}, s{sT3}, s{sT2}"))
        A(Group([I(f"s_cmp_lt_u32 s{sWAVE}, 2"), I(f"s_cselect_b32 s{sT2}, {VF_OFF - KF_OFF - 16384}, 0")]))
        A(I(f"s_add_u32 s{sT1}, s{sT1}, s{sT2}"))
        A(I(f"s_add_u32 s{sT1}, s{sT1}, {KF_OFF + 16384}"))
        A(Group([I(f"s_cmp_lt_u32 s{sWAVE}, 2"), I(f"s_cselect_b32 s{sT2}, 0, 16384")]))
        A(I(f"s_sub_u32 s{S_KV+2}, s{sT3}, s{sT2}"))
        A(Group([I(f"s_add_u32 s{S_KV}, s{S_WS}, s{sT1}"), I(f"s_addc_u32 s{S_KV+1}, s{S_WS+1}, 0")]))
        A(I(f"s_lshr_b32 s{sT1}, s{sWAVE}, 1"))
        A(I(f"s_sub_u32 s{sT2}, 3, s{sT1}"))
        A(I(f"s_lshl_b32 s{sT3}, s{sW}, 2"))
        A(I(f"s_add_u32 s{sNM1[3]}, s{sT3}, s{sT1}"))
        A(I(f"s_add_u32 s{sNM1[2]}, s{sT3}, s{sT2}"))
        A(I(f"s_sub_u32 s{sT3}, 60, s{sT3}"))
        A(I(f"s_add_u32 s{sNM1[1]}, s{sT3}, s{sT1}"))
        A(I(f"s_add_u32 s{sNM1[0]}, s{sT3}, s{sT2}"))
        for q in range(4):
            A(I(f"s_sub_u32 s{sNM2[q]}, s{sNM1[q]}, 1"))
        return c

    def att_events(self):
        c = []
        A = c.append
        m = sum(1 << j for j in range(0, 64, self.o.G))
        A(I(f"s_mov_b32 s{sEV}, {m & 0xffffffff:#x}"))
        A(I(f"s_mov_b32 s{sEV+1}, {m >> 32:#x}"))
        m = (1 << (2 * self.o.G)) | (1 << (3 * self.o.G))
        A(I(f"s_lshl_b32 s{sJL}, s{sW}, 2"))
        A(I(f"s_sub_u32 s{sJL}, 60, s{sJL}"))
        A(I(f"s_mov_b32 s{sSP}, {m:#x}"))
        A(I(f"s_mov_b32 s{sSP+1}, 0"))
        A(I(f"s_mov_b32 s{sMASK}, 0x40004000"))
        for q in range(4):
            A(I(f"s_bitset1_b64 s[{sSP}:{sSP+1}], s{sNM1[q]}"))
            A(I(f"s_bitset1_b64 s[{sSP}:{sSP+1}], s{sNM2[q]}"))
        A(I(f"s_bitset1_b64 s[{sSP}:{sSP+1}], s{sJL}"))
        A(I(f"s_or_b64 s[{sEV}:{sEV+1}], s[{sEV}:{sEV+1}], s[{sSP}:{sSP+1}]"))
        return c

    def att_dma(self, tile=None):
        return [I(f"buffer_load_dwordx4 v{vL16[0]}, {srd(S_KV)}, s{sSOFF} offen offset:{p*1024} {self.o.ldflag} lds")
                for p in range(4)]

    def pf_load(self, voff, sr, soff="0", dst=None):
        x = I(f"buffer_load_dword {dst or 'v%d' % vG0}, v{voff}, {srd(sr)}, {soff} offen")
        x.defs = []
        return x

    def prefetch0(self):
        L = vLANE
        t = 16
        c = [I(f"v_lshrrev_b32 v{t}, 1, v{L}"), I(f"v_and_b32 v{t+1}, 1, v{L}"),
             I(f"s_lshl_b32 s{sT1}, s{sW}, 2"), I(f"s_add_u32 s{sT1}, s{sT1}, s{sWAVE}"),
             I(f"s_lshl_b32 s{sT2}, s{sT1}, 17"), I(f"s_lshl_b32 s{sT3}, s{sH}, 8"),
             I(f"s_add_u32 s{sT2}, s{sT2}, s{sT3}"),
             I(f"v_lshlrev_b32 v{t}, 13, v{t}"), I(f"v_lshl_add_u32 v{t}, v{t+1}, 7, v{t}"),
             I(f"v_add_u32 v{t}, s{sT2}, v{t}"),
             I(f"v_mov_b32 v{t+2}, {OOB}"), I(f"v_cmp_gt_u32 vcc, 32, v{L}"),
             I(f"s_lshl_b32 s{sT1}, s{sT1}, 16"), I(f"s_and_b32 s{sT3}, s{sH}, 3"),
             I(f"v_cndmask_b32 v{vPFW}, v{t+2}, v{t}, vcc"),
             I(f"s_lshl_b32 s{sT3}, s{sT3}, 14"), I(f"s_add_u32 s{sT1}, s{sT1}, s{sT3}"),
             I(f"s_add_u32 s{sT1}, s{sT1}, {3*128}"),
             I(f"v_and_b32 v{t}, 15, v{L}"), I(f"v_lshrrev_b32 v{t+1}, 4, v{L}"),
             I(f"v_lshlrev_b32 v{t}, 10, v{t}"), I(f"v_lshl_add_u32 v{t}, v{t+1}, 7, v{t}"),
             I(f"v_add_u32 v{vPFW+1}, s{sT1}, v{t}")]
        return c, self.pf_load(vPFW + 1, S_CKV), self.pf_load(vPFW, S_WUK)

    def prefetch_code(self, lo=None, hi="L_exit", dst=None, va=20, st=sT1):
        pc = self.lab("pc")
        lo = lo or KNAME
        if lo == KNAME:
            adj = [I(f"s_sub_u32 s{sM0}, s{sM0}, {pc}-{lo}"), I(f"s_subb_u32 s{sM0+1}, s{sM0+1}, 0")]
        else:
            adj = [I(f"s_add_u32 s{sM0}, s{sM0}, {lo}-{pc}"), I(f"s_addc_u32 s{sM0+1}, s{sM0+1}, 0")]
        c = [Group([I(f"s_getpc_b64 s[{sM0}:{sM0+1}]"), I(f"{pc}:")] + adj),
             I(f"s_lshr_b32 s{st}, s{sB}, 3"), I(f"s_lshl_b32 s{st}, s{st}, 2"),
             I(f"s_add_u32 s{st}, s{st}, s{sWAVE}"), I(f"s_lshl_b32 s{st}, s{st}, 10"),
             I(f"v_lshlrev_b32 v{va}, 4, v{vLANE}"), I(f"v_add_u32 v{va}, s{st}, v{va}"),
             I(f"v_min_u32 v{va}, {hi}-{lo}-16, v{va}"), I(f"v_mov_b32 v{va+1}, s{sM0+1}"),
             Group([I(f"v_add_co_u32 v{va}, vcc, s{sM0}, v{va}"), I(f"v_addc_co_u32 v{va+1}, vcc, 0, v{va+1}, vcc")])]
        x = I(f"global_load_dwordx4 {dst or vr(172)}, v[{va}:{va+1}], off")
        if dst and dst.startswith("a"):
            x.defs = []
        return c + [x]

    def ex_prefill(self):
        D = WFB[3]
        c = [I(f"v_mov_b32 v{D+r}, -1") for r in range(4)]
        c += [I(f"s_bfe_u32 s{sT1}, s{sB}, 0x10002"), I(f"s_lshl_b32 s{sT1}, s{sT1}, 5"),
              I(f"s_lshr_b32 s{sT2}, s{sB}, 3"), I(f"s_add_u32 s{sT1}, s{sT1}, s{sT2}"),
              I(f"s_mul_i32 s{sT1}, s{sT1}, {4*3*8192}"), I(f"s_lshl_b32 s{sT2}, s{sWAVE}, 11"),
              I(f"s_add_u32 s{sT1}, s{sT1}, s{sT2}"), I(f"s_add_u32 s{sT1}, s{sT1}, {EX_OFF}")]
        st = []
        for p in range(1, 4):
            c += [I(f"s_{'xor_b32' if self.o.own else 'add_u32'} s{sT2}, s{sB}, {p}"), I(f"s_and_b32 s{sT2}, s{sT2}, 3"),
                  I(f"s_mul_i32 s{sT2}, s{sT2}, {3*8192}"), I(f"s_add_u32 s{sT2}, s{sT2}, s{sT1}"),
                  I(f"s_add_u32 s{sT3}, s{sT2}, {(p-1)*8192}")]
            x = [I(f"buffer_store_dwordx4 {vr(D)}, v{vL16[0]}, {srd(S_WS)}, s{sT3} offen offset:{tb*1024} sc1")
                 for tb in range(2)]
            c += x
            st += x
        return c, st

    def prefetch_xn(self):
        L = vLANE
        t = WFB[3]
        c = [I(f"s_and_b32 s{sT1}, s{sH}, 3"), I(f"s_lshl_b32 s{sT1}, s{sT1}, 12"),
             I(f"v_and_b32 v{t}, 31, v{L}"), I(f"v_lshlrev_b32 v{t}, 7, v{t}"), I(f"v_add_u32 v{t}, s{sT1}, v{t}"),
             I(f"v_cmp_gt_u32 vcc, 32, v{L}")]
        for k in range(2):
            c += [I(f"v_mov_b32 v{t+1}, s{sXN[2*k]}"), I(f"v_mov_b32 v{t+2}, s{sXN[2*k+1]}"),
                  I(f"v_cndmask_b32 v{t+1}, v{t+2}, v{t+1}, vcc"), I(f"v_add_u32 v{t+4+k}, v{t}, v{t+1}"),
                  self.pf_load(t + 4 + k, S_WS)]
        return c

    def prefetch1(self):
        L = vLANE
        t = vLN + 34
        a = [self.pf_load(vPFW, S_WUV)]
        b = [self.pf_load(vPFW, S_WQ)]
        t = WFB[3]
        c = [I(f"s_lshr_b32 s{sNM1[0]}, s{sB}, 3"), I(f"s_lshl_b32 s{sNM1[0]}, s{sNM1[0]}, 2"),
             I(f"s_add_u32 s{sNM1[0]}, s{sNM1[0]}, s{sWAVE}"), I(f"s_lshl_b32 s{sNM1[0]}, s{sNM1[0]}, 2"),
             I(f"v_lshrrev_b32 v{t}, 3, v{L}"), I(f"v_add_u32 v{t}, s{sNM1[0]}, v{t}"),
             I(f"v_mul_u32_u24 v{t}, 2752, v{t}"),
             I(f"s_and_b32 s{sNM1[1]}, s{sB}, 7"), I(f"s_lshl_b32 s{sNM1[2]}, s{sNM1[1]}, 8"),
             I(f"s_lshl_b32 s{sNM1[1]}, s{sNM1[1]}, 7"), I(f"s_add_u32 s{sNM1[1]}, s{sNM1[1]}, {2048 - 3*124}"),
             I(f"v_and_b32 v{t+1}, 7, v{L}"), I(f"v_mul_u32_u24 v{t+2}, 124, v{t+1}"),
             I(f"v_mov_b32 v{t+3}, s{sNM1[2]}"), I(f"v_mov_b32 v{t+4}, s{sNM1[1]}"),
             I(f"v_cmp_gt_u32 vcc, 3, v{t+1}"),
             I(f"v_cndmask_b32 v{t+3}, v{t+4}, v{t+3}, vcc"),
             I(f"v_add3_u32 v{t}, v{t}, v{t+2}, v{t+3}"),
             I(f"v_lshrrev_b32 v{t+2}, 5, v{L}"), I(f"v_lshlrev_b32 v{t+2}, 3, v{t+2}"),
             I(f"v_add_u32 v{t+1}, v{t+1}, v{t+2}"), I(f"v_mov_b32 v{t+2}, {OOB}"),
             I(f"v_cmp_gt_u32 vcc, 5, v{t+1}"),
             I(f"v_cndmask_b32 v{t}, v{t+2}, v{t}, vcc")]
        c += [self.pf_load(t, S_WG), self.pf_load(t, S_WU)]
        return a, b, c

    def prefetch2(self, early=False):
        L = vLANE
        if self.o.p2hi and not early:
            t = vT[0]
            return [I(f"s_sub_u32 s{sT3}, s{sB}, 128"), I(f"s_and_b32 s{sT1}, s{sT3}, 0xfc"),
                    I(f"s_add_u32 s{sT1}, s{sT1}, s{sWAVE}"), I(f"s_lshl_b32 s{sT1}, s{sT1}, 13"),
                    I(f"s_lshl_b32 s{sT2}, s{sT3}, 2"), I(f"s_add_u32 s{sT2}, s{sT2}, s{sWAVE}"),
                    I(f"s_mul_i32 s{sT2}, s{sT2}, {22*128}"),
                    I(f"s_cmp_ge_u32 s{sB}, 128"), I(f"s_cselect_b32 s{sT1}, s{sT1}, {OOB}"),
                    I(f"s_cselect_b32 s{sT2}, s{sT2}, {OOB}"),
                    I(f"v_lshlrev_b32 v{t}, 7, v{L}"), I(f"v_min_u32 v{t+1}, 21, v{L}"),
                    I(f"v_lshlrev_b32 v{t+1}, 7, v{t+1}"),
                    self.pf_load(t, S_WO, f"s{sT1}", dst="a200"), self.pf_load(t + 1, S_WD, f"s{sT2}", dst="a200")]
        t = WFB[3] + 4 if early else vT[0]
        dst = f"v{vG0+3}" if early else "a200"
        c = [I(f"s_lshl_b32 s{sT1}, s{sB}, 2") if early else I(f"s_and_b32 s{sT1}, s{sB}, 0xfc"),
             I(f"s_add_u32 s{sT1}, s{sT1}, s{sWAVE}"),
             I(f"s_lshl_b32 s{sT2}, s{sT1}, 12"),
             I(f"s_lshl_b32 s{sT1}, s{sB}, 2"), I(f"s_add_u32 s{sT1}, s{sT1}, s{sWAVE}"),
             I(f"v_and_b32 v{t}, 31, v{L}"),
             I(f"v_lshlrev_b32 v{t}, 7, v{t}"), I(f"v_add_u32 v{t}, s{sT2}, v{t}"),
             I(f"s_mul_i32 s{sT2}, s{sT1}, {11*128}"), I(f"v_min_u32 v{t+1}, 10, v{L}"),
             I(f"v_lshlrev_b32 v{t+1}, 7, v{t+1}"), I(f"v_add_u32 v{t+1}, s{sT2}, v{t+1}"),
             self.pf_load(t, S_WO, dst=dst), self.pf_load(t + 1, S_WD, dst=dst)]
        return c

    def phase12(self):
        o = self.o
        T = self.tiles()
        NT = len(T)
        pre = self.setup()
        later = pre[self.n_first:]
        pre = pre[:self.n_first]
        A = pre.append
        A(I("s_waitcnt lgkmcnt(0)"))
        if o.wsoff:
            pre += [I(f"s_add_u32 s{S_WS}, s{S_WS}, {o.wsoff << 20}"), I(f"s_addc_u32 s{S_WS+1}, s{S_WS+1}, 0")]
        pre += self.stamp()
        zpre = [I(f"s_mul_i32 s{sT1}, s{sWAVE}, 3072"), I(f"s_add_u32 s{sT1}, s{sT1}, {FL_OFF}"),
                I(f"s_cmp_eq_u32 s{sB}, 0"), I(f"s_cselect_b32 s{sT1}, s{sT1}, {OOB}"),
                I(f"v_lshlrev_b32 v20, 4, v{vLANE}")] + [I(f"v_mov_b32 v{r}, 0") for r in range(24, 28)]
        zero = [I(f"buffer_store_dwordx4 v[24:27], v20, {srd(S_WS)}, s{sT1} offen offset:{k*1024} sc1") for k in range(3)]
        s0, tok0 = self.tok_dma(0)
        pre += s0
        for n in range(4):
            T[n]["slot"] = n * 8192
        pre += self.tile_dma(T[0]) + self.tile_dma(T[1])
        lnl = [I(f"buffer_load_dwordx4 {vr(vLN)}, v{vLN+32}, {srd(S_X)}, 0 offen"),
               I(f"buffer_load_dwordx4 {vr(vLN+4)}, v{vLN+32}, {srd(S_X)}, 0 offen offset:512")]
        pre += later[:7]
        if o.lnpos == 1:
            pre += lnl
        pre += later[7:]
        c, pfa, pfb = self.prefetch0()
        if o.prefetch & (1 | 4 | 16 | 32):
            pre += c
        if o.prefetch & 16:
            pre += [pfa, pfb]
        if o.prefetch & 256:
            pre += [pfb]
        if o.prefetch & 128:
            pre += [I(f"s_lshl_b32 s{sT1}, s{sB}, 2"), I(f"s_add_u32 s{sT1}, s{sT1}, s{sWAVE}"),
                    I(f"s_lshl_b32 s{sT1}, s{sT1}, 11"), I(f"v_lshlrev_b32 v17, 7, v{vLANE}"),
                    I(f"v_mov_b32 v18, {OOB}"), I(f"v_cmp_gt_u32 vcc, 16, v{vLANE}"),
                    I(f"v_add_u32 v17, s{sT1}, v17"), I("s_nop 0"), I("v_cndmask_b32 v17, v18, v17, vcc"),
                    self.pf_load(17, S_CKV)]
        aux = (self.prefetch_code(va=22) if o.pfcode & 1 else []) + zpre + zero
        if o.pfpos == 0:
            pre += aux
        pre += self.setup2()
        s1, tok1 = self.tok_dma(1)
        pre += s1
        pre += self.tile_dma(T[2]) + self.tile_dma(T[3])
        if not o.lnlate and o.lnpos == 0:
            pre += lnl
        if o.pre2:
            s2, tok2 = self.tok_dma(2)
            pre += s2
        if o.pfpos == 1:
            pre += aux
        tokd = {0: tok0, 1: tok1}
        pre.append(Need(tok0))
        rd0 = self.tok_reads(0)
        pre += rd0
        pre.append(Need([T[n]["dma"] for n in range(2)] + (zero if o.pfpos == 0 else []), lg0=True))
        pre.append(I("s_barrier"))
        ready = [I(f"s_cmp_eq_u32 s{sB}, 0"), I(f"s_cselect_b32 s{sPOLL}, 0, {OOB}"),
                 I(f"buffer_store_dword v{vC1}, v{vONE}, {srd(S_DBG)}, s{sPOLL} offen sc1")]
        if o.pfpos == 0:
            pre += ready
        pre += self.stamp() + self.holdmark("bar0")
        NB = o.wdist + 1
        for U in range(o.wdist):
            pre += self.unit_reads(T[0], U, U)

        mf = []
        for n, t in enumerate(T):
            for u in range(4):
                mf += self.unit_mfma(t, u, (4 * n + u) % NB)
        tasks = []
        bstart = list(range(2, 16, 2)) + list(range(16, NT, o.G12))
        bg = lambda n0: 32 * n0 - 8 * o.wdist + 3
        extra_need = {n0: [] for n0 in bstart}
        release = lambda n: bg(min([b for b in bstart if b > n] + [NT + 1]))
        own_bar = lambda n: bg(max(b for b in bstart if b <= n))
        KVF = o.kvq + 12
        free_at = {sl: -1 for sl in range(7)}
        free_at.update({sl: bg(14) + 1 for sl in range(7, 20)})
        for n in range(4):
            free_at[n] = release(n)
        want = {4: 0, 5: 50, 6: 84, 7: 120, 8: 130, 9: 180, 10: 200, 11: 236, 12: 260, 13: 300, 14: 320, 15: 340}
        if o.wmode == 1:
            want.update({5: 40, 6: 56, 7: 82, 8: 120, 9: 132, 10: 180, 11: 192, 12: 206, 13: 258, 14: 272, 15: 322})
        elif o.wmode == 2:
            want.update({5: 50, 6: 80, 7: 100, 8: 122, 9: 146, 10: 182, 11: 206, 12: 244, 13: 270, 14: 310, 15: 330})
        for n in range(16, NT):
            want[n] = max(360 + 14 * (n - 16), 32 * (n - o.lead12))
        if o.gearly:
            early = [34, 32, 37, 33, 40, 35, 43, 36][:o.gearly]
            for n in range(16, 32):
                want[n] = max(360 + 14 * (n - 16), 32 * (n - 7))
            for i, n in enumerate(early):
                want[n] = o.ge0 + o.gestep * i
            for n in range(32, NT):
                if n not in early:
                    want[n] = 32 * (n - (7 if n < 44 else o.lead12))
        events = [(want[n], "W", n) for n in range(4, NT)]
        tokwant = {(2, 0): 8, (2, 1): 24, (3, 0): 40, (3, 1): 64, (4, 0): 92, (4, 1): 106, (5, 0): 154, (5, 1): 168,
                   (6, 0): 218, (6, 1): 242, (7, 0): 282, (7, 1): 308}
        if o.tokmode == 1:
            tokwant = {}
            for c in range(2, 8):
                tokwant[(c, 0)] = 64 * (c - 2) + 10
                tokwant[(c, 1)] = 64 * (c - 2) + 27
            for n in range(4, 16):
                want[n] = 64 * ((n - 4) // 2) + (0 if n % 2 == 0 else 46)
            events = [(want[n], "W", n) for n in range(4, NT)]
        if o.pre2:
            del tokwant[(2, 0)], tokwant[(2, 1)]
            tokwant.update({(3, 0): 8, (3, 1): 24})
        events += [(v, "T", k) for k, v in tokwant.items()]
        events.append((KVF, "KV", None))
        events.sort(key=lambda e: e[0])
        tokrd = {c: self.tok_reads(c) for c in range(1, 8)}
        tokrd[0] = rd0
        tokw = {1: (18 + o.toksh // 2, 36 + o.toksh // 2) if o.tokmode == 0 else (30, 50)}
        for c in range(2, 8):
            sh = o.toksh if c < 7 else min(o.toksh, 18)
            tokw[c] = ((64 * (c - 1) + 2 + sh, 64 * (c - 1) + 22 + sh) if o.tokmode == 0
                       else (64 * (c - 1) + 30, 64 * (c - 1) + 50))
            tasks.append(Task(f"tokrd{c}", [Need([lambda c=c: tokd[c]])] + tokrd[c], *tokw[c], prio=1))
        tasks.append(Task("tokrd1", [Need(tok1)] + tokrd[1], *tokw[1], prio=1))
        tseq = {}
        for c in range(2, 8):
            seq, ops = self.tok_dma(c)
            tokd[c] = ops if not (o.pre2 and c == 2) else tok2
            tseq[(c, 0)] = ([Need(tokrd[c - 3])] if c >= 4 else []) + seq[:6]
            tseq[(c, 1)] = [I(seq[0].text)] + seq[6:]
        k01 = [I(f"buffer_load_dwordx4 v{vL16[0]}, {srd(S_WS)}, s{sT0} offen offset:{p*1024} {self.o.ldflag} lds")
               for p in range(4)]
        kvseq = [I(f"s_lshl_b32 s{sT0}, s{sH}, 19"), I(f"s_lshl_b32 s{sWR}, s{sWAVE}, 12"),
                 I(f"s_add_u32 s{sT0}, s{sT0}, s{sWR}"), I(f"s_add_u32 s{sT0}, s{sT0}, {KF_OFF}"),
                 I(f"s_add_u32 m0, s{sWR}, {6*16384}")] + k01
        self.att_first = list(k01)
        for j in range(3):
            d = self.att_dma()
            kvseq += [I(f"s_add_u32 m0, s{sWR}, {(7+j)*16384}"), I(f"s_mov_b32 s{sSOFF}, {j*8192}")] + d
            self.att_first += d
        m0ent = []
        cur = 0
        for w, kind, k in events:
            lo = max(w, cur)
            if kind == "W":
                ok = [sl for sl in free_at if sl < 12 or release(k) <= KVF]
                sl = min(ok, key=lambda x: (max(free_at[x], lo), x))
                lo = max(lo, free_at[sl] + 1)
                free_at[sl] = release(k)
                T[k]["slot"] = sl * 8192
                seq = self.tile_dma(T[k])
                ln = 10 if lo < 512 else (14 if o.gearly and lo < 760 else 24)
                assert lo + ln < own_bar(k) - 24, (k, lo, own_bar(k))
                T[k]["issue"] = lo
            elif kind == "T":
                seq = tseq[k]
                if k[0] >= 4:
                    lo = max(lo, tokw[k[0] - 3][1] + 1)
                ln = 15
                assert lo + ln < tokw[k[0]][0] - 24, (k, lo)
            else:
                seq = kvseq
                ln = 110
            prev_scalar = False
            for x in seq:
                mind = 1 if (x.kind == "dma" and prev_scalar) else 0
                prev_scalar = x.kind == "salu"
                m0ent.append((x, lo, lo + ln, mind))
            cur = lo + (ln if ln < 100 else 0) - 2
        tasks.append(Task("m0", m0ent, prio=1))
        print("W issue gap / slot:", [(T[n]["issue"], T[n]["slot"] >> 13) for n in range(4, NT)], file=sys.stderr)
        win = {"R128": 0, "R64": 0, "R32": 0}
        aregs = {"R128": vRD, "R64": vRD64, "R32": [vRD32]}
        for U in range(o.wdist, 4 * NT):
            n, u = divmod(U, 4)
            lo = 8 * (U - o.wdist)
            rd = self.unit_reads(T[n], u, U % NB)
            ty, wn = T[n]["typ"], T[n]["slot"] >> 16
            if wn != win[ty]:
                sw = "v_add_u32" if wn > win[ty] else "v_subrev_u32"
                fix = [I(f"{sw} v{r}, {abs(wn - win[ty]) << 16:#x}, v{r}") for r in aregs[ty]]
                win[ty] = wn
                if T[n - 1]["typ"] == ty:
                    rd = [Group(fix + [rd[0]])] + rd[1:]
                else:
                    tasks.append(Task(f"rdfix{U}", fix, lo - 24, lo - 1, prio=1))
            if u == 0 and n in bstart:
                tasks.append(Task(f"rd{U}", rd, lo + 4, lo + 7, prio=0, tight=True))
            elif u == 3 and n + 1 in bstart:
                tasks.append(Task(f"rd{U}", rd, lo, lo + 3, prio=0, tight=True))
            else:
                tasks.append(Task(f"rd{U}", rd, lo, lo + o.wwin, prio=0))
        if o.pfpos == 1:
            extra_need[2] += zero
            tasks.append(Task("ready", [Group(ready[:2]), ready[2]], bg(2) + 2, bg(2) + 8, prio=3))
        k = 2 * o.lnlate
        if o.lnlate and o.lnpos == 0:
            tasks.append(Task("lnld", lnl, 2, 12, prio=2))
        tasks.append(Task("ln", self.ln_compute(), o.lnstart, bg(4 + k) - 2, prio=3, thi=bg(4 + k) - o.lnth))
        c, lnst = self.ln_store()
        tasks.append(Task("lnst", c, bg(4 + k) + 2, 145 + 32 * k, prio=3))
        extra_need[8 + k] += lnst
        tasks.append(Task("flagxn", [self.flag_store(sFXN)], bg(8 + k) + 4, bg(8 + k) + 10, prio=3))
        if o.prefetch & 1:
            tasks.append(Task("pf0a", [pfa], 1, 4, prio=0))
        if o.prefetch & 4:
            tasks.append(Task("pf0b", [pfb], 30, 36, prio=0))
        if o.prefetch & 8:
            tasks.append(Task("pfxn", self.prefetch_xn(), o.xnchk + 14, o.xnchk + 14 + o.pfxw, prio=3))
        if o.prefetch & 2:
            a, b, c = self.prefetch1()
            if o.prefetch & 32:
                if o.pa:
                    tasks.append(Task("pf1a", a, o.pa, o.pa + 8, prio=3))
                if o.pb:
                    tasks.append(Task("pf1b", b, o.pb, o.pb + 8, prio=3))
                if o.pc:
                    tasks.append(Task("pf1c", c, o.pc, o.pc + 30, prio=3))
        tasks.append(Task("setup3", self.setup3(), 153 + 32 * k, 218 + 32 * k, prio=4))
        tasks.append(Task("setup4", self.setup4(), 472, 510, prio=4))
        tasks.append(Task("gate", [self.poll_load(vPOLL, S_DBG, vC0, "0")], 146 + 32 * k, 152 + 32 * k, prio=3))
        tasks.append(Task("gatechk", self.poll_check(vPOLL, S_DBG, vC0, "0", "1", split=True), 220 + 32 * k, 232 + 32 * k, prio=3))
        tasks.append(Task("xnpoll", [I(f"s_lshl_b32 s{sPOLL}, s{sW}, 7"), I(f"s_add_u32 s{sPOLL}, s{sPOLL}, {FL_XN}"),
                                     self.poll_load(vPOLL, S_WS, vPO32, f"s{sPOLL}")], o.xnchk - 90, o.xnchk - 80, prio=3))
        tasks.append(Task("xnchk", self.poll_check(vPOLL, S_WS, vPO32, f"s{sPOLL}", "1", split=True), o.xnchk, o.xnchk + 12, prio=3))
        pk, sts = zip(self.epi_K(0), self.epi_K(1), self.epi_V(0), self.epi_V(1))
        tasks.append(Task("epiK0", pk[0], 490, 540, prio=5))
        tasks.append(Task("epiK1", pk[1], 521, 558, prio=4))
        tasks.append(Task("epiV0", pk[2], 1001, 1038, prio=4))
        tasks.append(Task("epiV1", pk[3], 1039, 1086, prio=5))
        allst = [x for l in sts for x in l]
        ent = []
        for k, x in enumerate(allst):
            if k < 16:
                lo = int(545 + k * (1020 - 545) / 16)
            else:
                lo = max(int(1045 + (k - 16) * (o.st_hi - 1045) / 16), 1088 if k >= 24 else 0)
            ent.append((x, lo, lo + 12))
        tasks.append(Task("epistores", ent, prio=2))
        extra_need[48] += allst
        tasks.append(Task("flagkv", [self.flag_store(sFKV)], bg(48) + 4, bg(48) + 10, prio=3))
        for c in range(8):
            ld = [I(f"buffer_load_dwordx4 {ar(TF(tb, 2*c+k))}, v{vX16[(2*c+k)>>2]}, {srd(S_CKV if o.xnsrc else S_WS)}, s{sXN[tb]} offen "
                    f"offset:{((2*c+k)&3)*1024} {self.o.ldflag}") for k in range(2) for tb in range(4)]
            lo = max(580 + 64 * c, o.xn0 + o.xnslope * c)
            tasks.append(Task(f"xn{c}", batch(ld), lo, lo + o.xnslope - 2, prio=2))
        if not o.g2:
            c, stA = self.epi_GA()
            tasks.append(Task("epiGA", c, o.ga0, 1660, prio=o.gaprio, thi=o.ga1))
            c, stB = self.epi_GB()
            tasks.append(Task("epiGB", c, 1661, 1790, prio=o.gaprio, thi=o.gb1))
        else:
            stA, stB = [], []
            seg = (o.ga1 - 8 - o.ga0) / 4
            for tb in range(4):
                R = lambda wb: areg("GA", wb, tb)
                lo, hi = int(o.ga0 + tb * seg), int(o.ga0 + (tb + 1) * seg) - 1
                tasks.append(Task(f"epiGA{tb}a", self.gelu4(R(0), R(2)), lo, hi, prio=o.gaprio))
                tasks.append(Task(f"epiGA{tb}b", self.gelu4(R(1), R(3), 224, 225), lo, hi, prio=o.gaprio))
                x = I(f"buffer_store_dwordx4 {vr(R(0))}, v{vL16[0]}, {srd(S_WS)}, s{sZH[tb]} offen {o.stflag}")
                stA.append(x)
                tasks.append(Task(f"epiGA{tb}p", self.pk_frag(R(0), R(0), R(1)) + [x], hi + 1, min(hi + 14, 1660),
                                  prio=o.gaprio - 1))
            for par in range(2):
                c = []
                for tb in (par, par + 2):
                    g, u = areg("GB", 0, tb), areg("GB", 1, tb)
                    c += self.gelu4(g, u) if par == 0 else self.gelu4(g, u, 224, 225)
                    c += [I(f"v_cvt_pk_bf16_f32 v{g}, v{g}, v{g+1}"), I(f"v_cvt_pk_bf16_f32 v{g+1}, v{g+2}, v{g+3}")]
                    x = I(f"buffer_store_dwordx2 {vr(g,2)}, v{vGBS}, {srd(S_WS)}, s{par} offen {o.stflag}")
                    c += [I(f"s_add_u32 s{par}, s{sZH[tb]}, s{sGBD}"), x]
                    stB.append(x)
                tasks.append(Task(f"epiGB{par}", c, o.ga1 + 1, o.gbhi, prio=o.gaprio))
        self.h_stores = stA + stB
        if o.sentinel:
            c, stP = self.ex_prefill()
            if o.p2early and o.prefetch & 2:
                c = self.prefetch2(True) + c
            tasks.append(Task("exfill", c, 1425, 1565, prio=3))
            self.h_stores += stP
        c = [I(f"s_mov_b32 s{sQS}, {fbits(QSCALE)}")]
        for q in range(4):
            c += self.epi_Q(0, q)
        tasks.append(Task("epiQ0", c, 1700, o.q0hi, prio=5))
        tasks.append(Task("attsetup", self.att_setup(), 1570, 1655, prio=4))
        tasks.append(Task("attev", self.att_events(), 1840, 1900, prio=4))
        if o.pfcode & 2:
            tasks.append(Task("pfcode2", self.prefetch_code("L_att", "L_p4", vr(WFB[3] + 4), WFB[3] + 4, sJL + 1),
                              1800, 1830, prio=3))
        assert o.gbhi < 1838
        tasks.append(Task("p4setup", self.p4_setup() + [(x, o.gbhi + 2, 1915) for x in self.p4_setup_vec()],
                          1795, 1915, prio=4))
        kvp = [I(f"s_lshl_b32 s{sPOLL}, s{sH}, 7"), I(f"s_add_u32 s{sPOLL}, s{sPOLL}, {FL_KV}"),
               self.poll_load(vPOLL, S_WS, vPO8, f"s{sPOLL}")]
        tasks.append(Task("kvpoll", kvp, o.kvq - o.kvd, o.kvq - o.kvd + 10, prio=3))
        tasks.append(Task("kvchk", self.poll_check(vPOLL, S_WS, vPO8, f"s{sPOLL}", "1", split=True), o.kvq, o.kvq + 10, prio=3))
        zr = lambda a, b: [I(f"v_mov_b64 {vr(r, 2)}, 0") for r in range(a, b, 2)]
        tasks.append(Task("zeroO5", zr(160, 192), 1662, 1760, prio=6))
        tasks.append(Task("zeroO3", zr(96, 128), o.gbhi + 2, max(1870, o.gbhi + 60), prio=6))
        tasks.append(Task("zeroO24", zr(64, 96) + zr(128, 160), o.q0hi + 2, 1920, prio=6))
        g = [I(f"v_lshrrev_b32 v{vT[0]}, 4, v{vLANE}"), I(f"v_and_b32 v{vT[1]}, 15, v{vLANE}"),
             I(f"v_lshlrev_b32 v{vT[0]}, 2, v{vT[0]}"), I(f"v_sub_u32 v{vT[1]}, v{vT[1]}, v{vT[0]}"),
             I(f"v_and_b32 v{vT[0]}, 64, v0") if False else I(f"v_mov_b32 v{vT[0]}, s{sWAVE}"),
             I(f"v_and_b32 v{vT[0]}, 1, v{vT[0]}"), I(f"v_lshlrev_b32 v{vT[0]}, 4, v{vT[0]}"),
             I(f"v_add_u32 v{vDM[1]}, v{vT[0]}, v{vT[1]}"), I(f"v_sub_u32 v{vT[0]}, 16, v{vT[0]}"),
             I(f"v_add_u32 v{vDM[0]}, v{vT[0]}, v{vT[1]}"), I(f"v_mov_b32 v{vT[2]}, 0x3f803f80")]
        tasks.append(Task("attvec", g, 1610, 1655, prio=6))
        g = [I(f"v_accvgpr_write_b32 a{gONE+r}, v{vT[2]}") for r in range(4)]
        g += [I(f"v_accvgpr_write_b32 a{r}, 0") for r in range(gL(0), gL(0) + 16)]
        tasks.append(Task("attacc", g, 1828, 1900, prio=6))
        for k, n0 in enumerate(bstart):
            n1 = bstart[k + 1] if k + 1 < len(bstart) else NT
            ops = [T[n]["dma"] for n in range(n0, n1)] + extra_need[n0]
            bar = [Need(ops, lg0=True), I("s_barrier")]
            tasks.append(Task(f"bar{n0}", [Group(bar if o.timeit else self.timed(bar))], bg(n0), bg(n0),
                              prio=-1))
        for nm, gp in (("K", 514), ("V", 1026), ("Q", 1916)):
            if self.holdmark(nm):
                tasks.append(Task("holdmark", self.holdmark(nm), gp, gp, prio=7))
        if o.stamps:
            for gp in [int(x) for x in o.stampat.split(",")]:
                tasks.append(Task("stamp", self.stamp(), gp + 2, gp + 2, prio=7))
        if o.drop:
            dr = o.drop.split(",")
            if "stores" in dr:
                dr = [d for d in dr if d != "stores"] + ["epistores"]
            for t in tasks:
                if "epistores" in dr and t.name.startswith("epiG"):
                    t.instrs = [x for x in t.instrs if not any(y.kind == "vstore" for y in flatten([x]))]
            tasks = [t for t in tasks if not any(t.name.startswith(d) for d in dr)]
        body = schedule(mf, tasks, o.budget, self.reports, reserve=range(0, len(mf), 8), seed=o.seed, vmw=o.vmw, ldw=o.ldw12)
        if o.timeit:
            nb = []
            for x in flatten(body):
                hit = {"st": x.kind == "vstore", "ld": x.kind == "vload", "dma": x.kind == "dma",
                       "need": x.kind == "need"}.get(o.timeit, False)
                nb += self.timed([x]) if hit else [x]
            body = nb
        return pre + body

    def mask(self, q, scores=False):
        c = []
        D = vDM[q & 1]
        if scores:
            c.append(I(f"v_mov_b32 v{vT[2]}, 0xff800000"))
            for i in range(0, 8, 2):
                c.append(I(f"v_cmp_gt_i32 s[{sM0}:{sM0+1}], {16*(i>>2)+(i&3)}, v{D}"))
                c.append(I(f"v_cmp_gt_i32 s[{sM1}:{sM1+1}], {16*(i>>2)+(i&3)+1}, v{D}"))
                c.append(I(f"v_cndmask_b32 v{aS(q,0)+i}, v{aS(q,0)+i}, v{vT[2]}, s[{sM0}:{sM0+1}]"))
                c.append(I(f"v_cndmask_b32 v{aS(q,0)+i+1}, v{aS(q,0)+i+1}, v{vT[2]}, s[{sM1}:{sM1+1}]"))
            return c
        src = aC(q, 0)
        c.append(I(f"v_mov_b32 v{vT[0]}, 0xff800000"))
        order = [(1, r) for r in range(4)] + [(0, 3), (0, 2), (0, 1), (0, 0)]
        for i in range(0, 8, 2):
            (k0, r0), (k1, r1) = order[i], order[i + 1]
            c.append(I(f"v_cmp_gt_i32 s[{sM0}:{sM0+1}], {16*k0+r0}, v{D}"))
            c.append(I(f"v_cmp_gt_i32 s[{sM1}:{sM1+1}], {16*k1+r1}, v{D}"))
            c.append(I("s_nop 0"))
            c.append(I(f"v_cndmask_b32 v{aC(q,k0)+r0}, v{src}, v{vT[0]}, s[{sM0}:{sM0+1}]"))
            c.append(I(f"v_cndmask_b32 v{aC(q,k1)+r1}, v{src}, v{vT[0]}, s[{sM1}:{sM1+1}]"))
        return c

    def rowmax(self, q, t0, t1):
        S = aS(q, 0)
        return [I(f"v_max3_f32 v{t0}, v{S}, v{S+1}, v{S+2}"), I(f"v_max3_f32 v{t1}, v{S+3}, v{S+4}, v{S+5}"),
                I(f"v_max3_f32 v{t0}, v{t0}, v{S+6}, v{S+7}"), I(f"v_max_f32 v{t0}, v{t0}, v{t1}"),
                I(f"v_mov_b32 v{t1}, v{t0}"), I(f"v_permlane32_swap_b32 v{t0}, v{t1}"),
                I(f"v_max_f32 v{t0}, v{t0}, v{t1}"),
                I(f"v_mov_b32 v{t1}, v{t0}"), I(f"v_permlane16_swap_b32 v{t0}, v{t1}"),
                I(f"v_max_f32 v{t0}, v{t0}, v{t1}"),
                I(f"v_add_f32 v{t0}, {fbits(BIAS)}, v{t0}")]

    def exps(self, q, E):
        S = aS(q, 0)
        return [I(f"v_exp_f32 v{E+i}, v{S+i}") for i in range(8)]

    def cvts(self, q, E):
        return [I(f"v_cvt_pk_bf16_f32 v{aP(q)+i}, v{E+2*i}, v{E+2*i+1}") for i in range(4)]

    def fix(self, q):
        t0, t1 = aE[2], aE[2] + 1
        S = aS(q, 0)
        c = [I("s_nop 7"), I("s_nop 1")] + self.rowmax(q, t0, t1)
        c.append(I(f"v_max_f32 v{t0}, 0, v{t0}"))
        c.append(I(f"v_exp_f32 v{t1}, -v{t0}"))
        for i in range(8):
            c.append(I(f"v_sub_f32 v{S+i}, v{S+i}, v{t0}"))
            c.append(I(f"v_sub_f32 v{aC(q,0)+i}, v{aC(q,0)+i}, v{t0}"))
        for r in range(aO(0, q), aO(0, q) + 32):
            c.append(I(f"v_mul_f32 v{r}, v{r}, v{t1}"))
        for r in range(4):
            c.append(I(f"v_accvgpr_read_b32 v{t0+2+r}, a{gL(q)+r}"))
        for r in range(4):
            c.append(I(f"v_mul_f32 v{t0+2+r}, v{t0+2+r}, v{t1}"))
        for r in range(4):
            c.append(I(f"v_accvgpr_write_b32 a{gL(q)+r}, v{t0+2+r}"))
        c += self.exps(q, aE[1]) + self.cvts(q, aE[1])
        return c

    def check(self, qs, mind=2):
        P = [aP(q) + i for q in qs for i in range(4)]
        ors = []
        cur = None
        while P:
            if cur is None:
                ors.append(I(f"v_or3_b32 v{vOR}, v{P[0]}, v{P[1]}, v{P[2]}"))
                P = P[3:]
                cur = vOR
            elif len(P) >= 2:
                ors.append(I(f"v_or3_b32 v{vOR}, v{vOR}, v{P[0]}, v{P[1]}"))
                P = P[2:]
            else:
                ors.append(I(f"v_bitop3_b32 v{vOR}, v{vOR}, v{P[0]}, s{sMASK} bitop3:0xa8"))
                P = []
        slow, back = self.lab("fix"), self.lab("fixb")
        body = []
        for q in qs:
            body += self.fix(q)
        body += [I("s_nop 1"), I(f"s_branch {back}")]
        self.cold.append(f"{slow}:\n" + render(pad_hazards(body)))
        tail = [I(f"v_cmp_ne_u32 vcc, 0, v{vOR}"),
                (Group([I(f"s_cbranch_vccnz {slow}"), I(f"{back}:")]), None, None, mind)]
        return ors, tail

    def k_reads(self, half_off=8192):
        r = [I(f"ds_read_b128 {ar(gK(kb, ds))}, v{vARD} offset:{half_off + (kb*4+ds)*1024}")
             for kb in range(2) for ds in range(4)]
        return batch(r[:4]) + batch(r[4:])

    def qk(self, q, first=False):
        m = []
        for kb in range(2):
            for ds in range(4):
                d = vr(aS(q, kb))
                m.append(mfma(d, ar(gK(kb, ds)), ar(gQ(q, ds)), ("0" if first else vr(aC(q, kb))) if ds == 0 else d))
        return m

    def pv(self, q):
        m = [mfma(vr(aO(db, q)), ar(gV(db)), vr(aP(q)), vr(aO(db, q))) for db in range(8)]
        m.append(mfma(ar(gL(q)), ar(gONE), vr(aP(q)), ar(gL(q))))
        return m

    def iteration(self, nc, nn):
        o = self.o
        X = [m for q in range(nn) for m in self.qk(q)]
        Y = [m for q in range(nc) for m in self.pv(q)]
        y0 = len(X)
        n = y0 + len(Y)
        late = nc - 1
        tasks = []
        hi = 8 * (nn - 1) if nn == nc else y0 + 9 * late
        hi = max(0, min(hi, 8))
        ors, tail = self.check([late], 2 if hi >= 6 else 0)
        tasks.append(Task("late", self.cvts(late, aE[0]) + ors + tail, 0, hi, prio=1, tight=True))
        vrd = [I(f"ds_read_b128 {ar(gV(db))}, v{vARD} offset:{db*1024}") for db in range(8)]
        vrd = batch(vrd[:4]) + batch(vrd[4:])
        tasks.append(Task("vrd", [(r, 0, max(0, y0 - 5 + (4 if k >= 4 else 0))) for k, r in enumerate(vrd)],
                          0, max(0, min(y0 - 3, 12)), prio=2))
        ES = [aE[1], aE[2], aE[1]]
        early = list(range(nn - 1))
        if nn > 0:
            start = 9
            span = (n - start) / nn
            pos = [int(start + span * i) for i in range(nn + 1)]
            last = []
            for q in range(nn):
                rdy = [8 * q + 9] * 4 + [8 * q + 13] * 4
                if q in early:
                    cv_lo = y0 + 9 * (q + 1)
                    cv_hi = min(n - 5, (y0 + 9 * (q + 1) + 9) if q + 1 < len(early) else n - 5)
                    if q == 0 and len(early) == 3:
                        cv_hi = y0 + 9 + 5
                    lo2 = (y0 + 9 + 6) if q == 2 else 0
                    ent = [(e, max(rdy[k], lo2), cv_hi - 2) for k, e in enumerate(self.exps(q, ES[q]))]
                    ent += [(x, cv_lo, cv_hi) for x in self.cvts(q, ES[q])]
                    tasks.append(Task(f"exp{q}", ent, max(pos[q], lo2), max(pos[q + 1] + 3, cv_lo + 4), prio=0))
                    last.append(cv_hi)
                else:
                    ent = [(e, min(n, max(rdy[k], 10)), n) for k, e in enumerate(self.exps(q, aE[0]))]
                    tasks.append(Task(f"exp{q}", ent, min(n, pos[q]), n, prio=0))
            if early:
                ors, tail = self.check(early)
                need = []
                for x in ors:
                    qs = [(int(u[1:]) - aP(0)) // 4 for u in x.uses if aP(0) <= int(u[1:]) < aP(0) + 16]
                    need.append(last[max(qs)] + 1)
                ent = [(x, min(need[k], n - 3), n - 2) for k, x in enumerate(ors)]
                ent += [(tail[0], min(need[-1], n - 2), n - 2), (tail[1][0], 0, n, 2)]
                tasks.append(Task("chk1", ent, prio=3, tight=True))
            krd = self.k_reads()
            adv = I(f"v_add_u32 v{vARD}, s{sRD}, v{vL16[0]}")
            tasks.append(Task("krd", [(r, y0, n - (7 if k < 4 else 4)) for k, r in enumerate(krd)] + [(adv, y0, n)],
                              y0, n - 3, prio=2))
            d = self.att_dma()
            R = o.NS * 16384
            sc = [I(f"s_mov_b32 m0, s{sWR}"), I(f"s_add_u32 s{sSOFF}, s{sSOFF}, 8192"), (d[0], None, None, 1)] + d[1:]
            sc += [I(f"s_add_u32 s{sWR}, s{sWR}, 16384"), I(f"s_sub_u32 s{sT0}, s{sWR}, {R}"),
                   I(f"s_min_u32 s{sWR}, s{sWR}, s{sT0}")]
            rdp = [I(f"s_add_u32 s{sRD}, s{sRD}, 16384"), I(f"s_sub_u32 s{sT1}, s{sRD}, {R}"),
                   I(f"s_min_u32 s{sRD}, s{sRD}, s{sT1}")]
            tasks.append(Task("rdp", rdp, 1, max(3, y0 - 1), prio=4))
            tasks.append(Task("dma", sc, 1, n - 4, prio=1))
        tasks.append(Task("j", [I(f"s_add_u32 s{sJ}, s{sJ}, 1")], max(0, n - 6), max(0, n - 3), prio=5))
        res = {0, 4, y0, y0 + 4}
        seed, ldw = (o.seed, o.ldw) if o.tune == 0 else {4: (11, 12), 3: (2, 12)}.get(max(nc, nn), (1, 0))
        seq = schedule(X + Y, tasks, o.budget, self.reports, reserve=res, seed=seed, vmw=o.vmwa, ldw=ldw)
        by = {t.name: [e[0] if isinstance(e, tuple) else e for e in t.instrs] for t in tasks}
        ref = by["late"] + by["vrd"] + X + Y
        for nm in ("exp0", "exp1", "exp2", "exp3", "chk1", "krd", "dma", "j"):
            if nm == "krd":
                ref += by.get("rdp", [])
            ref += by.get(nm, [])
        verify_order(ref, seq)
        return seq

    def att_state(self):
        sb = Scoreboard()
        for r in self.k_reads():
            sb.after(r)
        for i in range(40):
            sb.after(I("buffer_inv sc1"))
        return sb

    def finalize(self, q):
        t0 = vT[0]
        c = [I(f"v_accvgpr_read_b32 v{t0}, a{gL(q)}"), I(f"v_rcp_f32 v{t0}, v{t0}")]
        st = []
        for k in range(4):
            a, b = aO(2 * k, q), aO(2 * k + 1, q)
            for r in (a, a + 2, b, b + 2):
                c.append(I(f"v_pk_mul_f32 {vr(r,2)}, {vr(r,2)}, {vr(t0,2)} op_sel_hi:[1,0]"))
            p = aE[1] + 4 * k
            c += self.pk_frag(p, a, b)
            s = I(f"buffer_store_dwordx4 {vr(p)}, v{vL16[k]}, {srd(S_WS)}, s{sZC[q]} offen {self.o.stflag}")
            c.append(s)
            st.append(s)
        return c, st

    def seg(self, seq, sb, prev=()):
        s = add_waits(seq, sb)
        return pad_hazards(s, prev)

    def attention(self, sb, prev):
        o = self.o
        out = []
        pro = []
        A = pro.append
        pro += [I("L_att:"), I(f"v_add_u32 v{vARD}, {6*16384}, v{vL16[0]}")]
        e0 = self.epi_Q(1, 0)
        if o.pro2:
            pro += e0
        pro += [Need((self.att_first[:4] if o.pro2 else self.att_first) + self.h_stores, lg0=True), I("s_barrier")]
        pro += self.k_reads(0)
        pro.append(self.flag_store(sFH))
        dm = []
        for j in range(3, o.LEAD):
            d = self.att_dma()
            dm += [I(f"s_add_u32 m0, s{sWR}, {((7+j) % o.NS)*16384}"), I(f"s_mov_b32 s{sSOFF}, {j*8192}"),
                   (d[0], None, None, 1)] + d[1:]
        dm += [I(f"s_add_u32 s{sWR}, s{sWR}, {((7+o.LEAD-1) % o.NS + 1)*16384}"),
               I(f"s_mov_b32 s{sRD}, {7*16384}"), I(f"s_mov_b32 s{sJ}, 0")]
        assert ((7 + o.LEAD - 1) % o.NS) + 1 < o.NS
        if o.pro2:
            pro += dm[:2] + [dm[2][0]]
        else:
            pro += e0[:16] + dm[:2] + e0[16:24] + [dm[2][0]] + e0[24:]
        dm = dm[3:]

        def init(q):
            t0, t1 = vT[0], vT[1]
            S = aS(q, 0)
            c = self.rowmax(q, t0, t1)
            if q < 2:
                c += [I(f"v_sub_f32 v{S+i}, v{S+i}, v{t0}") for i in range(8)]
                c += [I(f"v_sub_f32 v{aC(q,0)+i}, 0, v{t0}") for i in range(2)]
                c += [I(f"v_mov_b64 {vr(aC(q,0)+i,2)}, {vr(aC(q,0),2)}") for i in range(2, 8, 2)]
            else:
                c.append(I(f"v_sub_f32 v{t0}, 0, v{t0}"))
                c += [I(f"v_pk_add_f32 {vr(S+i,2)}, {vr(S+i,2)}, {vr(t0,2)} op_sel_hi:[1,0]") for i in range(0, 8, 2)]
                c += [I(f"v_pk_mov_b32 {vr(aC(q,0)+i,2)}, {vr(t0,2)}, {vr(t0,2)} op_sel:[0,0]") for i in range(0, 8, 2)]
            if q < 3:
                E = [aE[1], aE[2], aE[1]][q]
                return c + self.exps(q, E) + self.cvts(q, E)
            return c + self.exps(q, aE[0])
        X = [m for q in range(4) for m in self.qk(q, True)]
        tasks = [Task("dm", dm, 0, 32, prio=0)]
        for q in range(1, 4):
            tasks.append(Task(f"epiQ1_{q}", self.epi_Q(1, q), 8 * (q - 1), 8 * q - 1, prio=1))
        tasks.append(Task("init01", [(x, 11, 32) for x in init(0)] + [(x, 19, 32) for x in init(1)], 11, 32, prio=2))
        pro += schedule(X, tasks, o.budget, self.reports, vmw=0)
        pro += self.k_reads()
        pro += [I(f"v_add_u32 v{vARD}, s{sRD}, v{vL16[0]}")]
        pro += init(2)
        skip = self.lab("nomask")
        pro += [I(f"s_cmp_lg_u32 s{sNM1[3]}, 0"), I(f"s_cbranch_scc1 {skip}")] + self.mask(3, True) + [I(f"{skip}:")]
        pro += init(3)
        pro += [I("s_waitcnt lgkmcnt(0)")]
        pro += self.stamp(vT[3])
        pro = self.seg(pro, sb, prev)
        out += pro
        out.append(I(f"s_branch L_ev4"))
        wait_n = (o.LEAD - o.G) * 4
        last_st = None
        for n in (4, 3, 2, 1):
            b = []
            for u in range(o.unroll):
                ctl = [I(f"s_bitcmp1_b64 s[{sEV}:{sEV+1}], s{sJ}"),
                       I(f"s_cbranch_scc0 L_body{n}") if u == o.unroll - 1 else I(f"s_cbranch_scc1 L_ev{n}")]
                b += self.seg(self.iteration(n, n) + ctl, self.att_state(), b)
            print("iteration", n, "estimate", estimate(b) // o.unroll, file=sys.stderr)
            check_hazards(b, b)
            out += [I(".p2align 6"), I(f"L_body{n}:")] + b
            bar = self.timed([I(f"s_waitcnt vmcnt({wait_n}) lgkmcnt(0)"), I("s_barrier")])
            nb, nm, nh, nh2, sp = self.lab("nb"), self.lab("nm"), self.lab("nh"), self.lab("nh2"), self.lab("sp")
            ev = [I(f"L_ev{n}:"), I(f"s_bitcmp1_b64 s[{sSP}:{sSP+1}], s{sJ}"), I(f"s_cbranch_scc1 {sp}")]
            ev += bar + [I(f"s_branch L_body{n}"), I(f"{sp}:")]
            ev += [I(f"s_and_b32 s{sT0}, s{sJ}, {o.G-1}"), I(f"s_cbranch_scc1 {nb}")]
            ev += self.timed([I(f"s_waitcnt vmcnt({wait_n}) lgkmcnt(0)"), I("s_barrier")])
            ev += [I(f"s_cmp_eq_u32 s{sJ}, {2*o.G}"), I(f"s_cbranch_scc0 {nh}")]
            ev += (self.prefetch2() if (o.prefetch & 2 and not o.p2early) else []) + self.p4_scalars()
            ev += self.h_offsets() + [self.poll_load(vHP, S_WS, vHO, f"s{sHB}"), I(f"{nh}:")]
            ev += [I(f"s_cmp_eq_u32 s{sJ}, {3*o.G}"), I(f"s_cbranch_scc0 {nh2}"),
                   self.poll_check(vHP, S_WS, vHO, f"s{sHB}", "1"), I(f"{nh2}:")]
            if n == 2:
                ne = self.lab("ne")
                ev += [I(f"s_cmp_eq_u32 s{sJ}, s{sJL}"), I(f"s_cbranch_scc0 {ne}")] + self.p4_early() + [I(f"{ne}:")]
            ev += [I(f"{nb}:"), I(f"s_cmp_eq_u32 s{sJ}, s{sNM2[n-1]}"), I(f"s_cbranch_scc0 {nm}")]
            ev += self.mask(n - 1) + [I(f"{nm}:"), I(f"s_cmp_eq_u32 s{sJ}, s{sNM1[n-1]}"),
                                      I(f"s_cbranch_scc0 L_body{n}")]
            if n >= 2:
                nm2 = self.lab("nm")
                ev += [I(f"s_cmp_eq_u32 s{sJ}, s{sNM2[n-2]}"), I(f"s_cbranch_scc0 {nm2}")]
                ev += self.mask(n - 2) + [I(f"{nm2}:")]
            ev = pad_hazards(flatten(ev), b)
            tr = self.iteration(n, n - 1)
            fin, st = self.finalize(n - 1)
            last_st = st
            tail = []
            if n >= 2:
                tail = [I(f"s_bitcmp1_b64 s[{sEV}:{sEV+1}], s{sJ}"),
                        I(f"s_cbranch_scc1 L_ev{n-1}")]
            sbt = self.att_state()
            t = self.seg(tr + fin + tail, sbt, ev)
            out += ev + t
        self.ctx_stores = last_st
        return out, sbt

    def p4_scalars(self):
        return [I(f"s_bfe_u32 s{sT1}, s{sB}, 0x10002"), I(f"s_lshl_b32 s{sT1}, s{sT1}, 3"),
                I(f"s_bfe_u32 s{sT2}, s{sB}, 0x30003"), I(f"s_add_u32 s{sT2}, s{sT1}, s{sT2}"),
                I(f"s_sub_u32 s{sT3}, 15, s{sT2}"),
                I(f"s_min_u32 s{sT2}, s{sT2}, s{sT3}"), I(f"s_lshl_b32 s{sPOLL}, s{sT2}, 7"),
                I(f"s_add_u32 s{sPOLL}, s{sPOLL}, {FL_H}")]

    def p4_setup_vec(self):
        c = []
        A = c.append
        t = WFB[3]
        g, i16 = t, t + 1
        A(I(f"s_lshl_b32 s{sT1}, s{sTB}, 2"))
        A(I(f"s_add_u32 s{sT1}, s{sT1}, s{sWAVE}"))
        A(I(f"s_lshl_b32 s{sT1}, s{sT1}, 15"))
        A(I(f"s_lshl_b32 s{sT2}, s{sCB}, 8"))
        A(I(f"s_add_u32 s{sT1}, s{sT1}, s{sT2}"))
        if self.o.own:
            A(I(f"s_and_b32 s{sT2}, s{sKQ}, 1"))
            A(I(f"s_lshl_b32 s{sT2}, s{sT2}, 14"))
            A(I(f"s_add_u32 s{sT1}, s{sT1}, s{sT2}"))
            A(I(f"s_lshr_b32 s{sT2}, s{sKQ}, 1"))
            A(I(f"s_lshl_b32 s{sT2}, s{sT2}, 7"))
        else:
            A(I(f"s_lshl_b32 s{sT2}, s{sKQ}, 6"))
        A(I(f"s_add_u32 s{sT1}, s{sT1}, s{sT2}"))
        A(I(f"v_lshlrev_b32 v{t+2}, 10, v{i16}"))
        A(I(f"v_lshl_add_u32 v{t+2}, v{g}, 3, v{t+2}"))
        A(I(f"v_add_u32 v{vXo}, s{sT1}, v{t+2}"))
        return c

    def p4_setup(self):
        c = []
        A = c.append
        L = vLANE
        A(I(f"s_and_b32 s{sKQ}, s{sB}, 3"))
        A(I(f"s_bfe_u32 s{sT1}, s{sB}, 0x10002"))
        A(I(f"s_lshr_b32 s{sT2}, s{sB}, 3"))
        A(I(f"s_lshl_b32 s{sTID}, s{sT1}, 5"))
        A(I(f"s_add_u32 s{sTID}, s{sTID}, s{sT2}"))
        A(I(f"s_lshr_b32 s{sCB}, s{sT2}, 3"))
        A(I(f"s_and_b32 s{sT2}, s{sT2}, 7"))
        A(I(f"s_lshl_b32 s{sT1}, s{sT1}, 3"))
        A(I(f"s_add_u32 s{sTB}, s{sT1}, s{sT2}"))
        t = WFB[3]
        A(I(f"v_lshrrev_b32 v{t}, 4, v{L}"))
        A(I(f"v_and_b32 v{t+1}, 15, v{L}"))
        A(I(f"v_lshlrev_b32 v{t+2}, 1, v{t}"))
        A(I(f"v_xor_b32 v{t+2}, v{t+2}, v{t+1}"))
        A(I(f"v_lshlrev_b32 v{t+2}, 4, v{t+2}"))
        A(I(f"v_lshl_add_u32 v{t+2}, v{t}, 10, v{t+2}"))
        A(I(f"s_lshl_b32 s{sT1}, s{sWAVE}, 13"))
        A(I(f"s_lshl_b32 s{sT2}, s{sCB}, 8"))
        A(I(f"s_add_u32 s{sT1}, s{sT1}, s{sT2}"))
        A(I(f"v_add_u32 v{vWo4[0]}, s{sT1}, v{t+2}"))
        A(I(f"v_xor_b32 v{vWo4[1]}, 128, v{vWo4[0]}"))
        A(I(f"v_add_u32 v{vWo4[1]}, {4096-1024}, v{vWo4[1]}"))
        A(I(f"s_lshl_b32 s{sT1}, s{sTB}, 1"))
        A(I(f"s_lshr_b32 s{sT2}, s{sWAVE}, 1"))
        A(I(f"s_add_u32 s{sT1}, s{sT1}, s{sT2}"))
        A(I(f"s_and_b32 s{sT2}, s{sWAVE}, 1"))
        A(I(f"s_lshl_b32 s{sT2}, s{sT2}, 11"))
        A(I(f"s_mul_i32 s{sT3}, s{sT1}, {43*4096}"))
        A(I(f"s_add_u32 s{sT3}, s{sT3}, s{sT2}"))
        A(I(f"s_add_u32 s{sT3}, s{sT3}, {ZH_OFF}"))
        A(Group([I(f"s_add_u32 s{S_ZH}, s{S_WS}, s{sT3}"), I(f"s_addc_u32 s{S_ZH+1}, s{S_WS+1}, 0")]))
        A(I(f"s_sub_u32 s{S_ZH+2}, {43*4096}, s{sT2}"))
        A(I(f"s_lshl_b32 s{sT1}, s{sT1}, 19"))
        A(I(f"s_lshl_b32 s{sT3}, s{sKQ}, 17"))
        A(I(f"s_add_u32 s{sT1}, s{sT1}, s{sT3}"))
        A(I(f"s_add_u32 s{sT1}, s{sT1}, s{sT2}"))
        A(I(f"s_add_u32 s{sT1}, s{sT1}, {ZC_OFF}"))
        A(Group([I(f"s_add_u32 s{S_ZC}, s{S_WS}, s{sT1}"), I(f"s_addc_u32 s{S_ZC+1}, s{S_WS+1}, 0")]))
        A(I(f"s_sub_u32 s{S_ZC+2}, {32*4096}, s{sT2}"))
        A(I(f"s_lshl_b32 s{sT2}, s{sKQ}, 20"))
        A(Group([I(f"s_add_u32 s{S_WO}, s{S_WO}, s{sT2}"), I(f"s_addc_u32 s{S_WO+1}, s{S_WO+1}, 0")]))
        A(I(f"s_mov_b32 s{S_WO+2}, {1 << 20}"))
        A(I(f"s_mul_i32 s{sZo}, s{sKQ}, {11*4096}"))
        A(I(f"s_mul_i32 s{sWo}, s{sKQ}, {11*32768}"))

        return c

    def p4_early(self):
        t = vT[0]
        c = []
        own = self.o.own
        if own:
            c += [I(f"s_and_b32 s{sT1}, s{sKQ}, 1"), I(f"s_lshl_b32 s{sT1}, s{sT1}, 10"),
                  I(f"v_add_u32 v{vZ4[0]}, s{sT1}, v{vL16[0]}"), I(f"v_xor_b32 v{vZ4[1]}, 0x400, v{vZ4[0]}")]
        for n in range(4):
            c += [I(f"buffer_load_dwordx4 {vr(128 + (n*2 + tb)*4)}, v{vZ4[tb] if own else vL16[0]}, {srd(S_ZH)}, "
                    f"s{sZo} offen offset:{0 if own else tb*1024} {self.o.ldflag}") for tb in range(2)]
            c.append(I(f"s_add_u32 s{sZo}, s{sZo}, 4096"))
        if self.o.xat == 2 and own:
            c += [I(f"buffer_load_dwordx2 {ar(XR + 2*i, 2)}, v{vXo}, {srd(S_X)}, 0 offen offset:{i*32}") for i in range(4)]
        elif self.o.xat == 2:
            c.append(I(f"s_mov_b32 s{sT1}, 16384"))
            c += [I(f"buffer_load_dwordx2 {ar(XR + 4*tb + 2*i, 2)}, v{vXo}, {srd(S_X)}, {'s%d' % sT1 if tb else '0'} offen "
                    f"offset:{i*32}") for tb in range(2) for i in range(2)]
        if self.o.prefetch & 64:
            c += [I(f"s_and_b32 s{sT1}, s{sTB}, 7"), I(f"s_lshl_b32 s{sT1}, s{sT1}, 2"),
                  I(f"s_add_u32 s{sT1}, s{sT1}, s{sWAVE}"), I(f"s_lshl_b32 s{sT1}, s{sT1}, 15"),
                  I(f"s_lshl_b32 s{sT2}, s{sCB}, 8"), I(f"s_add_u32 s{sT1}, s{sT1}, s{sT2}"),
                  I(f"v_lshrrev_b32 v{t+1}, 1, v{vLANE}"), I(f"v_and_b32 v{t}, 1, v{vLANE}"),
                  I(f"v_lshlrev_b32 v{t}, 7, v{t}"), I(f"v_lshl_add_u32 v{t}, v{t+1}, 10, v{t}"),
                  self.pf_load(t, S_WO, f"s{sT1}", dst="a200")]
        if self.o.pfcode & 4:
            c += self.prefetch_code("L_p4", "L_exit", "a[204:207]", vT[0])
        if self.o.prefetch & 2:
            c += [I(f"s_and_b32 s{sT1}, s{sTB}, 7"), I(f"s_mul_i32 s{sT1}, s{sT1}, 44"),
                  I(f"s_mul_i32 s{sT2}, s{sWAVE}, 11"), I(f"s_add_u32 s{sT1}, s{sT1}, s{sT2}"),
                  I(f"s_lshl_b32 s{sT1}, s{sT1}, 10"), I(f"s_add_u32 s{sT1}, s{sT1}, s{sWo}"),
                  I(f"s_lshl_b32 s{sT2}, s{sCB}, 8"), I(f"s_add_u32 s{sT1}, s{sT1}, s{sT2}"),
                  I(f"v_min_u32 v{t}, 21, v{vLANE}"), I(f"v_lshrrev_b32 v{t+1}, 1, v{t}"),
                  I(f"v_and_b32 v{t}, 1, v{t}"), I(f"v_lshlrev_b32 v{t}, 7, v{t}"),
                  I(f"v_lshl_add_u32 v{t}, v{t+1}, 10, v{t}"),
                  self.pf_load(t, S_WD, f"s{sT1}", dst="a200")]
        return c

    def h_offsets(self):
        t = vT[0]
        return [I(f"s_mov_b32 s{sHB}, {FL_H}"), I(f"s_sub_u32 s{sT1}, s{sPOLL}, s{sHB}"),
                I(f"v_add_u32 v{t}, s{sT1}, v{vPO32}"),
                I(f"s_bfe_u32 s{sT1}, s{sB}, 0x10002"), I(f"s_lshl_b32 s{sT1}, s{sT1}, 4"),
                I(f"s_and_b32 s{sT2}, s{sH}, 3"), I(f"s_add_u32 s{sT1}, s{sT1}, s{sT2}"),
                I(f"s_lshl_b32 s{sT2}, s{sW}, 5"), I(f"s_add_u32 s{sT1}, s{sT1}, s{sT2}"),
                I(f"s_lshl_b32 s{sT1}, s{sT1}, 2"),
                I(f"v_and_b32 v{t+1}, 3, v{vLANE}"), I(f"v_lshlrev_b32 v{t+1}, 4, v{t+1}"),
                I(f"v_cmp_gt_u32 vcc, 32, v{vLANE}"), I(f"v_add_u32 v{t+1}, s{sT1}, v{t+1}"),
                I(f"v_cndmask_b32 v{vHO}, v{t+1}, v{t}, vcc")]

    def phase4(self, sb, prev):
        o = self.o
        ACC4, ZR, WR = 0, 64, 192
        vRd4 = list(range(224, 232))
        vP4, vW1 = 234, 235
        sEXs, sEXd, sFE, sOo = sNM2
        L = vLANE
        NH, NS, LEAD = 11, 16, o.lead4
        sR4 = sWR
        c = []
        A = c.append
        sb.vm = sb.vm[-24:]
        A(I("L_p4:"))
        c += self.holdmark("att")
        A(I("s_waitcnt lgkmcnt(0)"))
        A(I("s_barrier"))
        c += self.stamp(232)
        t = WR
        Wd, Zd = {}, {}

        def wload(n):
            ws = S_WD if n < NH else S_WO
            d = [I(f"buffer_load_dwordx4 v{vWo4[e]}, {srd(ws)}, s{sWo} offen offset:{e*1024} {o.wflg} lds") for e in range(2)]
            Wd[n % NS] = d
            pre = [I(f"s_lshl_b32 s{sWo}, s{sR4}, 17")] if n == NH else []
            post = [I(f"s_add_u32 s{sWo}, s{sWo}, 32768")]
            if o.rot4 and n >= NH:
                post.append(I(f"s_and_b32 s{sWo}, s{sWo}, 0xfffff"))
            return pre + [I(f"s_add_u32 m0, s{sW2K}, {(n % NS)*8192}"), d[0], d[1]] + post

        def zload(n):
            zs, so = (S_ZH, sZo) if n < NH else (S_ZC, sSOFF)
            d = [I(f"buffer_load_dwordx4 {vr(ZR + (((n + 8) % NS)*2 + tb)*4)}, v{vZ4[tb] if o.own else vL16[0]}, "
                   f"{srd(zs)}, s{so} offen offset:{0 if o.own else tb*1024} {o.ldflag}") for tb in range(2)]
            batch(d)
            pre = [I(f"s_lshl_b32 s{so}, s{sR4}, 14")] if n == NH else []
            post = [I(f"s_add_u32 s{so}, s{so}, 4096")]
            if o.rot4 and n >= NH:
                post.append(I(f"s_and_b32 s{so}, s{so}, 0x1ffff"))
            return pre + d + post

        NST = 43
        DEF0 = NST - o.defer if o.p4v == 3 else NST

        def wreg(n, wb, k=0, cnt=4):
            NO = 4 if o.own else 2
            if n >= DEF0 and wb < NO:
                return ar(32 + ((n - DEF0) * NO + wb) * 4 + k, cnt)
            if o.p4v == 3 and n & 1:
                return ar(4 * wb + k, cnt)
            return vr(WR + 4 * wb + k, cnt)

        def reads(n, wb):
            slot = (n % NS) * 8192
            return batch([I(f"ds_read_b64_tr_b16 {wreg(n, wb, 2*a, 2)}, v{vRd4[wb]} offset:{(slot & 0xffff) + a*4096}")
                          for a in range(2)])

        def winfix(n):
            a, b = ((n - 1) % NS) >> 3, (n % NS) >> 3
            if a == b:
                return lambda wb: []
            op = "v_add_u32" if b else "v_subrev_u32"
            return lambda wb: [I(f"{op} v{vRd4[wb]}, 0x10000, v{vRd4[wb]}")]

        for n in range(4):
            c += wload(n)
        A(I(f"s_sub_u32 s{sPOLL}, s{sPOLL}, {FL_H}"))
        A(I(f"s_lshl_b32 s{sT1}, s{sKQ}, 5"))
        A(I(f"s_add_u32 s{sPOLL}, s{sPOLL}, s{sT1}"))
        if o.wflag:
            A(I(f"s_lshl_b32 s{sPOLL}, s{sPOLL}, 2"))
        A(I(f"s_add_u32 s{sPOLL}, s{sPOLL}, {FL_CW if o.wflag else FL_C}"))
        g, i16 = t, t + 1
        A(I(f"v_lshrrev_b32 v{g}, 4, v{L}"))
        A(I(f"v_and_b32 v{i16}, 15, v{L}"))
        A(I(f"v_lshrrev_b32 v{t+2}, 2, v{i16}"))
        A(I(f"v_lshl_add_u32 v{t+2}, v{g}, 2, v{t+2}"))
        A(I(f"v_and_b32 v{t+3}, 3, v{i16}"))
        A(I(f"v_lshlrev_b32 v{t+3}, 3, v{t+3}"))
        A(I(f"v_lshl_add_u32 v{t+3}, v{t+2}, 8, v{t+3}"))
        A(I(f"v_and_b32 v{t+2}, 7, v{t+2}"))
        A(I(f"v_lshl_add_u32 v{t+3}, v{t+2}, 5, v{t+3}"))
        for i in range(8):
            if o.own:
                A(I(f"s_and_b32 s{sT1}, s{sKQ}, 2"))
                A(I(f"s_lshl_b32 s{sT1}, s{sT1}, 1"))
            else:
                A(I(f"s_lshl_b32 s{sT1}, s{sKQ}, 1"))
            A(I(f"s_add_u32 s{sT1}, s{sT1}, {i}"))
            A(I(f"s_and_b32 s{sT1}, s{sT1}, 7"))
            A(I(f"s_lshl_b32 s{sT1}, s{sT1}, 5"))
            A(I(f"v_xor_b32 v{vRd4[i]}, s{sT1}, v{t+3}"))
        A(I(f"s_mov_b32 s{sOo}, 16384"))
        A(I(f"s_lshl_b32 s{sT1}, s{sCB}, 1"))
        A(I(f"s_add_u32 s{sT1}, s{sT1}, s{sTB}"))
        A(I(f"s_and_b32 s{sR4}, s{sT1}, {o.rot4}"))
        A(I(f"s_mul_i32 s{sT1}, s{sTID}, {4*3*8192}"))
        A(I(f"s_lshl_b32 s{sT2}, s{sWAVE}, 11"))
        A(I(f"s_add_u32 s{sT1}, s{sT1}, s{sT2}"))
        A(I(f"s_add_u32 s{sEXs}, s{sT1}, {EX_OFF}"))
        A(I(f"s_mul_i32 s{sT2}, s{sKQ}, {3*8192}"))
        A(I(f"s_add_u32 s{sEXd}, s{sEXs}, s{sT2}"))
        A(I(f"s_lshl_b32 s{sFE}, s{sTID}, 2"))
        A(I(f"s_add_u32 s{sFE}, s{sFE}, s{sWAVE}"))
        A(I(f"s_lshl_b32 s{sFE}, s{sFE}, 4"))
        A(I(f"s_add_u32 s{sFE}, s{sFE}, {FL_E}"))
        A(I(f"v_mov_b32 v{t+2}, {OOB}"))
        A(I(f"v_cmp_eq_u32 vcc, 0, v{L}"))
        A(I(f"s_lshl_b32 s{sT1}, s{sKQ}, 2"))
        A(I(f"v_mov_b32 v{t+3}, s{sT1}"))
        A(I(f"v_cndmask_b32 v{vW1}, v{t+2}, v{t+3}, vcc"))
        first = [Wd[k] for k in range(4)]
        if o.wflag:
            assert o.sentinel
            A(I(f"s_sub_u32 s{sT1}, s{sFC}, {FL_C}"))
            A(I(f"s_lshl_b32 s{sT1}, s{sT1}, 2"))
            A(I(f"s_lshl_b32 s{sT2}, s{sWAVE}, 2"))
            A(I(f"s_add_u32 s{sT1}, s{sT1}, s{sT2}"))
            A(I(f"s_add_u32 s{sT1}, s{sT1}, {FL_CW}"))
            A(I(f"v_cndmask_b32 v{vW1}, v{t+2}, v{vC0}, vcc"))
            A(Need([self.ctx_stores]))
            A(I(f"buffer_store_dword v{vC1}, v{vW1}, {srd(S_WS)}, s{sT1} offen sc1"))
            A(Need(first, lg0=True))
            A(I("s_barrier"))
        else:
            A(Need(first + [self.ctx_stores], lg0=True))
            A(I("s_barrier"))
            A(self.flag_store(sFC))
        for n in range(4, LEAD):
            c += wload(n)
        xl = [I(f"buffer_load_dwordx2 {ar(XR + 4*tb + 2*i, 2)}, v{vXo}, {srd(S_X)}, {'s%d' % sOo if tb else '0'} offen "
                f"offset:{i*32}") for tb in range(2) for i in range(2)]
        if o.p4v == 3:
            return self.phase4_pairs(locals())
        rr = [reads(0, wb) for wb in range(8)]
        c += batch(sum(rr[:4], [])) + batch(sum(rr[4:], []))

        def steps(n0, n1, first, zplan, extra):
            mf, tasks = [], []
            wch, zch = [], []
            for n in range(n0, n1):
                b = 16 * (n - n0)
                for wb in range(8):
                    for tb in range(2):
                        d = vr(ACC4 + (wb * 2 + tb) * 4)
                        mf.append(mfma(d, vr(WR + 4 * wb), vr(ZR + (((n + 8) % NS) * 2 + tb) * 4),
                                       "0" if (first and n == n0) else d))
                bar = (n + 1) % 4 == 0
                fx = winfix(n + 1)
                ent = []
                rr = [reads(n + 1, wb) for wb in range(8)]
                batch(sum(rr[:4], []))
                batch(sum(rr[4:], []))
                for wb in range(8):
                    lo = b + 2 * wb + 2
                    if bar:
                        lo = max(lo, b + 5)
                    ent += [(x, lo, min(b + 16, lo + 3)) for x in fx(wb) + rr[wb]]
                tasks.append(Task(f"rd{n}", ent, prio=0, tight=True))
                if bar:
                    need = [Wd[k % NS] for k in range(n + 1, n + 5)]
                    tasks.append(Task(f"bar{n}", [Group([Need(need, lg0=True), I("s_barrier")])], b + 4, b + 4, prio=-1))
                seq = wload(n + LEAD)
                zs = [zload(zn) for zn in zplan(n)]
                if o.p4fix and len(zs) == 1:
                    pos = iter((b + 6, b + 10))
                    for x in seq:
                        g = next(pos) if x.kind == "dma" else None
                        wch.append((x, g, g) if g else (x, b + (5 if (bar and False) else 0), b + 15))
                    pos = iter((b + 2, b + 14))
                    for x in zs[0]:
                        g = next(pos) if x.kind == "vload" else None
                        zch.append((x, g, g) if g else (x, b, b + 16))
                else:
                    lo = b + (5 if bar else 0)
                    wch += [(x, lo, b + 15, 1 if (x.kind == "dma" and k and seq[k-1].kind == "salu") else 0)
                            for k, x in enumerate(seq)]
                    for z in zs:
                        zch += [(x, b + 1, b + 16) for x in z]
                for x in extra.get(n, []):
                    tasks.append(Task("ex", x, b + 1, b + 12, prio=2))
            tasks.append(Task("w", wch, prio=-1))
            if zch:
                tasks.append(Task("z", zch, prio=-1))
            if extra.get("tasks"):
                tasks += extra["tasks"]
            return schedule(mf, tasks, 8, self.reports, reserve=range(0, len(mf), 8), seed=o.seed, iters=40, vmw=o.vmw)

        CH = o.chk4
        pend = list(range(NH, NH + LEAD))

        def zplan_head(n):
            z = [n + 4] if n + 4 < NH else []
            if n > CH:
                k = -(-len(pend) // (NH - n))
                z += pend[:k]
                del pend[:k]
            return z
        vPC = vPO32 if o.wflag else vPO8
        ex = {0: [xl[:2]] if o.xat == 0 else [], 1: [xl[2:]] if o.xat == 0 else [], CH - 2: [[self.poll_load(vP4, S_WS, vPC, f"s{sPOLL}")]],
              CH: [self.poll_check(vP4, S_WS, vPC, f"s{sPOLL}", "1", split=True) + self.stamp(232)]}
        c += steps(0, NH, True, zplan_head, ex)
        assert not pend
        c += [I(f"s_mov_b32 s{sJ}, 0")]
        head = self.seg(c, sb, prev)

        def loop_body(sbx, pv):
            b = steps(NH, NH + NS, False, lambda n: [n + LEAD], {})
            b += [I(f"s_add_u32 s{sJ}, s{sJ}, 1"), I(f"s_cmp_lt_u32 s{sJ}, 2"), I("s_cbranch_scc1 L_p4loop")]
            return add_waits(b, sbx)
        b1 = loop_body(sb, head)
        b2 = loop_body(sb, b1)
        b1 = pad_hazards(merge_waits(b1, b2), head)
        check_hazards(b1, b1)
        b2 = b1
        print("phase 4 head / loop estimate", estimate(head), estimate(b1), file=sys.stderr)
        e = self.p4_exchange(locals(), [])
        tail = self.seg(e, sb, b2)
        return head + [I(".p2align 6"), I("L_p4loop:")] + b1 + tail

    def p4_exchange(self, L_, deferred):
        o = self.o
        ACC4, ZR, WR, vP4, vW1 = (L_[k] for k in ("ACC4", "ZR", "WR", "vP4", "vW1"))
        sEXs, sEXd, sFE, sOo = sNM2
        e = []
        A = e.append
        e += self.stamp(232)
        st = []
        for p in range(1, 4):
            A(I(f"s_{'xor_b32' if o.own else 'add_u32'} s{sT1}, s{sKQ}, {p}"))
            A(I(f"s_and_b32 s{sT1}, s{sT1}, 3"))
            A(I(f"s_mul_i32 s{sT1}, s{sT1}, {3*8192}"))
            A(I(f"s_add_u32 s{sT1}, s{sT1}, s{sEXs}"))
            A(I(f"s_add_u32 s{sT1}, s{sT1}, {(p-1)*8192}"))
            for tb in range(2):
                if o.own:
                    w0 = 4 * (p >> 1) + 2 * tb
                    t0, t1 = ACC4 + (w0 * 2 + (p & 1)) * 4, ACC4 + ((w0 + 1) * 2 + (p & 1)) * 4
                else:
                    t0, t1 = ACC4 + ((2 * p) * 2 + tb) * 4, ACC4 + ((2 * p + 1) * 2 + tb) * 4
                d = ZR + 24 + ((p - 1) * 2 + tb) * 4
                e += self.pk_frag(d, t0, t1)
                x = I(f"buffer_store_dwordx4 {vr(d)}, v{vL16[0]}, {srd(S_WS)}, s{sT1} offen offset:{tb*1024} {o.stflag}")
                A(x)
                st.append(x)
        e += deferred
        if o.xat == 1:
            e += L_["xl"]
        tile = (lambda f, i: ACC4 + (2 * f + i) * 8) if o.own else (lambda tb, i: ACC4 + (i * 2 + tb) * 4)
        for tb in range(2):
            for i in range(2):
                a = tile(tb, i)
                x = XR + 4 * tb + 2 * i
                u = WR
                e += [I(f"v_accvgpr_read_b32 v{u+4}, a{x}"), I(f"v_accvgpr_read_b32 v{u+5}, a{x+1}"),
                      I(f"v_lshlrev_b32 v{u}, 16, v{u+4}"), I(f"v_and_b32 v{u+1}, 0xffff0000, v{u+4}"),
                      I(f"v_lshlrev_b32 v{u+2}, 16, v{u+5}"), I(f"v_and_b32 v{u+3}, 0xffff0000, v{u+5}")]
                e += [I(f"v_pk_add_f32 {vr(a+r,2)}, {vr(a+r,2)}, {vr(u+r,2)}") for r in (0, 2)]
        R = ZR + 48
        sX = [sZo, sWo, sTB]
        exl = []
        for p in range(3):
            A(I(f"s_add_u32 s{sX[p]}, s{sEXd}, {p*8192}"))
            exl += [I(f"buffer_load_dwordx4 {vr(R + (p*2+tb)*4)}, v{vL16[0]}, {srd(S_WS)}, s{sX[p]} offen "
                      f"offset:{tb*1024} {o.ldflag}") for tb in range(2)]
        if not o.sentinel:
            A(Need(st))
            A(I(f"buffer_store_dword v{vC1}, v{vW1}, {srd(S_WS)}, s{sFE} offen sc1"))
            A(I(f"v_and_b32 v{vW1}, 12, v{vPO8}"))
            A(self.poll_load(vP4, S_WS, vW1, f"s{sFE}"))
            A(self.poll_check(vP4, S_WS, vW1, f"s{sFE}", "1"))
            e += self.stamp(232)
            e += exl
        else:
            chk = [I(f"v_max3_u32 v{vP4}, v{R}, v{R+1}, v{R+2}")]
            chk += [I(f"v_max3_u32 v{vP4}, v{vP4}, v{R+k}, v{R+k+1}") for k in range(3, 23, 2)]
            chk += [I(f"v_max_u32 v{vP4}, v{vP4}, v{R+23}"), I(f"v_cmp_eq_u32 vcc, -1, v{vP4}")]
            slow, back = self.lab("exs"), self.lab("exb")
            tm = o.timeit == "spin"
            self.cold.append(f"{slow}:\n" + ("    s_memtime s[0:1]\n" if tm else "") +
                             f"    s_mov_b32 s{sSPIN}, {o.spin}\n{slow}_l:\n" +
                             render([I(x.text) for x in exl] + [I("s_waitcnt vmcnt(0)")] + [I(x.text) for x in chk]) +
                             f"    s_nop 1\n    s_cbranch_vccz {slow}_x\n    s_sub_u32 s{sSPIN}, s{sSPIN}, 1\n"
                             f"    s_cmp_lg_u32 s{sSPIN}, 0\n    s_cbranch_scc1 {slow}_l\n{slow}_x:\n" +
                             (f"    s_memtime s[{sM0}:{sM0+1}]\n    s_waitcnt lgkmcnt(0)\n    s_sub_u32 s0, s{sM0}, s0\n"
                              f"    s_add_u32 s{sACC}, s{sACC}, s0\n" if tm else "") + f"    s_branch {back}\n")
            if o.sentinel == 2:
                A(Need(st))
            e += exl + chk + [I(f"s_cbranch_vccnz {slow}"), I(f"{back}:")]
            e += self.stamp(232)
        for p in range(3):
            for tb in range(2):
                for k in range(4):
                    a = tile(tb, k >> 1) + (k & 1) * 2
                    x = R + (p * 2 + tb) * 4 + k
                    u = WR + 2 * (k & 1)
                    e += [I(f"v_lshlrev_b32 v{u}, 16, v{x}"), I(f"v_and_b32 v{u+1}, 0xffff0000, v{x}"),
                          I(f"v_pk_add_f32 {vr(a,2)}, {vr(a,2)}, {vr(u,2)}")]
        for tb in range(2):
            for i in range(2):
                a = tile(tb, i)
                d = WR + 4 + 2 * (tb * 2 + i)
                so, off = ("0", (2 * tb + i) * 32) if o.own else ('s%d' % sOo if tb else '0', i * 32)
                e += [I(f"v_cvt_pk_bf16_f32 v{d}, v{a}, v{a+1}"), I(f"v_cvt_pk_bf16_f32 v{d+1}, v{a+2}, v{a+3}"),
                      I(f"buffer_store_dwordx2 {vr(d,2)}, v{vXo}, {srd(S_OUT)}, {so} offen offset:{off} {o.outflag}")]
        e += self.stamp(232)
        return e

    def phase4_pairs(self, L_):
        o = self.o
        (c, sb, prev, ACC4, ZR, NH, NS, LEAD, NST, DEF0, Wd, wload, zload, reads, winfix, wreg, vP4) = (
            L_[k] for k in ("c", "sb", "prev", "ACC4", "ZR", "NH", "NS", "LEAD", "NST", "DEF0", "Wd", "wload",
                            "zload", "reads", "winfix", "wreg", "vP4"))
        zreg = lambda n, tb: vr(ZR + (((n + 8) % NS) * 2 + tb) * 4)
        NP = (NST + 1) // 2
        st = lambda p: [n for n in (2 * p, 2 * p + 1) if n < NST]

        def pair_reads(p):
            rr = [sum((reads(n, wb) for n in st(p)), []) for wb in range(8)]
            batch(sum(rr[:4], []))
            batch(sum(rr[4:], []))
            return rr
        c += sum(pair_reads(0), [])
        mf, start, wbend = [], [], []
        started = set()
        deferred = []
        for p in range(NP):
            start.append(len(mf))
            ends = {}
            for wb in range(8):
                for tb in range(2):
                    d = vr(ACC4 + (wb * 2 + tb) * 4)
                    for n in st(p):
                        m = mfma(d, wreg(n, wb), zreg(n, tb), d if (wb, tb) in started else "0")
                        started.add((wb, tb))
                        mine = (wb < 4 and tb == 0) if o.own else wb < 2
                        (deferred if (n >= DEF0 and mine) else mf).append(m)
                ends[wb] = len(mf)
            wbend.append(ends)
        start.append(len(mf))
        tasks, wch, zch, res = [], [], [], []
        CH, LZ = o.chkp, o.leadz
        pend = list(range(NH, 2 * (CH + 3) + LZ))
        vPC = vPO32 if o.wflag else vPO8
        for p in range(NP):
            b, e = start[p], start[p + 1]
            res += [b, wbend[p][3]]
            bar = p % 2 == 1 and p + 1 < NP
            if p + 1 < NP:
                rr = pair_reads(p + 1)
                fx = winfix(2 * p + 2)
                ent = []
                for wb in range(8):
                    lo = max(wbend[p][wb], b + (5 if bar else 1))
                    ent += [(x, lo, min(e, lo + 5)) for x in fx(wb) + rr[wb]]
                tasks.append(Task(f"rd{p}", ent, prio=0, tight=True))
            if bar:
                need = [Wd[k % NS] for k in range(2 * p + 2, min(2 * p + 6, NST))]
                tasks.append(Task(f"bar{p}", [Group([Need(need, lg0=True), I("s_barrier")])], b + 4, b + 4, prio=-1))
            lo = b + (5 if bar else 0)
            for n in (2 * p + LEAD, 2 * p + LEAD + 1):
                if n < NST:
                    seq = wload(n)
                    wch += [(x, lo, e - 1, 1 if (x.kind == "dma" and k and seq[k-1].kind == "salu") else 0)
                            for k, x in enumerate(seq)]
            z = [n for n in (2 * p + 4, 2 * p + 5) if n < NH]
            if CH < p < CH + 3:
                k = -(-len(pend) // (CH + 3 - p))
                z += pend[:k]
                del pend[:k]
            elif p >= CH + 3:
                z += [n for n in (2 * p + LZ, 2 * p + LZ + 1) if n < NST]
            for n in z:
                zch += [(x, b + 1, e) for x in zload(n)]
            if p == CH - 1:
                tasks.append(Task("poll", [self.poll_load(vP4, S_WS, vPC, f"s{sPOLL}")], b + 8, b + 20, prio=2))
            if p == CH:
                tasks.append(Task("chk", self.poll_check(vP4, S_WS, vPC, f"s{sPOLL}", "1", split=True) + self.stamp(232),
                                  e - 12, e - 1, prio=2))
        assert not pend
        tasks += [Task("w", wch, prio=-1), Task("z", zch, prio=-1)]
        c += schedule(mf, tasks, 8, self.reports, reserve=res, seed=o.seed, iters=12, vmw=o.vmw)
        c += self.p4_exchange(L_, deferred)
        out = self.seg(c, sb, prev)
        print("phase 4 estimate", estimate(out), file=sys.stderr)
        return out

    def build(self):
        o = self.o
        sb = Scoreboard()
        p12 = self.phase12()
        if o.stop == "p2":
            for q in range(4):
                p12 += self.epi_Q(1, q)
            p12 += [I(f"s_lshl_b32 s{sT1}, s{sB}, 2"), I(f"s_add_u32 s{sT1}, s{sT1}, s{sWAVE}"),
                    I(f"s_lshl_b32 s{sT1}, s{sT1}, 14"), I(f"s_add_u32 s{sT1}, s{sT1}, {ZC_OFF}")]
            for q in range(4):
                for ds in range(4):
                    p12.append(I(f"buffer_store_dwordx4 {ar(gQ(q, ds))}, v{vL16[q]}, {srd(S_WS)}, s{sT1} offen "
                                 f"offset:{ds*1024}"))
        code = add_waits(p12, sb)
        if o.timeit.startswith("vmw"):
            nb, k = [], 0
            for x in code:
                if x.kind == "wait" and "vmcnt" in x.text and k < 48:
                    nb += [I("s_memtime s[0:1]"), I("s_waitcnt lgkmcnt(0)"), x, I(f"s_memtime s[{sM0}:{sM0+1}]"),
                           I("s_waitcnt lgkmcnt(0)"), I(f"s_sub_u32 s0, s{sM0}, s0"), I("s_mov_b64 exec, 1"),
                           I(f"v_mov_b32 v{vPOLL2}, s0"), I(f"s_add_u32 s0, s{sST}, {4*k}"),
                           I(f"ds_write_b32 v{vC0}, v{vPOLL2} offset:{60*1024+4*k}") if False else
                           I(f"v_writelane_b32 v{vPOLL2+1}, s0, 0") if False else I("s_nop 0"),
                           I("s_mov_b64 exec, -1"), I(f"v_readlane_b32 s1, v{vPOLL2}, 0"), I("s_nop 3"),
                           I(f"v_writelane_b32 v{vPOLL2+1}, s1, {k}")]
                    print("vmwait", k, x.text, "at mfma", sum(1 for y in nb if y.kind == "mfma"), file=sys.stderr)
                    k += 1
                else:
                    nb.append(x)
            nb += [I(f"v_lshlrev_b32 v{vPOLL2}, 2, v{vLANE}"), I(f"s_add_u32 s0, s{sST}, {1<<18}"),
                   I(f"buffer_store_dword v{vPOLL2+1}, v{vPOLL2}, {srd(S_WS)}, s0 offen")]
            code = nb
        code = pad_hazards(code)
        print("phase 1/2 estimate", estimate(code), file=sys.stderr)
        if o.stop not in ("p1a", "p2"):
            a, sb3 = self.attention(sb, code)
            code += a
            if o.stop != "p3":
                code += self.phase4(sb3, code)
        if o.hold:
            code += [I("L_hold:"), I("s_memrealtime s[2:3]"), I("s_waitcnt lgkmcnt(0)"),
                     I(f"s_sub_u32 s2, s2, s{sACC}"), I("s_cmp_lt_i32 s2, 0"), I("s_cbranch_scc1 L_hold")]
        if o.stop or o.stamps:
            code.append(I("s_waitcnt vmcnt(0) lgkmcnt(0)"))
        code += [I("L_exit:"), I("s_endpgm")]
        self.code = code
        labels = {x.text for x in code if x.kind == "label"}
        import re
        cold = [c for c in self.cold if re.findall(r"s_branch (\S+)", c)[-1] + ":" in labels]
        txt = HEADER + render(code) + "".join(cold) + FOOTER
        return txt


GK0 = -2.0 * math.sqrt(2.0 / math.pi) * math.log2(math.e)
GK1 = GK0 * 0.044715
QSCALE = math.log2(math.e) / math.sqrt(128.0)
BIAS = 8.0
sQS = sGBD + 0
sQS = 3

HEADER = f"""; out = x + Attn(LN(x), c_kv) + GeGLU_FFN(LN(x)): one persistent launch, 256 workgroups (one per CU) x 4 waves.
; Hand-designed kernel; the instruction stream is laid out by the author's own list-scheduler script.
;
; Workgroup b: head h = 4*(b&7) + ((b>>3)&3), w = b>>5.  All matrix products use v_mfma_f32_16x16x32_bf16.
;     (out-of-line paths L_fix_*).  Row sums come from a ones-row MFMA on the same bf16 probabilities.
;  4. out tile 128 x 128, K = [H | ctx] split over four workgroups, partial sums exchanged through d_ws.
; Hand-offs: sc1 stores, vmcnt, then an sc1 flag word; consumers poll (bounded) and load with sc1, so any
; @launch grid=(256,1,1) block=(256,1,1) lds=163840
.amdgcn_target "amdgcn-amd-amdhsa--gfx950"
.text
.globl {KNAME}
.p2align 8
.type {KNAME},@function
{KNAME}:
"""
FOOTER = f"""    s_endpgm
.section .rodata,"a"
.p2align 6
.amdhsa_kernel {KNAME}
  .amdhsa_next_free_vgpr 512
  .amdhsa_next_free_sgpr 102
  .amdhsa_accum_offset 256
  .amdhsa_group_segment_fixed_size 0
  .amdhsa_kernarg_size 104
  .amdhsa_user_sgpr_count 2
  .amdhsa_user_sgpr_kernarg_segment_ptr 1
  .amdhsa_system_sgpr_workgroup_id_x 1
  .amdhsa_float_denorm_mode_32 3
.end_amdhsa_kernel
"""


def main():
    o = Opt()
    out = "k.s"
    for a in sys.argv[1:]:
        if "=" in a:
            k, v = a.split("=")
            if k == "out":
                out = v
            else:
                cur = getattr(o, k)
                setattr(o, k, v if (cur is None or isinstance(cur, str)) else type(cur)(int(v)))
    g = Gen(o)
    txt = g.build()
    open(out, "w").write(txt)
    for r in g.reports:
        print("sched overflow/total/gaps:", r, file=sys.stderr)


if __name__ == "__main__":
    main()
```
